```python
import torch

def _softmax(x, axis=-1):
    return torch.softmax(x, dim=axis)
def _gelu(x):
    return torch.nn.functional.gelu(x, approximate="tanh")
def _silu(x):
    return torch.nn.functional.silu(x)
def _sigmoid(x):
    return torch.sigmoid(x)
def _layernorm(x, axis=-1, eps=1e-5):
    m = x.mean(dim=axis, keepdim=True)
    v = x.var(dim=axis, keepdim=True, unbiased=False)
    return (x - m) / torch.sqrt(v + eps)
def _scatter_add(tgt, idx, src, axis=0):
    return tgt.clone().index_add_(axis, idx, src)
def _segment_sum(src, seg, n):
    out = torch.zeros((n,) + src.shape[1:], dtype=src.dtype)
    return out.index_add_(0, seg, src)
def _pad(x, pw):
    flat = tuple(v for pair in reversed(pw) for v in pair)
    return torch.nn.functional.pad(x, flat)

kernel_name = 'sequential_preLN__sliding_block__dense_activation_relu__prompt'

def setup_inputs():

    _w = (lambda a: (lambda t: t.to(torch.bfloat16) if t.is_floating_point() else t)(torch.as_tensor(a)))
    def _A_setup():
        B, S, D = 1, 2048, 448
        return {
            "x": _w((lambda *s: torch.randn(*s, dtype=torch.bfloat16) * 0.05)(B, S, D)),
            "wqkv": _w((lambda *s: torch.randn(*s, dtype=torch.bfloat16) * 0.05)(D, 3 * D)),
            "wo": _w((lambda *s: torch.randn(*s, dtype=torch.bfloat16) * 0.05)(D, D)),
        }
    _A_in = _A_setup()

    def _B_setup():
        B, S, D, Dff = 1, 2048, 448, 1792
        return {
            "x": _w((lambda *s: torch.randn(*s, dtype=torch.bfloat16) * 0.05)(B, S, D)),
            "w1": _w((lambda *s: torch.randn(*s, dtype=torch.bfloat16) * 0.05)(D, Dff)),
            "w2": _w((lambda *s: torch.randn(*s, dtype=torch.bfloat16) * 0.05)(Dff, D)),
        }
    _B_in = _B_setup()

    return {
        "A_x": _A_in["x"],
        "A_wqkv": _A_in["wqkv"],
        "A_wo": _A_in["wo"],
        "B_x": _B_in["x"],
        "B_w1": _B_in["w1"],
        "B_w2": _B_in["w2"],
    }

def reference(A_x, A_wqkv, A_wo, B_x, B_w1, B_w2):
    def _A_ref(x, wqkv, wo):
        B, S, D = x.shape
        H = 16; Dh = D // H; W = 256
        qkv = (lambda x, *d: x.permute(*d))((x @ wqkv).reshape(B, S, 3, H, Dh), 2, 0, 3, 1, 4)
        q, k, v = qkv[0], qkv[1], qkv[2]
        scores = torch.einsum("bhqd,bhkd->bhqk", q, k) * (Dh ** -0.5)
        idx = torch.arange(S)
        mask = (idx[:, None] - idx[None, :] >= 0) & (idx[:, None] - idx[None, :] < W)
        scores = torch.where(mask[None, None], scores, -1e9)
        p = _softmax(scores, axis=-1)
        o = torch.einsum("bhqk,bhkd->bhqd", p, v)
        return (lambda x, *d: x.permute(*d))(o, 0, 2, 1, 3).reshape(B, S, D) @ wo

    def _B_ref(x, w1, w2):
        h = torch.einsum("bsd,df->bsf", x, w1)
        zero = torch.zeros_like(h)
        h = torch.maximum(h, zero)
        return torch.einsum("bsf,fd->bsd", h, w2)

    x = A_x
    h = x + _A_ref(_layernorm(x, axis=-1), A_wqkv, A_wo)
    h2 = h + _B_ref(_layernorm(h, axis=-1), B_w1, B_w2)
    return h2
```

```python
import re

TRANS = ("v_exp_f32", "v_log_f32", "v_rcp_f32", "v_rsq_f32", "v_sqrt_f32", "v_sin_f32", "v_cos_f32")


def _regs(tok):
    tok = tok.strip()
    neg = tok.lstrip("-")
    m = re.fullmatch(r"abs\((.*)\)", neg)
    if m:
        neg = m.group(1)
    m = re.fullmatch(r"([vs])(\d+)", neg)
    if m:
        return m.group(1), {int(m.group(2))}
    m = re.fullmatch(r"([vs])\[(\d+):(\d+)\]", neg)
    if m:
        return m.group(1), set(range(int(m.group(2)), int(m.group(3)) + 1))
    if neg == "vcc":
        return "s", {106, 107}
    if neg == "exec":
        return "s", {126, 127}
    if neg == "m0":
        return "s", {124}
    return None, set()


class Ins:
    __slots__ = ("text", "mn", "kind", "vw", "vr", "sw", "sr", "passes", "srcA", "srcB", "srcC", "ws", "wide_store", "lds_dma")

    def __init__(self, text):
        self.text = text
        body = text.split(";")[0].strip()
        parts = body.split(None, 1)
        self.mn = mn = parts[0]
        rest = parts[1] if len(parts) > 1 else ""
        ops = []
        depth = 0
        cur = ""
        for ch in rest:
            if ch in "[(":
                depth += 1
            if ch in "])":
                depth -= 1
            if ch == "," and depth == 0:
                ops.append(cur.strip())
                cur = ""
            else:
                cur += ch
        if cur.strip():
            ops.append(cur.strip())
        mods = []
        if ops:
            toks = ops[-1].split()
            ops[-1] = toks[0]
            mods = toks[1:]
        self.vw, self.vr, self.sw, self.sr = set(), set(), set(), set()
        self.passes = 0
        self.srcA = self.srcB = self.srcC = set()
        self.ws = 1
        self.wide_store = False
        self.lds_dma = False

        def rd(tok):
            k, r = _regs(tok)
            if k == "v":
                self.vr |= r
            elif k == "s":
                self.sr |= r

        def wr(tok):
            k, r = _regs(tok)
            if k == "v":
                self.vw |= r
            elif k == "s":
                self.sw |= r

        if mn.startswith("v_mfma"):
            self.kind = "mfma"
            self.passes = 8 if "32x32x16" in mn else 4
            wr(ops[0])
            self.srcA = _regs(ops[1])[1]
            self.srcB = _regs(ops[2])[1]
            self.srcC = _regs(ops[3])[1] if _regs(ops[3])[0] == "v" else set()
            for o in ops[1:]:
                rd(o)
        elif mn.startswith("v_"):
            self.kind = "valu"
            if mn.startswith("v_permlane") and "swap" in mn:
                for o in ops[:2]:
                    wr(o)
                    rd(o)
            elif mn.startswith("v_cmp"):
                wr(ops[0])
                for o in ops[1:]:
                    rd(o)
            elif mn.startswith("v_add_co") or mn.startswith("v_addc_co") or mn.startswith("v_sub_co"):
                wr(ops[0])
                wr(ops[1])
                for o in ops[2:]:
                    rd(o)
            else:
                wr(ops[0])
                for o in ops[1:]:
                    rd(o)
                if mn.startswith("v_fmac") or mn.startswith("v_dot2c") or mn.startswith("v_pk_fmac"):
                    rd(ops[0])
        elif mn.startswith("ds_"):
            self.kind = "ds"
            if mn.startswith("ds_read") or mn.startswith("ds_bpermute") or mn.startswith("ds_swizzle"):
                wr(ops[0])
                for o in ops[1:]:
                    rd(o)
            else:
                for o in ops:
                    rd(o)
        elif mn.startswith("buffer_") or mn.startswith("global_"):
            self.kind = "vmem"
            if "load" in mn:
                if "lds" in mods:
                    self.lds_dma = True
                    for o in ops:
                        rd(o)
                    self.sr |= {124}
                else:
                    wr(ops[0])
                    for o in ops[1:]:
                        rd(o)
            else:
                for o in ops:
                    rd(o)
                if "x4" in mn or "x3" in mn:
                    self.wide_store = True
                    self.srcA = _regs(ops[0] if mn.startswith("buffer_") else ops[1])[1]
        elif mn == "s_nop":
            self.kind = "nop"
            self.ws = int(ops[0], 0) + 1
        elif mn.startswith("s_cbranch") or mn == "s_branch" or mn == "s_endpgm" or mn == "s_setpc_b64":
            self.kind = "branch"
        elif mn.startswith("s_"):
            self.kind = "salu"
            if mn.startswith("s_cmp") or mn in ("s_waitcnt", "s_barrier", "s_sleep", "s_setprio"):
                for o in ops:
                    rd(o)
            else:
                if ops:
                    wr(ops[0])
                for o in ops[1:]:
                    rd(o)
        else:
            raise ValueError("unknown instruction: " + text)


def required(p, c):
    need = 0
    if p.kind == "valu":
        isdot = p.mn.startswith("v_dot")
        if c.kind == "mfma" and (p.vw & c.vr):
            need = max(need, 3 if isdot else 2)
        if c.kind == "valu":
            if c.mn.startswith("v_permlane") and (p.vw & c.vr):
                need = max(need, 2)
            if (c.mn.startswith("v_readfirstlane") or c.mn.startswith("v_readlane")) and (p.vw & c.vr):
                need = max(need, 1)
            if p.mn in TRANS and (p.vw & (c.vr | c.vw)) and c.mn not in TRANS:
                need = max(need, 1)
            if p.mn in TRANS and (p.vw & c.vr):
                need = max(need, 1)
            if p.sw & c.sr:
                need = max(need, 4 if c.mn.startswith("v_readlane") or c.mn.startswith("v_writelane") else 2)
            if isdot and (p.vw & (c.vr | c.vw)):
                if c.mn == p.mn:
                    if not (p.vw == c.vw):
                        need = max(need, 3)
                else:
                    need = max(need, 3)
        if isdot and c.kind in ("ds", "vmem") and (p.vw & c.vr):
            need = max(need, 3)
        if c.kind == "vmem" and (p.sw & c.sr):
            need = max(need, 5)
        if c.kind in ("salu", "branch") and (p.sw & c.sr):
            need = max(need, 2)
        if c.kind == "branch" and ({106, 107} & p.sw) and "vcc" in c.mn:
            need = max(need, 5)
    if p.kind == "mfma":
        big = p.passes == 8
        if c.kind == "mfma":
            if p.vw & (c.srcA | c.srcB):
                need = max(need, 12 if big else 8)
            if p.vw & c.srcC:
                if not (p.vw == c.srcC and p.passes == c.passes):
                    need = max(need, 10 if big else 6)
            elif p.vw & c.vw:
                need = max(need, 10 if big else 6)
        elif c.kind in ("valu", "ds", "vmem"):
            if p.vw & (c.vr | c.vw):
                need = max(need, 12 if big else 8)
            if c.kind == "valu" and (p.srcC & c.vw):
                need = max(need, 7 if big else 3)
    if p.kind == "vmem" and p.wide_store:
        if p.srcA & c.vw:
            need = max(need, 2 if c.kind == "valu" else 1)
    if p.kind == "salu" and (124 in p.sw) and c.kind == "vmem" and c.lds_dma:
        need = max(need, 1)
    return need


class Asm:
    def __init__(self):
        self.lines = []
        self.hist = []
        self.nlabel = 0
        self.count = 0

    def raw(self, text):
        self.lines.append(text)

    def comment(self, text):
        self.lines.append("  ; " + text)

    def _pad(self, n):
        while n > 0:
            k = min(n, 8)
            t = "s_nop %d" % (k - 1)
            self.lines.append("  " + t)
            self.hist.append(Ins(t))
            n -= k

    def settle(self):
        dist = 0
        need = 0
        for p in reversed(self.hist[-24:]):
            worst = 0
            if p.kind == "mfma":
                worst = 12 if p.passes == 8 else 8
            elif p.kind == "valu":
                worst = 5 if p.sw else 3
            elif p.kind == "vmem" and p.wide_store:
                worst = 2
            elif p.kind == "salu" and 124 in p.sw:
                worst = 1
            need = max(need, worst - dist)
            dist += p.ws
        self._pad(need)

    def __call__(self, text):
        for t in text.strip().split("\n"):
            t = t.strip()
            if not t or t.startswith(";"):
                continue
            ins = Ins(t)
            if ins.kind == "branch" and ins.mn != "s_endpgm":
                self.settle()
            dist = 0
            need = 0
            for p in reversed(self.hist[-24:]):
                r = required(p, ins)
                need = max(need, r - dist)
                dist += p.ws
                if dist > 20:
                    break
            self._pad(need)
            self.lines.append("  " + t)
            self.hist.append(ins)
            self.count += 1

    def label(self, name):
        self.settle()
        self.lines.append(name + ":")

    def newlabel(self, stem="L"):
        self.nlabel += 1
        return "%s_%d" % (stem, self.nlabel)

    def text(self):
        return "\n".join(self.lines) + "\n"


G128 = [
    [0, 1, 2, 3, 12, 13, 14, 15] + list(range(20, 28)),
    list(range(4, 12)) + [16, 17, 18, 19, 28, 29, 30, 31],
]
G128 = G128 + [[l + 32 for l in g] for g in G128]


def lds_conflicts(addrs, kind):
    if kind == "b128":
        groups, nd, nb = G128, 4, 64
    elif kind in ("b64", "tr"):
        groups, nd, nb = [list(range(32)), list(range(32, 64))], 2, 64
    elif kind == "b32":
        groups, nd, nb = [list(range(32)), list(range(32, 64))], 1, 32
    else:
        raise ValueError(kind)
    extra = 0
    for g in groups:
        banks = {}
        for l in g:
            for d in range(nd):
                a = addrs[l] // 4 + d
                banks.setdefault(a % nb, set()).add(a)
        extra += max(len(s) for s in banks.values()) - 1
    return extra
```

```python
import sys, math, struct
from asmlib import Asm, lds_conflicts

KNAME = "sequential_preLN__sliding_block__dense_activation_relu__prompt_kernel"
OPT = dict(stamps=0, force_slow=0, pretouch=1)
for a_ in sys.argv[2:]:
    k_, v_ = a_.split("=")
    OPT[k_] = int(v_)


def f32(x):
    return "0x%08x" % struct.unpack("<I", struct.pack("<f", x))[0]


WS_KV = 0
WS_O = 4 << 20
WS_H = 6 << 20
WS_H1 = 8 << 20
WS_F1 = 15 << 20
WS_F2 = WS_F1 + 0x10000
WS_F3 = WS_F1 + 0x20000
WS_F4 = WS_F1 + 0x30000
WS_TS = 16 << 20
WS_SIZE = 32 << 20

SLOT = 28672
L_KV = 28672
L_Q = L_KV + 12 * 4096
L_WO = 86016
L_W1U = 144384
L_SCR5 = 144384
L_MISC = 160768
L_CS = L_MISC
L_ST = L_MISC + 384
L_EP = L_ST + 1024
L_CS1 = L_EP + 64
L_CS1P = 158720
LDS_BYTES = 163840
UNIT = 14336

X, WQKV, WO, W1, W2, OUT, DBG, WS = ["s[%d:%d]" % (4 + 4 * i, 7 + 4 * i) for i in range(8)]
sG, sJ, sWAVE, sR0, sXCC, sFAST = "s36", "s37", "s38", "s39", "s40", "s41"
sEP = "s[42:43]"
sEPL, sEPH = "s42", "s43"
sROT, sHW, sMH2, sNB, sKH, sMH = "s44", "s45", "s46", "s47", "s48", "s49"
sHI = "s[50:51]"
sL28 = "s[52:53]"
sQ3 = "s[54:55]"
sHW1K, sHW4K = "s56", "s57"
sCNT = "s58"
sT0, sT1, sT2, sT3, sT4, sT5 = "s60", "s61", "s62", "s63", "s64", "s65"
sFLAGLO = "s59"
sTS = "s[66:67]"
sTSOFF = "s68"

vTID, vL, vL31, vH, vR, vQ4, vL16 = "v0", "v1", "v2", "v3", "v4", "v5", "v6"
vTMP = "v7"
vXRES = 8
vFLG = 16
vT = 18


def v(i, n=1):
    return "v%d" % i if n == 1 else "v[%d:%d]" % (i, i + n - 1)


a = Asm()
nstamp = [0]


def stamp(idx):
    if not OPT["stamps"]:
        return
    a("s_memtime %s" % sTS)
    a("s_waitcnt lgkmcnt(0)")
    a("v_mov_b32 v30, s66")
    a("v_mov_b32 v31, s67")
    a("v_mov_b32 v29, 0")
    a("s_mov_b64 exec, 1")
    a("buffer_store_dwordx2 v[30:31], v29, %s, %s offen offset:%d" % (WS, sTSOFF, idx * 8))
    a("s_mov_b64 exec, -1")


def dma(voff, srd, soff, lds_s, lds_imm, inst=0, sc1=False):
    m = lds_imm - inst
    if lds_s is None:
        a("s_mov_b32 m0, %d" % m)
    else:
        a("s_add_u32 m0, %s, %d" % (lds_s, m))
    a("buffer_load_dwordx4 %s, %s, %s offen%s%s lds" % (voff, srd, soff, (" offset:%d" % inst) if inst else "", " sc1" if sc1 else ""))


def poll(vaddr, vd, name):
    lp, dn = a.newlabel("Lpoll_" + name), a.newlabel("Lpolld_" + name)
    a("s_mov_b32 %s, 0x20000" % sCNT)
    a.label(lp)
    a("buffer_load_dwordx2 %s, %s, %s, 0 offen sc1" % (v(vd, 2), vaddr, WS))
    a("s_waitcnt vmcnt(0)")
    a("v_and_b32 %s, -8, %s" % (v(vd), v(vd)))
    a("v_cmp_ne_u64 vcc, %s, %s" % (sEP, v(vd, 2)))
    a("s_cmp_eq_u64 vcc, 0")
    a("s_cbranch_scc1 %s" % dn)
    a("s_sub_u32 %s, %s, 1" % (sCNT, sCNT))
    a("s_cmp_lg_u32 %s, 0" % sCNT)
    a("s_cbranch_scc1 %s" % lp)
    a.label(dn)


def publish(stores, flag_vaddr, flag_soff, always_sc1=False):
    def emit(sc):
        for s_ in stores:
            a(s_.format(sc=sc))
        a("s_waitcnt vmcnt(0)")
        a("s_mov_b64 exec, 1")
        a("buffer_store_dwordx2 %s, %s, %s, %s offen%s" % (v(vFLG, 2), flag_vaddr, WS, flag_soff, sc))
        a("s_mov_b64 exec, -1")
    if always_sc1:
        emit(" sc1")
        return
    ls, le = a.newlabel("Lslow"), a.newlabel("Lpub")
    a("s_cmp_eq_u32 %s, 0" % sFAST)
    a("s_cbranch_scc1 %s" % ls)
    emit("")
    a("s_branch %s" % le)
    a.label(ls)
    emit(" sc1")
    a.label(le)


def bf16r(dst, src):
    a("v_cvt_pk_bf16_f32 %s, %s, %s" % (dst, src, src))
    a("v_and_b32 %s, 0xffff0000, %s" % (dst, dst))


def ln_finish(sx, sxx, negmean, rstd, t0):
    a("v_mul_f32 %s, %s, %s" % (sx, f32(1.0 / 448), sx))
    a("v_mul_f32 %s, %s, %s" % (sxx, f32(1.0 / 448), sxx))
    a("v_fma_f32 %s, -%s, %s, %s" % (sxx, sx, sx, sxx))
    a("v_max_f32 %s, 0, %s" % (sxx, sxx))
    bf16r(sxx, sxx)
    a("v_add_f32 %s, %s, %s" % (sxx, f32(1e-5), sxx))
    bf16r(sxx, sxx)
    a("v_sqrt_f32 %s, %s" % (sxx, sxx))
    bf16r(sxx, sxx)
    a("v_rcp_f32 %s, %s" % (rstd, sxx))
    bf16r(t0, sx)
    a("v_sub_f32 %s, 0, %s" % (negmean, t0))


def xhalf_sum(x, t):
    a("v_mov_b32 %s, %s" % (t, x))
    a("v_permlane32_swap_b32 %s, %s" % (x, t))
    a("v_add_f32 %s, %s, %s" % (x, x, t))


def xrow_sum(x, t):
    a("v_mov_b32 %s, %s" % (t, x))
    a("v_permlane16_swap_b32 %s, %s" % (x, t))
    a("v_add_f32 %s, %s, %s" % (x, x, t))


hdr = open("sequential_preLN__sliding_block__dense_activation_relu__prompt.s.ref").read().split("\n")
for ln in hdr:
    if ln.startswith("; @launch"):
        a.raw("; @launch grid=(256,1,1) block=(512,1,1) lds=%d" % LDS_BYTES)
        break
    a.raw(ln)
a.raw('.amdgcn_target "amdgcn-amd-amdhsa--gfx950"')
a.raw(".text")
a.raw(".globl %s" % KNAME)
a.raw(".p2align 8")
a.raw(".type %s,@function" % KNAME)
a.raw("%s:" % KNAME)
a.raw("Lstart:")

a("s_cmp_ge_u32 s2, 256")
a("s_cbranch_scc1 Lend")
a("s_load_dwordx16 s[72:87], s[0:1], 0")
a("s_load_dwordx2 s[88:89], s[0:1], 64")
a("s_getpc_b64 s[90:91]")
a.raw("Lpc:")
a("v_and_b32 %s, 63, v0" % vL)
a("v_lshrrev_b32 %s, 6, v0" % vTMP)
a("v_and_b32 %s, 31, v0" % vL31)
a("v_readfirstlane_b32 %s, %s" % (sWAVE, vTMP))
a("v_bfe_u32 %s, v0, 5, 1" % vH)
a("v_and_b32 %s, 15, v0" % vR)
a("v_bfe_u32 %s, v0, 4, 2" % vQ4)
a("v_lshlrev_b32 %s, 4, %s" % (vL16, vL))
a("s_and_b32 %s, s2, 7" % sT0)
a("s_lshr_b32 %s, s2, 3" % sT1)
a("s_lshr_b32 %s, %s, 4" % (sT2, sT1))
a("s_lshl_b32 %s, %s, 1" % (sG, sT0))
a("s_add_u32 %s, %s, %s" % (sG, sG, sT2))
a("s_and_b32 %s, %s, 15" % (sJ, sT1))
a("s_lshl_b32 %s, %s, 7" % (sR0, sG))
a("s_and_b32 %s, %s, 3" % (sHW, sWAVE))
a("s_lshl_b32 %s, %s, 10" % (sHW1K, sHW))
a("s_lshl_b32 %s, %s, 12" % (sHW4K, sHW))
a("s_lshr_b32 %s, %s, 1" % (sKH, sHW))
a("s_and_b32 %s, %s, 1" % (sMH, sHW))
a("s_cmp_ge_u32 %s, 7" % sJ)
a("s_cselect_b32 %s, 1, 0" % sMH2)
a("s_mul_i32 %s, %s, 7" % (sT3, sMH2))
a("s_sub_u32 %s, %s, %s" % (sNB, sJ, sT3))
a("s_min_u32 %s, %s, 6" % (sNB, sNB))
a("s_mul_i32 %s, %s, 3" % (sT3, sT2))
a("s_add_u32 %s, %s, %s" % (sROT, sJ, sT3))
for _ in range(2):
    a("s_sub_u32 %s, %s, 7" % (sT3, sROT))
    a("s_cmp_ge_u32 %s, 7" % sROT)
    a("s_cselect_b32 %s, %s, %s" % (sROT, sT3, sROT))
a("s_getreg_b32 %s, hwreg(HW_REG_XCC_ID)" % sXCC)
a("s_and_b32 %s, %s, 7" % (sXCC, sXCC))
a("s_mov_b32 s50, 0")
a("s_mov_b32 s51, -1")
a("s_mov_b32 s52, 0x10000000")
a("s_mov_b32 s53, 0x10000000")
a("s_mov_b32 s54, 0")
a("s_mov_b32 s55, 0xffff0000")
a("s_mov_b32 %s, 0" % sFAST)
a("s_mov_b32 %s, 0" % sEPL)
a("s_mov_b32 %s, 0" % sEPH)
if OPT["stamps"]:
    a("s_lshl_b32 %s, s2, 3" % sTSOFF)
    a("s_add_u32 %s, %s, %s" % (sTSOFF, sTSOFF, sWAVE))
    a("s_lshl_b32 %s, %s, 7" % (sTSOFF, sTSOFF))
    a("s_add_u32 %s, %s, %d" % (sTSOFF, sTSOFF, WS_TS))
a("s_waitcnt lgkmcnt(0)")
sizes = [1835008, 1204224, 401408, 1605632, 1605632, 1835008, 256, WS_SIZE]
srcs = [72, 74, 76, 80, 82, 84, 86, 88]
for i in range(8):
    b = 4 + 4 * i
    a("s_mov_b32 s%d, s%d" % (b, srcs[i]))
    a("s_mov_b32 s%d, s%d" % (b + 1, srcs[i] + 1))
    a("s_mov_b32 s%d, %d" % (b + 2, sizes[i]))
    a("s_mov_b32 s%d, 0x00020000" % (b + 3))
stamp(0)
a("s_cmp_ge_u32 %s, 4" % sWAVE)
a("s_cbranch_scc1 Lhelper")

a("s_or_b32 %s, s2, %s" % (sT0, sWAVE))
a("s_cmp_lg_u32 %s, 0" % sT0)
a("s_cbranch_scc1 Lnoep")
a("s_memrealtime s[92:93]")
a("s_waitcnt lgkmcnt(0)")
a("s_lshl_b32 %s, s92, 4" % sT1)
a("s_or_b32 %s, %s, 8" % (sT1, sT1))
a("s_mul_i32 %s, s92, 0x9e3779b1" % sT2)
a("s_add_u32 %s, %s, s93" % (sT2, sT2))
a("v_mov_b32 %s, %s" % (v(vT), sT1))
a("v_mov_b32 %s, %s" % (v(vT + 1), sT2))
a("v_mov_b32 %s, 0" % v(vT + 2))
a("s_mov_b64 exec, 1")
a("buffer_store_dwordx2 %s, %s, %s, 0 offen sc1" % (v(vT, 2), v(vT + 2), DBG))
a("s_mov_b64 exec, -1")
a.label("Lnoep")
a("s_lshr_b32 %s, s2, 3" % sT0)
a("s_lshl_b32 %s, %s, 2" % (sT0, sT0))
a("s_add_u32 %s, %s, %s" % (sT0, sT0, sWAVE))
a("s_and_b32 %s, %s, 15" % (sT0, sT0))
a("s_lshl_b32 %s, %s, 12" % (sT0, sT0))
a("v_lshlrev_b32 %s, 6, %s" % (v(vT), vL))
a("v_add_u32 %s, %s, %s" % (v(vT), sT0, v(vT)))
a("v_min_u32 %s, Lcode_end-Lpc-4, %s" % (v(vT), v(vT)))
a("v_mov_b32 %s, s91" % v(vT + 1))
a("v_add_co_u32 %s, vcc, s90, %s" % (v(vT), v(vT)))
a("v_addc_co_u32 %s, vcc, 0, %s, vcc" % (v(vT + 1), v(vT + 1)))
a("global_load_dword v26, %s, off" % v(vT, 2))
a("s_lshl_b32 %s, %s, 6" % (sT0, sMH2))
a("s_lshl_b32 %s, %s, 5" % (sT1, sMH))
a("s_add_u32 %s, %s, %s" % (sT0, sT0, sT1))
a("s_add_u32 %s, %s, %s" % (sT0, sT0, sR0))
a("s_mul_i32 %s, %s, 896" % (sT0, sT0))
a("s_lshl_b32 %s, %s, 7" % (sT1, sNB))
a("s_add_u32 %s, %s, %s" % (sT0, sT0, sT1))
a("s_lshl_b32 %s, %s, 6" % (sT1, sKH))
a("s_add_u32 s69, %s, %s" % (sT0, sT1))
a("s_movk_i32 %s, 896" % sT2)
a("v_mul_lo_u32 v25, %s, %s" % (vL31, sT2))
a("v_lshl_add_u32 v25, %s, 3, v25" % vH)
for jj in range(4):
    a("buffer_load_dwordx2 %s, v25, %s, s69 offen offset:%d" % (v(vXRES + 2 * jj, 2), X, 16 * jj))
a("v_mov_b32 v24, 0")
a("buffer_load_dwordx2 %s, v24, %s, 0 offen sc1" % (v(vFLG, 2), DBG))

accQ, accK, accV = 32, 48, 64
FB = 80
vSX, vSXX, vONE = "v144", "v145", "v146"
vXA = [148, 149, 150, 151]
vWA, vWA2 = "v152", "v153"
a("v_mov_b32 %s, 0" % vSX)
a("v_mov_b32 %s, 0" % vSXX)
a("v_mov_b32 %s, 0x3f803f80" % vONE)
a("v_bfe_u32 %s, %s, 1, 3" % (v(vT), vL31))
a("v_xor_b32 %s, %s, %s" % (v(vT), v(vT), vH))
a("v_lshlrev_b32 %s, 7, %s" % (v(vT + 1), vL31))
a("v_add_u32 %s, %s, %s" % (v(vT + 1), sHW4K, v(vT + 1)))
for s in range(4):
    a("v_xor_b32 %s, %d, %s" % (v(vT + 2), 2 * s, v(vT)))
    a("v_lshl_add_u32 %s, %s, 4, %s" % (v(vXA[s]), v(vT + 2), v(vT + 1)))
    assert lds_conflicts([(l & 31) * 128 + (((2 * s + (l >> 5)) ^ (((l & 31) >> 1) & 7)) * 16) for l in range(64)], "b128") == 0


def tr_base_64(dst, t0):
    a("v_lshrrev_b32 %s, 2, %s" % (t0, vR))
    a("v_lshl_add_u32 %s, %s, 3, %s" % (t0, vH, t0))
    a("v_lshlrev_b32 %s, 6, %s" % (dst, t0))
    a("v_bfe_u32 %s, %s, 4, 1" % (t0, vL))
    a("v_lshl_add_u32 %s, %s, 5, %s" % (dst, t0, dst))
    a("v_and_b32 %s, 3, %s" % (t0, vL))
    a("v_lshl_add_u32 %s, %s, 3, %s" % (dst, t0, dst))


tr_base_64(vWA, v(vT))
a("v_add_u32 %s, %d, %s" % (vWA2, 2 * SLOT, vWA))
assert lds_conflicts([(8 * (l >> 5) + ((l & 15) >> 2)) * 64 + ((l >> 4) & 1) * 32 + (l & 3) * 8 for l in range(64)], "tr") == 0


def p1_reads(c, s, with_x=True):
    sb = (c % 3) * SLOT
    fb = FB + 16 * s
    if with_x:
        a("ds_read_b128 %s, %s offset:%d" % (v(fb, 4), v(vXA[s]), sb))
    base, off = (vWA2, 0) if c % 3 == 2 else (vWA, sb)
    for p3 in range(3):
        for hh in range(2):
            a("ds_read_b64_tr_b16 %s, %s offset:%d" % (v(fb + 4 + 4 * p3 + 2 * hh, 2), base, off + 16384 + p3 * 4096 + s * 1024 + hh * 256))


def p1_mfma(c, s):
    fb = FB + 16 * s
    first = (c == 0 and s == 0)
    cq = "0" if first else v(accQ, 16)
    ck = "0" if first else v(accK, 16)
    cv = "0" if first else v(accV, 16)
    a("v_mfma_f32_32x32x16_bf16 %s, %s, %s, %s" % (v(accK, 16), v(fb + 8, 4), v(fb, 4), ck))
    for i in range(2):
        a("v_dot2c_f32_bf16 %s, %s, %s" % (vSX, v(fb + i), vONE))
        a("v_dot2c_f32_bf16 %s, %s, %s" % (vSXX, v(fb + i), v(fb + i)))
    a("v_mfma_f32_32x32x16_bf16 %s, %s, %s, %s" % (v(accV, 16), v(fb, 4), v(fb + 12, 4), cv))
    for i in range(2, 4):
        a("v_dot2c_f32_bf16 %s, %s, %s" % (vSX, v(fb + i), vONE))
        a("v_dot2c_f32_bf16 %s, %s, %s" % (vSXX, v(fb + i), v(fb + i)))
    a("v_mfma_f32_32x32x16_bf16 %s, %s, %s, %s" % (v(accQ, 16), v(fb + 4, 4), v(fb, 4), cq))


for c in range(7):
    a("s_barrier")
    p1_reads(c, 0)
    p1_reads(c, 1)
    a("s_waitcnt lgkmcnt(7)")
    p1_mfma(c, 0)
    p1_reads(c, 2)
    a("s_waitcnt lgkmcnt(7)")
    p1_mfma(c, 1)
    p1_reads(c, 3)
    a("s_waitcnt lgkmcnt(7)")
    p1_mfma(c, 2)
    a("s_waitcnt lgkmcnt(0)")
    p1_mfma(c, 3)
stamp(1)
vNM, vRS = "v154", "v155"
xhalf_sum(vSX, v(vT))
xhalf_sum(vSXX, v(vT))
ln_finish(vSX, vSXX, vNM, vRS, v(vT))
a("s_lshl_b32 %s, %s, 8" % (sT0, sHW))
a("s_add_u32 %s, %s, %d" % (sT0, sT0, L_ST))
a("v_lshl_add_u32 %s, %s, 2, %s" % (v(vT), vL31, sT0))
a("ds_write_b32 %s, %s" % (v(vT), vNM))
a("ds_write_b32 %s, %s offset:128" % (v(vT), vRS))
a("v_lshl_add_u32 %s, %s, 4, %s" % (v(vT + 1), vH, sT0))
SNM, SRS = 80, 96
for jj in range(4):
    a("ds_read_b128 %s, %s offset:%d" % (v(SNM + 4 * jj, 4), v(vT + 1), 32 * jj))
for jj in range(4):
    a("ds_read_b128 %s, %s offset:%d" % (v(SRS + 4 * jj, 4), v(vT + 1), 128 + 32 * jj))
lp, dn = "Lep_loop", "Lep_done"
a("s_mov_b32 %s, 0x20000" % sCNT)
a.label(lp)
a("s_waitcnt vmcnt(0)")
a("v_readfirstlane_b32 %s, %s" % (sEPL, v(vFLG)))
a("v_readfirstlane_b32 %s, %s" % (sEPH, v(vFLG + 1)))
a("s_cmp_lg_u32 %s, 0" % sEPL)
a("s_cbranch_scc1 %s" % dn)
a("buffer_load_dwordx2 %s, v24, %s, 0 offen sc1" % (v(vFLG, 2), DBG))
a("s_sub_u32 %s, %s, 1" % (sCNT, sCNT))
a("s_cmp_lg_u32 %s, 0" % sCNT)
a("s_cbranch_scc1 %s" % lp)
a.label(dn)
a("v_mov_b32 %s, %d" % (v(vT + 2), L_EP))
a("ds_write_b64 %s, %s" % (v(vT + 2), v(vFLG, 2)))
a("v_or_b32 %s, %s, %s" % (v(vFLG), sXCC, v(vFLG)))
a("s_waitcnt lgkmcnt(0)")
a("s_barrier")
CSQ, CSK = 112, 128
vCSV = "v147"
a("v_lshlrev_b32 %s, 4, %s" % (v(vT), vH))
a("v_add_u32 %s, %d, %s" % (v(vT), L_CS, v(vT)))
for jj in range(4):
    a("ds_read_b128 %s, %s offset:%d" % (v(CSK + 4 * jj, 4), v(vT), 128 + 32 * jj))
a("v_lshlrev_b32 %s, 2, %s" % (v(vT + 1), vL31))
a("v_add_u32 %s, %d, %s" % (v(vT + 1), L_CS, v(vT + 1)))
a("ds_read_b32 %s, %s offset:%d" % (vCSV, v(vT + 1), 256))
for jj in range(4):
    a("ds_read_b128 %s, %s offset:%d" % (v(CSQ + 4 * jj, 4), v(vT), 32 * jj))
vKo, vVo = "v156", "v157"
a("v_bfe_u32 %s, %s, 4, 1" % (v(vT + 2), vL31))
a("v_lshl_add_u32 %s, %s, 1, %s" % (v(vT + 2), v(vT + 2), vH))
a("v_lshlrev_b32 %s, 6, %s" % (v(vT + 3), vL31))
a("v_lshl_add_u32 %s, %s, 4, %s" % (vKo, v(vT + 2), v(vT + 3)))
a("v_bfe_u32 %s, %s, 3, 1" % (v(vT + 2), vL31))
a("v_lshl_add_u32 %s, %s, 1, %s" % (v(vT + 2), v(vT + 2), vH))
a("v_lshl_add_u32 %s, %s, 4, %s" % (vVo, v(vT + 2), v(vT + 3)))
vKo2, vVo2 = "v158", "v159"
a("v_xor_b32 %s, 32, %s" % (vKo2, vKo))
a("v_xor_b32 %s, 32, %s" % (vVo2, vVo))
a("s_lshl_b32 %s, %s, 4" % (sT0, sG))
a("s_add_u32 %s, %s, %s" % (sT0, sT0, sJ))
a("s_lshl_b32 %s, %s, 14" % (sT1, sT0))
a("s_add_u32 %s, %s, %s" % (sT1, sT1, sHW4K))
a("s_lshl_b32 %s, %s, 5" % (sT2, sT0))
a("s_lshl_b32 %s, %s, 3" % (sT3, sHW))
a("s_add_u32 %s, %s, %s" % (sT2, sT2, sT3))
a("s_add_u32 %s, %s, %d" % (sT2, sT2, WS_F1))
PK = 160
a("s_waitcnt lgkmcnt(5)")
for i in range(16):
    a("v_fma_f32 %s, %s, %s, %s" % (v(accK + i), v(CSK + i), vNM, v(accK + i)))
    a("v_mul_f32 %s, %s, %s" % (v(accK + i), v(accK + i), vRS))
for i in range(8):
    a("v_cvt_pk_bf16_f32 %s, %s, %s" % (v(PK + i), v(accK + 2 * i), v(accK + 2 * i + 1)))
a("buffer_store_dwordx4 %s, %s, %s, %s offen sc1" % (v(PK, 4), vKo, WS, sT1))
a("buffer_store_dwordx4 %s, %s, %s, %s offen sc1" % (v(PK + 4, 4), vKo2, WS, sT1))
a("s_waitcnt lgkmcnt(4)")
for i in range(16):
    a("v_fma_f32 %s, %s, %s, %s" % (v(accV + i), vCSV, v(SNM + i), v(accV + i)))
    a("v_mul_f32 %s, %s, %s" % (v(accV + i), v(accV + i), v(SRS + i)))
for i in range(8):
    a("v_cvt_pk_bf16_f32 %s, %s, %s" % (v(PK + 8 + i), v(accV + 2 * i), v(accV + 2 * i + 1)))
for i in range(8):
    a("v_cndmask_b32 %s, %s, %s, %s" % (v(PK + 8 + i), v(PK + 8 + i), vONE, sL28))
a("buffer_store_dwordx4 %s, %s, %s, %s offen offset:2048 sc1" % (v(PK + 8, 4), vVo, WS, sT1))
a("buffer_store_dwordx4 %s, %s, %s, %s offen offset:2048 sc1" % (v(PK + 12, 4), vVo2, WS, sT1))
a("v_add_u32 %s, %s, %s" % (v(vT), sHW4K, vKo))
a("v_add_u32 %s, %s, %s" % (v(vT + 1), sHW4K, vKo2))
a("v_add_u32 %s, %s, %s" % (v(vT + 2), sHW4K, vVo))
a("v_add_u32 %s, %s, %s" % (v(vT + 3), sHW4K, vVo2))
a("ds_write_b128 %s, %s offset:%d" % (v(vT), v(PK, 4), L_KV + 8 * 4096))
a("ds_write_b128 %s, %s offset:%d" % (v(vT + 1), v(PK + 4, 4), L_KV + 8 * 4096))
a("ds_write_b128 %s, %s offset:%d" % (v(vT + 2), v(PK + 8, 4), L_KV + 8 * 4096 + 2048))
a("ds_write_b128 %s, %s offset:%d" % (v(vT + 3), v(PK + 12, 4), L_KV + 8 * 4096 + 2048))
a("s_waitcnt lgkmcnt(4)")
for i in range(16):
    a("v_fma_f32 %s, %s, %s, %s" % (v(accQ + i), v(CSQ + i), vNM, v(accQ + i)))
    a("v_mul_f32 %s, %s, %s" % (v(accQ + i), v(accQ + i), vRS))
for i in range(8):
    a("v_cvt_pk_bf16_f32 %s, %s, %s" % (v(PK + 16 + i), v(accQ + 2 * i), v(accQ + 2 * i + 1)))
a("v_mov_b32 %s, 0" % v(vT + 4))
a("v_cndmask_b32 %s, %s, %s, %s" % (v(PK + 22), v(PK + 22), v(vT + 4), sHI))
a("v_cndmask_b32 %s, %s, %s, %s" % (v(PK + 23), v(PK + 23), v(vT + 4), sHI))
a("s_lshl_b32 %s, %s, 11" % (sT3, sHW))
a("s_add_u32 %s, %s, %d" % (sT3, sT3, L_Q))
a("v_add_u32 %s, %s, %s" % (v(vT), sT3, vVo))
a("v_add_u32 %s, %s, %s" % (v(vT + 1), sT3, vVo2))
a("ds_write_b128 %s, %s" % (v(vT), v(PK + 16, 4)))
a("ds_write_b128 %s, %s" % (v(vT + 1), v(PK + 20, 4)))
a("s_waitcnt vmcnt(0)")
a("s_mov_b64 exec, 1")
a("buffer_store_dwordx2 %s, v24, %s, %s offen sc1" % (v(vFLG, 2), WS, sT2))
a("s_mov_b64 exec, -1")
stamp(2)
a("s_add_u32 %s, %s, %s" % (sT0, sG, sKH))
a("s_cmp_lt_u32 %s, 2" % sT0)
a("s_cselect_b32 %s, 1, 0" % sT5)
a("s_sub_u32 %s, %s, 2" % (sT0, sT0))
a("s_lshl_b32 %s, %s, 4" % (sT0, sT0))
a("s_add_u32 %s, %s, %s" % (sT0, sT0, sJ))
a("s_lshl_b32 %s, %s, 14" % (sT1, sT0))
a("s_lshl_b32 %s, %s, 13" % (sT2, sMH))
a("s_add_u32 %s, %s, %s" % (sT1, sT1, sT2))
a("s_mov_b32 %s, 0x40000000" % sT3)
a("s_cmp_eq_u32 %s, 1" % sT5)
a("s_cselect_b32 %s, %s, %s" % (sT1, sT3, sT1))
a("s_cbranch_scc1 Lskip_f1")
a("s_lshl_b32 %s, %s, 5" % (sT2, sT0))
a("s_lshl_b32 %s, %s, 4" % (sT3, sMH))
a("s_add_u32 %s, %s, %s" % (sT2, sT2, sT3))
a("s_add_u32 %s, %s, %d" % (sT2, sT2, WS_F1))
a("v_and_b32 %s, 1, %s" % (v(vT), vL))
a("v_lshlrev_b32 %s, 3, %s" % (v(vT), v(vT)))
a("v_add_u32 %s, %s, %s" % (v(vT), sT2, v(vT)))
poll(v(vT), vT + 2, "f1")
a.label("Lskip_f1")
stamp(3)
a("s_lshl_b32 %s, %s, 13" % (sT2, sHW))
for i in range(8):
    if i == 4:
        a("s_add_u32 %s, %s, 4096" % (sT1, sT1))
    dma(vL16, WS, sT1, sT2, L_KV + i * 1024, inst=(i % 4) * 1024, sc1=True)
a("s_waitcnt vmcnt(0) lgkmcnt(0)")
a("s_branch Lp2")

a.label("Lhelper")
vX = [32, 33, 34, 35]
vW = "v36"
vWO = "v37"
vW1 = [38, 39, 40, 41, 42, 43, 44]
a("v_lshrrev_b32 %s, 3, %s" % (v(vT), vL))
a("s_lshl_b32 %s, %s, 5" % (sT0, sHW))
a("s_add_u32 %s, %s, %s" % (sT0, sT0, sR0))
a("v_add_u32 %s, %s, %s" % (v(vT), sT0, v(vT)))
a("s_movk_i32 %s, 896" % sT1)
a("v_mul_lo_u32 %s, %s, %s" % (v(vT), v(vT), sT1))
a("v_and_b32 %s, 7, %s" % (v(vT + 1), vL))
a("v_xor_b32 %s, %s, %s" % (v(vT + 1), v(vT + 1), vQ4))
a("v_xor_b32 %s, 4, %s" % (v(vT + 2), v(vT + 1)))
for ii in range(4):
    a("v_lshl_add_u32 %s, %s, 4, %s" % (v(vX[ii]), v(vT + 1 + (ii & 1)), v(vT)))
    if ii:
        a("v_add_u32 %s, %d, %s" % (v(vX[ii]), ii * 8 * 896, v(vX[ii])))
a("v_lshrrev_b32 %s, 2, %s" % (v(vT), vL))
a("s_lshl_b32 %s, %s, 4" % (sT0, sHW))
a("v_add_u32 %s, %s, %s" % (v(vT), sT0, v(vT)))
a("s_movk_i32 %s, 2688" % sT1)
a("v_mul_lo_u32 %s, %s, %s" % (v(vT), v(vT), sT1))
a("v_and_b32 %s, 3, %s" % (v(vT + 1), vL))
a("v_lshl_add_u32 %s, %s, 4, %s" % (vW, v(vT + 1), v(vT)))
a("s_mul_i32 %s, %s, 56" % (sT0, sJ))
a("v_add_u32 %s, %s, %s" % (vW, sT0, vW))
sCC = "s70"
a("s_mov_b32 %s, %s" % (sCC, sROT))


def p1_issue(c):
    sb = (c % 3) * SLOT
    a("s_lshl_b32 %s, %s, 7" % (sT0, sCC))
    a("s_mul_i32 %s, %s, %d" % (sT1, sCC, 64 * 2688))
    for p3 in range(3):
        dma(vW, WQKV, sT1, sHW1K, sb + 16384 + p3 * 4096, inst=p3 * 896)
    for ii in range(4):
        dma(v(vX[ii]), X, sT0, sHW4K, sb + ii * 1024)
    a("s_add_u32 %s, %s, 1" % (sCC, sCC))
    a("s_cmp_eq_u32 %s, 7" % sCC)
    a("s_cselect_b32 %s, 0, %s" % (sCC, sCC))


p1_issue(0)
p1_issue(1)
a("v_lshrrev_b32 %s, 3, %s" % (v(vT), vL))
a("s_movk_i32 %s, 896" % sT1)
a("v_mul_lo_u32 %s, %s, %s" % (v(vT), v(vT), sT1))
a("v_bfe_u32 %s, %s, 4, 1" % (v(vT + 1), vL))
a("v_lshlrev_b32 %s, 2, %s" % (v(vT + 1), v(vT + 1)))
a("v_and_b32 %s, 7, %s" % (v(vT + 2), vL))
a("v_xor_b32 %s, %s, %s" % (v(vT + 1), v(vT + 1), v(vT + 2)))
a("v_lshl_add_u32 %s, %s, 4, %s" % (vWO, v(vT + 1), v(vT)))
a("s_lshl_b32 %s, %s, 7" % (sT0, sNB))
a("v_add_u32 %s, %s, %s" % (vWO, sT0, vWO))
a("s_mul_i32 %s, %s, 224" % (sT0, sJ))
a("s_mov_b32 %s, %d" % (sT1, (1 << 20) // 14 + 1))
a("s_movk_i32 %s, %d" % (sT2, 3584 - 224))
for k in range(7):
    a("v_add_u32 %s, %d, %s" % (v(vT), 64 * k, vL))
    a("v_mul_lo_u32 %s, %s, %s" % (v(vT + 1), v(vT), sT1))
    a("v_lshrrev_b32 %s, 20, %s" % (v(vT + 1), v(vT + 1)))
    a("v_mul_lo_u32 %s, %s, %s" % (v(vT + 1), v(vT + 1), sT2))
    a("v_lshl_add_u32 %s, %s, 4, %s" % (v(vW1[k]), v(vT), v(vT + 1)))
    a("v_add_u32 %s, %s, %s" % (v(vW1[k]), sT0, v(vW1[k])))
for i in range(448):
    assert (i * ((1 << 20) // 14 + 1)) >> 20 == i // 14
hCS = [48, 49, 50]
hONE = "v51"
hWA, hWA2 = "v52", "v53"
HB = 56
for p3 in range(3):
    a("v_mov_b32 %s, 0" % v(hCS[p3]))
a("v_mov_b32 %s, 0x3f803f80" % hONE)
tr_base_64(hWA, v(vT))
a("v_add_u32 %s, %d, %s" % (hWA2, 2 * SLOT, hWA))


def w1_block(blk):
    if isinstance(blk, tuple):
        base = blk[1]
        a("s_add_u32 %s, %s, %d" % (sT0, sHW, base))
        a("s_mul_i32 %s, %s, %d" % (sT1, sT0, 32 * 3584))
        a("s_mul_i32 %s, %s, 7168" % (sT2, sHW))
        ldsb = base * 7168 if base < 12 else L_W1U + (base - 12) * 7168
        for k in range(7):
            dma(v(vW1[k]), W1, sT1, sT2, ldsb + k * 1024)


def colsum_chunk(c):
    sb = (c % 3) * SLOT
    base, off = (hWA2, 0) if c % 3 == 2 else (hWA, sb)

    def rd(s):
        for p3 in range(3):
            for hh in range(2):
                a("ds_read_b64_tr_b16 %s, %s offset:%d" % (v(HB + 12 * (s & 1) + 4 * p3 + 2 * hh, 2), base, off + 16384 + p3 * 4096 + s * 1024 + hh * 256))

    def dots(s):
        for i in range(4):
            for p3 in range(3):
                a("v_dot2c_f32_bf16 %s, %s, %s" % (v(hCS[p3]), v(HB + 12 * (s & 1) + 4 * p3 + i), hONE))
    rd(0)
    rd(1)
    a("s_waitcnt lgkmcnt(6)")
    dots(0)
    rd(2)
    a("s_waitcnt lgkmcnt(6)")
    dots(1)
    rd(3)
    a("s_waitcnt lgkmcnt(6)")
    dots(2)
    a("s_waitcnt lgkmcnt(0)")
    dots(3)


NPRE = 0
pending_after = {}


def early_prefetch():
    n = 0
    if OPT["pretouch"]:
        a("s_lshl_b32 %s, %s, 17" % (sT0, sG))
        a("s_lshl_b32 %s, %s, 13" % (sT1, sJ))
        a("s_add_u32 %s, %s, %s" % (sT0, sT0, sT1))
        a("s_add_u32 %s, %s, %d" % (sT0, sT0, WS_O))
        a("s_mul_i32 %s, %s, %d" % (sT1, sG, 8 * 14 * 1024))
        a("s_mul_i32 %s, %s, %d" % (sT2, sJ, 7168))
        a("s_add_u32 %s, %s, %s" % (sT1, sT1, sT2))
        a("s_add_u32 %s, %s, %d" % (sT1, sT1, WS_H))
        a("s_cmp_eq_u32 %s, 0" % sHW)
        a("s_cselect_b32 %s, %s, %s" % (sT0, sT0, sT1))
        a("v_lshlrev_b32 %s, 7, %s" % (v(vT), vL))
        a("v_and_b32 %s, 15, %s" % (v(vT + 1), vL))
        a("v_and_b32 %s, 3, %s" % (v(vT + 2), vL))
        a("v_lshlrev_b32 %s, 7, %s" % (v(vT + 2), v(vT + 2)))
        a("s_lshl_b32 %s, %s, 9" % (sT2, sG))
        a("v_add_u32 %s, %s, %s" % (v(vT + 2), sT2, v(vT + 2)))
        a("v_bfe_u32 %s, %s, 2, 1" % (v(vT + 3), vL))
        a("v_lshlrev_b32 %s, 16, %s" % (v(vT + 3), v(vT + 3)))
        a("v_add_u32 %s, %s, %s" % (v(vT + 2), v(vT + 2), v(vT + 3)))
        a("v_add_u32 %s, %d, %s" % (v(vT + 2), WS_F3, v(vT + 2)))
        a("v_and_b32 %s, 7, %s" % (v(vT + 3), vL))
        a("v_lshlrev_b32 %s, 7, %s" % (v(vT + 3), v(vT + 3)))
        a("s_lshl_b32 %s, %s, 10" % (sT2, sG))
        a("s_add_u32 %s, %s, %d" % (sT2, sT2, WS_F2))
        a("v_add_u32 %s, %s, %s" % (v(vT + 3), sT2, v(vT + 3)))
        a("v_cmp_gt_u32 vcc, 8, %s" % v(vT + 1))
        a("v_cndmask_b32 %s, %s, %s, vcc" % (v(vT + 2), v(vT + 2), v(vT + 3)))
        a("v_add_u32 %s, %s, %s" % (v(vT), sT0, v(vT)))
        a("s_cmp_ge_u32 %s, 2" % sHW)
        a("s_cselect_b64 vcc, -1, 0")
        a("v_cndmask_b32 %s, %s, %s, vcc" % (v(vT), v(vT), v(vT + 2)))
        a("buffer_load_dword v26, %s, %s, 0 offen sc1" % (v(vT), WS))
        n += 1
    a("s_mul_i32 %s, %s, %d" % (sT0, sHW, 8 * 896))
    for k in range(15):
        if k == 14:
            a("s_mov_b32 %s, %d" % (sT0, 56 * 8 * 896))
            dma(vWO, WO, sT0, None, L_WO + 56 * 1024)
        else:
            dma(vWO, WO, sT0, sHW1K, L_WO + k * 4096)
            a("s_add_u32 %s, %s, %d" % (sT0, sT0, 32 * 896))
        n += 1
    return n


out_list = []
issued = [7, 7]
for c in range(7):
    after = sum(issued[c + 1:])
    a("s_waitcnt vmcnt(%d)" % after)
    a("s_barrier")
    if c + 2 <= 6:
        p1_issue(c + 2)
        issued.append(7)
    if c == 4:
        n = early_prefetch()
        issued.append(n)
    lab = a.newlabel("Lnocs")
    a("s_cmp_lg_u32 %s, 7" % sWAVE)
    a("s_cbranch_scc1 %s" % lab)
    colsum_chunk(c)
    if c == 6:
        for p3 in range(3):
            xhalf_sum(v(hCS[p3]), v(vT))
        a("v_lshlrev_b32 %s, 2, %s" % (v(vT), vL31))
        a("v_add_u32 %s, %d, %s" % (v(vT), L_CS, v(vT)))
        for p3 in range(3):
            a("ds_write_b32 %s, %s offset:%d" % (v(vT), v(hCS[p3]), 128 * p3))
        a("s_waitcnt lgkmcnt(0)")
    a.label(lab)
a("s_barrier")
w1_block(("hw", 0))
lab = a.newlabel("Lnou")
a("s_cmp_ge_u32 %s, 2" % sHW)
a("s_cbranch_scc1 %s" % lab)
w1_block(("hw", 12))
a.label(lab)
a("v_mov_b32 %s, %d" % (v(vT), L_EP))
a("ds_read_b64 %s, %s" % (v(vFLG, 2), v(vT)))
a("s_waitcnt lgkmcnt(0)")
a("v_readfirstlane_b32 %s, %s" % (sEPL, v(vFLG)))
a("v_readfirstlane_b32 %s, %s" % (sEPH, v(vFLG + 1)))
a("v_or_b32 %s, %s, %s" % (v(vFLG), sXCC, v(vFLG)))
a("v_mov_b32 v24, 0")
HP = 240
a("v_mov_b32 %s, %s" % (v(HP), vWO))
for k in range(7):
    a("v_mov_b32 %s, %s" % (v(HP + 1 + k), v(vW1[k])))
vWO = v(HP)
vW1 = [HP + 1 + k for k in range(7)]

a.label("Lp2")
SC, KB, QF, M0R, M8R, PF, VB, OA = 32, 104, 128, 132, 140, 148, 160, 184
vKA, vVA, vQA, vNEG, vZERO, vGF = "v192", "v193", "v194", "v195", "v196", 198
a("s_lshr_b32 %s, %s, 1" % (sT0, sWAVE))
a("s_lshl_b32 %s, %s, 12" % (sT0, sT0))
a("s_add_u32 %s, %s, %d" % (sT0, sT0, L_KV))
a("v_lshrrev_b32 %s, 3, %s" % (v(vT), vR))
a("v_lshlrev_b32 %s, 1, %s" % (v(vT + 1), v(vT)))
a("v_xor_b32 %s, %s, %s" % (v(vT + 1), v(vT + 1), vQ4))
a("v_lshlrev_b32 %s, 4, %s" % (v(vT + 1), v(vT + 1)))
a("v_lshl_add_u32 %s, %s, 6, %s" % (vVA, vR, v(vT + 1)))
a("v_lshl_add_u32 %s, %s, 9, %s" % (vKA, v(vT), vVA))
a("s_lshl_b32 %s, %s, 10" % (sT1, sWAVE))
a("s_add_u32 %s, %s, %d" % (sT1, sT1, L_Q))
a("v_add_u32 %s, %s, %s" % (vQA, sT1, vVA))
a("v_add_u32 %s, %s, %s" % (vKA, sT0, vKA))
a("v_add_u32 %s, %s, %s" % (vVA, sT0, vVA))
for T in range(2):
    assert lds_conflicts([((16 * ((l & 15) >> 3) + 8 * T + (l & 7)) * 64 + (((l >> 4) ^ (2 * ((l & 15) >> 3))) * 16)) for l in range(64)], "b128") == 0
assert lds_conflicts([((l & 15) * 64 + (((l >> 4) ^ (2 * ((l & 15) >> 3))) * 16)) for l in range(64)], "b128") == 0
a("v_mov_b32 %s, 0xf149f2ca" % vNEG)
a("v_mov_b32 %s, 0" % vZERO)
a("v_lshrrev_b32 %s, 1, %s" % (v(vT), vQ4))
a("v_lshlrev_b32 %s, 4, %s" % (v(vT), v(vT)))
a("v_and_b32 %s, 1, %s" % (v(vT + 1), vQ4))
a("v_lshl_add_u32 %s, %s, 2, %s" % (v(vT), v(vT + 1), v(vT)))
a("v_sub_u32 %s, %s, %s" % (v(vT), v(vT), vR))
a("s_and_b32 %s, %s, 1" % (sT0, sWAVE))
a("s_lshl_b32 %s, %s, 4" % (sT0, sT0))
a("v_subrev_u32 %s, %s, %s" % (v(vT), sT0, v(vT)))
for T in range(2):
    for c in range(4):
        a("v_cmp_lt_i32 vcc, %d, %s" % (-(8 * T + c), v(vT)))
        a("v_cndmask_b32 %s, %s, %s, vcc" % (v(M0R + 4 * T + c), vNEG, vZERO))
        a("v_cndmask_b32 %s, %s, %s, vcc" % (v(M8R + 4 * T + c), vZERO, vNEG))
a("s_lshl_b32 %s, %s, 9" % (sT0, sG))
a("s_add_u32 %s, %s, %d" % (sT0, sT0, WS_F1))
a("v_lshlrev_b32 v197, 5, %s" % vR)
a("v_add_u32 v197, %s, v197" % sT0)
a("s_barrier")
stamp(4)
a("buffer_load_dwordx2 %s, v197, %s, 0 offen sc1" % (v(vGF, 2), WS))
a("ds_read_b128 %s, %s" % (v(QF, 4), vQA))
NKB = 6
seq = [(t, T) for t in range(9) for T in range(2)]


def kread(i):
    t, T = seq[i]
    a("ds_read_b128 %s, %s offset:%d" % (v(KB + 4 * (i % NKB), 4), vKA, t * 4096 + T * 512))


for i in range(NKB):
    kread(i)
for i in range(18):
    t, T = seq[i]
    rem = min(NKB - 1, 17 - i)
    a("s_waitcnt lgkmcnt(%d)" % rem)
    cc = v(M0R + 4 * T, 4) if t == 0 else (v(M8R + 4 * T, 4) if t == 8 else "0")
    a("v_mfma_f32_16x16x32_bf16 %s, %s, %s, %s" % (v(SC + 8 * t + 4 * T, 4), v(KB + 4 * (i % NKB), 4), v(QF, 4), cc))
    if i + NKB < 18:
        kread(i + NKB)
vseq = [(t, dt) for t in range(9) for dt in range(2)]


def vread(i):
    t, dt = vseq[i]
    a("ds_read_b128 %s, %s offset:%d" % (v(VB + 4 * (i % NKB), 4), vVA, 2048 + t * 4096 + dt * 1024))


for i in range(NKB):
    vread(i)
a("s_cmp_ge_u32 %s, 2" % sG)
a("s_cbranch_scc1 Lnoinv")
a("s_lshl_b32 %s, %s, 2" % (sT0, sG))
a("s_lshr_b32 %s, %s, 1" % (sT1, sWAVE))
a("s_add_u32 %s, %s, %s" % (sT0, sT0, sT1))
a("s_sub_u32 %s, 8, %s" % (sT0, sT0))
for t in range(8):
    a("s_cmp_le_u32 %s, %d" % (sT0, t))
    a("s_cbranch_scc1 Lnoinv")
    for i in range(8):
        a("v_mov_b32 %s, %s" % (v(SC + 8 * t + i), vNEG))
a.label("Lnoinv")
vM, vM2 = v(vT), v(vT + 1)
a("v_max3_f32 %s, %s, %s, %s" % (vM, v(SC), v(SC + 1), v(SC + 2)))
a("v_max3_f32 %s, %s, %s, %s" % (vM2, v(SC + 3), v(SC + 4), v(SC + 5)))
i = 6
flip = 0
while i < 72:
    tgt = vM if flip == 0 else vM2
    a("v_max3_f32 %s, %s, %s, %s" % (tgt, tgt, v(SC + i), v(SC + i + 1)))
    i += 2
    flip ^= 1
a("v_max_f32 %s, %s, %s" % (vM, vM, vM2))
a("v_mov_b32 %s, %s" % (vM2, vM))
a("v_permlane32_swap_b32 %s, %s" % (vM, vM2))
a("v_max_f32 %s, %s, %s" % (vM, vM, vM2))
a("v_mov_b32 %s, %s" % (vM2, vM))
a("v_permlane16_swap_b32 %s, %s" % (vM, vM2))
a("v_max_f32 %s, %s, %s" % (vM, vM, vM2))
CSC = (28.0 ** -0.5) * math.log2(math.e)
a("s_mov_b32 %s, %s" % (sT0, f32(CSC)))
a("v_mul_f32 %s, %s, %s" % (vM, f32(-CSC), vM))
for t in range(9):
    for i in range(8):
        a("v_fma_f32 %s, %s, %s, %s" % (v(SC + 8 * t + i), v(SC + 8 * t + i), sT0, vM))
    for i in range(8):
        a("v_exp_f32 %s, %s" % (v(SC + 8 * t + i), v(SC + 8 * t + i)))
    pf = PF + 4 * (t % 3)
    for i in range(4):
        a("v_cvt_pk_bf16_f32 %s, %s, %s" % (v(pf + i), v(SC + 8 * t + 2 * i), v(SC + 8 * t + 2 * i + 1)))
    for dt in range(2):
        i = 2 * t + dt
        rem = min(NKB - 1, 17 - i)
        a("s_waitcnt lgkmcnt(%d)" % rem)
        cc = "0" if t == 0 else v(OA + 4 * dt, 4)
        a("v_mfma_f32_16x16x32_bf16 %s, %s, %s, %s" % (v(OA + 4 * dt, 4), v(VB + 4 * (i % NKB), 4), v(pf, 4), cc))
        if i + NKB < 18:
            vread(i + NKB)
a("s_waitcnt vmcnt(0)")
a("v_and_b32 %s, -8, %s" % (v(vT + 4), v(vGF)))
a("v_mov_b32 %s, %s" % (v(vT + 5), v(vGF + 1)))
a("v_cmp_ne_u64 vcc, %s, %s" % (sEP, v(vT + 4, 2)))
a("s_cmp_eq_u64 vcc, 0")
a("s_cbranch_scc1 Lgf_ok")
poll("v197", vT + 4, "gf")
a("buffer_load_dwordx2 %s, v197, %s, 0 offen sc1" % (v(vGF, 2), WS))
a("s_waitcnt vmcnt(0)")
a.label("Lgf_ok")
a("v_cmp_ne_u32 vcc, %s, %s" % (v(vGF), v(vFLG)))
a("s_cmp_eq_u64 vcc, 0")
a("s_cselect_b32 %s, %d, 0" % (sFAST, 0 if OPT["force_slow"] else 1))
a("v_mov_b32 %s, %s" % (v(vT), v(OA + 4)))
a("v_mov_b32 %s, %s" % (v(vT + 1), v(OA + 4)))
a("v_permlane32_swap_b32 %s, %s" % (v(vT), v(vT + 1)))
a("v_mov_b32 %s, %s" % (v(vT), v(vT + 1)))
a("v_permlane16_swap_b32 %s, %s" % (v(vT), v(vT + 1)))
a("v_rcp_f32 %s, %s" % (v(vT), v(vT + 1)))
a("v_cndmask_b32 %s, %s, %s, %s" % (v(vT + 1), v(vT), vZERO, sQ3))
for i in range(4):
    a("v_mul_f32 %s, %s, %s" % (v(OA + i), v(OA + i), v(vT)))
    a("v_mul_f32 %s, %s, %s" % (v(OA + 4 + i), v(OA + 4 + i), v(vT + 1)))
OP = 148
for i in range(4):
    a("v_cvt_pk_bf16_f32 %s, %s, %s" % (v(OP + i), v(OA + 2 * i), v(OA + 2 * i + 1)))
a("s_lshl_b32 %s, %s, 2" % (sT0, sG))
a("s_lshr_b32 %s, %s, 1" % (sT1, sWAVE))
a("s_add_u32 %s, %s, %s" % (sT0, sT0, sT1))
a("s_lshl_b32 %s, %s, 15" % (sT0, sT0))
a("s_lshl_b32 %s, %s, 11" % (sT1, sJ))
a("s_add_u32 %s, %s, %s" % (sT0, sT0, sT1))
a("s_and_b32 %s, %s, 1" % (sT1, sWAVE))
a("s_lshl_b32 %s, %s, 8" % (sT1, sT1))
a("s_add_u32 %s, %s, %s" % (sT0, sT0, sT1))
a("s_add_u32 %s, %s, %d" % (sT0, sT0, WS_O))
a("v_lshlrev_b32 %s, 9, %s" % (v(vT + 2), vQ4))
a("v_lshl_add_u32 %s, %s, 4, %s" % (v(vT + 2), vR, v(vT + 2)))
a("s_lshl_b32 %s, %s, 10" % (sT1, sG))
a("s_lshl_b32 %s, %s, 7" % (sT2, sWAVE))
a("s_add_u32 %s, %s, %s" % (sT1, sT1, sT2))
a("s_lshl_b32 %s, %s, 3" % (sT2, sJ))
a("s_add_u32 %s, %s, %s" % (sT1, sT1, sT2))
a("s_add_u32 %s, %s, %d" % (sT1, sT1, WS_F2))
publish(["buffer_store_dwordx4 %s, %s, %s, %s offen{sc}" % (v(OP, 4), v(vT + 2), WS, sT0)], "v24", sT1)
stamp(5)
a("s_barrier")
a("s_cmp_ge_u32 %s, 4" % sWAVE)
a("s_cbranch_scc1 Lhelper2")

a("s_cmp_ge_u32 %s, 14" % sJ)
a("s_cbranch_scc1 Lp3_idle")
AK, AS = 32, 48
OF = 64
WB = 128
vWk, vWs = "v160", "v161"


def tr_base_128(dkeep, dsend, hmul, base_s, base_imm):
    a("v_lshrrev_b32 %s, 2, %s" % (v(vT), vR))
    a("v_lshrrev_b32 %s, 1, %s" % (v(vT + 1), v(vT)))
    a("v_xor_b32 %s, %s, %s" % (v(vT + 1), sKH, v(vT + 1)))
    a("v_lshl_add_u32 %s, %s, %d, %s" % (v(vT), vH, {4: 2, 8: 3}[hmul], v(vT)))
    a("v_lshlrev_b32 %s, 7, %s" % (v(vT), v(vT)))
    a("v_bfe_u32 %s, %s, 4, 1" % (v(vT + 2), vL))
    a("v_lshl_add_u32 %s, %s, 5, %s" % (v(vT), v(vT + 2), v(vT)))
    a("v_and_b32 %s, 3, %s" % (v(vT + 2), vL))
    a("v_lshl_add_u32 %s, %s, 3, %s" % (v(vT), v(vT + 2), v(vT)))
    a("v_add_u32 %s, %s, %s" % (v(vT), base_s, v(vT)))
    if base_imm:
        a("v_add_u32 %s, %d, %s" % (v(vT), base_imm, v(vT)))
    a("v_lshl_add_u32 %s, %s, 6, %s" % (dkeep, v(vT + 1), v(vT)))
    a("v_xor_b32 %s, 64, %s" % (dsend, dkeep))


for hm in (4, 8):
    for nt in range(2):
        assert lds_conflicts([(hm * (l >> 5) + ((l & 15) >> 2)) * 128 + ((nt ^ (((l & 15) >> 3) & 1)) * 64) + ((l >> 4) & 1) * 32 + (l & 3) * 8 for l in range(64)], "tr") == 0
a("s_mul_i32 %s, %s, %d" % (sT0, sKH, 224 * 128))
tr_base_128(vWk, vWs, 4, sT0, L_WO)
a("s_lshl_b32 %s, %s, 10" % (sT0, sG))
a("s_lshl_b32 %s, %s, 9" % (sT1, sMH2))
a("s_add_u32 %s, %s, %s" % (sT0, sT0, sT1))
a("s_lshl_b32 %s, %s, 8" % (sT1, sMH))
a("s_add_u32 %s, %s, %s" % (sT0, sT0, sT1))
a("s_lshl_b32 %s, %s, 6" % (sT1, sKH))
a("s_add_u32 %s, %s, %s" % (sT0, sT0, sT1))
a("s_add_u32 %s, %s, %d" % (sT0, sT0, WS_F2))
a("v_bfe_u32 %s, %s, 3, 1" % (v(vT), vL))
a("v_lshlrev_b32 %s, 7, %s" % (v(vT), v(vT)))
a("v_and_b32 %s, 7, %s" % (v(vT + 1), vL))
a("v_lshl_add_u32 %s, %s, 3, %s" % (v(vT), v(vT + 1), v(vT)))
a("v_add_u32 %s, %s, %s" % (v(vT), sT0, v(vT)))
sTILE = "s71"
a("s_lshl_b32 %s, %s, 2" % (sTILE, sG))
a("s_lshl_b32 %s, %s, 1" % (sT1, sMH2))
a("s_add_u32 %s, %s, %s" % (sTILE, sTILE, sT1))
a("s_add_u32 %s, %s, %s" % (sTILE, sTILE, sMH))
a("s_lshl_b32 %s, %s, 15" % (sT4, sTILE))
a("s_lshl_b32 %s, %s, 14" % (sT1, sKH))
a("s_add_u32 %s, %s, %s" % (sT4, sT4, sT1))
a("s_add_u32 %s, %s, %d" % (sT4, sT4, WS_O))


def p3_wread(s):
    head, ab = s >> 1, s & 1
    wb = WB + 8 * (s % 4)
    r0 = (28 * head + 8 * ab) * 128
    for k, base in enumerate((vWk, vWs)):
        a("ds_read_b64_tr_b16 %s, %s offset:%d" % (v(wb + 4 * k, 2), base, r0))
        a("ds_read_b64_tr_b16 %s, %s offset:%d" % (v(wb + 4 * k + 2, 2), base, r0 + 16 * 128))


for s in range(3):
    p3_wread(s)
poll(v(vT), vT + 2, "f2")
stamp(6)
for s in range(16):
    if s and s % 4 == 0:
        a("s_add_u32 %s, %s, 4096" % (sT4, sT4))
    a("buffer_load_dwordx4 %s, %s, %s, %s offen offset:%d sc1" % (v(OF + 4 * s, 4), vL16, WS, sT4, (s % 4) * 1024))
for s in range(16):
    a("s_waitcnt vmcnt(%d) lgkmcnt(%d)" % (15 - s, min(8, 4 * (15 - s))))
    if s + 3 < 16:
        p3_wread(s + 3)
    wb = WB + 8 * (s % 4)
    a("v_mfma_f32_32x32x16_bf16 %s, %s, %s, %s" % (v(AS, 16), v(wb + 4, 4), v(OF + 4 * s, 4), "0" if s == 0 else v(AS, 16)))
    a("v_mfma_f32_32x32x16_bf16 %s, %s, %s, %s" % (v(AK, 16), v(wb, 4), v(OF + 4 * s, 4), "0" if s == 0 else v(AK, 16)))


def exchange(scr_base, first_barrier):
    a("v_add_u32 %s, %s, %s" % (v(vT), sHW4K, vL16))
    a("v_xor_b32 %s, 0x2000, %s" % (v(vT + 1), v(vT)))
    if scr_base >= 65536 - 4096:
        a("v_add_u32 %s, %d, %s" % (v(vT), scr_base, v(vT)))
        a("v_add_u32 %s, %d, %s" % (v(vT + 1), scr_base, v(vT + 1)))
        scr_base = 0
    if first_barrier:
        a("s_barrier")
    for i in range(4):
        a("ds_write_b128 %s, %s offset:%d" % (v(vT), v(AS + 4 * i, 4), scr_base + 1024 * i))
    a("s_waitcnt lgkmcnt(0)")
    a("s_barrier")
    for i in range(4):
        a("ds_read_b128 %s, %s offset:%d" % (v(AS + 4 * i, 4), v(vT + 1), scr_base + 1024 * i))
    for i in range(4):
        a("s_waitcnt lgkmcnt(%d)" % (3 - i))
        for k in range(4):
            a("v_add_f32 %s, %s, %s" % (v(AK + 4 * i + k), v(AK + 4 * i + k), v(AS + 4 * i + k)))


def residual_add(res, out):
    for i in range(8):
        a("v_cvt_pk_bf16_f32 %s, %s, %s" % (v(AS + i), v(AK + 2 * i), v(AK + 2 * i + 1)))
    for i in range(8):
        a("v_lshlrev_b32 %s, 16, %s" % (v(AK + 2 * i), v(AS + i)))
        a("v_and_b32 %s, 0xffff0000, %s" % (v(AK + 2 * i + 1), v(AS + i)))
        a("v_lshlrev_b32 %s, 16, %s" % (v(AS + 8), v(res + i)))
        a("v_and_b32 %s, 0xffff0000, %s" % (v(AS + 9), v(res + i)))
        a("v_add_f32 %s, %s, %s" % (v(AK + 2 * i), v(AK + 2 * i), v(AS + 8)))
        a("v_add_f32 %s, %s, %s" % (v(AK + 2 * i + 1), v(AK + 2 * i + 1), v(AS + 9)))
        a("v_cvt_pk_bf16_f32 %s, %s, %s" % (v(out + i), v(AK + 2 * i), v(AK + 2 * i + 1)))


exchange(L_WO, True)
residual_add(vXRES, vXRES)
a("s_mul_i32 %s, %s, %d" % (sT0, sTILE, 28 * 1024))
a("s_lshl_b32 %s, %s, 11" % (sT1, sNB))
a("s_add_u32 %s, %s, %s" % (sT0, sT0, sT1))
a("s_lshl_b32 %s, %s, 10" % (sT1, sKH))
a("s_add_u32 %s, %s, %s" % (sT0, sT0, sT1))
a("s_add_u32 %s, %s, %d" % (sT0, sT0, WS_H))
a("v_bfe_u32 %s, %s, 4, 1" % (v(vT), vL))
a("v_mul_u32_u24 %s, %d, %s" % (v(vT), 14 * 1024, v(vT)))
a("v_lshl_add_u32 %s, %s, 8, %s" % (v(vT), vH, v(vT)))
a("v_lshl_add_u32 %s, %s, 4, %s" % (v(vT), vR, v(vT)))
a("s_lshl_b32 %s, %s, 7" % (sT1, sTILE))
a("s_lshl_b32 %s, %s, 4" % (sT2, sNB))
a("s_add_u32 %s, %s, %s" % (sT1, sT1, sT2))
a("s_lshl_b32 %s, %s, 3" % (sT2, sKH))
a("s_add_u32 %s, %s, %s" % (sT1, sT1, sT2))
a("s_add_u32 %s, %s, %d" % (sT1, sT1, WS_F3))
publish(["buffer_store_dwordx4 %s, %s, %s, %s offen{sc}" % (v(vXRES, 4), v(vT), WS, sT0),
         "buffer_store_dwordx4 %s, %s, %s, %s offen offset:512{sc}" % (v(vXRES + 4, 4), v(vT), WS, sT0)], "v24", sT1)
stamp(7)
a("s_branch Lp3_done")
a.label("Lp3_idle")
a("s_barrier")
a("s_barrier")
a.label("Lp3_done")
a("s_barrier")

HF = 32
A4 = 144
W4 = 200
vW4a, vW4b = "v244", "v245"
S4 = [246, 247, 248, 249]
vONE4 = "v250"
a("v_lshrrev_b32 %s, 1, %s" % (v(vT), vQ4))
a("v_lshlrev_b32 %s, 4, %s" % (v(vT), v(vT)))
a("v_and_b32 %s, 1, %s" % (v(vT + 1), vQ4))
a("v_lshl_add_u32 %s, %s, 2, %s" % (v(vT), v(vT + 1), v(vT)))
a("v_lshrrev_b32 %s, 2, %s" % (v(vT + 1), vR))
a("v_add_u32 %s, %s, %s" % (v(vT), v(vT), v(vT + 1)))
a("v_mul_u32_u24 %s, 224, %s" % (v(vT), v(vT)))
a("v_and_b32 %s, 3, %s" % (v(vT + 1), vL))
a("v_lshl_add_u32 %s, %s, 3, %s" % (vW4a, v(vT + 1), v(vT)))
a("v_add_u32 %s, %d, %s" % (vW4b, 8 * 7168, vW4a))
a("v_add_u32 v251, %d, %s" % (L_W1U, vW4a))
assert lds_conflicts([(16 * (l >> 5) + 4 * ((l >> 4) & 1) + ((l & 15) >> 2)) * 224 + (l & 3) * 8 for l in range(64)], "tr") == 0
for r_ in S4:
    a("v_mov_b32 %s, 0" % v(r_))
a("v_mov_b32 %s, 0x3f803f80" % vONE4)
a("s_lshl_b32 %s, %s, 2" % (sT0, sG))
a("s_add_u32 %s, %s, %s" % (sT0, sT0, sHW))
a("s_lshl_b32 %s, %s, 7" % (sT1, sT0))
a("s_add_u32 %s, %s, %d" % (sT1, sT1, WS_F3))
a("v_min_u32 %s, 13, %s" % (v(vT), vR))
a("v_lshlrev_b32 %s, 3, %s" % (v(vT), v(vT)))
a("v_add_u32 %s, %s, %s" % (v(vT), sT1, v(vT)))
a("s_mul_i32 %s, %s, %d" % (sT4, sT0, 28 * 1024))
a("s_add_u32 %s, %s, %d" % (sT4, sT4, WS_H))
a("s_mov_b32 s72, %s" % sT0)
NW4 = 11


def p4_wread(q):
    ks, nt = divmod(q, 7)
    if ks < 8:
        base, off = vW4a, ks * 7168
    elif ks < 12:
        base, off = vW4b, (ks - 8) * 7168
    else:
        base, off = "v251", (ks - 12) * 7168
    wb = W4 + 4 * (q % NW4)
    a("ds_read_b64_tr_b16 %s, %s offset:%d" % (v(wb, 2), base, off + nt * 32))
    a("ds_read_b64_tr_b16 %s, %s offset:%d" % (v(wb + 2, 2), base, off + nt * 32 + 8 * 224))


AHEAD = 7
for q in range(AHEAD):
    p4_wread(q)
poll(v(vT), vT + 2, "f3")
stamp(8)
a("s_add_u32 %s, %s, %d" % (sT5, sT4, 14 * 1024))
for ks in range(14):
    if ks and ks % 4 == 0:
        a("s_add_u32 %s, %s, 4096" % (sT4, sT4))
        a("s_add_u32 %s, %s, 4096" % (sT5, sT5))
    for mt in range(2):
        a("buffer_load_dwordx4 %s, %s, %s, %s offen offset:%d sc1" % (v(HF + 4 * (mt * 14 + ks), 4), vL16, WS, (sT4, sT5)[mt], (ks % 4) * 1024))
for ks in range(14):
    dots = []
    for mt in range(2):
        for i in range(4):
            hf = v(HF + 4 * (mt * 14 + ks) + i)
            dots.append("v_dot2c_f32_bf16 %s, %s, %s" % (v(S4[2 * mt]), hf, vONE4))
            dots.append("v_dot2c_f32_bf16 %s, %s, %s" % (v(S4[2 * mt + 1]), hf, hf))
    for nt in range(7):
        q = ks * 7 + nt
        lg = min(2 * (AHEAD - 1), 2 * (97 - q))
        if nt == 0:
            a("s_waitcnt vmcnt(%d) lgkmcnt(%d)" % (2 * (13 - ks), lg))
        else:
            a("s_waitcnt lgkmcnt(%d)" % lg)
        if q + AHEAD < 98:
            p4_wread(q + AHEAD)
        wb = W4 + 4 * (q % NW4)
        for mt in range(2):
            acc = v(A4 + 4 * (mt * 7 + nt), 4)
            a("v_mfma_f32_16x16x32_bf16 %s, %s, %s, %s" % (acc, v(wb, 4), v(HF + 4 * (mt * 14 + ks), 4), "0" if ks == 0 else acc))
            if dots:
                a(dots.pop(0))
        if nt >= 5:
            a(dots.pop(0))
    assert not dots
a("s_barrier")
stamp(9)
CS4 = 200
a("v_lshlrev_b32 %s, 4, %s" % (v(vT), vQ4))
a("v_add_u32 %s, %d, %s" % (v(vT), L_CS1, v(vT)))
for nt in range(7):
    a("ds_read_b128 %s, %s offset:%d" % (v(CS4 + 4 * nt, 4), v(vT), 64 * nt))
NM4, RS4 = [228, 230], [232, 234]
for mt in range(2):
    for r_ in (S4[2 * mt], S4[2 * mt + 1]):
        xhalf_sum(v(r_), v(vT + 1))
        xrow_sum(v(r_), v(vT + 1))
    ln_finish(v(S4[2 * mt]), v(S4[2 * mt + 1]), v(NM4[mt]), v(RS4[mt]), v(vT + 1))
H1P = 32
a("s_waitcnt lgkmcnt(0)")
a("v_mov_b32 %s, 0" % v(vT + 2))
for mt in range(2):
    for nt in range(7):
        acc = A4 + 4 * (mt * 7 + nt)
        for c in range(4):
            a("v_fma_f32 %s, %s, %s, %s" % (v(acc + c), v(CS4 + 4 * nt + c), v(NM4[mt]), v(acc + c)))
        for c in range(4):
            a("v_mul_f32 %s, %s, %s" % (v(acc + c), v(acc + c), v(RS4[mt])))
        hp = H1P + 16 * mt + 2 * nt
        for c in range(2):
            a("v_cvt_pk_bf16_f32 %s, %s, %s" % (v(hp + c), v(acc + 2 * c), v(acc + 2 * c + 1)))
        for c in range(2):
            a("v_pk_max_i16 %s, %s, %s" % (v(hp + c), v(hp + c), v(vT + 2)))
a("s_mul_i32 %s, s72, %d" % (sT0, 112 * 1024))
a("s_mul_i32 %s, %s, 7168" % (sT1, sJ))
a("s_add_u32 %s, %s, %s" % (sT0, sT0, sT1))
a("s_add_u32 %s, %s, %d" % (sT0, sT0, WS_H1))
a("s_add_u32 %s, %s, 4096" % (sT2, sT0))
a("v_lshlrev_b32 %s, 9, %s" % (v(vT), vQ4))
a("v_lshl_add_u32 %s, %s, 4, %s" % (v(vT), vR, v(vT)))
a("v_lshrrev_b32 %s, 1, %s" % (v(vT + 1), vQ4))
a("v_lshlrev_b32 %s, 9, %s" % (v(vT + 1), v(vT + 1)))
a("v_lshl_add_u32 %s, %s, 4, %s" % (v(vT + 1), vR, v(vT + 1)))
a("v_and_b32 %s, 1, %s" % (v(vT + 3), vQ4))
a("v_lshl_add_u32 %s, %s, 3, %s" % (v(vT + 1), v(vT + 3), v(vT + 1)))
st = []
for mt in range(2):
    for p in range(3):
        so, off = (sT0, p * 2048 + mt * 256) if p < 2 else (sT2, mt * 256)
        st.append("buffer_store_dwordx4 %s, %s, %s, %s offen offset:%d{sc}" % (v(H1P + 16 * mt + 4 * p, 4), v(vT), WS, so, off))
    st.append("buffer_store_dwordx2 %s, %s, %s, %s offen offset:%d{sc}" % (v(H1P + 16 * mt + 12, 2), v(vT + 1), WS, sT2, 2048 + mt * 256))
a("s_lshl_b32 %s, s72, 7" % sT1)
a("s_lshl_b32 %s, %s, 3" % (sT3, sJ))
a("s_add_u32 %s, %s, %s" % (sT1, sT1, sT3))
a("s_add_u32 %s, %s, %d" % (sT1, sT1, WS_F4))
publish(st, "v24", sT1)
stamp(10)
a("s_cmp_ge_u32 %s, 14" % sJ)
a("s_cbranch_scc1 Lend")

RF = 64
NRF = 28
WB5 = 176
AD5 = 208
a("s_mul_i32 %s, %s, %d" % (sT0, sKH, UNIT))
for pat, hm in enumerate((4, 8)):
    tr_base_128(v(AD5 + 6 * pat), v(AD5 + 6 * pat + 1), hm, sT0, 0)
    for b, off in ((1, 4 * UNIT), (2, L_WO)):
        for k in range(2):
            a("v_add_u32 %s, %d, %s" % (v(AD5 + 6 * pat + 2 * b + k), off, v(AD5 + 6 * pat + k)))
UMAP = {0: (2, 0), 1: (2, 2 * UNIT), 2: (0, 0), 3: (0, 2 * UNIT), 4: (1, 0), 5: (2, 0), 6: (2, 2 * UNIT), 7: (0, 0)}


def p5_wread(i):
    n, u = divmod(i, 7)
    b, off = UMAP[n]
    wb = WB5 + 8 * (i % 4)
    if u < 6:
        pat, r0, d2 = 0, 32 * (u >> 1) + 8 * (u & 1), 16
    else:
        pat, r0, d2 = 1, 96, 4
    for k in range(2):
        base = v(AD5 + 6 * pat + 2 * b + k)
        a("ds_read_b64_tr_b16 %s, %s offset:%d" % (v(wb + 4 * k, 2), base, off + r0 * 128))
        a("ds_read_b64_tr_b16 %s, %s offset:%d" % (v(wb + 4 * k + 2, 2), base, off + (r0 + d2) * 128))


a("s_lshl_b32 %s, %s, 7" % (sT0, sTILE))
a("s_lshl_b32 %s, %s, 6" % (sT1, sKH))
a("s_add_u32 %s, %s, %s" % (sT0, sT0, sT1))
a("s_add_u32 %s, %s, %d" % (sT0, sT0, WS_F4))
a("v_and_b32 %s, 7, %s" % (v(vT), vL))
a("v_lshlrev_b32 %s, 3, %s" % (v(vT), v(vT)))
a("v_add_u32 %s, %s, %s" % (v(vT), sT0, v(vT)))
a("s_mul_i32 %s, %s, %d" % (sT4, sTILE, 112 * 1024))
a("s_mul_i32 %s, %s, %d" % (sT1, sKH, 56 * 1024))
a("s_add_u32 %s, %s, %s" % (sT4, sT4, sT1))
a("s_add_u32 %s, %s, %d" % (sT4, sT4, WS_H1))
for i in range(3):
    p5_wread(i)
poll(v(vT), vT + 2, "f4")
stamp(11)


def p5_load(i):
    if i and i % 4 == 0:
        a("s_add_u32 %s, %s, 4096" % (sT4, sT4))
    a("buffer_load_dwordx4 %s, %s, %s, %s offen offset:%d sc1" % (v(RF + 4 * (i % NRF), 4), vL16, WS, sT4, (i % 4) * 1024))


for i in range(NRF):
    p5_load(i)
BARS = {14, 21, 35}
nread = 3
for i in range(56):
    if i in BARS:
        a("s_barrier")
    while nread < 56 and nread <= i + 2 and not any(i < b <= nread for b in BARS):
        p5_wread(nread)
        nread += 1
    lg = 4 * (nread - 1 - i)
    vm = min(NRF - 1, 55 - i)
    a("s_waitcnt vmcnt(%d) lgkmcnt(%d)" % (vm, lg))
    if nread < 56 and nread <= i + 3 and not any(i < b <= nread for b in BARS):
        p5_wread(nread)
        nread += 1
    wb = WB5 + 8 * (i % 4)
    rf = v(RF + 4 * (i % NRF), 4)
    a("v_mfma_f32_32x32x16_bf16 %s, %s, %s, %s" % (v(AS, 16), v(wb + 4, 4), rf, "0" if i == 0 else v(AS, 16)))
    a("v_mfma_f32_32x32x16_bf16 %s, %s, %s, %s" % (v(AK, 16), v(wb, 4), rf, "0" if i == 0 else v(AK, 16)))
    if i + NRF < 56:
        p5_load(i + NRF)
stamp(12)
exchange(L_SCR5, False)
OUTP = 64
residual_add(vXRES, OUTP)
for jj in range(4):
    a("buffer_store_dwordx2 %s, v25, %s, s69 offen offset:%d" % (v(OUTP + 2 * jj, 2), OUT, 16 * jj))
stamp(13)
a("s_endpgm")

a.label("Lhelper2")
w1_block(("hw", 4))
w1_block(("hw", 8))
if OPT["pretouch"]:
    a("s_mul_i32 %s, %s, %d" % (sT0, sG, 448 * 1024))
    a("s_mul_i32 %s, %s, %d" % (sT1, sJ, 28 * 1024))
    a("s_add_u32 %s, %s, %s" % (sT0, sT0, sT1))
    a("s_mul_i32 %s, %s, 7168" % (sT1, sHW))
    a("s_add_u32 %s, %s, %s" % (sT0, sT0, sT1))
    a("s_add_u32 %s, %s, %d" % (sT0, sT0, WS_H1))
    a("v_min_u32 %s, 55, %s" % (v(vT), vL))
    a("v_lshlrev_b32 %s, 7, %s" % (v(vT), v(vT)))
    a("buffer_load_dword v26, %s, %s, %s offen sc1" % (v(vT), WS, sT0))
C1 = 32
C1B = 40
cA = "v70"
a("v_lshrrev_b32 %s, 1, %s" % (v(vT), vQ4))
a("v_lshlrev_b32 %s, 4, %s" % (v(vT), v(vT)))
a("v_and_b32 %s, 1, %s" % (v(vT + 1), vQ4))
a("v_lshl_add_u32 %s, %s, 2, %s" % (v(vT), v(vT + 1), v(vT)))
a("v_lshrrev_b32 %s, 2, %s" % (v(vT + 1), vR))
a("v_add_u32 %s, %s, %s" % (v(vT), v(vT), v(vT + 1)))
a("v_mul_u32_u24 %s, 224, %s" % (v(vT), v(vT)))
a("v_and_b32 %s, 3, %s" % (v(vT + 1), vL))
a("v_lshl_add_u32 %s, %s, 3, %s" % (cA, v(vT + 1), v(vT)))
a("s_mul_i32 %s, %s, 7168" % (sT0, sHW))
a("v_add_u32 %s, %s, %s" % (cA, sT0, cA))
a("v_add_u32 v71, %d, %s" % (L_W1U, cA))
a("v_mov_b32 v72, 0x3f803f80")
for nt in range(7):
    a("v_mov_b32 %s, 0" % v(C1 + nt))


def cs1_block(base, off):
    for nt in range(7):
        a("ds_read_b64_tr_b16 %s, %s offset:%d" % (v(C1B + 4 * nt, 2), base, off + nt * 32))
        a("ds_read_b64_tr_b16 %s, %s offset:%d" % (v(C1B + 4 * nt + 2, 2), base, off + nt * 32 + 8 * 224))
    a("s_waitcnt lgkmcnt(0)")
    for i in range(4):
        for nt in range(7):
            a("v_dot2c_f32_bf16 %s, %s, v72" % (v(C1 + nt), v(C1B + 4 * nt + i)))


cs1_block(cA, 0)
lab = a.newlabel("Lnou2")
a("s_cmp_ge_u32 %s, 2" % sHW)
a("s_cbranch_scc1 %s" % lab)
cs1_block("v71", 0)
a.label(lab)
a("s_barrier")
a("s_barrier")
a("s_waitcnt vmcnt(0)")
cs1_block(cA, 4 * 7168)
cs1_block(cA, 8 * 7168)
for nt in range(7):
    xhalf_sum(v(C1 + nt), v(vT))
    xrow_sum(v(C1 + nt), v(vT))
a("s_mul_i32 %s, %s, 448" % (sT0, sHW))
a("s_add_u32 %s, %s, %d" % (sT0, sT0, L_CS1P))
a("v_lshl_add_u32 %s, %s, 2, %s" % (v(vT), vR, sT0))
for nt in range(7):
    a("ds_write_b32 %s, %s offset:%d" % (v(vT), v(C1 + nt), 64 * nt))
a("s_waitcnt lgkmcnt(0)")
a("s_barrier")


def w2_unit_part(jp_s, lds_s, lds_imm, i0, i1):
    a("s_mul_i32 %s, %s, %d" % (sT3, jp_s, 112 * 896))
    if i0:
        a("s_add_u32 %s, %s, %d" % (sT3, sT3, i0 * 8 * 896))
    for i in range(i0, i1):
        dma(vWO, W2, sT3, lds_s, lds_imm + i * 1024)
        if i + 1 < i1:
            a("s_add_u32 %s, %s, %d" % (sT3, sT3, 8 * 896))


a("s_cmp_ge_u32 %s, 14" % sJ)
a("s_cbranch_scc1 Lh_noA")
a("s_lshl_b32 %s, %s, 3" % (sT0, sMH))
a("s_add_u32 %s, %s, %s" % (sT0, sT0, sKH))
a("s_mul_i32 %s, %s, %d" % (sT1, sHW, UNIT))
w2_unit_part(sT0, sT1, L_WO, 0, 14)
a.label("Lh_noA")
lab = a.newlabel("Lnocs1")
a("s_cmp_lg_u32 %s, 4" % sWAVE)
a("s_cbranch_scc1 %s" % lab)
a("v_min_u32 %s, 55, %s" % (v(vT), vL))
a("v_lshlrev_b32 %s, 3, %s" % (v(vT), v(vT)))
a("v_add_u32 %s, %d, %s" % (v(vT + 1), L_CS1P, v(vT)))
for k in range(4):
    a("ds_read_b64 %s, %s offset:%d" % (v(40 + 2 * k, 2), v(vT + 1), 448 * k))
a("s_waitcnt lgkmcnt(0)")
for c in range(2):
    a("v_add_f32 %s, %s, %s" % (v(40 + c), v(40 + c), v(42 + c)))
    a("v_add_f32 %s, %s, %s" % (v(44 + c), v(44 + c), v(46 + c)))
    a("v_add_f32 %s, %s, %s" % (v(40 + c), v(40 + c), v(44 + c)))
a("v_add_u32 %s, %d, %s" % (v(vT + 1), L_CS1, v(vT)))
a("ds_write_b64 %s, %s" % (v(vT + 1), v(40, 2)))
a.label(lab)
a("s_waitcnt vmcnt(0) lgkmcnt(0)")
a("s_barrier")
a("s_cmp_ge_u32 %s, 14" % sJ)
a("s_cbranch_scc1 Lend")
a("s_lshl_b32 %s, %s, 3" % (sT0, sMH))
a("s_add_u32 %s, %s, %s" % (sT0, sT0, sKH))
a("s_add_u32 %s, %s, 2" % (sT0, sT0))
a("s_mul_i32 %s, %s, %d" % (sT1, sHW, UNIT))
w2_unit_part(sT0, sT1, 0, 0, 14)


def w2_two_units(n, slot0):
    a("s_lshl_b32 %s, %s, 3" % (sT0, sMH))
    a("s_add_u32 %s, %s, %d" % (sT0, sT0, n))
    a("s_mul_i32 %s, %s, %d" % (sT3, sT0, 112 * 896))
    a("s_mul_i32 %s, %s, %d" % (sT2, sKH, 7 * 8 * 896))
    a("s_add_u32 %s, %s, %s" % (sT3, sT3, sT2))
    a("s_mul_i32 %s, %s, %d" % (sT1, sMH, UNIT))
    a("s_mul_i32 %s, %s, 7168" % (sT2, sKH))
    a("s_add_u32 %s, %s, %s" % (sT1, sT1, sT2))
    for i in range(7):
        dma(vWO, W2, sT3, sT1, slot0 + i * 1024)
        if i < 6:
            a("s_add_u32 %s, %s, %d" % (sT3, sT3, 8 * 896))


w2_two_units(4, 4 * UNIT)
a("s_waitcnt vmcnt(0)")
a("s_barrier")
a("s_lshl_b32 %s, %s, 3" % (sT0, sMH))
a("s_add_u32 %s, %s, %s" % (sT0, sT0, sKH))
a("s_add_u32 %s, %s, 5" % (sT0, sT0))
a("s_mul_i32 %s, %s, %d" % (sT1, sHW, UNIT))
w2_unit_part(sT0, sT1, L_WO, 0, 14)
a("s_barrier")
w2_two_units(7, 0)
a("s_waitcnt vmcnt(0)")
a("s_barrier")
a("s_barrier")
a.label("Lend")
a("s_endpgm")
a.raw("Lcode_end:")
a.raw('.section .rodata,"a"')
a.raw(".p2align 6")
a.raw(".amdhsa_kernel %s" % KNAME)
a.raw("  .amdhsa_next_free_vgpr 256")
a.raw("  .amdhsa_next_free_sgpr 102")
a.raw("  .amdhsa_accum_offset 256")
a.raw("  .amdhsa_group_segment_fixed_size 0")
a.raw("  .amdhsa_kernarg_size 72")
a.raw("  .amdhsa_user_sgpr_count 2")
a.raw("  .amdhsa_user_sgpr_kernarg_segment_ptr 1")
a.raw("  .amdhsa_system_sgpr_workgroup_id_x 1")
a.raw(".end_amdhsa_kernel")
open(sys.argv[1], "w").write(a.text())
print("instructions:", a.count)
```

```python
import sys, math, struct, re, json
from asmlib import Asm, lds_conflicts

KNAME = "sequential_preLN__sliding_block__dense_activation_relu__prompt_kernel"
OPT = dict(stamps="", force_slow=0, nobg=0, t_w1=1, t_w2=1, pt_h1=0, up3=8, up4=4, up5=8, dry=0, psleep=0, gw=0, rotj=0, init2=1, pt_c=3, h1sc=1, bgA=1)
for a_ in sys.argv[2:]:
    k_, v_ = a_.split("=")
    OPT[k_] = v_ if k_ == "stamps" else int(v_)


def f32(x):
    return "0x%08x" % struct.unpack("<I", struct.pack("<f", x))[0]


QT = 336 * 256
WS_QKV = 0
WS_O = 6 << 20
WS_H = 8 << 20
WS_H1 = 10 << 20
WS_F1 = 17 << 20
WS_F2 = WS_F1 + 0x10000
WS_F3 = WS_F1 + 0x20000
WS_F4 = WS_F1 + 0x30000
WS_HS = WS_F1 + 0x40000
WS_ST = WS_F1 + 0x80000
WS_TS = 18 << 20
WS_SIZE = 32 << 20

L_XR = 86016
L_KV = 0
L_Q = 12 * 4096
L_WO = 86016
L_W1U = 144384
L_SCR = 144384
L_CSP = 158720
L_MISC = 160768
L_CS = L_MISC
L_ST = L_MISC + 384
L_EP = L_ST + 1024
L_CS1 = L_EP + 64
LDS_BYTES = 163840
UNIT = 14336

X, WQKV, WO, W1, W2, OUT, DBG, WS = ["s[%d:%d]" % (4 + 4 * i, 7 + 4 * i) for i in range(8)]
sG, sJ, sWAVE, sR0, sXCC, sFAST = "s36", "s37", "s38", "s39", "s40", "s41"
sEP = "s[42:43]"
sEPL, sEPH = "s42", "s43"
sROT, sHW, sMH2, sNB, sKH, sMH = "s44", "s45", "s46", "s47", "s48", "s49"
sHI = "s[50:51]"
sLT48 = "s[52:53]"
sQ3 = "s[54:55]"
sHW1K, sHW4K = "s56", "s57"
sCNT = "s58"
sSLOT = "s59"
sT0, sT1, sT2, sT3, sT4, sT5 = "s60", "s61", "s62", "s63", "s64", "s65"
sTS = "s[66:67]"
sTSOFF = "s68"
sXO = "s69"
sCX, sCW = "s70", "s71"
sTILE, sTILE4 = "s72", "s73"
sA, sB, sC, sD, sE, sF = "s74", "s75", "s76", "s77", "s78", "s79"

vL, vL31, vH, vR, vQ4, vL16, vTMP = "v1", "v2", "v3", "v4", "v5", "v6", "v7"
vXRES = 8
vFLG = 16
vT = 18
vZ = "v24"
vXOFF = "v25"
HP = 240


def v(i, n=1):
    return "v%d" % i if n == 1 else "v[%d:%d]" % (i, i + n - 1)


a = Asm()
STAMPS = {}


def stamp(name):
    if not OPT["stamps"] or not (name == "t0" or re.fullmatch(OPT["stamps"], name)):
        return
    idx = STAMPS.setdefault(name, len(STAMPS))
    assert idx < 30
    a(("s_memrealtime %s" if name.startswith("rt_") else "s_memtime %s") % sTS)
    a("s_waitcnt lgkmcnt(0)")
    a("v_mov_b32 v30, s66")
    a("v_mov_b32 v31, s67")
    a("v_mov_b32 v29, 0")
    a("s_mov_b64 exec, 1")
    a("buffer_store_dwordx2 v[30:31], v29, %s, %s offen offset:%d" % (WS, sTSOFF, idx * 8))
    a("s_mov_b64 exec, -1")


def dma(voff, srd, soff, lds_s, lds_imm, inst=0, sc1=False):
    if OPT["nobg"] and srd in (WO, W1, W2):
        return
    m = lds_imm - inst
    if lds_s is None:
        a("s_mov_b32 m0, %d" % m)
    else:
        a("s_add_u32 m0, %s, %d" % (lds_s, m))
    a("buffer_load_dwordx4 %s, %s, %s offen%s%s lds" % (voff, srd, soff, (" offset:%d" % inst) if inst else "", " sc1" if sc1 else ""))


def sum_s(dst, terms, const=0):
    first = True
    for sreg, mult in terms:
        tgt = dst if first else sT5
        if mult == 1:
            if first:
                a("s_mov_b32 %s, %s" % (dst, sreg))
            else:
                a("s_add_u32 %s, %s, %s" % (dst, dst, sreg))
            first = False
            continue
        if mult & (mult - 1) == 0:
            a("s_lshl_b32 %s, %s, %d" % (tgt, sreg, mult.bit_length() - 1))
        else:
            a("s_mul_i32 %s, %s, %d" % (tgt, sreg, mult))
        if not first:
            a("s_add_u32 %s, %s, %s" % (dst, dst, sT5))
        first = False
    if const:
        a("s_add_u32 %s, %s, %d" % (dst, dst, const))


def poll(vaddr, vd, name):
    lp, dn = a.newlabel("Lpoll_" + name), a.newlabel("Lpolld_" + name)
    a("s_mov_b32 %s, 0x20000" % sCNT)
    a.label(lp)
    a("buffer_load_dwordx2 %s, %s, %s, 0 offen sc1" % (v(vd, 2), vaddr, WS))
    a("s_sub_u32 %s, %s, 1" % (sCNT, sCNT))
    a("s_waitcnt vmcnt(0)")
    a("v_and_b32 %s, -8, %s" % (v(vd), v(vd)))
    a("v_cmp_ne_u64 vcc, %s, %s" % (sEP, v(vd, 2)))
    a("s_cmp_eq_u32 %s, 0" % sCNT)
    a("s_cbranch_scc1 %s" % dn)
    if OPT["psleep"]:
        a("s_cbranch_vccz %s" % dn)
        a("s_sleep %d" % OPT["psleep"])
        a("s_branch %s" % lp)
    else:
        a("s_cbranch_vccnz %s" % lp)
    a.label(dn)


def flag_store(soff, sc):
    a("s_mov_b64 exec, 1")
    a("buffer_store_dwordx2 %s, %s, %s, %s offen%s" % (v(vFLG, 2), vZ, WS, soff, sc))
    a("s_mov_b64 exec, -1")


def publish(stores, flag_soff, data_sc1=False):
    if data_sc1:
        for s_ in stores:
            a(s_.format(sc=" sc1"))
        stores = []

    def emit(sc):
        for s_ in stores:
            a(s_.format(sc=sc))
        a("s_waitcnt vmcnt(0)")
        flag_store(flag_soff, sc)
    ls, le = a.newlabel("Lslow"), a.newlabel("Lpub")
    a("s_cmp_eq_u32 %s, 0" % sFAST)
    a("s_cbranch_scc1 %s" % ls)
    emit("")
    a("s_branch %s" % le)
    a.label(ls)
    emit(" sc1")
    a.label(le)


def bf16r(dst, src):
    a("v_cvt_pk_bf16_f32 %s, %s, %s" % (dst, src, src))
    a("v_and_b32 %s, 0xffff0000, %s" % (dst, dst))


def ln_finish(sx, sxx, negmean, rstd, t0):
    a("v_mul_f32 %s, %s, %s" % (sx, f32(1.0 / 448), sx))
    a("v_mul_f32 %s, %s, %s" % (sxx, f32(1.0 / 448), sxx))
    a("v_fma_f32 %s, -%s, %s, %s" % (sxx, sx, sx, sxx))
    a("v_max_f32 %s, 0, %s" % (sxx, sxx))
    bf16r(sxx, sxx)
    a("v_add_f32 %s, %s, %s" % (sxx, f32(1e-5), sxx))
    bf16r(sxx, sxx)
    a("v_sqrt_f32 %s, %s" % (sxx, sxx))
    bf16r(sxx, sxx)
    a("v_rcp_f32 %s, %s" % (rstd, sxx))
    bf16r(t0, sx)
    a("v_sub_f32 %s, 0, %s" % (negmean, t0))


def xhalf_sum(x, t):
    a("v_mov_b32 %s, %s" % (t, x))
    a("v_permlane32_swap_b32 %s, %s" % (x, t))
    a("v_add_f32 %s, %s, %s" % (x, x, t))


def xrow_sum(x, t):
    a("v_mov_b32 %s, %s" % (t, x))
    a("v_permlane16_swap_b32 %s, %s" % (x, t))
    a("v_add_f32 %s, %s, %s" % (x, x, t))


def get_epoch_spin(name):
    lp, dn = "Lep_%s" % name, "Lepd_%s" % name
    a("s_mov_b32 %s, 0x20000" % sCNT)
    a.label(lp)
    a("s_waitcnt vmcnt(0)")
    a("v_readfirstlane_b32 %s, %s" % (sEPL, v(vFLG)))
    a("v_readfirstlane_b32 %s, %s" % (sEPH, v(vFLG + 1)))
    a("s_cmp_lg_u32 %s, 0" % sEPL)
    a("s_cbranch_scc1 %s" % dn)
    a("buffer_load_dwordx2 %s, %s, %s, 0 offen sc1" % (v(vFLG, 2), vZ, DBG))
    a("s_sub_u32 %s, %s, 1" % (sCNT, sCNT))
    a("s_cmp_lg_u32 %s, 0" % sCNT)
    a("s_cbranch_scc1 %s" % lp)
    a.label(dn)


hdr = open("sequential_preLN__sliding_block__dense_activation_relu__prompt.s.ref").read().split("\n")
for ln in hdr:
    if ln.startswith("; @launch"):
        a.raw("; @launch grid=(256,1,1) block=(512,1,1) lds=%d" % LDS_BYTES)
        break
    a.raw(ln)
a.raw('.amdgcn_target "amdgcn-amd-amdhsa--gfx950"')
a.raw(".text")
a.raw(".globl %s" % KNAME)
a.raw(".p2align 8")
a.raw(".type %s,@function" % KNAME)
a.raw("%s:" % KNAME)

a("s_load_dwordx16 s[72:87], s[0:1], 0")
a("s_load_dwordx2 s[88:89], s[0:1], 64")
a("s_getpc_b64 s[90:91]")
a.raw("Lpc:")
a("v_and_b32 %s, 63, v0" % vL)
a("v_lshrrev_b32 %s, 6, v0" % vTMP)
a("s_lshr_b32 %s, s2, 3" % sSLOT)
a("v_readfirstlane_b32 %s, %s" % (sWAVE, vTMP))
a("v_lshlrev_b32 %s, 7, %s" % (v(vT), vL))
a("s_cmp_ge_u32 s2, 256")
a("s_cbranch_scc1 Lend")
a("s_add_u32 %s, %s, %s" % (sT0, sSLOT, sWAVE))
a("s_and_b32 %s, %s, 7" % (sT0, sT0))
a("s_lshl_b32 %s, %s, 13" % (sT0, sT0))
a("v_add_u32 %s, %s, %s" % (v(vT), sT0, v(vT)))
a("v_min_u32 %s, Lcode_end-Lpc-4, %s" % (v(vT), v(vT)))
a("v_mov_b32 %s, s91" % v(vT + 1))
a("v_add_co_u32 %s, vcc, s90, %s" % (v(vT), v(vT)))
a("v_addc_co_u32 %s, vcc, 0, %s, vcc" % (v(vT + 1), v(vT + 1)))
a("s_cmp_ge_u32 %s, 2" % sWAVE)
a("s_cbranch_scc1 Lnocp")
a("global_load_dword v26, %s, off" % v(vT, 2))
a.label("Lnocp")
a("v_and_b32 %s, 31, v0" % vL31)
a("v_bfe_u32 %s, v0, 5, 1" % vH)
a("v_and_b32 %s, 15, v0" % vR)
a("v_bfe_u32 %s, v0, 4, 2" % vQ4)
a("v_lshlrev_b32 %s, 4, %s" % (vL16, vL))
a("v_mov_b32 %s, 0" % vZ)
a("s_and_b32 %s, s2, 7" % sT0)
a("s_lshr_b32 %s, %s, 4" % (sT2, sSLOT))
a("s_lshl_b32 %s, %s, 1" % (sG, sT0))
a("s_add_u32 %s, %s, %s" % (sG, sG, sT2))
a("s_and_b32 %s, %s, 15" % (sJ, sSLOT))
a("s_lshl_b32 %s, %s, 7" % (sR0, sG))
a("s_and_b32 %s, %s, 3" % (sHW, sWAVE))
a("s_lshl_b32 %s, %s, 10" % (sHW1K, sHW))
a("s_lshl_b32 %s, %s, 12" % (sHW4K, sHW))
if OPT["rotj"]:
    a("s_mul_i32 %s, %s, 3" % (sT3, sT2))
    a("s_add_u32 %s, %s, %s" % (sROT, sJ, sT3))
    for _ in range(2):
        a("s_sub_u32 %s, %s, 7" % (sT3, sROT))
        a("s_cmp_ge_u32 %s, 7" % sROT)
        a("s_cselect_b32 %s, %s, %s" % (sROT, sT3, sROT))
else:
    a("s_lshl_b32 %s, %s, 2" % (sROT, sT2))
vX = [32, 33, 34, 35]
vW = [36, 37, 38]
a("v_lshrrev_b32 %s, 3, %s" % (v(vT), vL))
a("s_lshl_b32 %s, %s, 5" % (sT0, sHW))
a("s_add_u32 %s, %s, %s" % (sT0, sT0, sR0))
a("v_add_u32 %s, %s, %s" % (v(vT), sT0, v(vT)))
a("v_mul_u32_u24 %s, 896, %s" % (v(vT), v(vT)))
a("v_and_b32 %s, 7, %s" % (v(vT + 1), vL))
a("v_xor_b32 %s, %s, %s" % (v(vT + 1), v(vT + 1), vQ4))
a("v_xor_b32 %s, 4, %s" % (v(vT + 2), v(vT + 1)))
for ii in range(4):
    a("v_lshl_add_u32 %s, %s, 4, %s" % (v(vX[ii]), v(vT + 1 + (ii & 1)), v(vT)))
    if ii:
        a("v_add_u32 %s, %d, %s" % (v(vX[ii]), ii * 8 * 896, v(vX[ii])))
a("s_mul_i32 %s, %s, %d" % (sT0, sHW, 16 * 2688))
a("s_mul_i32 %s, %s, 192" % (sT1, sJ))
a("s_add_u32 %s, %s, %s" % (sT0, sT0, sT1))
M12 = (1 << 16) // 12 + 1
for i in range(192):
    assert (i * M12) >> 16 == i // 12
for k in range(3):
    a("v_add_u32 %s, %d, %s" % (v(vT), 64 * k, vL))
    a("v_mul_u32_u24 %s, %d, %s" % (v(vT + 1), M12, v(vT)))
    a("v_lshrrev_b32 %s, 16, %s" % (v(vT + 1), v(vT + 1)))
    a("v_mul_u32_u24 %s, %d, %s" % (v(vT + 1), 2688 - 192, v(vT + 1)))
    a("v_lshl_add_u32 %s, %s, 4, %s" % (v(vW[k]), v(vT), v(vT + 1)))
    a("v_add_u32 %s, %s, %s" % (v(vW[k]), sT0, v(vW[k])))
a("s_mov_b32 %s, %s" % (sCX, sROT))
a("s_mov_b32 %s, %s" % (sCW, sROT))
a("s_mul_i32 s92, %s, 3072" % sHW)
sizes = [1835008, 1204224, 401408, 1605632, 1605632, 1835008, 256, WS_SIZE]
srcs = [72, 74, 76, 80, 82, 84, 86, 88]
for i in range(8):
    a("s_mov_b32 s%d, %d" % (4 + 4 * i + 2, sizes[i]))
    a("s_mov_b32 s%d, 0x00020000" % (4 + 4 * i + 3))
a("s_waitcnt lgkmcnt(0)")
for i in range(8):
    a("s_mov_b64 s[%d:%d], s[%d:%d]" % (4 + 4 * i, 5 + 4 * i, srcs[i], srcs[i] + 1))
a("s_cmp_ge_u32 %s, 14" % sJ)
a("s_cbranch_scc1 Lservice")
a("s_cmp_lt_u32 %s, 4" % sWAVE)
a("s_cbranch_scc1 Lmfma")


def common_setup():
    a("s_lshr_b32 %s, %s, 1" % (sKH, sHW))
    a("s_and_b32 %s, %s, 1" % (sMH, sHW))
    a("s_cmp_ge_u32 %s, 7" % sJ)
    a("s_cselect_b32 %s, 1, 0" % sMH2)
    a("s_mul_i32 %s, %s, 7" % (sT3, sMH2))
    a("s_sub_u32 %s, %s, %s" % (sNB, sJ, sT3))
    a("s_min_u32 %s, %s, 6" % (sNB, sNB))
    a("s_getreg_b32 %s, hwreg(HW_REG_XCC_ID)" % sXCC)
    a("s_and_b32 %s, %s, 7" % (sXCC, sXCC))
    a("s_mov_b32 s50, 0")
    a("s_mov_b32 s51, -1")
    a("s_mov_b32 s52, -1")
    a("s_mov_b32 s53, 0xffff")
    a("s_mov_b32 s54, 0")
    a("s_mov_b32 s55, 0xffff0000")
    a("s_mov_b32 %s, 0" % sFAST)
    a("s_mov_b32 %s, 0" % sEPL)
    a("s_mov_b32 %s, 0" % sEPH)
    if OPT["stamps"]:
        sum_s(sTSOFF, [("s2", 2048), (sWAVE, 256)], WS_TS)
    sum_s(sTILE, [(sG, 4), (sMH2, 2), (sMH, 1)])
    sum_s(sXO, [(sTILE, 32 * 896), (sNB, 128), (sKH, 64)])
    sum_s(sTILE4, [(sG, 4), (sHW, 1)])
    a("v_mul_u32_u24 %s, 896, %s" % (vXOFF, vL31))
    a("v_lshl_add_u32 %s, %s, 3, %s" % (vXOFF, vH, vXOFF))
    a("v_lshlrev_b32 %s, 7, %s" % (v(HP + 8), vL))
    a("v_lshrrev_b32 %s, 3, %s" % (v(vT), vL))
    a("v_mul_u32_u24 %s, 896, %s" % (v(vT), v(vT)))
    a("v_bfe_u32 %s, %s, 4, 1" % (v(vT + 1), vL))
    a("v_lshlrev_b32 %s, 2, %s" % (v(vT + 1), v(vT + 1)))
    a("v_and_b32 %s, 7, %s" % (v(vT + 2), vL))
    a("v_xor_b32 %s, %s, %s" % (v(vT + 1), v(vT + 1), v(vT + 2)))
    a("v_lshl_add_u32 %s, %s, 4, %s" % (v(HP), v(vT + 1), v(vT)))
    a("s_lshl_b32 %s, %s, 7" % (sT0, sNB))
    a("v_add_u32 %s, %s, %s" % (v(HP), sT0, v(HP)))
    a("s_mul_i32 %s, %s, 224" % (sT0, sJ))
    for k in range(7):
        a("v_add_u32 %s, %d, %s" % (v(vT), 64 * k, vL))
        a("v_mul_u32_u24 %s, %d, %s" % (v(vT + 1), (1 << 16) // 14 + 1, v(vT)))
        a("v_lshrrev_b32 %s, 16, %s" % (v(vT + 1), v(vT + 1)))
        a("v_mul_u32_u24 %s, %d, %s" % (v(vT + 1), 3584 - 224, v(vT + 1)))
        a("v_lshl_add_u32 %s, %s, 4, %s" % (v(HP + 1 + k), v(vT), v(vT + 1)))
        a("v_add_u32 %s, %s, %s" % (v(HP + 1 + k), sT0, v(HP + 1 + k)))


for i in range(448):
    assert (i * ((1 << 16) // 14 + 1)) >> 16 == i // 14
vWO = v(HP)
vW1 = [HP + 1 + k for k in range(7)]
vTCH = v(HP + 8)


def tr_base_192(dst, t0):
    a("v_lshrrev_b32 %s, 2, %s" % (t0, vR))
    a("v_lshl_add_u32 %s, %s, 3, %s" % (t0, vH, t0))
    a("v_mul_u32_u24 %s, 192, %s" % (dst, t0))
    a("v_bfe_u32 %s, %s, 4, 1" % (t0, vL))
    a("v_lshl_add_u32 %s, %s, 5, %s" % (dst, t0, dst))
    a("v_and_b32 %s, 3, %s" % (t0, vL))
    a("v_lshl_add_u32 %s, %s, 3, %s" % (dst, t0, dst))


assert lds_conflicts([(8 * (l >> 5) + ((l & 15) >> 2)) * 192 + ((l >> 4) & 1) * 32 + (l & 3) * 8 for l in range(64)], "tr") == 0


def w1_block(base):
    a("s_add_u32 %s, %s, %d" % (sT0, sHW, base))
    a("s_mul_i32 %s, %s, %d" % (sT1, sT0, 32 * 3584))
    a("s_mul_i32 %s, %s, 7168" % (sT2, sHW))
    ldsb = base * 7168 if base < 12 else L_W1U + (base - 12) * 7168
    for k in range(7):
        dma(v(vW1[k]), W1, sT1, sT2, ldsb + k * 1024)


def touch_lines(srd, s_base, n, sc1=False):
    cnt = 0
    done = 0
    while done < n:
        k = min(64, n - done)
        if k < 64:
            a("v_min_u32 %s, %d, %s" % (v(vT), (k - 1) * 128, vTCH))
            vo = v(vT)
        else:
            vo = vTCH
        a("buffer_load_dword v26, %s, %s, %s offen%s" % (vo, srd, s_base, " sc1" if sc1 else ""))
        cnt += 1
        done += k
        if done < n:
            a("s_add_u32 %s, %s, %d" % (s_base, s_base, 64 * 128))
    return cnt


def touch_range(srd, base, total):
    if OPT["nobg"]:
        return 0
    per = total // 128 // 128
    assert per * 128 * 128 == total, (total, per)
    sum_s(sT0, [(sSLOT, 4 * per * 128), (sHW, per * 128)], base)
    return touch_lines(srd, sT0, per)


def wo_dma():
    a("s_mul_i32 %s, %s, %d" % (sT0, sHW, 8 * 896))
    for k in range(15):
        if k == 14:
            a("s_mov_b32 %s, %d" % (sT0, 56 * 8 * 896))
            dma(vWO, WO, sT0, None, L_WO + 56 * 1024)
        else:
            dma(vWO, WO, sT0, sHW1K, L_WO + k * 4096)
            a("s_add_u32 %s, %s, %d" % (sT0, sT0, 32 * 896))


def vpad_prefill():
    a("v_mov_b32 %s, 0x3f80" % v(vT + 2))
    a("v_mov_b32 %s, 0" % v(vT + 3))
    a("s_mul_i32 %s, %s, %d" % (sT0, sHW, 3 * 4096))
    a("v_lshlrev_b32 %s, 3, %s" % (v(vT), vL31))
    a("v_lshl_add_u32 %s, %s, 12, %s" % (v(vT), vH, v(vT)))
    a("v_add_u32 %s, %s, %s" % (v(vT), sT0, v(vT)))
    a("ds_write_b64 %s, %s offset:%d" % (v(vT), v(vT + 2, 2), L_KV + 2048 + 1792))
    a("ds_write_b64 %s, %s offset:%d" % (v(vT), v(vT + 2, 2), L_KV + 4096 + 2048 + 1792))


sFA, sFB, sFC, sFD = "s84", "s85", "s86", "s87"
vIF = 236


def fetch_setup():
    a("v_lshrrev_b32 %s, 3, %s" % (v(vT), vL))
    a("v_min_u32 %s, 2, %s" % (v(vT), v(vT)))
    a("v_bfe_u32 %s, %s, 1, 2" % (v(vT + 1), vL))
    a("v_min_u32 %s, 2, %s" % (v(vT + 1), v(vT + 1)))
    a("v_cmp_gt_u32 vcc, 2, %s" % v(vT))
    a("v_max_u32 %s, 1, %s" % (v(vT + 2), v(vT + 1)))
    a("v_cndmask_b32 %s, %s, %s, vcc" % (v(vT + 1), v(vT + 1), v(vT + 2)))
    a("v_mul_u32_u24 %s, 448, %s" % (v(vT + 1), v(vT + 1)))
    a("v_and_b32 %s, 1, %s" % (v(vT + 2), vL))
    a("v_mul_u32_u24 %s, 31, %s" % (v(vT + 2), v(vT + 2)))
    a("s_mul_i32 %s, %s, 7" % (sT0, sJ))
    a("s_lshr_b32 %s, %s, 1" % (sE, sT0))
    a("s_lshl_b32 %s, %s, 3" % (sT0, sE))
    a("v_add3_u32 %s, %s, %s, %s" % (v(vT + 1), v(vT + 1), v(vT + 2), sT0))
    M96 = (1 << 18) // 96 + 1
    for i in range(1348):
        assert (i * M96) >> 18 == i // 96
    a("v_mul_u32_u24 %s, %d, %s" % (v(vT + 1), M96, v(vT + 1)))
    a("v_lshrrev_b32 %s, 18, %s" % (v(vT + 1), v(vT + 1)))
    a("v_min_u32 %s, 13, %s" % (v(vT + 1), v(vT + 1)))
    a("v_add_u32 %s, %s, %s" % (v(vT + 2), sG, v(vT)))
    a("v_cmp_gt_u32 vcc, 2, %s" % v(vT + 2))
    a("v_subrev_u32 %s, 2, %s" % (v(vT + 2), v(vT + 2)))
    a("v_mov_b32 %s, %s" % (v(vT + 3), sG))
    a("v_cndmask_b32 %s, %s, %s, vcc" % (v(vT + 2), v(vT + 2), v(vT + 3)))
    a("v_lshlrev_b32 %s, 9, %s" % (v(vT + 2), v(vT + 2)))
    a("v_lshl_add_u32 %s, %s, 3, %s" % (v(vT + 2), v(vT + 1), v(vT + 2)))
    sum_s(sT0, [(sHW, 128)], WS_F1)
    a("v_add_u32 v27, %s, %s" % (sT0, v(vT + 2)))
    sum_s(sFC, [(sTILE4, QT), (sE, 512)], WS_QKV)
    a("s_sub_u32 %s, %s, %d" % (sFB, sFC, 4 * QT))
    a("s_sub_u32 %s, %s, %d" % (sFA, sFC, 8 * QT))
    a("s_cmp_lt_u32 %s, 1" % sG)
    a("s_cselect_b32 %s, 0x40000000, %s" % (sFB, sFB))
    a("s_cmp_lt_u32 %s, 2" % sG)
    a("s_cselect_b32 %s, 0x40000000, %s" % (sFA, sFA))
    a("s_lshl_b32 %s, %s, 11" % (sFD, sHW))


SC, KB, QF, M0R, M16R, PF, VB, OA = 32, 100, 124, 128, 132, 136, 148, 172
LS, ONE4 = 196, 200
vKA = [180, 181]
vVA = [184, 185]
vQA = "v186"
vNEG, vGFA, vGF, vOA = "v188", "v189", 190, "v192"
sFQ, sFO = "s[80:81]", "s[82:83]"


def p2_setup():
    a("s_mul_i32 %s, %s, 7" % (sT4, sJ))
    a("s_lshr_b32 %s, %s, 1" % (sT4, sT4))
    a("v_add_u32 %s, %s, %s" % (v(vT + 3), sT4, vQ4))
    a("v_and_b32 %s, 1, %s" % (v(vT + 3), v(vT + 3)))
    a("v_mul_u32_u24 %s, 12, %s" % (v(vT + 3), v(vT + 3)))
    a("v_bfe_u32 %s, %s, 1, 1" % (v(vT + 4), vR))
    a("v_add_u32 %s, %s, %s" % (v(vT + 5), sT4, v(vT + 4)))
    a("v_and_b32 %s, 1, %s" % (v(vT + 5), v(vT + 5)))
    a("v_mul_u32_u24 %s, 12, %s" % (v(vT + 5), v(vT + 5)))
    for par in range(2):
        a("s_add_u32 %s, %s, %d" % (sT0, sWAVE, par))
        a("s_lshr_b32 %s, %s, 1" % (sT1, sT0))
        a("s_lshl_b32 %s, %s, 12" % (sT1, sT1))
        a("s_and_b32 %s, %s, 1" % (sT0, sT0))
        a("s_lshl_b32 %s, %s, 4" % (sT0, sT0))
        a("v_add_u32 %s, %s, %s" % (v(vT), sT0, vR))
        a("v_xor_b32 %s, %s, %s" % (v(vT), v(vT), v(vT + 3)))
        a("v_lshlrev_b32 %s, 4, %s" % (v(vT), v(vT)))
        a("v_lshl_add_u32 %s, %s, 9, %s" % (v(vT), vQ4, v(vT)))
        a("v_add_u32 %s, %s, %s" % (v(vKA[par]), sT1, v(vT)))
        if par == 0:
            a("s_lshr_b32 %s, %s, 1" % (sT2, sT1))
            a("s_add_u32 %s, %s, %d" % (sT2, sT2, L_Q))
            a("v_add_u32 %s, %s, %s" % (vQA, sT2, v(vT)))
        a("v_lshrrev_b32 %s, 2, %s" % (v(vT), vR))
        a("v_lshl_add_u32 %s, %s, 2, %s" % (v(vT), vQ4, v(vT)))
        a("v_add_u32 %s, %s, %s" % (v(vT), sT0, v(vT)))
        a("v_xor_b32 %s, %s, %s" % (v(vT), v(vT), v(vT + 5)))
        a("v_lshlrev_b32 %s, 4, %s" % (v(vT), v(vT)))
        a("v_lshl_add_u32 %s, %s, 9, %s" % (v(vT), v(vT + 4), v(vT)))
        a("v_and_b32 %s, 1, %s" % (v(vT + 1), vR))
        a("v_lshl_add_u32 %s, %s, 3, %s" % (v(vT), v(vT + 1), v(vT)))
        a("v_add_u32 %s, %s, %s" % (v(vVA[par]), sT1, v(vT)))
    for o_ in range(2):
        for half in range(2):
            assert lds_conflicts([(l >> 4) * 512 + (((16 * half + (l & 15)) ^ (12 * ((o_ + (l >> 4)) & 1))) * 16) for l in range(64)], "b128") == 0
            assert lds_conflicts([((l >> 1) & 1) * 512 + (((16 * half + 4 * (l >> 4) + ((l & 15) >> 2)) ^ (12 * ((o_ + ((l >> 1) & 1)) & 1))) * 16) + (l & 1) * 8 for l in range(64)], "tr") == 0
    a("s_and_b32 %s, %s, 1" % (sT0, sJ))
    a("s_cmp_eq_u32 %s, 0" % sT0)
    a("s_cselect_b32 s80, 0, 0xffff")
    a("s_mov_b32 s81, 0")
    a("s_mov_b32 s82, 0")
    a("s_cselect_b32 s83, 0xffff0000, 0")
    for k in range(4):
        a("v_mov_b32 %s, 0x3f803f80" % v(ONE4 + k))
    a("v_mov_b32 %s, 0xf149f2ca" % vNEG)
    a("v_lshlrev_b32 %s, 2, %s" % (v(vT), vQ4))
    a("v_sub_u32 %s, %s, %s" % (v(vT), v(vT), vR))
    for c in range(4):
        a("v_cmp_lt_i32 vcc, %d, %s" % (-c, v(vT)))
        a("v_cndmask_b32 %s, %s, %s, vcc" % (v(M0R + c), vNEG, vZ))
        a("v_cndmask_b32 %s, %s, %s, vcc" % (v(M16R + c), vZ, vNEG))
    sum_s(sT0, [(sG, 512)], WS_F1)
    a("v_lshlrev_b32 %s, 3, %s" % (vGFA, vR))
    a("v_add_u32 %s, %s, %s" % (vGFA, sT0, vGFA))
    a("s_lshr_b32 %s, %s, 1" % (sT1, sWAVE))
    a("s_and_b32 %s, %s, 1" % (sT2, sWAVE))
    sum_s(sE, [(sG, 131072), (sT1, 32768), (sJ, 2048), (sT2, 256)], WS_O)
    sum_s(sF, [(sG, 1024), (sWAVE, 128), (sJ, 8)], WS_F2)
    a("v_lshlrev_b32 %s, 9, %s" % (vOA, vQ4))
    a("v_lshl_add_u32 %s, %s, 4, %s" % (vOA, vR, vOA))
    a("v_mov_b32 %s, 0" % v(PF + 8 + 2))
    a("v_mov_b32 %s, 0" % v(PF + 8 + 3))




def adv(s):
    a("s_add_u32 %s, %s, 1" % (s, s))
    a("s_cmp_eq_u32 %s, 7" % s)
    a("s_cselect_b32 %s, 0, %s" % (s, s))


def issue_w(c):
    a("s_mul_i32 %s, %s, %d" % (sT1, sCW, 64 * 2688))
    for k in range(3):
        dma(v(vW[k]), WQKV, sT1, "s92", c * 12288 + k * 1024)
    adv(sCW)


def issue_x(c):
    a("s_lshl_b32 %s, %s, 7" % (sT0, sCX))
    for ii in range(4):
        dma(v(vX[ii]), X, sT0, sHW4K, L_XR + (c % 4) * 16384 + ii * 1024)
    adv(sCX)


GW = [{0: [0, 1], 1: [2, 3], 2: [4], 3: [5], 4: [6], 5: [], 6: []},
      {0: [0], 1: [1], 2: [2, 3], 3: [4, 5], 4: [6], 5: [], 6: []},
      {0: [0], 1: [1, 2], 2: [3, 4], 3: [5], 4: [6], 5: [], 6: []}][OPT["gw"]]


def issue_group(c):
    ws = list(GW[c])
    while ws and (ws[0] <= c or (OPT["gw"] == 0 and c <= 1)):
        issue_w(ws.pop(0))
    issue_x(c)
    for w_ in ws:
        issue_w(w_)
    return 4 + 3 * len(GW[c])


groups = [issue_group(0), issue_group(1)]
common_setup()
stamp("t0")
stamp("rt_start")
hCS = [48, 49, 50, 51, 52, 53]
hWA, hWA2 = "v54", "v55"
HBW = 60
hST = 76
for r_ in hCS:
    a("v_mov_b32 %s, 0" % v(r_))
tr_base_192(hWA, v(vT))
a("v_add_u32 %s, s92, %s" % (hWA, hWA))
a("v_add_u32 %s, %d, %s" % (hWA2, 5 * 12288, hWA))
a("v_lshlrev_b32 v56, 4, %s" % vL31)
a("v_mov_b32 v57, 0x3f803f80")
sum_s(sA, [(sTILE4, 512)], WS_ST)


def colsum_w(c):
    if OPT["dry"] & 1:
        return
    base, off = (hWA2, (c - 5) * 12288) if c >= 5 else (hWA, c * 12288)
    for p3 in range(3):
        for hh in range(2):
            a("ds_read_b64_tr_b16 %s, %s offset:%d" % (v(HBW + 4 * p3 + 2 * hh, 2), base, off + p3 * 64 + hh * 768))
    a("s_waitcnt lgkmcnt(0)")
    for i in range(4):
        for p3 in range(3):
            a("v_dot2c_f32_bf16 %s, %s, v57" % (v(hCS[2 * p3]), v(HBW + 4 * p3 + i)))


for c in range(7):
    after = sum(groups[c + 1:])
    if c == 6:
        a("v_mov_b32 %s, %d" % (v(vT), L_EP))
        a("ds_read_b64 %s, %s" % (v(vFLG, 2), v(vT)))
        a("s_waitcnt lgkmcnt(0)")
        a("v_readfirstlane_b32 %s, %s" % (sEPL, v(vFLG)))
        a("v_readfirstlane_b32 %s, %s" % (sEPH, v(vFLG + 1)))
        a("v_or_b32 %s, %s, %s" % (v(vFLG), sXCC, v(vFLG)))
        a("s_mov_b32 %s, 0x20000" % sCNT)
        a("s_waitcnt vmcnt(%d)" % sum(groups[8:]))
        a.label("Lst_loop")
        a("v_cmp_ne_u32 vcc, %s, %s" % (sEPL, v(hST + 1)))
        a("v_cmp_ne_u32 s[94:95], %s, %s" % (sEPH, v(hST + 3)))
        a("s_or_b64 vcc, vcc, s[94:95]")
        a("s_cbranch_scc0 Lst_ok")
        a("buffer_load_dwordx4 %s, v56, %s, %s offen sc1" % (v(hST, 4), WS, sA))
        a("s_sub_u32 %s, %s, 1" % (sCNT, sCNT))
        a("s_waitcnt vmcnt(0)")
        a("s_cmp_lg_u32 %s, 0" % sCNT)
        a("s_cbranch_scc1 Lst_loop")
        a.label("Lst_ok")
        sum_s(sT0, [(sHW, 256)], L_ST)
        a("v_lshl_add_u32 %s, %s, 2, %s" % (v(vT), vL31, sT0))
        a("ds_write_b32 %s, %s" % (v(vT), v(hST)))
        a("ds_write_b32 %s, %s offset:128" % (v(vT), v(hST + 2)))
        a("s_waitcnt lgkmcnt(0)")
    else:
        a("s_waitcnt vmcnt(%d)" % after)
    a("s_barrier")
    stamp("h_b%d" % c)
    if c == 0:
        groups.append(issue_group(2))
    if c + 3 <= 6:
        groups.append(issue_group(c + 3))
    if c == 3:
        a("buffer_load_dwordx4 %s, v56, %s, %s offen sc1" % (v(hST, 4), WS, sA))
        groups.append(1)
    if c == OPT["pt_c"] and OPT["pt_h1"] == 3:
        sum_s(sT0, [(sG, 448 * 1024), (sJ, 32 * 1024), (sHW, 8192)], WS_H1)
        groups.append(touch_lines(WS, sT0, 64, sc1=True))
    for w_ in GW[c]:
        colsum_w(w_)
    if c == 4:
        for p3 in range(3):
            a("v_add_f32 %s, %s, %s" % (v(hCS[2 * p3]), v(hCS[2 * p3]), v(hCS[2 * p3 + 1])))
            xhalf_sum(v(hCS[2 * p3]), v(vT))
        sum_s(sT0, [(sHW, 384)], L_CSP)
        a("v_lshl_add_u32 %s, %s, 2, %s" % (v(vT), vL31, sT0))
        for p3 in range(3):
            a("ds_write_b32 %s, %s offset:%d" % (v(vT), v(hCS[2 * p3]), 128 * p3))
        a("s_waitcnt lgkmcnt(0)")
    if c == 5:
        a("s_min_u32 %s, %s, 2" % (sT0, sHW))
        a("s_lshl_b32 %s, %s, 7" % (sT0, sT0))
        a("s_add_u32 %s, %s, %d" % (sT1, sT0, L_CSP))
        a("v_lshl_add_u32 %s, %s, 2, %s" % (v(vT + 4), vL31, sT1))
        a("s_add_u32 %s, %s, %d" % (sT1, sT0, L_CS))
        a("v_lshl_add_u32 %s, %s, 2, %s" % (v(vT + 5), vL31, sT1))
        for k in range(4):
            a("ds_read_b32 %s, %s offset:%d" % (v(HBW + k), v(vT + 4), 384 * k))
        a("s_waitcnt lgkmcnt(0)")
        a("v_add_f32 %s, %s, %s" % (v(HBW), v(HBW), v(HBW + 1)))
        a("v_add_f32 %s, %s, %s" % (v(HBW + 2), v(HBW + 2), v(HBW + 3)))
        a("v_add_f32 %s, %s, %s" % (v(HBW), v(HBW), v(HBW + 2)))
        a("ds_write_b32 %s, %s" % (v(vT + 5), v(HBW)))
a("s_barrier")
wo_dma()
stamp("h_wo")
a("s_branch Lp2")

a.label("Lservice")
a("s_sub_u32 %s, %s, 14" % (sT0, sJ))
sum_s(sT1, [(sT0, 64), (sWAVE, 8), (sR0, 1)])
a("s_mul_i32 %s, %s, 896" % (sT2, sT1))
a("v_lshrrev_b32 %s, 3, %s" % (v(vT), vL))
a("v_mul_u32_u24 %s, 896, %s" % (v(40), v(vT)))
a("v_and_b32 %s, 7, %s" % (v(vT + 1), vL))
a("v_lshl_add_u32 %s, %s, 4, %s" % (v(40), v(vT + 1), v(40)))
SX = 44
for i in range(7):
    a("buffer_load_dwordx4 %s, v40, %s, %s offen offset:%d" % (v(SX + 4 * i, 4), X, sT2, 128 * i))
a("buffer_load_dwordx2 %s, %s, %s, 0 offen sc1" % (v(vFLG, 2), vZ, DBG))
a("s_lshl_b32 %s, %s, 4" % (sA, sT1))
a("s_add_u32 %s, %s, %d" % (sA, sA, WS_ST))
a("v_lshlrev_b32 v41, 4, %s" % v(vT))
common_setup()
stamp("t0")
stamp("rt_start")
a("v_mov_b32 v42, 0")
a("v_mov_b32 v43, 0")
a("v_mov_b32 v39, 0x3f803f80")
a("s_waitcnt vmcnt(1)")
for i in range(28):
    a("v_dot2c_f32_bf16 v42, %s, v39" % v(SX + i))
    a("v_dot2c_f32_bf16 v43, %s, %s" % (v(SX + i), v(SX + i)))
for sw in (0x041F, 0x081F, 0x101F):
    a("ds_swizzle_b32 %s, v42 offset:0x%x" % (v(vT + 2), sw))
    a("ds_swizzle_b32 %s, v43 offset:0x%x" % (v(vT + 3), sw))
    a("s_waitcnt lgkmcnt(0)")
    a("v_add_f32 v42, v42, %s" % v(vT + 2))
    a("v_add_f32 v43, v43, %s" % v(vT + 3))
ln_finish("v42", "v43", v(SX), v(SX + 2), v(vT + 2))
get_epoch_spin("svc")
a("v_mov_b32 %s, %s" % (v(SX + 1), sEPL))
a("v_mov_b32 %s, %s" % (v(SX + 3), sEPH))
a("v_or_b32 %s, %s, %s" % (v(vFLG), sXCC, v(vFLG)))
a("buffer_store_dwordx4 %s, v41, %s, %s offen sc1" % (v(SX, 4), WS, sA))
sum_s(sT0, [(sG, 512), (sJ, 8)], WS_F1)
flag_store(sT0, " sc1")
stamp("svc_st")
a("s_waitcnt vmcnt(0)")
a("s_barrier")
a("s_sub_u32 %s, %s, 14" % (sT0, sJ))
sum_s(sT4, [(sT0, 8), (sWAVE, 1)])
sum_s(sT1, [(sG, 131072), (sT4, 8192)], WS_O)
touch_lines(WS, sT1, 64, sc1=True)
sum_s(sT1, [(sG, 114688), (sT4, 7168)], WS_H)
touch_lines(WS, sT1, 56, sc1=True)
sum_s(sT1, [(sG, 16384), (sT4, 1024)], WS_HS)
touch_lines(WS, sT1, 8, sc1=True)
sum_s(sT1, [(sG, 1024)], WS_F2)
touch_lines(WS, sT1, 8, sc1=True)
sum_s(sT1, [(sG, 512)], WS_F3)
touch_lines(WS, sT1, 4, sc1=True)
sum_s(sT1, [(sG, 512)], WS_F4)
touch_lines(WS, sT1, 4, sc1=True)
if OPT["pt_h1"] == 2:
    sum_s(sT1, [(sG, 448 * 1024), (sT4, 28 * 1024)], WS_H1)
    touch_lines(WS, sT1, 224, sc1=True)
fetch_setup()
a("s_cmp_lt_u32 %s, 4" % sWAVE)
a("s_cbranch_scc1 Lfetch")
a("s_branch Lp2")

a.label("Lmfma")
a("s_or_b32 %s, s2, %s" % (sT0, sWAVE))
a("s_cmp_lg_u32 %s, 0" % sT0)
a("s_cbranch_scc1 Lnoep")
a("s_memrealtime s[94:95]")
a("s_waitcnt lgkmcnt(0)")
a("s_lshl_b32 %s, s94, 4" % sT1)
a("s_or_b32 %s, %s, 8" % (sT1, sT1))
a("s_mul_i32 %s, s94, 0x9e3779b1" % sT2)
a("s_add_u32 %s, %s, s95" % (sT2, sT2))
a("v_mov_b32 %s, %s" % (v(vT), sT1))
a("v_mov_b32 %s, %s" % (v(vT + 1), sT2))
a("s_mov_b64 exec, 1")
a("buffer_store_dwordx2 %s, %s, %s, 0 offen sc1" % (v(vT, 2), vZ, DBG))
a("s_mov_b64 exec, -1")
a.label("Lnoep")
common_setup()
stamp("t0")
stamp("rt_start")
ACC = 32
FB = 80
vXA = [148, 149, 150, 151]
vWA, vWA2 = "v152", "v153"
vSA, vCA = "v154", "v155"
vQo = ["v156", "v157"]
CS = 160
PK = 208
vNM, vRS = 232, 234
a("v_bfe_u32 %s, %s, 1, 3" % (v(vT), vL31))
a("v_xor_b32 %s, %s, %s" % (v(vT), v(vT), vH))
a("v_lshlrev_b32 %s, 7, %s" % (v(vT + 1), vL31))
a("v_add_u32 %s, %s, %s" % (v(vT + 1), sHW4K, v(vT + 1)))
a("v_add_u32 %s, %d, %s" % (v(vT + 1), L_XR, v(vT + 1)))
for s in range(4):
    a("v_xor_b32 %s, %d, %s" % (v(vT + 2), 2 * s, v(vT)))
    a("v_lshl_add_u32 %s, %s, 4, %s" % (v(vXA[s]), v(vT + 2), v(vT + 1)))
    assert lds_conflicts([(l & 31) * 128 + (((2 * s + (l >> 5)) ^ (((l & 31) >> 1) & 7)) * 16) for l in range(64)], "b128") == 0
tr_base_192(vWA, v(vT))
a("v_add_u32 %s, %d, %s" % (vWA2, 5 * 12288, vWA))
sum_s(sT0, [(sHW, 256)], L_ST)
a("v_lshl_add_u32 %s, %s, 2, %s" % (vSA, vL31, sT0))
a("v_lshlrev_b32 %s, 4, %s" % (vCA, vH))
a("v_add_u32 %s, %d, %s" % (vCA, L_CS, vCA))
a("v_mul_u32_u24 %s, 12, %s" % (v(vT), vH))
a("v_xor_b32 %s, %s, %s" % (v(vT), v(vT), vL))
a("v_lshlrev_b32 %s, 4, %s" % (vQo[0], v(vT)))
sum_s(sA, [(sTILE4, QT), (sJ, 12 * 512)], WS_QKV)
a("s_add_u32 %s, %s, 4096" % (sC, sA))
sum_s(sD, [(sTILE4, 128), (sJ, 8)], WS_F1)


def p1_reads(c, s):
    if OPT["dry"] & 2:
        return
    fb = FB + 16 * s
    a("ds_read_b128 %s, %s offset:%d" % (v(fb, 4), v(vXA[s]), (c % 4) * 16384))
    base, off = (vWA2, (c - 5) * 12288) if c >= 5 else (vWA, c * 12288)
    for p3 in range(3):
        for hh in range(2):
            a("ds_read_b64_tr_b16 %s, %s offset:%d" % (v(fb + 4 + 4 * p3 + 2 * hh, 2), base, off + p3 * 64 + s * 3072 + hh * 768))


def p1_mfma(c, s, fill=None):
    if OPT["dry"] & 2:
        return
    fb = FB + 16 * s
    first = (c == 0 and s == 0)
    for p3 in range(3):
        acc = v(ACC + 16 * p3, 16)
        a("v_mfma_f32_32x32x16_bf16 %s, %s, %s, %s" % (acc, v(fb + 4 + 4 * p3, 4), v(fb, 4), "0" if first else acc))
        if fill:
            for _ in range(6):
                if fill:
                    a(fill.pop(0))


for k in range(4):
    a("v_mov_b32 %s, -1" % v(PK + k))
for i in range(6):
    a("buffer_store_dwordx4 %s, %s, %s, %s offen offset:%d sc1" % (v(PK, 4), vL16, WS, sA if i < 4 else sC, 1024 * (i % 4)))
a("buffer_load_dwordx2 %s, %s, %s, 0 offen sc1" % (v(vFLG, 2), vZ, DBG))
fetch_setup()
a("s_barrier")
stamp("m_b0")
p1_reads(0, 0)
p1_reads(0, 1)
for c in range(7):
    fill = []
    if c == 1:
        for jj in range(4):
            a("buffer_load_dwordx2 %s, %s, %s, %s offen offset:%d" % (v(vXRES + 2 * jj, 2), vXOFF, X, sXO, 16 * jj))
    if c == 5:
        a("buffer_load_dwordx2 %s, v27, %s, 0 offen sc1" % (v(vIF, 2), WS))
    a("s_waitcnt lgkmcnt(7)")
    p1_mfma(c, 0)
    p1_reads(c, 2)
    a("s_waitcnt lgkmcnt(7)")
    p1_mfma(c, 1)
    p1_reads(c, 3)
    if c == 6:
        a("ds_read_b32 %s, %s" % (v(vNM), vSA))
        a("ds_read_b32 %s, %s offset:128" % (v(vRS), vSA))
        a("s_waitcnt lgkmcnt(9)")
        p1_mfma(c, 2)
        a("s_waitcnt lgkmcnt(2)")
        for i in range(12):
            a("ds_read_b128 %s, %s offset:%d" % (v(CS + 4 * i, 4), vCA, 32 * i))
        p1_mfma(c, 3)
    else:
        a("s_waitcnt lgkmcnt(7)")
        p1_mfma(c, 2)
        if c == 0:
            get_epoch_spin("m")
            a("v_mov_b32 %s, %d" % (v(vT + 2), L_EP))
            a("ds_write_b64 %s, %s" % (v(vT + 2), v(vFLG, 2)))
            a("v_or_b32 %s, %s, %s" % (v(vFLG), sXCC, v(vFLG)))
            flag_store(sD, " sc1")
        a("s_waitcnt lgkmcnt(0)")
        a("s_barrier")
        stamp("m_b%d" % (c + 1))
        p1_reads(c + 1, 0)
        p1_reads(c + 1, 1)
        p1_mfma(c, 3)
a("s_waitcnt lgkmcnt(12)")
a("v_mul_f32 %s, %s, %s" % (v(vNM), v(vNM), v(vRS)))
a("v_mov_b32 %s, %s" % (v(vRS + 1), v(vRS)))
a("v_mov_b32 %s, %s" % (v(vNM + 1), v(vNM)))
stamp("m_p1end")
for i in range(3):
    a("s_waitcnt lgkmcnt(%d)" % (8 - 4 * i))
    for k in range(8):
        r_ = CS + 16 * i + 2 * k
        a("v_pk_mul_f32 %s, %s, %s" % (v(r_, 2), v(r_, 2), v(vNM, 2)))
for i in range(3):
    for k in range(8):
        r_ = ACC + 16 * i + 2 * k
        a("v_pk_fma_f32 %s, %s, %s, %s" % (v(r_, 2), v(r_, 2), v(vRS, 2), v(CS + 16 * i + 2 * k, 2)))
    for k in range(8):
        a("v_cvt_pk_bf16_f32 %s, %s, %s" % (v(PK + 8 * i + k), v(ACC + 16 * i + 2 * k), v(ACC + 16 * i + 2 * k + 1)))
    for m in range(2):
        for k in range(2):
            a("v_permlane32_swap_b32 %s, %s" % (v(PK + 8 * i + 4 * m + k), v(PK + 8 * i + 4 * m + 2 + k)))
    for m in range(2):
        a("buffer_store_dwordx4 %s, %s, %s, %s offen offset:%d sc1" % (v(PK + 8 * i + 4 * m, 4), vQo[0], WS, sA if i < 2 else sC, (2048 * i if i < 2 else 0) + 1024 * m))
stamp("m_epi1")
stamp("rt_epi1")
a("s_barrier")
a("s_waitcnt vmcnt(6)")
a("v_and_b32 %s, -8, %s" % (v(vIF), v(vIF)))
a("v_cmp_ne_u64 vcc, %s, %s" % (sEP, v(vIF, 2)))
a("s_cbranch_vccz Lfetch_go")

a.label("Lfetch")
poll("v27", vT + 2, "f1")
a.label("Lfetch_go")
stamp("m_f1ok")
stamp("rt_f1ok")
a("v_add_u32 v32, %s, %s" % (sHW4K, vL16))
a("v_add_u32 v33, %s, %s" % (sFD, vL16))
a("s_mov_b32 %s, 0x4000" % sCNT)


def fetch_dma():
    for kind, sb in ((2, sFC), (1, sFB), (0, sFA)):
        if kind == 2:
            dma(vL16, WS, sb, sFD, L_Q, sc1=True)
            dma(vL16, WS, sb, sFD, L_Q + 1024, inst=1024, sc1=True)
        a("s_add_u32 %s, %s, %d" % (sT0, sb, 56 * 512))
        a("s_add_u32 %s, %s, %d" % (sT1, sb, 112 * 512))
        lb = L_KV + kind * 16384
        dma(vL16, WS, sT0, sHW4K, lb, sc1=True)
        dma(vL16, WS, sT0, sHW4K, lb + 1024, inst=1024, sc1=True)
        dma(vL16, WS, sT1, sHW4K, lb + 2048, sc1=True)
        dma(vL16, WS, sT1, sHW4K, lb + 3072, inst=1024, sc1=True)


fetch_dma()
p2_setup()
a.label("Lfetch_val")
VR = 36
order = [("v33", L_Q), ("v33", L_Q + 1024)] + [("v32", L_KV + kind * 16384 + 1024 * q) for kind in (2, 1, 0) for q in range(4)]
for n, (ad, off) in enumerate(order):
    if n in (0, 6, 10):
        a("s_waitcnt vmcnt(%d)" % {0: 8, 6: 4, 10: 0}[n])
    a("ds_read_b128 %s, %s offset:%d" % (v(VR + 4 * n, 4), ad, off))
a("v_mov_b32 v34, 0")
a("v_mov_b32 v35, 0")
for n in range(14):
    if n in (0, 6, 10):
        a("s_waitcnt lgkmcnt(%d)" % {0: 8, 6: 4, 10: 0}[n])
    a("v_max3_u32 v34, v34, %s, %s" % (v(VR + 4 * n), v(VR + 4 * n + 1)))
    a("v_max3_u32 v35, v35, %s, %s" % (v(VR + 4 * n + 2), v(VR + 4 * n + 3)))
a("v_max_u32 v34, v34, v35")
a("v_cmp_eq_u32 vcc, -1, v34")
a("s_sub_u32 %s, %s, 1" % (sCNT, sCNT))
a("s_cmp_eq_u32 %s, 0" % sCNT)
a("s_cbranch_scc1 Lfetch_done")
a("s_cbranch_vccz Lfetch_done")
fetch_dma()
a("s_branch Lfetch_val")
a.label("Lfetch_done")
if OPT["stamps"]:
    a("v_mov_b32 v30, %s" % sCNT)
    a("v_mov_b32 v31, 0")
    a("s_mov_b64 exec, 1")
    a("buffer_store_dwordx2 v[30:31], %s, %s, %s offen offset:%d" % (vZ, WS, sTSOFF, 30 * 8))
    a("s_mov_b64 exec, -1")
a("s_branch Lp2b")

a.label("Lp2")
p2_setup()
a.label("Lp2b")
stamp("kv_landed")
a("s_barrier")
stamp("b8")
stamp("rt_b8")
a("s_cmp_lt_u32 %s, 4" % sWAVE)
a("s_cbranch_scc1 Lp2go")
w1_block(8)
if OPT["t_w1"]:
    touch_range(W1, 0, 256 * 3584)
a.label("Lp2go")
a("buffer_load_dwordx2 %s, %s, %s, 0 offen sc1" % (v(vGF, 2), vGFA, WS))
a("ds_read_b128 %s, %s" % (v(QF, 4), vQA))
NKB = 6


def kread(i):
    a("ds_read_b128 %s, %s offset:%d" % (v(KB + 4 * (i % NKB), 4), v(vKA[i & 1]), (i >> 1) * 4096))


for i in range(NKB):
    kread(i)
for i in range(17):
    rem = min(NKB - 1, 16 - i)
    a("s_waitcnt lgkmcnt(%d)" % rem)
    if i == 0:
        for k in range(2):
            a("v_cndmask_b32 %s, %s, %s, %s" % (v(QF + k), v(QF + k), vZ, sFQ))
            a("v_cndmask_b32 %s, %s, %s, %s" % (v(QF + 2 + k), v(QF + 2 + k), vZ, sFO))
    cc = v(M0R, 4) if i == 0 else (v(M16R, 4) if i == 16 else "0")
    a("v_mfma_f32_16x16x32_bf16 %s, %s, %s, %s" % (v(SC + 4 * i, 4), v(KB + 4 * (i % NKB), 4), v(QF, 4), cc))
    if i + NKB < 17:
        kread(i + NKB)


def vread(n):
    p, dt = n >> 1, n & 1
    for b in range(2):
        par = b if p < 8 else 0
        a("ds_read_b64_tr_b16 %s, %s offset:%d" % (v(VB + 4 * (n % NKB) + 2 * b, 2), v(vVA[par]), 2048 + p * 4096 + dt * 1024))


for n in range(NKB):
    vread(n)
a("s_cmp_ge_u32 %s, 2" % sG)
a("s_cbranch_scc1 Lnoinv")
a("s_lshl_b32 %s, %s, 3" % (sT0, sG))
a("s_add_u32 %s, %s, %s" % (sT0, sT0, sWAVE))
a("s_sub_u32 %s, 16, %s" % (sT0, sT0))
for i in range(16):
    a("s_cmp_le_u32 %s, %d" % (sT0, i))
    a("s_cbranch_scc1 Lnoinv")
    for c in range(4):
        a("v_mov_b32 %s, %s" % (v(SC + 4 * i + c), vNEG))
a.label("Lnoinv")
vM, vM2 = v(vT), v(vT + 1)
a("v_max3_f32 %s, %s, %s, %s" % (vM, v(SC), v(SC + 1), v(SC + 2)))
a("v_max3_f32 %s, %s, %s, %s" % (vM2, v(SC + 3), v(SC + 4), v(SC + 5)))
i = 6
flip = 0
while i < 68:
    tgt = vM if flip == 0 else vM2
    a("v_max3_f32 %s, %s, %s, %s" % (tgt, tgt, v(SC + i), v(SC + i + 1)))
    i += 2
    flip ^= 1
a("v_max_f32 %s, %s, %s" % (vM, vM, vM2))
a("v_mov_b32 %s, %s" % (vM2, vM))
a("v_permlane32_swap_b32 %s, %s" % (vM, vM2))
a("v_max_f32 %s, %s, %s" % (vM, vM, vM2))
a("v_mov_b32 %s, %s" % (vM2, vM))
a("v_permlane16_swap_b32 %s, %s" % (vM, vM2))
a("v_max_f32 %s, %s, %s" % (vM, vM, vM2))
CSC = (28.0 ** -0.5) * math.log2(math.e)
a("s_mov_b32 %s, %s" % (sT0, f32(CSC)))
a("v_mul_f32 %s, %s, %s" % (vM, f32(-CSC), vM))
for p in range(9):
    ne = 8 if p < 8 else 4
    for i in range(ne):
        a("v_fma_f32 %s, %s, %s, %s" % (v(SC + 8 * p + i), v(SC + 8 * p + i), sT0, vM))
    for i in range(ne):
        a("v_exp_f32 %s, %s" % (v(SC + 8 * p + i), v(SC + 8 * p + i)))
    pf = PF + 4 * (p % 2) if p < 8 else PF + 8
    for i in range(ne // 2):
        a("v_cvt_pk_bf16_f32 %s, %s, %s" % (v(pf + i), v(SC + 8 * p + 2 * i), v(SC + 8 * p + 2 * i + 1)))
    a("v_mfma_f32_16x16x32_bf16 %s, %s, %s, %s" % (v(LS, 4), v(ONE4, 4), v(pf, 4), "0" if p == 0 else v(LS, 4)))
    for dt in range(2):
        n = 2 * p + dt
        rem = min(NKB - 1, 17 - n)
        a("s_waitcnt lgkmcnt(%d)" % (2 * rem))
        cc = "0" if p == 0 else v(OA + 4 * dt, 4)
        a("v_mfma_f32_16x16x32_bf16 %s, %s, %s, %s" % (v(OA + 4 * dt, 4), v(VB + 4 * (n % NKB), 4), v(pf, 4), cc))
        if n + NKB < 18:
            vread(n + NKB)
    if p == 6:
        a("s_waitcnt vmcnt(0)")
        a("v_and_b32 %s, -8, %s" % (v(vT + 4), v(vGF)))
        a("v_mov_b32 %s, %s" % (v(vT + 5), v(vGF + 1)))
        a("v_cmp_ne_u64 vcc, %s, %s" % (sEP, v(vT + 4, 2)))
        a("s_cbranch_vccz Lgf_ok")
        poll(vGFA, vT + 4, "gf")
        a("buffer_load_dwordx2 %s, %s, %s, 0 offen sc1" % (v(vGF, 2), vGFA, WS))
        a("s_waitcnt vmcnt(0)")
        a.label("Lgf_ok")
        a("v_cmp_ne_u32 vcc, %s, %s" % (v(vGF), v(vFLG)))
        a("s_cmp_eq_u64 vcc, 0")
        a("s_cselect_b32 %s, %d, 0" % (sFAST, 0 if OPT["force_slow"] else 1))
stamp("att_done")
if OPT["stamps"]:
    a("v_mov_b32 v30, %s" % sXCC)
    a("v_mov_b32 v31, %s" % sFAST)
    a("s_mov_b64 exec, 1")
    a("buffer_store_dwordx2 v[30:31], %s, %s, %s offen offset:%d" % (vZ, WS, sTSOFF, 31 * 8))
    a("s_mov_b64 exec, -1")
a("v_rcp_f32 %s, %s" % (v(vT + 2), v(LS)))
a("v_cndmask_b32 %s, %s, %s, %s" % (v(vT), v(vT + 2), vZ, sFQ))
a("v_cndmask_b32 %s, %s, %s, %s" % (v(vT + 1), v(vT + 2), vZ, sFO))
for i in range(4):
    a("v_mul_f32 %s, %s, %s" % (v(OA + i), v(OA + i), v(vT)))
    a("v_mul_f32 %s, %s, %s" % (v(OA + 4 + i), v(OA + 4 + i), v(vT + 1)))
OP = 136
for i in range(4):
    a("v_cvt_pk_bf16_f32 %s, %s, %s" % (v(OP + i), v(OA + 2 * i), v(OA + 2 * i + 1)))
publish(["buffer_store_dwordx4 %s, %s, %s, %s offen{sc}" % (v(OP, 4), vOA, WS, sE)], sF)
stamp("o_pub")
stamp("rt_opub")
a("s_cmp_ge_u32 %s, 4" % sWAVE)
a("s_cbranch_scc1 Lhelper2")

a("s_cmp_ge_u32 %s, 14" % sJ)
a("s_cbranch_scc1 Lp3_idle")
AK, AS = 32, 48
OF = 64
WB = 128
vWk, vWs = "v160", "v161"
vEXW, vEXR, vHA, vHSA, vF2A = "v162", "v163", "v164", "v165", "v166"


def tr_base_128(dkeep, dsend, hmul, base_s, base_imm):
    a("v_lshrrev_b32 %s, 2, %s" % (v(vT), vR))
    a("v_lshrrev_b32 %s, 1, %s" % (v(vT + 1), v(vT)))
    a("v_xor_b32 %s, %s, %s" % (v(vT + 1), sKH, v(vT + 1)))
    a("v_lshl_add_u32 %s, %s, %d, %s" % (v(vT), vH, {4: 2, 8: 3}[hmul], v(vT)))
    a("v_lshlrev_b32 %s, 7, %s" % (v(vT), v(vT)))
    a("v_bfe_u32 %s, %s, 4, 1" % (v(vT + 2), vL))
    a("v_lshl_add_u32 %s, %s, 5, %s" % (v(vT), v(vT + 2), v(vT)))
    a("v_and_b32 %s, 3, %s" % (v(vT + 2), vL))
    a("v_lshl_add_u32 %s, %s, 3, %s" % (v(vT), v(vT + 2), v(vT)))
    a("v_add_u32 %s, %s, %s" % (v(vT), base_s, v(vT)))
    if base_imm:
        a("v_add_u32 %s, %d, %s" % (v(vT), base_imm, v(vT)))
    a("v_lshl_add_u32 %s, %s, 6, %s" % (dkeep, v(vT + 1), v(vT)))
    a("v_xor_b32 %s, 64, %s" % (dsend, dkeep))


def ex_addrs():
    a("v_add_u32 %s, %s, %s" % (vEXW, sHW4K, vL16))
    a("v_xor_b32 %s, 0x2000, %s" % (vEXR, vEXW))
    a("v_add_u32 %s, %d, %s" % (vEXW, L_SCR, vEXW))
    a("v_add_u32 %s, %d, %s" % (vEXR, L_SCR, vEXR))


for hm in (4, 8):
    for nt in range(2):
        assert lds_conflicts([(hm * (l >> 5) + ((l & 15) >> 2)) * 128 + ((nt ^ (((l & 15) >> 3) & 1)) * 64) + ((l >> 4) & 1) * 32 + (l & 3) * 8 for l in range(64)], "tr") == 0
a("s_mul_i32 %s, %s, %d" % (sT0, sKH, 224 * 128))
tr_base_128(vWk, vWs, 4, sT0, L_WO)
ex_addrs()
sum_s(sT0, [(sG, 1024), (sMH2, 512), (sMH, 256), (sKH, 64)], WS_F2)
a("v_bfe_u32 %s, %s, 3, 1" % (v(vT), vL))
a("v_lshlrev_b32 %s, 7, %s" % (v(vT), v(vT)))
a("v_and_b32 %s, 7, %s" % (v(vT + 1), vL))
a("v_lshl_add_u32 %s, %s, 3, %s" % (v(vT), v(vT + 1), v(vT)))
a("v_add_u32 %s, %s, %s" % (vF2A, sT0, v(vT)))
sum_s(sT4, [(sTILE, 32768), (sKH, 16384)], WS_O)
sum_s(sA, [(sTILE, 28 * 1024), (sNB, 2048), (sKH, 1024)], WS_H)
sum_s(sB, [(sTILE, 4096), (sNB, 512), (sKH, 256)], WS_HS)
sum_s(sC, [(sTILE, 128), (sNB, 16), (sKH, 8)], WS_F3)
a("v_bfe_u32 %s, %s, 4, 1" % (v(vT), vL))
a("v_mul_u32_u24 %s, %d, %s" % (v(vT), 14 * 1024, v(vT)))
a("v_lshl_add_u32 %s, %s, 8, %s" % (v(vT), vH, v(vT)))
a("v_lshl_add_u32 %s, %s, 4, %s" % (vHA, vR, v(vT)))
a("v_lshlrev_b32 %s, 3, %s" % (vHSA, vL31))
XF = 168
for i in range(8):
    a("v_lshlrev_b32 %s, 16, %s" % (v(XF + 2 * i), v(vXRES + i)))
    a("v_and_b32 %s, 0xffff0000, %s" % (v(XF + 2 * i + 1), v(vXRES + i)))
a("v_mov_b32 v167, 0x3f803f80")
a("s_barrier")
stamp("b9")


def p3_wread(s):
    head, ab = s >> 1, s & 1
    wb = WB + 8 * (s % 4)
    r0 = (28 * head - 4 * (head & 1) + 8 * ab) * 128
    for k, base in enumerate((vWk, vWs)):
        a("ds_read_b64_tr_b16 %s, %s offset:%d" % (v(wb + 4 * k, 2), base, r0))
        a("ds_read_b64_tr_b16 %s, %s offset:%d" % (v(wb + 4 * k + 2, 2), base, r0 + 16 * 128))


def p3_load(s):
    if s and s % 4 == 0:
        a("s_add_u32 %s, %s, 4096" % (sT4, sT4))
    a("buffer_load_dwordx4 %s, %s, %s, %s offen offset:%d sc1" % (v(OF + 4 * s, 4), vL16, WS, sT4, (s % 4) * 1024))


for s in range(3):
    p3_wread(s)
poll(vF2A, vT + 2, "f2")
stamp("f2ok")
stamp("rt_f2ok")
UP = OPT["up3"]
for s in range(UP):
    p3_load(s)
for s in range(16):
    a("s_waitcnt vmcnt(%d) lgkmcnt(%d)" % (min(UP - 1, 15 - s), min(8, 4 * (15 - s))))
    if s + 3 < 16:
        p3_wread(s + 3)
    wb = WB + 8 * (s % 4)
    a("v_mfma_f32_32x32x16_bf16 %s, %s, %s, %s" % (v(AS, 16), v(wb + 4, 4), v(OF + 4 * s, 4), "0" if s == 0 else v(AS, 16)))
    if s + UP < 16:
        p3_load(s + UP)
    a("v_mfma_f32_32x32x16_bf16 %s, %s, %s, %s" % (v(AK, 16), v(wb, 4), v(OF + 4 * s, 4), "0" if s == 0 else v(AK, 16)))
stamp("p3_mfma")


def exchange():
    for i in range(4):
        a("ds_write_b128 %s, %s offset:%d" % (vEXW, v(AS + 4 * i, 4), 1024 * i))
    a("s_waitcnt lgkmcnt(0)")
    a("s_barrier")
    for i in range(4):
        a("ds_read_b128 %s, %s offset:%d" % (v(AS + 4 * i, 4), vEXR, 1024 * i))


def residual_add(out):
    for i in range(4):
        a("s_waitcnt lgkmcnt(%d)" % (3 - i))
        for k in range(2):
            r_ = 4 * i + 2 * k
            a("v_pk_add_f32 %s, %s, %s" % (v(AK + r_, 2), v(AK + r_, 2), v(AS + r_, 2)))
        for k in range(2):
            r_ = 4 * i + 2 * k
            a("v_cvt_pk_bf16_f32 %s, %s, %s" % (v(AS + r_), v(AK + r_), v(AK + r_ + 1)))
        for k in range(2):
            r_ = 4 * i + 2 * k
            a("v_lshlrev_b32 %s, 16, %s" % (v(AK + r_), v(AS + r_)))
            a("v_and_b32 %s, 0xffff0000, %s" % (v(AK + r_ + 1), v(AS + r_)))
        for k in range(2):
            r_ = 4 * i + 2 * k
            a("v_pk_add_f32 %s, %s, %s" % (v(AK + r_, 2), v(AK + r_, 2), v(XF + r_, 2)))
        for k in range(2):
            r_ = 4 * i + 2 * k
            a("v_cvt_pk_bf16_f32 %s, %s, %s" % (v(out + 2 * i + k), v(AK + r_), v(AK + r_ + 1)))


exchange()
residual_add(vXRES)
stamp("p3_res")
a("v_mov_b32 %s, 0" % v(AS))
a("v_mov_b32 %s, 0" % v(AS + 1))
st3 = ["buffer_store_dwordx4 %s, %s, %s, %s offen{sc}" % (v(vXRES, 4), vHA, WS, sA),
       "buffer_store_dwordx4 %s, %s, %s, %s offen offset:512{sc}" % (v(vXRES + 4, 4), vHA, WS, sA)]
for i in range(8):
    st3.append("v_dot2c_f32_bf16 %s, %s, v167" % (v(AS), v(vXRES + i)))
    st3.append("v_dot2c_f32_bf16 %s, %s, %s" % (v(AS + 1), v(vXRES + i), v(vXRES + i)))
st3 += ["v_mov_b32 %s, %s" % (v(AS + 2), v(AS)), "v_mov_b32 %s, %s" % (v(AS + 3), v(AS + 1)),
        "v_permlane32_swap_b32 %s, %s" % (v(AS), v(AS + 2)), "v_permlane32_swap_b32 %s, %s" % (v(AS + 1), v(AS + 3)),
        "v_pk_add_f32 %s, %s, %s" % (v(AS, 2), v(AS, 2), v(AS + 2, 2)),
        "buffer_store_dwordx2 %s, %s, %s, %s offen{sc}" % (v(AS, 2), vHSA, WS, sB)]
publish(st3, sC)
stamp("h_pub")
stamp("rt_hpub")
a("s_branch Lp3_done")
a.label("Lp3_idle")
a("s_barrier")
a("s_barrier")
a.label("Lp3_done")

HF = 32
A4 = 144
W4 = 200
SPR = 232
NM4, RS4 = [246, 248], [250, 252]
vW4a, vW4b, vW4c, vSPA = "v254", "v255", "v27", "v28"
a("v_lshrrev_b32 %s, 1, %s" % (v(vT), vQ4))
a("v_lshlrev_b32 %s, 4, %s" % (v(vT), v(vT)))
a("v_and_b32 %s, 1, %s" % (v(vT + 1), vQ4))
a("v_lshl_add_u32 %s, %s, 2, %s" % (v(vT), v(vT + 1), v(vT)))
a("v_lshrrev_b32 %s, 2, %s" % (v(vT + 1), vR))
a("v_add_u32 %s, %s, %s" % (v(vT), v(vT), v(vT + 1)))
a("v_mul_u32_u24 %s, 224, %s" % (v(vT), v(vT)))
a("v_and_b32 %s, 3, %s" % (v(vT + 1), vL))
a("v_lshl_add_u32 %s, %s, 3, %s" % (vW4a, v(vT + 1), v(vT)))
a("v_add_u32 %s, %d, %s" % (vW4b, 8 * 7168, vW4a))
a("v_add_u32 %s, %d, %s" % (vW4c, L_W1U, vW4a))
assert lds_conflicts([(16 * (l >> 5) + 4 * ((l >> 4) & 1) + ((l & 15) >> 2)) * 224 + (l & 3) * 8 for l in range(64)], "tr") == 0
sum_s(sT1, [(sTILE4, 128)], WS_F3)
a("v_min_u32 %s, 13, %s" % (v(vT), vR))
a("v_lshlrev_b32 %s, 3, %s" % (v(vT), v(vT)))
a("v_add_u32 %s, %s, %s" % (v(vT), sT1, v(vT)))
sum_s(sT4, [(sTILE4, 28 * 1024)], WS_H)
a("s_add_u32 %s, %s, %d" % (sE, sT4, 14 * 1024))
sum_s(sT3, [(sTILE4, 4096)], WS_HS)
a("v_mul_u32_u24 %s, %d, %s" % (vSPA, 7 * 256, vH))
a("v_lshl_add_u32 %s, %s, 3, %s" % (vSPA, vL31, vSPA))
sum_s(sA, [(sTILE4, 112 * 1024), (sJ, 7168)], WS_H1)
a("s_add_u32 %s, %s, 4096" % (sB, sA))
sum_s(sC, [(sTILE4, 128), (sJ, 8)], WS_F4)
a("s_barrier")
stamp("b11")
NW4 = 8
AHEAD = 7


def p4_wread(q):
    ks, nt = divmod(q, 7)
    if ks < 8:
        base, off = vW4a, ks * 7168
    elif ks < 12:
        base, off = vW4b, (ks - 8) * 7168
    else:
        base, off = vW4c, (ks - 12) * 7168
    wb = W4 + 4 * (q % NW4)
    a("ds_read_b64_tr_b16 %s, %s offset:%d" % (v(wb, 2), base, off + nt * 32))
    a("ds_read_b64_tr_b16 %s, %s offset:%d" % (v(wb + 2, 2), base, off + nt * 32 + 8 * 224))


def p4_load(ks, mt):
    if mt == 0 and ks and ks % 4 == 0:
        a("s_add_u32 %s, %s, 4096" % (sT4, sT4))
        a("s_add_u32 %s, %s, 4096" % (sE, sE))
    a("buffer_load_dwordx4 %s, %s, %s, %s offen offset:%d sc1" % (v(HF + 4 * (mt * 14 + ks), 4), vL16, WS, (sT4, sE)[mt], (ks % 4) * 1024))


for q in range(AHEAD):
    p4_wread(q)
poll(v(vT), vT + 2, "f3")
stamp("f3ok")
stamp("rt_f3ok")
UP = OPT["up4"]
for ks in range(UP):
    p4_load(ks, 0)
    p4_load(ks, 1)
    if ks == 1:
        for i in range(7):
            a("buffer_load_dwordx2 %s, %s, %s, %s offen offset:%d sc1" % (v(SPR + 2 * i, 2), vSPA, WS, sT3, 256 * i))
assert UP >= 3
for ks in range(14):
    if ks == 3:
        for i in range(1, 7):
            a("v_pk_add_f32 %s, %s, %s" % (v(SPR, 2), v(SPR, 2), v(SPR + 2 * i, 2)))
        xhalf_sum(v(SPR), v(SPR + 2))
        xhalf_sum(v(SPR + 1), v(SPR + 2))
        ln_finish(v(SPR), v(SPR + 1), v(NM4[0]), v(RS4[0]), v(SPR + 2))
        a("v_mul_f32 %s, %s, %s" % (v(NM4[0]), v(NM4[0]), v(RS4[0])))
        a("v_mov_b32 %s, %s" % (v(NM4[1]), v(NM4[0])))
        a("v_mov_b32 %s, %s" % (v(RS4[1]), v(RS4[0])))
        a("v_permlane16_swap_b32 %s, %s" % (v(NM4[0]), v(NM4[1])))
        a("v_permlane16_swap_b32 %s, %s" % (v(RS4[0]), v(RS4[1])))
        for r_ in NM4 + RS4:
            a("v_mov_b32 %s, %s" % (v(r_ + 1), v(r_)))
    if ks in (1, 7):
        stamp("p4_k%d" % ks)
    for nt in range(7):
        q = ks * 7 + nt
        if q + AHEAD == 84:
            a("s_barrier")
        lg = min(2 * (AHEAD - 1), 2 * (97 - q))
        if nt == 0:
            later = 2 * (min(13, ks + UP - 1) - ks) + (7 if ks <= 1 else 0)
            a("s_waitcnt vmcnt(%d) lgkmcnt(%d)" % (later, lg))
        else:
            a("s_waitcnt lgkmcnt(%d)" % lg)
        if q + AHEAD < 98:
            p4_wread(q + AHEAD)
        wb = W4 + 4 * (q % NW4)
        for mt in range(2):
            acc = v(A4 + 4 * (mt * 7 + nt), 4)
            a("v_mfma_f32_16x16x32_bf16 %s, %s, %s, %s" % (acc, v(wb, 4), v(HF + 4 * (mt * 14 + ks), 4), "0" if ks == 0 else acc))
        if nt < 2 and ks + UP < 14:
            p4_load(ks + UP, nt)
stamp("p4_mfma")
a("s_barrier")
stamp("b12")
CS4 = 200
a("v_lshlrev_b32 %s, 4, %s" % (v(vT), vQ4))
a("v_add_u32 %s, %d, %s" % (v(vT), L_CS1, v(vT)))
for nt in range(7):
    a("ds_read_b128 %s, %s offset:%d" % (v(CS4 + 4 * nt, 4), v(vT), 64 * nt))
a("v_lshlrev_b32 %s, 9, %s" % (v(vT), vQ4))
a("v_lshl_add_u32 %s, %s, 4, %s" % (v(vT), vR, v(vT)))
a("v_lshrrev_b32 %s, 1, %s" % (v(vT + 1), vQ4))
a("v_lshlrev_b32 %s, 9, %s" % (v(vT + 1), v(vT + 1)))
a("v_lshl_add_u32 %s, %s, 4, %s" % (v(vT + 1), vR, v(vT + 1)))
a("v_and_b32 %s, 1, %s" % (v(vT + 3), vQ4))
a("v_lshl_add_u32 %s, %s, 3, %s" % (v(vT + 1), v(vT + 3), v(vT + 1)))
H1P = 32
TT = 64
st = ["s_waitcnt lgkmcnt(0)"]
for mt in range(2):
    for p in range(4):
        nts = (2 * p, 2 * p + 1) if p < 3 else (6,)
        for nt in nts:
            for c in range(2):
                st.append("v_pk_mul_f32 %s, %s, %s" % (v(TT + 4 * (nt & 1) + 2 * c, 2), v(CS4 + 4 * nt + 2 * c, 2), v(NM4[mt], 2)))
        for nt in nts:
            acc = A4 + 4 * (mt * 7 + nt)
            for c in range(2):
                st.append("v_pk_fma_f32 %s, %s, %s, %s" % (v(acc + 2 * c, 2), v(acc + 2 * c, 2), v(RS4[mt], 2), v(TT + 4 * (nt & 1) + 2 * c, 2)))
        for nt in nts:
            acc = A4 + 4 * (mt * 7 + nt)
            hp = H1P + 16 * mt + 2 * nt
            for c in range(2):
                st.append("v_cvt_pk_bf16_f32 %s, %s, %s" % (v(hp + c), v(acc + 2 * c), v(acc + 2 * c + 1)))
        for nt in nts:
            hp = H1P + 16 * mt + 2 * nt
            for c in range(2):
                st.append("v_pk_max_i16 %s, %s, %s" % (v(hp + c), v(hp + c), vZ))
        if p < 3:
            so, off = (sA, p * 2048 + mt * 256) if p < 2 else (sB, mt * 256)
            st.append("buffer_store_dwordx4 %s, %s, %s, %s offen offset:%d{sc}" % (v(H1P + 16 * mt + 4 * p, 4), v(vT), WS, so, off))
        else:
            st.append("buffer_store_dwordx2 %s, %s, %s, %s offen offset:%d{sc}" % (v(H1P + 16 * mt + 12, 2), v(vT + 1), WS, sB, 2048 + mt * 256))
publish(st, sC, data_sc1=bool(OPT["h1sc"]))
stamp("h1_pub")
stamp("rt_h1pub")
a("s_cmp_ge_u32 %s, 14" % sJ)
a("s_cbranch_scc1 Lend")

RF = 64
NRF = 16
WB5 = 128
AD5 = 208
a("s_mul_i32 %s, %s, %d" % (sT0, sKH, UNIT))
for pat, hm in enumerate((4, 8)):
    tr_base_128(v(AD5 + 6 * pat), v(AD5 + 6 * pat + 1), hm, sT0, 0)
    for b, off in ((1, 4 * UNIT), (2, L_WO)):
        for k in range(2):
            a("v_add_u32 %s, %d, %s" % (v(AD5 + 6 * pat + 2 * b + k), off, v(AD5 + 6 * pat + k)))
UMAP = {0: (2, 0), 1: (2, 2 * UNIT), 2: (0, 0), 3: (0, 2 * UNIT), 4: (1, 0), 5: (2, 0), 6: (2, 2 * UNIT), 7: (0, 0)}


def p5_wread(i):
    n, u = divmod(i, 7)
    b, off = UMAP[n]
    wb = WB5 + 8 * (i % 4)
    if u < 6:
        pat, r0, d2 = 0, 32 * (u >> 1) + 8 * (u & 1), 16
    else:
        pat, r0, d2 = 1, 96, 4
    for k in range(2):
        base = v(AD5 + 6 * pat + 2 * b + k)
        a("ds_read_b64_tr_b16 %s, %s offset:%d" % (v(wb + 4 * k, 2), base, off + r0 * 128))
        a("ds_read_b64_tr_b16 %s, %s offset:%d" % (v(wb + 4 * k + 2, 2), base, off + (r0 + d2) * 128))


ex_addrs()
for i in range(8):
    a("v_lshlrev_b32 %s, 16, %s" % (v(XF + 2 * i), v(vXRES + i)))
    a("v_and_b32 %s, 0xffff0000, %s" % (v(XF + 2 * i + 1), v(vXRES + i)))
sum_s(sT0, [(sTILE, 128), (sKH, 64)], WS_F4)
a("v_and_b32 %s, 7, %s" % (v(vT), vL))
a("v_lshlrev_b32 %s, 3, %s" % (v(vT), v(vT)))
a("v_add_u32 %s, %s, %s" % (v(vT), sT0, v(vT)))
sum_s(sT4, [(sTILE, 112 * 1024), (sKH, 56 * 1024)], WS_H1)
for i in range(3):
    p5_wread(i)
poll(v(vT), vT + 2, "f4")
stamp("f4ok")
stamp("rt_f4ok")


def p5_load(i):
    n, u = divmod(i, 7)
    if u == 0:
        a("s_add_u32 %s, %s, %d" % (sT0, sNB, n))
        a("s_and_b32 %s, %s, 7" % (sT0, sT0))
        a("s_mul_i32 %s, %s, 7168" % (sT0, sT0))
        a("s_add_u32 %s, %s, %s" % (sT3, sT4, sT0))
    if u == 4:
        a("s_add_u32 %s, %s, 4096" % (sT3, sT3))
    a("buffer_load_dwordx4 %s, %s, %s, %s offen offset:%d sc1" % (v(RF + 4 * (i % NRF), 4), vL16, WS, sT3, (u % 4) * 1024))


UP = OPT["up5"]
assert UP < NRF
for i in range(UP):
    p5_load(i)
BARS = {14, 21, 35}
nread = 3
for i in range(56):
    if i in BARS:
        a("s_barrier")
        stamp("p5_b%d" % i)
    while nread < 56 and nread <= i + 2 and not any(i < b <= nread for b in BARS):
        p5_wread(nread)
        nread += 1
    lg = 4 * (nread - 1 - i)
    vm = min(UP - 1, 55 - i)
    a("s_waitcnt vmcnt(%d) lgkmcnt(%d)" % (vm, lg))
    if nread < 56 and nread <= i + 3 and not any(i < b <= nread for b in BARS):
        p5_wread(nread)
        nread += 1
    wb = WB5 + 8 * (i % 4)
    rf = v(RF + 4 * (i % NRF), 4)
    a("v_mfma_f32_32x32x16_bf16 %s, %s, %s, %s" % (v(AS, 16), v(wb + 4, 4), rf, "0" if i == 0 else v(AS, 16)))
    if i + UP < 56:
        p5_load(i + UP)
    a("v_mfma_f32_32x32x16_bf16 %s, %s, %s, %s" % (v(AK, 16), v(wb, 4), rf, "0" if i == 0 else v(AK, 16)))
stamp("p5_mfma")
exchange()
OUTP = 64
residual_add(OUTP)
for jj in range(4):
    a("buffer_store_dwordx2 %s, %s, %s, %s offen offset:%d" % (v(OUTP + 2 * jj, 2), vXOFF, OUT, sXO, 16 * jj))
stamp("end")
stamp("rt_end")
a("s_endpgm")

a.label("Lhelper2")
a("s_barrier")
w1_block(0)
w1_block(4)
stamp("h_w1b")
if OPT["pt_h1"] == 1:
    sum_s(sT0, [(sG, 448 * 1024), (sJ, 28 * 1024), (sHW, 7168)], WS_H1)
    touch_lines(WS, sT0, 56, sc1=True)
C1 = 32
C1B = 48
cA = "v80"
a("v_lshrrev_b32 %s, 1, %s" % (v(vT), vQ4))
a("v_lshlrev_b32 %s, 4, %s" % (v(vT), v(vT)))
a("v_and_b32 %s, 1, %s" % (v(vT + 1), vQ4))
a("v_lshl_add_u32 %s, %s, 2, %s" % (v(vT), v(vT + 1), v(vT)))
a("v_lshrrev_b32 %s, 2, %s" % (v(vT + 1), vR))
a("v_add_u32 %s, %s, %s" % (v(vT), v(vT), v(vT + 1)))
a("v_mul_u32_u24 %s, 224, %s" % (v(vT), v(vT)))
a("v_and_b32 %s, 3, %s" % (v(vT + 1), vL))
a("v_lshl_add_u32 %s, %s, 3, %s" % (cA, v(vT + 1), v(vT)))
a("s_mul_i32 %s, %s, 7168" % (sT0, sHW))
a("v_add_u32 %s, %s, %s" % (cA, sT0, cA))
a("v_add_u32 v81, %d, %s" % (L_W1U, cA))
a("v_mov_b32 v82, 0x3f803f80")
for nt in range(14):
    a("v_mov_b32 %s, 0" % v(C1 + nt))


def cs1_block(base, off):
    for nt in range(7):
        a("ds_read_b64_tr_b16 %s, %s offset:%d" % (v(C1B + 4 * nt, 2), base, off + nt * 32))
        a("ds_read_b64_tr_b16 %s, %s offset:%d" % (v(C1B + 4 * nt + 2, 2), base, off + nt * 32 + 8 * 224))
    a("s_waitcnt lgkmcnt(0)")
    for i in range(4):
        for nt in range(7):
            a("v_dot2c_f32_bf16 %s, %s, v82" % (v(C1 + 2 * nt), v(C1B + 4 * nt + i)))


cs1_block(cA, 8 * 7168)
a("s_barrier")
a("s_waitcnt vmcnt(0)")
stamp("h_w1_landed")
cs1_block(cA, 0)
cs1_block(cA, 4 * 7168)
a("s_barrier")


def unit_index(dst, n_s, n_imm):
    if n_s:
        a("s_add_u32 %s, %s, %s" % (dst, sNB, n_s))
        if n_imm:
            a("s_add_u32 %s, %s, %d" % (dst, dst, n_imm))
    else:
        a("s_add_u32 %s, %s, %d" % (dst, sNB, n_imm))
    a("s_and_b32 %s, %s, 7" % (dst, dst))
    a("s_lshl_b32 %s, %s, 3" % (sT5, sMH))
    a("s_add_u32 %s, %s, %s" % (dst, dst, sT5))


def w2_unit(jp_s, lds_s, lds_imm):
    a("s_mul_i32 %s, %s, %d" % (sT3, jp_s, 112 * 896))
    for i in range(14):
        dma(vWO, W2, sT3, lds_s, lds_imm + i * 1024)
        if i < 13:
            a("s_add_u32 %s, %s, %d" % (sT3, sT3, 8 * 896))


lab = a.newlabel("Lnou")
a("s_cmp_ge_u32 %s, 2" % sHW)
a("s_cbranch_scc1 %s" % lab)
w1_block(12)
a.label(lab)
a("s_waitcnt vmcnt(0)")
a("s_cmp_ge_u32 %s, 14" % sJ)
a("s_cbranch_scc1 Lh_noA")
unit_index(sT0, sKH, 0)
a("s_mul_i32 %s, %s, %d" % (sT1, sHW, UNIT))
w2_unit(sT0, sT1, L_WO)
a.label("Lh_noA")
if OPT["t_w2"]:
    touch_range(W2, 0, 1605632)
stamp("h_w2a")
lab = a.newlabel("Lnou2")
a("s_cmp_ge_u32 %s, 2" % sHW)
a("s_cbranch_scc1 %s" % lab)
cs1_block("v81", 0)
a.label(lab)
for nt in range(7):
    a("v_add_f32 %s, %s, %s" % (v(C1 + 2 * nt), v(C1 + 2 * nt), v(C1 + 2 * nt + 1)))
    xhalf_sum(v(C1 + 2 * nt), v(vT))
    xrow_sum(v(C1 + 2 * nt), v(vT))
sum_s(sT0, [(sHW, 448)], L_CSP)
a("v_lshl_add_u32 %s, %s, 2, %s" % (v(vT), vR, sT0))
for nt in range(7):
    a("ds_write_b32 %s, %s offset:%d" % (v(vT), v(C1 + 2 * nt), 64 * nt))
a("s_waitcnt lgkmcnt(0)")
a("s_barrier")
lab = a.newlabel("Lnocs1")
a("s_cmp_lg_u32 %s, 4" % sWAVE)
a("s_cbranch_scc1 %s" % lab)
a("v_min_u32 %s, 55, %s" % (v(vT), vL))
a("v_lshlrev_b32 %s, 3, %s" % (v(vT), v(vT)))
a("v_add_u32 %s, %d, %s" % (v(vT + 1), L_CSP, v(vT)))
for k in range(4):
    a("ds_read_b64 %s, %s offset:%d" % (v(40 + 2 * k, 2), v(vT + 1), 448 * k))
a("s_waitcnt lgkmcnt(0)")
for c in range(2):
    a("v_add_f32 %s, %s, %s" % (v(40 + c), v(40 + c), v(42 + c)))
    a("v_add_f32 %s, %s, %s" % (v(44 + c), v(44 + c), v(46 + c)))
    a("v_add_f32 %s, %s, %s" % (v(40 + c), v(40 + c), v(44 + c)))
a("v_add_u32 %s, %d, %s" % (v(vT + 1), L_CS1, v(vT)))
a("ds_write_b64 %s, %s" % (v(vT + 1), v(40, 2)))
a.label(lab)
a("s_waitcnt vmcnt(0) lgkmcnt(0)")
stamp("h_w2a_landed")
a("s_barrier")
a("s_cmp_ge_u32 %s, 14" % sJ)
a("s_cbranch_scc1 Lend")
unit_index(sT0, sKH, 2)
a("s_mul_i32 %s, %s, %d" % (sT1, sHW, UNIT))
w2_unit(sT0, sT1, 0)


def w2_two_units(n, slot0):
    unit_index(sT0, None, n)
    sum_s(sT3, [(sT0, 112 * 896), (sKH, 7 * 8 * 896)])
    sum_s(sT1, [(sMH, UNIT), (sKH, 7168)])
    for i in range(7):
        dma(vWO, W2, sT3, sT1, slot0 + i * 1024)
        if i < 6:
            a("s_add_u32 %s, %s, %d" % (sT3, sT3, 8 * 896))


w2_two_units(4, 4 * UNIT)
a("s_waitcnt vmcnt(0)")
stamp("h_w2b_landed")
a("s_barrier")
unit_index(sT0, sKH, 5)
a("s_mul_i32 %s, %s, %d" % (sT1, sHW, UNIT))
w2_unit(sT0, sT1, L_WO)
a("s_barrier")
w2_two_units(7, 0)
a("s_waitcnt vmcnt(0)")
a("s_barrier")
a("s_barrier")
a.label("Lend")
a("s_endpgm")
a.raw("Lcode_end:")
a.raw('.section .rodata,"a"')
a.raw(".p2align 6")
a.raw(".amdhsa_kernel %s" % KNAME)
a.raw("  .amdhsa_next_free_vgpr 256")
a.raw("  .amdhsa_next_free_sgpr 102")
a.raw("  .amdhsa_accum_offset 256")
a.raw("  .amdhsa_group_segment_fixed_size 0")
a.raw("  .amdhsa_kernarg_size 72")
a.raw("  .amdhsa_user_sgpr_count 2")
a.raw("  .amdhsa_user_sgpr_kernarg_segment_ptr 1")
a.raw("  .amdhsa_system_sgpr_workgroup_id_x 1")
a.raw(".end_amdhsa_kernel")
open(sys.argv[1], "w").write(a.text())
json.dump(STAMPS, open(sys.argv[1] + ".stamps.json", "w"))
print("instructions:", a.count)
```

```python
import sys, math, struct, re, json
from asmlib import Asm, lds_conflicts

KNAME = "sequential_preLN__sliding_block__dense_activation_relu__prompt_kernel"
OPT = dict(stamps="", force_slow=0, nobg=0, t_w1=1, t_w2=1, pt_h1=0, up3=8, up4=8, up5=8, dry=0, psleep=0, gw=0, rotj=0, init2=1, pt_c=3, h1sc=1, bgA=1, ic=2, fc=4, P3="", A="wo", B="w18+tw1", C="w10+w14", C2="", D="tw2", b9b=0, warm=0, kb=5, r2early=1, D2="", st4=0, ohsc=0, svc="", bm=0, prio=0, w2=1, diag=0, nt=0, sent=1)
for a_ in sys.argv[2:]:
    k_, v_ = a_.split("=")
    OPT[k_] = v_ if isinstance(OPT[k_], str) else int(v_)


def f32(x):
    return "0x%08x" % struct.unpack("<I", struct.pack("<f", x))[0]


QT = 336 * 256
WS_QKV = 0
WS_O = 6 << 20
WS_H = 8 << 20
WS_H1 = 10 << 20
WS_F1 = 17 << 20
WS_F2 = WS_F1 + 0x10000
WS_F3 = WS_F1 + 0x20000
WS_F4 = WS_F1 + 0x30000
WS_HS = WS_F1 + 0x40000
WS_ST = WS_F1 + 0x80000
WS_TS = 18 << 20
WS_SIZE = 32 << 20

L_XR = 86016
L_KV = 0
L_Q = 12 * 4096
L_WO = 86016
L_W1U = 144384
L_SCR = 144384
L_CSP = 158720
L_MISC = 160768
L_CS = L_MISC
L_ST = L_MISC + 384
L_EP = L_ST + 1024
L_CS1 = L_EP + 64
LDS_BYTES = 163840
UNIT = 14336

X, WQKV, WO, W1, W2, OUT, DBG, WS = ["s[%d:%d]" % (4 + 4 * i, 7 + 4 * i) for i in range(8)]
sG, sJ, sWAVE, sR0, sXCC, sFAST = "s36", "s37", "s38", "s39", "s40", "s41"
sEP = "s[42:43]"
sEPL, sEPH = "s42", "s43"
sROT, sHW, sMH2, sNB, sKH, sMH = "s44", "s45", "s46", "s47", "s48", "s49"
sHI = "s[50:51]"
sLT48 = "s[52:53]"
sQ3 = "s[54:55]"
sHW1K, sHW4K = "s56", "s57"
sCNT = "s58"
sSLOT = "s59"
sT0, sT1, sT2, sT3, sT4, sT5 = "s60", "s61", "s62", "s63", "s64", "s65"
sTS = "s[66:67]"
sTSOFF = "s68"
sXO = "s69"
sCX, sCW = "s70", "s71"
sTILE, sTILE4 = "s72", "s73"
sA, sB, sC, sD, sE, sF = "s74", "s75", "s76", "s77", "s78", "s79"

vL, vL31, vH, vR, vQ4, vL16, vTMP = "v1", "v2", "v3", "v4", "v5", "v6", "v7"
vXRES = 8
vFLG = 16
vT = 18
vZ = "v24"
vXOFF = "v25"
HP = 240


def v(i, n=1):
    return "v%d" % i if n == 1 else "v[%d:%d]" % (i, i + n - 1)


a = Asm()
STAMPS = {}


def stamp(name):
    if not OPT["stamps"] or not (name == "t0" or re.fullmatch(OPT["stamps"], name)):
        return
    idx = STAMPS.setdefault(name, len(STAMPS))
    assert idx < 30
    a(("s_memrealtime %s" if name.startswith("rt_") else "s_memtime %s") % sTS)
    a("s_waitcnt lgkmcnt(0)")
    a("v_mov_b32 v30, s66")
    a("v_mov_b32 v31, s67")
    a("v_mov_b32 v29, 0")
    a("s_mov_b64 exec, 1")
    a("buffer_store_dwordx2 v[30:31], v29, %s, %s offen offset:%d" % (WS, sTSOFF, idx * 8))
    a("s_mov_b64 exec, -1")


def dma(voff, srd, soff, lds_s, lds_imm, inst=0, sc1=False):
    if OPT["nobg"] and srd in (WO, W1, W2):
        return
    m = lds_imm - inst
    if lds_s is None:
        a("s_mov_b32 m0, %d" % m)
    else:
        a("s_add_u32 m0, %s, %d" % (lds_s, m))
    nt = (srd == X and OPT["nt"] & 1) or (srd == WQKV and OPT["nt"] & 2) or (srd in (WO, W1) and OPT["nt"] & 16)
    a("buffer_load_dwordx4 %s, %s, %s offen%s%s%s lds" % (voff, srd, soff, (" offset:%d" % inst) if inst else "", " sc1" if sc1 else "", " nt" if nt else ""))


def sum_s(dst, terms, const=0):
    first = True
    for sreg, mult in terms:
        tgt = dst if first else sT5
        if mult == 1:
            if first:
                a("s_mov_b32 %s, %s" % (dst, sreg))
            else:
                a("s_add_u32 %s, %s, %s" % (dst, dst, sreg))
            first = False
            continue
        if mult & (mult - 1) == 0:
            a("s_lshl_b32 %s, %s, %d" % (tgt, sreg, mult.bit_length() - 1))
        else:
            a("s_mul_i32 %s, %s, %d" % (tgt, sreg, mult))
        if not first:
            a("s_add_u32 %s, %s, %s" % (dst, dst, sT5))
        first = False
    if const:
        a("s_add_u32 %s, %s, %d" % (dst, dst, const))


def poll(vaddr, vd, name):
    lp, dn = a.newlabel("Lpoll_" + name), a.newlabel("Lpolld_" + name)
    a("s_mov_b32 %s, 0x20000" % sCNT)
    a.label(lp)
    a("buffer_load_dwordx2 %s, %s, %s, 0 offen sc1" % (v(vd, 2), vaddr, WS))
    a("s_sub_u32 %s, %s, 1" % (sCNT, sCNT))
    a("s_waitcnt vmcnt(0)")
    a("v_and_b32 %s, -8, %s" % (v(vd), v(vd)))
    a("v_cmp_ne_u64 vcc, %s, %s" % (sEP, v(vd, 2)))
    a("s_cmp_eq_u32 %s, 0" % sCNT)
    a("s_cbranch_scc1 %s" % dn)
    if OPT["psleep"]:
        a("s_cbranch_vccz %s" % dn)
        a("s_sleep %d" % OPT["psleep"])
        a("s_branch %s" % lp)
    else:
        a("s_cbranch_vccnz %s" % lp)
    a.label(dn)


def flag_store(soff, sc):
    a("s_mov_b64 exec, 1")
    a("buffer_store_dwordx2 %s, %s, %s, %s offen%s" % (v(vFLG, 2), vZ, WS, soff, sc))
    a("s_mov_b64 exec, -1")


def publish(stores, flag_soff, data_sc1=False):
    if data_sc1:
        for s_ in stores:
            a(s_.format(sc=" sc1"))
        stores = []

    def emit(sc):
        for s_ in stores:
            a(s_.format(sc=sc))
        a("s_waitcnt vmcnt(0)")
        flag_store(flag_soff, sc)
    ls, le = a.newlabel("Lslow"), a.newlabel("Lpub")
    a("s_cmp_eq_u32 %s, 0" % sFAST)
    a("s_cbranch_scc1 %s" % ls)
    emit("")
    a("s_branch %s" % le)
    a.label(ls)
    emit(" sc1")
    a.label(le)


def bf16r(dst, src):
    a("v_cvt_pk_bf16_f32 %s, %s, %s" % (dst, src, src))
    a("v_and_b32 %s, 0xffff0000, %s" % (dst, dst))


def ln_finish(sx, sxx, negmean, rstd, t0):
    a("v_mul_f32 %s, %s, %s" % (sx, f32(1.0 / 448), sx))
    a("v_mul_f32 %s, %s, %s" % (sxx, f32(1.0 / 448), sxx))
    a("v_fma_f32 %s, -%s, %s, %s" % (sxx, sx, sx, sxx))
    a("v_max_f32 %s, 0, %s" % (sxx, sxx))
    bf16r(sxx, sxx)
    a("v_add_f32 %s, %s, %s" % (sxx, f32(1e-5), sxx))
    bf16r(sxx, sxx)
    a("v_sqrt_f32 %s, %s" % (sxx, sxx))
    bf16r(sxx, sxx)
    a("v_rcp_f32 %s, %s" % (rstd, sxx))
    bf16r(t0, sx)
    a("v_sub_f32 %s, 0, %s" % (negmean, t0))


def xhalf_sum(x, t):
    a("v_mov_b32 %s, %s" % (t, x))
    a("v_permlane32_swap_b32 %s, %s" % (x, t))
    a("v_add_f32 %s, %s, %s" % (x, x, t))


def xrow_sum(x, t):
    a("v_mov_b32 %s, %s" % (t, x))
    a("v_permlane16_swap_b32 %s, %s" % (x, t))
    a("v_add_f32 %s, %s, %s" % (x, x, t))


def get_epoch_spin(name):
    lp, dn = "Lep_%s" % name, "Lepd_%s" % name
    a("s_mov_b32 %s, 0x20000" % sCNT)
    a.label(lp)
    a("s_waitcnt vmcnt(0)")
    a("v_readfirstlane_b32 %s, %s" % (sEPL, v(vFLG)))
    a("v_readfirstlane_b32 %s, %s" % (sEPH, v(vFLG + 1)))
    a("s_cmp_lg_u32 %s, 0" % sEPL)
    a("s_cbranch_scc1 %s" % dn)
    a("buffer_load_dwordx2 %s, %s, %s, 0 offen sc1" % (v(vFLG, 2), vZ, DBG))
    a("s_sub_u32 %s, %s, 1" % (sCNT, sCNT))
    a("s_cmp_lg_u32 %s, 0" % sCNT)
    a("s_cbranch_scc1 %s" % lp)
    a.label(dn)


hdr = open("sequential_preLN__sliding_block__dense_activation_relu__prompt.s.ref").read().split("\n")
for ln in hdr:
    if ln.startswith("; @launch"):
        a.raw("; @launch grid=(256,1,1) block=(512,1,1) lds=%d" % LDS_BYTES)
        break
    a.raw(ln)
a.raw('.amdgcn_target "amdgcn-amd-amdhsa--gfx950"')
a.raw(".text")
a.raw(".globl %s" % KNAME)
a.raw(".p2align 8")
a.raw(".type %s,@function" % KNAME)
a.raw("%s:" % KNAME)

if OPT["diag"]:
    a("s_memtime s[96:97]")
a("s_load_dwordx16 s[72:87], s[0:1], 0")
a("s_load_dwordx2 s[88:89], s[0:1], 64")
a("s_getpc_b64 s[90:91]")
a.raw("Lpc:")
a("v_and_b32 %s, 63, v0" % vL)
a("v_lshrrev_b32 %s, 6, v0" % vTMP)
a("s_lshr_b32 %s, s2, 3" % sSLOT)
a("v_readfirstlane_b32 %s, %s" % (sWAVE, vTMP))
a("v_lshlrev_b32 %s, 7, %s" % (v(vT), vL))
a("s_cmp_ge_u32 s2, 256")
a("s_cbranch_scc1 Lend")
a("s_add_u32 %s, %s, %s" % (sT0, sSLOT, sWAVE))
a("s_and_b32 %s, %s, 7" % (sT0, sT0))
a("s_lshl_b32 %s, %s, 13" % (sT0, sT0))
a("v_add_u32 %s, %s, %s" % (v(vT), sT0, v(vT)))
a("v_min_u32 %s, Lcode_end-Lpc-4, %s" % (v(vT), v(vT)))
a("v_mov_b32 %s, s91" % v(vT + 1))
a("v_add_co_u32 %s, vcc, s90, %s" % (v(vT), v(vT)))
a("v_addc_co_u32 %s, vcc, 0, %s, vcc" % (v(vT + 1), v(vT + 1)))
a("s_cmp_ge_u32 %s, 2" % sWAVE)
a("s_cbranch_scc1 Lnocp")
a("global_load_dword v26, %s, off" % v(vT, 2))
a.label("Lnocp")
a("v_and_b32 %s, 31, v0" % vL31)
a("v_bfe_u32 %s, v0, 5, 1" % vH)
a("v_and_b32 %s, 15, v0" % vR)
a("v_bfe_u32 %s, v0, 4, 2" % vQ4)
a("v_lshlrev_b32 %s, 4, %s" % (vL16, vL))
a("v_mov_b32 %s, 0" % vZ)
a("s_and_b32 %s, s2, 7" % sT0)
a("s_lshr_b32 %s, %s, 4" % (sT2, sSLOT))
a("s_lshl_b32 %s, %s, 1" % (sG, sT0))
a("s_add_u32 %s, %s, %s" % (sG, sG, sT2))
a("s_and_b32 %s, %s, 15" % (sJ, sSLOT))
a("s_lshl_b32 %s, %s, 7" % (sR0, sG))
a("s_and_b32 %s, %s, 3" % (sHW, sWAVE))
a("s_lshl_b32 %s, %s, 10" % (sHW1K, sHW))
a("s_lshl_b32 %s, %s, 12" % (sHW4K, sHW))
if OPT["rotj"]:
    a("s_mul_i32 %s, %s, 3" % (sT3, sT2))
    a("s_add_u32 %s, %s, %s" % (sROT, sJ, sT3))
    for _ in range(2):
        a("s_sub_u32 %s, %s, 7" % (sT3, sROT))
        a("s_cmp_ge_u32 %s, 7" % sROT)
        a("s_cselect_b32 %s, %s, %s" % (sROT, sT3, sROT))
else:
    a("s_lshl_b32 %s, %s, 2" % (sROT, sT2))
vX = [32, 33, 34, 35]
vW = [36, 37, 38]
a("v_lshrrev_b32 %s, 3, %s" % (v(vT), vL))
a("s_lshl_b32 %s, %s, 5" % (sT0, sHW))
a("s_add_u32 %s, %s, %s" % (sT0, sT0, sR0))
a("v_add_u32 %s, %s, %s" % (v(vT), sT0, v(vT)))
a("v_mul_u32_u24 %s, 896, %s" % (v(vT), v(vT)))
a("v_and_b32 %s, 7, %s" % (v(vT + 1), vL))
a("v_xor_b32 %s, %s, %s" % (v(vT + 1), v(vT + 1), vQ4))
a("v_xor_b32 %s, 4, %s" % (v(vT + 2), v(vT + 1)))
for ii in range(4):
    a("v_lshl_add_u32 %s, %s, 4, %s" % (v(vX[ii]), v(vT + 1 + (ii & 1)), v(vT)))
    if ii:
        a("v_add_u32 %s, %d, %s" % (v(vX[ii]), ii * 8 * 896, v(vX[ii])))
a("s_mul_i32 %s, %s, %d" % (sT0, sHW, 16 * 2688))
a("s_mul_i32 %s, %s, 192" % (sT1, sJ))
a("s_add_u32 %s, %s, %s" % (sT0, sT0, sT1))
M12 = (1 << 16) // 12 + 1
for i in range(192):
    assert (i * M12) >> 16 == i // 12
for k in range(3):
    a("v_add_u32 %s, %d, %s" % (v(vT), 64 * k, vL))
    a("v_mul_u32_u24 %s, %d, %s" % (v(vT + 1), M12, v(vT)))
    a("v_lshrrev_b32 %s, 16, %s" % (v(vT + 1), v(vT + 1)))
    a("v_mul_u32_u24 %s, %d, %s" % (v(vT + 1), 2688 - 192, v(vT + 1)))
    a("v_lshl_add_u32 %s, %s, 4, %s" % (v(vW[k]), v(vT), v(vT + 1)))
    a("v_add_u32 %s, %s, %s" % (v(vW[k]), sT0, v(vW[k])))
if OPT["warm"]:
    a("s_mul_i32 %s, %s, 14" % (sT0, sT2))
    a("s_add_u32 %s, %s, %s" % (sT0, sT0, sJ))
    a("s_lshl_b32 %s, %s, 3" % (sT0, sT0))
    a("s_add_u32 %s, %s, %s" % (sT0, sT0, sWAVE))
    if OPT["warm"] in (1, 4):
        a("v_min_u32 v39, 41, %s" % vL)
        a("v_mul_u32_u24 v39, 224, v39")
        a("v_add_u32 v39, %s, v39" % sT0)
        a("v_lshlrev_b32 v39, 7, v39")
    else:
        a("s_mul_i32 %s, %s, 42" % (sT0, sT0))
        a("v_min_u32 v39, 41, %s" % vL)
        a("v_add_u32 v39, %s, v39" % sT0)
        a("v_lshlrev_b32 v39, 7, v39")
    sum_s(sT0, [(sJ, 8), (sWAVE, 1)])
    sum_s(sT1, [(sT0, 1024), (sR0, 896)])
    a("v_and_b32 v40, 7, %s" % vL)
    a("v_lshlrev_b32 v40, 7, v40")
    a("v_add_u32 v40, %s, v40" % sT1)
    a("s_mov_b32 %s, 0" % sROT)
a("s_mov_b32 %s, %s" % (sCX, sROT))
a("s_mov_b32 %s, %s" % (sCW, sROT))
a("s_mul_i32 s92, %s, 3072" % sHW)
sizes = [1835008, 1204224, 401408, 1605632, 1605632, 1835008, 256, WS_SIZE]
srcs = [72, 74, 76, 80, 82, 84, 86, 88]
for i in range(8):
    a("s_mov_b32 s%d, %d" % (4 + 4 * i + 2, sizes[i]))
    a("s_mov_b32 s%d, 0x00020000" % (4 + 4 * i + 3))
a("s_waitcnt lgkmcnt(0)")
for i in range(8):
    a("s_mov_b64 s[%d:%d], s[%d:%d]" % (4 + 4 * i, 5 + 4 * i, srcs[i], srcs[i] + 1))
a("s_cmp_ge_u32 %s, 14" % sJ)
a("s_cbranch_scc1 Lservice")
if OPT["warm"]:
    if OPT["warm"] >= 3:
        a("buffer_load_dword v26, v40, %s, 0 offen" % X)
    a("buffer_load_dword v26, v39, %s, 0 offen" % WQKV)
a("s_cmp_lt_u32 %s, 4" % sWAVE)
a("s_cbranch_scc1 Lmfma")


def common_setup():
    a("s_lshr_b32 %s, %s, 1" % (sKH, sHW))
    a("s_and_b32 %s, %s, 1" % (sMH, sHW))
    a("s_cmp_ge_u32 %s, 7" % sJ)
    a("s_cselect_b32 %s, 1, 0" % sMH2)
    a("s_mul_i32 %s, %s, 7" % (sT3, sMH2))
    a("s_sub_u32 %s, %s, %s" % (sNB, sJ, sT3))
    a("s_min_u32 %s, %s, 6" % (sNB, sNB))
    a("s_getreg_b32 %s, hwreg(HW_REG_XCC_ID)" % sXCC)
    a("s_and_b32 %s, %s, 7" % (sXCC, sXCC))
    a("s_mov_b32 s50, 0")
    a("s_mov_b32 s51, -1")
    a("s_mov_b32 s52, -1")
    a("s_mov_b32 s53, 0xffff")
    a("s_mov_b32 s54, 0")
    a("s_mov_b32 s55, 0xffff0000")
    a("s_mov_b32 %s, 0" % sFAST)
    a("s_mov_b32 %s, 0" % sEPL)
    a("s_mov_b32 %s, 0" % sEPH)
    if OPT["stamps"]:
        sum_s(sTSOFF, [("s2", 2048), (sWAVE, 256)], WS_TS)
    sum_s(sTILE, [(sG, 4), (sMH2, 2), (sMH, 1)])
    sum_s(sXO, [(sTILE, 32 * 896), (sNB, 128), (sKH, 64)])
    sum_s(sTILE4, [(sG, 4), (sHW, 1)])
    a("v_mul_u32_u24 %s, 896, %s" % (vXOFF, vL31))
    a("v_lshl_add_u32 %s, %s, 3, %s" % (vXOFF, vH, vXOFF))
    a("v_lshlrev_b32 %s, 7, %s" % (v(HP + 8), vL))
    a("v_lshrrev_b32 %s, 3, %s" % (v(vT), vL))
    a("v_mul_u32_u24 %s, 896, %s" % (v(vT), v(vT)))
    a("v_bfe_u32 %s, %s, 4, 1" % (v(vT + 1), vL))
    a("v_lshlrev_b32 %s, 2, %s" % (v(vT + 1), v(vT + 1)))
    a("v_and_b32 %s, 7, %s" % (v(vT + 2), vL))
    a("v_xor_b32 %s, %s, %s" % (v(vT + 1), v(vT + 1), v(vT + 2)))
    a("v_lshl_add_u32 %s, %s, 4, %s" % (v(HP), v(vT + 1), v(vT)))
    a("s_lshl_b32 %s, %s, 7" % (sT0, sNB))
    a("v_add_u32 %s, %s, %s" % (v(HP), sT0, v(HP)))
    a("s_mul_i32 %s, %s, 224" % (sT0, sJ))
    for k in range(7):
        a("v_add_u32 %s, %d, %s" % (v(vT), 64 * k, vL))
        a("v_mul_u32_u24 %s, %d, %s" % (v(vT + 1), (1 << 16) // 14 + 1, v(vT)))
        a("v_lshrrev_b32 %s, 16, %s" % (v(vT + 1), v(vT + 1)))
        a("v_mul_u32_u24 %s, %d, %s" % (v(vT + 1), 3584 - 224, v(vT + 1)))
        a("v_lshl_add_u32 %s, %s, 4, %s" % (v(HP + 1 + k), v(vT), v(vT + 1)))
        a("v_add_u32 %s, %s, %s" % (v(HP + 1 + k), sT0, v(HP + 1 + k)))


for i in range(448):
    assert (i * ((1 << 16) // 14 + 1)) >> 16 == i // 14
vWO = v(HP)
vW1 = [HP + 1 + k for k in range(7)]
vTCH = v(HP + 8)


def tr_base_192(dst, t0):
    a("v_lshrrev_b32 %s, 2, %s" % (t0, vR))
    a("v_lshl_add_u32 %s, %s, 3, %s" % (t0, vH, t0))
    a("v_mul_u32_u24 %s, 192, %s" % (dst, t0))
    a("v_bfe_u32 %s, %s, 4, 1" % (t0, vL))
    a("v_lshl_add_u32 %s, %s, 5, %s" % (dst, t0, dst))
    a("v_and_b32 %s, 3, %s" % (t0, vL))
    a("v_lshl_add_u32 %s, %s, 3, %s" % (dst, t0, dst))


assert lds_conflicts([(8 * (l >> 5) + ((l & 15) >> 2)) * 192 + ((l >> 4) & 1) * 32 + (l & 3) * 8 for l in range(64)], "tr") == 0


def w1_block(base):
    a("s_add_u32 %s, %s, %d" % (sT0, sHW, base))
    a("s_mul_i32 %s, %s, %d" % (sT1, sT0, 32 * 3584))
    a("s_mul_i32 %s, %s, 7168" % (sT2, sHW))
    ldsb = base * 7168 if base < 12 else L_W1U + (base - 12) * 7168
    for k in range(7):
        dma(v(vW1[k]), W1, sT1, sT2, ldsb + k * 1024)


def touch_lines(srd, s_base, n, sc1=False):
    cnt = 0
    done = 0
    while done < n:
        k = min(64, n - done)
        if k < 64:
            a("v_min_u32 %s, %d, %s" % (v(vT), (k - 1) * 128, vTCH))
            vo = v(vT)
        else:
            vo = vTCH
        nt = (srd == WS and OPT["nt"] & 8) or (srd != WS and OPT["nt"] & 4)
        a("buffer_load_dword v26, %s, %s, %s offen%s%s" % (vo, srd, s_base, " sc1" if sc1 else "", " nt" if nt else ""))
        cnt += 1
        done += k
        if done < n:
            a("s_add_u32 %s, %s, %d" % (s_base, s_base, 64 * 128))
    return cnt


def touch_range(srd, base, total):
    if OPT["nobg"]:
        return 0
    per = total // 128 // 128
    assert per * 128 * 128 == total, (total, per)
    sum_s(sT0, [(sSLOT, 4 * per * 128), (sHW, per * 128)], base)
    return touch_lines(srd, sT0, per)


def wo_dma():
    a("s_mul_i32 %s, %s, %d" % (sT0, sHW, 8 * 896))
    for k in range(15):
        if k == 14:
            a("s_mov_b32 %s, %d" % (sT0, 56 * 8 * 896))
            dma(vWO, WO, sT0, None, L_WO + 56 * 1024)
        else:
            dma(vWO, WO, sT0, sHW1K, L_WO + k * 4096)
            a("s_add_u32 %s, %s, %d" % (sT0, sT0, 32 * 896))


def bg(slot):
    n = 0
    for it in [x for x in OPT[slot].split("+") if x]:
        if it == "wo":
            wo_dma(); n += 15
        elif it == "w18":
            w1_block(8); n += 7
        elif it == "w10":
            w1_block(0); n += 7
        elif it == "w14":
            w1_block(4); n += 7
        elif it == "tw1":
            n += touch_range(W1, 0, 256 * 3584)
        elif it == "tw1u":
            n += touch_range(W1, 384 * 3584, 64 * 3584)
        elif it == "tw1a":
            n += touch_range(W1, 0, 1605632)
        elif it == "two":
            n += touch_range(WO, 0, 393216)
        elif it == "tw2":
            n += touch_range(W2, 0, 1605632)
        elif it == "tw2a":
            n += touch_range(W2, 0, 802816)
        elif it == "tw2b":
            n += touch_range(W2, 802816, 802816)
        elif it == "tw2r":
            n += touch_range(W2, 393216, 1605632 - 393216 - 0 * 16384) if False else touch_range(W2, 393216, 1212416)
        elif it == "w2a":
            pass
        else:
            raise ValueError(it)
    return n


def vpad_prefill():
    a("v_mov_b32 %s, 0x3f80" % v(vT + 2))
    a("v_mov_b32 %s, 0" % v(vT + 3))
    a("s_mul_i32 %s, %s, %d" % (sT0, sHW, 3 * 4096))
    a("v_lshlrev_b32 %s, 3, %s" % (v(vT), vL31))
    a("v_lshl_add_u32 %s, %s, 12, %s" % (v(vT), vH, v(vT)))
    a("v_add_u32 %s, %s, %s" % (v(vT), sT0, v(vT)))
    a("ds_write_b64 %s, %s offset:%d" % (v(vT), v(vT + 2, 2), L_KV + 2048 + 1792))
    a("ds_write_b64 %s, %s offset:%d" % (v(vT), v(vT + 2, 2), L_KV + 4096 + 2048 + 1792))


sFA, sFB, sFC, sFD = "s84", "s85", "s86", "s87"
vIF = 236


def fetch_setup():
    a("v_lshrrev_b32 %s, 3, %s" % (v(vT), vL))
    a("v_min_u32 %s, 2, %s" % (v(vT), v(vT)))
    a("v_bfe_u32 %s, %s, 1, 2" % (v(vT + 1), vL))
    a("v_min_u32 %s, 2, %s" % (v(vT + 1), v(vT + 1)))
    a("v_cmp_gt_u32 vcc, 2, %s" % v(vT))
    a("v_max_u32 %s, 1, %s" % (v(vT + 2), v(vT + 1)))
    a("v_cndmask_b32 %s, %s, %s, vcc" % (v(vT + 1), v(vT + 1), v(vT + 2)))
    a("v_mul_u32_u24 %s, 448, %s" % (v(vT + 1), v(vT + 1)))
    a("v_and_b32 %s, 1, %s" % (v(vT + 2), vL))
    a("v_mul_u32_u24 %s, 31, %s" % (v(vT + 2), v(vT + 2)))
    a("s_mul_i32 %s, %s, 7" % (sT0, sJ))
    a("s_lshr_b32 %s, %s, 1" % (sE, sT0))
    a("s_lshl_b32 %s, %s, 3" % (sT0, sE))
    a("v_add3_u32 %s, %s, %s, %s" % (v(vT + 1), v(vT + 1), v(vT + 2), sT0))
    M96 = (1 << 18) // 96 + 1
    for i in range(1348):
        assert (i * M96) >> 18 == i // 96
    a("v_mul_u32_u24 %s, %d, %s" % (v(vT + 1), M96, v(vT + 1)))
    a("v_lshrrev_b32 %s, 18, %s" % (v(vT + 1), v(vT + 1)))
    a("v_min_u32 %s, 13, %s" % (v(vT + 1), v(vT + 1)))
    a("v_add_u32 %s, %s, %s" % (v(vT + 2), sG, v(vT)))
    a("v_cmp_gt_u32 vcc, 2, %s" % v(vT + 2))
    a("v_subrev_u32 %s, 2, %s" % (v(vT + 2), v(vT + 2)))
    a("v_mov_b32 %s, %s" % (v(vT + 3), sG))
    a("v_cndmask_b32 %s, %s, %s, vcc" % (v(vT + 2), v(vT + 2), v(vT + 3)))
    a("v_lshlrev_b32 %s, 9, %s" % (v(vT + 2), v(vT + 2)))
    a("v_lshl_add_u32 %s, %s, 3, %s" % (v(vT + 2), v(vT + 1), v(vT + 2)))
    sum_s(sT0, [(sHW, 128)], WS_F1)
    a("v_add_u32 v27, %s, %s" % (sT0, v(vT + 2)))
    sum_s(sFC, [(sTILE4, QT), (sE, 512)], WS_QKV)
    a("s_sub_u32 %s, %s, %d" % (sFB, sFC, 4 * QT))
    a("s_sub_u32 %s, %s, %d" % (sFA, sFC, 8 * QT))
    a("s_cmp_lt_u32 %s, 1" % sG)
    a("s_cselect_b32 %s, 0x40000000, %s" % (sFB, sFB))
    a("s_cmp_lt_u32 %s, 2" % sG)
    a("s_cselect_b32 %s, 0x40000000, %s" % (sFA, sFA))
    a("s_lshl_b32 %s, %s, 11" % (sFD, sHW))


SC, KB, QF, M0R, M16R, PF, VB, OA = 32, 100, 124, 128, 132, 136, 148, 172
LS, ONE4 = 196, 200
vKA = [180, 181]
vVA = [184, 185]
vQA = "v186"
vNEG, vGFA, vGF, vOA = "v188", "v189", 190, "v192"
sFQ, sFO = "s[80:81]", "s[82:83]"


def p2_setup():
    a("s_mul_i32 %s, %s, 7" % (sT4, sJ))
    a("s_lshr_b32 %s, %s, 1" % (sT4, sT4))
    a("v_add_u32 %s, %s, %s" % (v(vT + 3), sT4, vQ4))
    a("v_and_b32 %s, 1, %s" % (v(vT + 3), v(vT + 3)))
    a("v_mul_u32_u24 %s, 12, %s" % (v(vT + 3), v(vT + 3)))
    a("v_bfe_u32 %s, %s, 1, 1" % (v(vT + 4), vR))
    a("v_add_u32 %s, %s, %s" % (v(vT + 5), sT4, v(vT + 4)))
    a("v_and_b32 %s, 1, %s" % (v(vT + 5), v(vT + 5)))
    a("v_mul_u32_u24 %s, 12, %s" % (v(vT + 5), v(vT + 5)))
    for par in range(2):
        a("s_add_u32 %s, %s, %d" % (sT0, sWAVE, par))
        a("s_lshr_b32 %s, %s, 1" % (sT1, sT0))
        a("s_lshl_b32 %s, %s, 12" % (sT1, sT1))
        a("s_and_b32 %s, %s, 1" % (sT0, sT0))
        a("s_lshl_b32 %s, %s, 4" % (sT0, sT0))
        a("v_add_u32 %s, %s, %s" % (v(vT), sT0, vR))
        a("v_xor_b32 %s, %s, %s" % (v(vT), v(vT), v(vT + 3)))
        a("v_lshlrev_b32 %s, 4, %s" % (v(vT), v(vT)))
        a("v_lshl_add_u32 %s, %s, 9, %s" % (v(vT), vQ4, v(vT)))
        a("v_add_u32 %s, %s, %s" % (v(vKA[par]), sT1, v(vT)))
        if par == 0:
            a("s_lshr_b32 %s, %s, 1" % (sT2, sT1))
            a("s_add_u32 %s, %s, %d" % (sT2, sT2, L_Q))
            a("v_add_u32 %s, %s, %s" % (vQA, sT2, v(vT)))
        a("v_lshrrev_b32 %s, 2, %s" % (v(vT), vR))
        a("v_lshl_add_u32 %s, %s, 2, %s" % (v(vT), vQ4, v(vT)))
        a("v_add_u32 %s, %s, %s" % (v(vT), sT0, v(vT)))
        a("v_xor_b32 %s, %s, %s" % (v(vT), v(vT), v(vT + 5)))
        a("v_lshlrev_b32 %s, 4, %s" % (v(vT), v(vT)))
        a("v_lshl_add_u32 %s, %s, 9, %s" % (v(vT), v(vT + 4), v(vT)))
        a("v_and_b32 %s, 1, %s" % (v(vT + 1), vR))
        a("v_lshl_add_u32 %s, %s, 3, %s" % (v(vT), v(vT + 1), v(vT)))
        a("v_add_u32 %s, %s, %s" % (v(vVA[par]), sT1, v(vT)))
    for o_ in range(2):
        for half in range(2):
            assert lds_conflicts([(l >> 4) * 512 + (((16 * half + (l & 15)) ^ (12 * ((o_ + (l >> 4)) & 1))) * 16) for l in range(64)], "b128") == 0
            assert lds_conflicts([((l >> 1) & 1) * 512 + (((16 * half + 4 * (l >> 4) + ((l & 15) >> 2)) ^ (12 * ((o_ + ((l >> 1) & 1)) & 1))) * 16) + (l & 1) * 8 for l in range(64)], "tr") == 0
    a("s_and_b32 %s, %s, 1" % (sT0, sJ))
    a("s_cmp_eq_u32 %s, 0" % sT0)
    a("s_cselect_b32 s80, 0, 0xffff")
    a("s_mov_b32 s81, 0")
    a("s_mov_b32 s82, 0")
    a("s_cselect_b32 s83, 0xffff0000, 0")
    for k in range(4):
        a("v_mov_b32 %s, 0x3f803f80" % v(ONE4 + k))
    a("v_mov_b32 %s, 0xf149f2ca" % vNEG)
    a("v_lshlrev_b32 %s, 2, %s" % (v(vT), vQ4))
    a("v_sub_u32 %s, %s, %s" % (v(vT), v(vT), vR))
    for c in range(4):
        a("v_cmp_lt_i32 vcc, %d, %s" % (-c, v(vT)))
        a("v_cndmask_b32 %s, %s, %s, vcc" % (v(M0R + c), vNEG, vZ))
        a("v_cndmask_b32 %s, %s, %s, vcc" % (v(M16R + c), vZ, vNEG))
    sum_s(sT0, [(sG, 512)], WS_F1)
    a("v_lshlrev_b32 %s, 3, %s" % (vGFA, vR))
    a("v_add_u32 %s, %s, %s" % (vGFA, sT0, vGFA))
    a("s_lshr_b32 %s, %s, 1" % (sT1, sWAVE))
    a("s_and_b32 %s, %s, 1" % (sT2, sWAVE))
    sum_s(sE, [(sG, 131072), (sT1, 32768), (sJ, 2048), (sT2, 256)], WS_O)
    sum_s(sF, [(sG, 1024), (sWAVE, 128), (sJ, 8)], WS_F2)
    a("v_lshlrev_b32 %s, 9, %s" % (vOA, vQ4))
    a("v_lshl_add_u32 %s, %s, 4, %s" % (vOA, vR, vOA))
    a("v_mov_b32 %s, 0" % v(PF + 8 + 2))
    a("v_mov_b32 %s, 0" % v(PF + 8 + 3))




def adv(s):
    a("s_add_u32 %s, %s, 1" % (s, s))
    a("s_cmp_eq_u32 %s, 7" % s)
    a("s_cselect_b32 %s, 0, %s" % (s, s))


def issue_w(c):
    a("s_mul_i32 %s, %s, %d" % (sT1, sCW, 64 * 2688))
    for k in range(3):
        dma(v(vW[k]), WQKV, sT1, "s92", c * 12288 + k * 1024)
    adv(sCW)


def issue_x(c):
    a("s_lshl_b32 %s, %s, 7" % (sT0, sCX))
    for ii in range(4):
        dma(v(vX[ii]), X, sT0, sHW4K, L_XR + (c % 4) * 16384 + ii * 1024)
    adv(sCX)


GW = [{0: [0, 1], 1: [2, 3], 2: [4], 3: [5], 4: [6], 5: [], 6: []},
      {0: [0], 1: [1], 2: [2, 3], 3: [4, 5], 4: [6], 5: [], 6: []},
      {0: [0], 1: [1, 2], 2: [3, 4], 3: [5], 4: [6], 5: [], 6: []}][OPT["gw"]]


def issue_group(c):
    ws = list(GW[c])
    while ws and (ws[0] <= c or (OPT["gw"] == 0 and c <= 1)):
        issue_w(ws.pop(0))
    issue_x(c)
    for w_ in ws:
        issue_w(w_)
    return 4 + 3 * len(GW[c])


if OPT["warm"]:
    common_setup()
    a("s_waitcnt vmcnt(0)")
if OPT["diag"]:
    a("s_memtime s[98:99]")
    issue_w(0)
    a("s_waitcnt vmcnt(0)")
    a("s_memtime s[100:101]")
    a("s_mov_b32 %s, %s" % (sCW, sROT))
groups = [issue_group(0), issue_group(1)]
if not OPT["warm"]:
    common_setup()
if OPT["diag"]:
    a("s_waitcnt lgkmcnt(0)")
    for nm, r_ in (("d_entry", 96), ("d_karg", 98), ("d_first", 100)):
        idx = STAMPS.setdefault("t0", 0)
        idx = STAMPS.setdefault(nm, len(STAMPS))
        a("v_mov_b32 v30, s%d" % r_)
        a("v_mov_b32 v31, s%d" % (r_ + 1))
        a("s_mov_b64 exec, 1")
        a("buffer_store_dwordx2 v[30:31], %s, %s, %s offen offset:%d" % (vZ, WS, sTSOFF, idx * 8))
        a("s_mov_b64 exec, -1")
    groups[-1] += 3
stamp("t0")
stamp("rt_start")
hCS = [48, 49, 50, 51, 52, 53]
hWA, hWA2 = "v54", "v55"
HBW = 60
hST = 76
for r_ in hCS:
    a("v_mov_b32 %s, 0" % v(r_))
tr_base_192(hWA, v(vT))
a("v_add_u32 %s, s92, %s" % (hWA, hWA))
a("v_add_u32 %s, %d, %s" % (hWA2, 5 * 12288, hWA))
a("v_lshlrev_b32 v56, 4, %s" % vL31)
a("v_mov_b32 v57, 0x3f803f80")
sum_s(sA, [(sTILE4, 512)], WS_ST)


def colsum_w(c):
    if OPT["dry"] & 1:
        return
    base, off = (hWA2, (c - 5) * 12288) if c >= 5 else (hWA, c * 12288)
    for p3 in range(3):
        for hh in range(2):
            a("ds_read_b64_tr_b16 %s, %s offset:%d" % (v(HBW + 4 * p3 + 2 * hh, 2), base, off + p3 * 64 + hh * 768))
    a("s_waitcnt lgkmcnt(0)")
    for i in range(4):
        for p3 in range(3):
            a("v_dot2c_f32_bf16 %s, %s, v57" % (v(hCS[2 * p3]), v(HBW + 4 * p3 + i)))


for c in range(7):
    after = sum(groups[c + 1:])
    if c == 6:
        a("v_mov_b32 %s, %d" % (v(vT), L_EP))
        a("ds_read_b64 %s, %s" % (v(vFLG, 2), v(vT)))
        a("s_waitcnt lgkmcnt(0)")
        a("v_readfirstlane_b32 %s, %s" % (sEPL, v(vFLG)))
        a("v_readfirstlane_b32 %s, %s" % (sEPH, v(vFLG + 1)))
        a("v_or_b32 %s, %s, %s" % (v(vFLG), sXCC, v(vFLG)))
        a("s_mov_b32 %s, 0x20000" % sCNT)
        a("s_waitcnt vmcnt(%d)" % sum(groups[8:]))
        a.label("Lst_loop")
        a("v_cmp_ne_u32 vcc, %s, %s" % (sEPL, v(hST + 1)))
        a("v_cmp_ne_u32 s[94:95], %s, %s" % (sEPH, v(hST + 3)))
        a("s_or_b64 vcc, vcc, s[94:95]")
        a("s_cbranch_scc0 Lst_ok")
        a("buffer_load_dwordx4 %s, v56, %s, %s offen sc1" % (v(hST, 4), WS, sA))
        a("s_sub_u32 %s, %s, 1" % (sCNT, sCNT))
        a("s_waitcnt vmcnt(0)")
        a("s_cmp_lg_u32 %s, 0" % sCNT)
        a("s_cbranch_scc1 Lst_loop")
        a.label("Lst_ok")
        sum_s(sT0, [(sHW, 256)], L_ST)
        a("v_lshl_add_u32 %s, %s, 2, %s" % (v(vT), vL31, sT0))
        a("ds_write_b32 %s, %s" % (v(vT), v(hST)))
        a("ds_write_b32 %s, %s offset:128" % (v(vT), v(hST + 2)))
        a("s_waitcnt lgkmcnt(0)")
    else:
        a("s_waitcnt vmcnt(%d)" % after)
    a("s_barrier")
    stamp("h_b%d" % c)
    if c == 0:
        groups.append(issue_group(2))
    if c + 3 <= 6:
        groups.append(issue_group(c + 3))
    if c == 3:
        a("buffer_load_dwordx4 %s, v56, %s, %s offen sc1" % (v(hST, 4), WS, sA))
        groups.append(1)
    if c == 3 and OPT["P3"]:
        groups.append(bg("P3"))
    if c == OPT["pt_c"] and OPT["pt_h1"] == 3:
        sum_s(sT0, [(sG, 448 * 1024), (sJ, 32 * 1024), (sHW, 8192)], WS_H1)
        groups.append(touch_lines(WS, sT0, 64, sc1=True))
    for w_ in GW[c]:
        colsum_w(w_)
    if c == 4:
        for p3 in range(3):
            a("v_add_f32 %s, %s, %s" % (v(hCS[2 * p3]), v(hCS[2 * p3]), v(hCS[2 * p3 + 1])))
            xhalf_sum(v(hCS[2 * p3]), v(vT))
        sum_s(sT0, [(sHW, 384)], L_CSP)
        a("v_lshl_add_u32 %s, %s, 2, %s" % (v(vT), vL31, sT0))
        for p3 in range(3):
            a("ds_write_b32 %s, %s offset:%d" % (v(vT), v(hCS[2 * p3]), 128 * p3))
        a("s_waitcnt lgkmcnt(0)")
    if c == 5:
        a("s_min_u32 %s, %s, 2" % (sT0, sHW))
        a("s_lshl_b32 %s, %s, 7" % (sT0, sT0))
        a("s_add_u32 %s, %s, %d" % (sT1, sT0, L_CSP))
        a("v_lshl_add_u32 %s, %s, 2, %s" % (v(vT + 4), vL31, sT1))
        a("s_add_u32 %s, %s, %d" % (sT1, sT0, L_CS))
        a("v_lshl_add_u32 %s, %s, 2, %s" % (v(vT + 5), vL31, sT1))
        for k in range(4):
            a("ds_read_b32 %s, %s offset:%d" % (v(HBW + k), v(vT + 4), 384 * k))
        a("s_waitcnt lgkmcnt(0)")
        a("v_add_f32 %s, %s, %s" % (v(HBW), v(HBW), v(HBW + 1)))
        a("v_add_f32 %s, %s, %s" % (v(HBW + 2), v(HBW + 2), v(HBW + 3)))
        a("v_add_f32 %s, %s, %s" % (v(HBW), v(HBW), v(HBW + 2)))
        a("ds_write_b32 %s, %s" % (v(vT + 5), v(HBW)))
a("s_barrier")
bg("A")
stamp("h_wo")
a("s_branch Lp2")

a.label("Lservice")
a("s_sub_u32 %s, %s, 14" % (sT0, sJ))
sum_s(sT1, [(sT0, 64), (sWAVE, 8), (sR0, 1)])
a("s_mul_i32 %s, %s, 896" % (sT2, sT1))
a("v_lshrrev_b32 %s, 3, %s" % (v(vT), vL))
a("v_mul_u32_u24 %s, 896, %s" % (v(40), v(vT)))
a("v_and_b32 %s, 7, %s" % (v(vT + 1), vL))
a("v_lshl_add_u32 %s, %s, 4, %s" % (v(40), v(vT + 1), v(40)))
SX = 44
for i in range(7):
    a("buffer_load_dwordx4 %s, v40, %s, %s offen offset:%d%s" % (v(SX + 4 * i, 4), X, sT2, 128 * i, " nt" if OPT["nt"] & 1 else ""))
a("buffer_load_dwordx2 %s, %s, %s, 0 offen sc1" % (v(vFLG, 2), vZ, DBG))
a("s_lshl_b32 %s, %s, 4" % (sA, sT1))
a("s_add_u32 %s, %s, %d" % (sA, sA, WS_ST))
a("v_lshlrev_b32 v41, 4, %s" % v(vT))
common_setup()
stamp("t0")
stamp("rt_start")
a("v_mov_b32 v42, 0")
a("v_mov_b32 v43, 0")
a("v_mov_b32 v39, 0x3f803f80")
a("s_waitcnt vmcnt(1)")
for i in range(28):
    a("v_dot2c_f32_bf16 v42, %s, v39" % v(SX + i))
    a("v_dot2c_f32_bf16 v43, %s, %s" % (v(SX + i), v(SX + i)))
for sw in (0x041F, 0x081F, 0x101F):
    a("ds_swizzle_b32 %s, v42 offset:0x%x" % (v(vT + 2), sw))
    a("ds_swizzle_b32 %s, v43 offset:0x%x" % (v(vT + 3), sw))
    a("s_waitcnt lgkmcnt(0)")
    a("v_add_f32 v42, v42, %s" % v(vT + 2))
    a("v_add_f32 v43, v43, %s" % v(vT + 3))
ln_finish("v42", "v43", v(SX), v(SX + 2), v(vT + 2))
get_epoch_spin("svc")
a("v_mov_b32 %s, %s" % (v(SX + 1), sEPL))
a("v_mov_b32 %s, %s" % (v(SX + 3), sEPH))
a("v_or_b32 %s, %s, %s" % (v(vFLG), sXCC, v(vFLG)))
a("buffer_store_dwordx4 %s, v41, %s, %s offen sc1" % (v(SX, 4), WS, sA))
sum_s(sT0, [(sG, 512), (sJ, 8)], WS_F1)
flag_store(sT0, " sc1")
stamp("svc_st")
a("s_waitcnt vmcnt(0)")
a("s_barrier")
a("s_sub_u32 %s, %s, 14" % (sT0, sJ))
sum_s(sT4, [(sT0, 8), (sWAVE, 1)])
if not OPT["ohsc"]:
    sum_s(sT1, [(sG, 131072), (sT4, 8192)], WS_O)
    touch_lines(WS, sT1, 64, sc1=True)
    sum_s(sT1, [(sG, 114688), (sT4, 7168)], WS_H)
    touch_lines(WS, sT1, 56, sc1=True)
    sum_s(sT1, [(sG, 16384), (sT4, 1024)], WS_HS)
    touch_lines(WS, sT1, 8, sc1=True)
sum_s(sT1, [(sG, 1024)], WS_F2)
touch_lines(WS, sT1, 8, sc1=True)
sum_s(sT1, [(sG, 512)], WS_F3)
touch_lines(WS, sT1, 4, sc1=True)
sum_s(sT1, [(sG, 512)], WS_F4)
touch_lines(WS, sT1, 4, sc1=True)
a("s_and_b32 %s, %s, 1" % (sT0, sG))
sum_s(sT3, [(sT0, 16), (sT4, 1)])
for it in [x for x in OPT["svc"].split("+") if x]:
    srd, base, total = {"wo": (WO, 0, 401408), "w2q": (W2, 0, 401408), "w2q2": (W2, 401408, 401408), "w1q": (W1, 0, 401408)}[it]
    per = total // 128 // 32
    sum_s(sT1, [(sT3, per * 128)], base)
    touch_lines(srd, sT1, per)
if OPT["pt_h1"] == 2:
    sum_s(sT1, [(sG, 448 * 1024), (sT4, 28 * 1024)], WS_H1)
    touch_lines(WS, sT1, 224, sc1=True)
fetch_setup()
a("s_cmp_lt_u32 %s, 4" % sWAVE)
a("s_cbranch_scc1 Lfetch")
if "w18" in OPT["A"]:
    w1_block(8)
a("s_branch Lp2")

a.label("Lmfma")
a("s_or_b32 %s, s2, %s" % (sT0, sWAVE))
a("s_cmp_lg_u32 %s, 0" % sT0)
a("s_cbranch_scc1 Lnoep")
a("s_memrealtime s[94:95]")
a("s_waitcnt lgkmcnt(0)")
a("s_lshl_b32 %s, s94, 4" % sT1)
a("s_or_b32 %s, %s, 8" % (sT1, sT1))
a("s_mul_i32 %s, s94, 0x9e3779b1" % sT2)
a("s_add_u32 %s, %s, s95" % (sT2, sT2))
a("v_mov_b32 %s, %s" % (v(vT), sT1))
a("v_mov_b32 %s, %s" % (v(vT + 1), sT2))
a("s_mov_b64 exec, 1")
a("buffer_store_dwordx2 %s, %s, %s, 0 offen sc1" % (v(vT, 2), vZ, DBG))
a("s_mov_b64 exec, -1")
a.label("Lnoep")
common_setup()
stamp("t0")
stamp("rt_start")
ACC = 32
FB = 80
vXA = [148, 149, 150, 151]
vWA, vWA2 = "v152", "v153"
vSA, vCA = "v154", "v155"
vQo = ["v156", "v157"]
CS = 160
PK = 208
vNM, vRS = 232, 234
a("v_bfe_u32 %s, %s, 1, 3" % (v(vT), vL31))
a("v_xor_b32 %s, %s, %s" % (v(vT), v(vT), vH))
a("v_lshlrev_b32 %s, 7, %s" % (v(vT + 1), vL31))
a("v_add_u32 %s, %s, %s" % (v(vT + 1), sHW4K, v(vT + 1)))
a("v_add_u32 %s, %d, %s" % (v(vT + 1), L_XR, v(vT + 1)))
for s in range(4):
    a("v_xor_b32 %s, %d, %s" % (v(vT + 2), 2 * s, v(vT)))
    a("v_lshl_add_u32 %s, %s, 4, %s" % (v(vXA[s]), v(vT + 2), v(vT + 1)))
    assert lds_conflicts([(l & 31) * 128 + (((2 * s + (l >> 5)) ^ (((l & 31) >> 1) & 7)) * 16) for l in range(64)], "b128") == 0
tr_base_192(vWA, v(vT))
a("v_add_u32 %s, %d, %s" % (vWA2, 5 * 12288, vWA))
sum_s(sT0, [(sHW, 256)], L_ST)
a("v_lshl_add_u32 %s, %s, 2, %s" % (vSA, vL31, sT0))
a("v_lshlrev_b32 %s, 4, %s" % (vCA, vH))
a("v_add_u32 %s, %d, %s" % (vCA, L_CS, vCA))
a("v_mul_u32_u24 %s, 12, %s" % (v(vT), vH))
a("v_xor_b32 %s, %s, %s" % (v(vT), v(vT), vL))
a("v_lshlrev_b32 %s, 4, %s" % (vQo[0], v(vT)))
sum_s(sA, [(sTILE4, QT), (sJ, 12 * 512)], WS_QKV)
a("s_add_u32 %s, %s, 4096" % (sC, sA))
sum_s(sD, [(sTILE4, 128), (sJ, 8)], WS_F1)


def p1_reads(c, s):
    if OPT["dry"] & 2:
        return
    fb = FB + 16 * s
    a("ds_read_b128 %s, %s offset:%d" % (v(fb, 4), v(vXA[s]), (c % 4) * 16384))
    base, off = (vWA2, (c - 5) * 12288) if c >= 5 else (vWA, c * 12288)
    for p3 in range(3):
        for hh in range(2):
            a("ds_read_b64_tr_b16 %s, %s offset:%d" % (v(fb + 4 + 4 * p3 + 2 * hh, 2), base, off + p3 * 64 + s * 3072 + hh * 768))


def p1_mfma(c, s, fill=None):
    if OPT["dry"] & 2:
        return
    fb = FB + 16 * s
    first = (c == 0 and s == 0)
    for p3 in range(3):
        acc = v(ACC + 16 * p3, 16)
        a("v_mfma_f32_32x32x16_bf16 %s, %s, %s, %s" % (acc, v(fb + 4 + 4 * p3, 4), v(fb, 4), "0" if first else acc))
        if fill:
            for _ in range(6):
                if fill:
                    a(fill.pop(0))


for k in range(4):
    a("v_mov_b32 %s, -1" % v(PK + k))
def sentinel_init():
    for i in range(6 if OPT["sent"] else 0):
        a("buffer_store_dwordx4 %s, %s, %s, %s offen offset:%d sc1" % (v(PK, 4), vL16, WS, sA if i < 4 else sC, 1024 * (i % 4)))
    a("buffer_load_dwordx2 %s, %s, %s, 0 offen sc1" % (v(vFLG, 2), vZ, DBG))


if OPT["ic"] < 0:
    sentinel_init()
fetch_setup()
a("s_barrier")
stamp("m_b0")
p1_reads(0, 0)
p1_reads(0, 1)
for c in range(7):
    fill = []
    if c == 1:
        for jj in range(4):
            a("buffer_load_dwordx2 %s, %s, %s, %s offen offset:%d" % (v(vXRES + 2 * jj, 2), vXOFF, X, sXO, 16 * jj))
    if c == OPT["ic"]:
        sentinel_init()
    if c == 6 and OPT["sent"]:
        a("buffer_load_dwordx2 %s, v27, %s, 0 offen sc1" % (v(vIF, 2), WS))
    a("s_waitcnt lgkmcnt(7)")
    p1_mfma(c, 0)
    p1_reads(c, 2)
    a("s_waitcnt lgkmcnt(7)")
    p1_mfma(c, 1)
    p1_reads(c, 3)
    if c == 6:
        a("ds_read_b32 %s, %s" % (v(vNM), vSA))
        a("ds_read_b32 %s, %s offset:128" % (v(vRS), vSA))
        a("s_waitcnt lgkmcnt(9)")
        p1_mfma(c, 2)
        a("s_waitcnt lgkmcnt(2)")
        for i in range(12):
            a("ds_read_b128 %s, %s offset:%d" % (v(CS + 4 * i, 4), vCA, 32 * i))
        p1_mfma(c, 3)
    else:
        a("s_waitcnt lgkmcnt(7)")
        p1_mfma(c, 2)
        if c == OPT["fc"]:
            get_epoch_spin("m")
            a("v_mov_b32 %s, %d" % (v(vT + 2), L_EP))
            a("ds_write_b64 %s, %s" % (v(vT + 2), v(vFLG, 2)))
            a("v_or_b32 %s, %s, %s" % (v(vFLG), sXCC, v(vFLG)))
            if OPT["sent"]:
                flag_store(sD, " sc1")
        a("s_waitcnt lgkmcnt(0)")
        a("s_barrier")
        stamp("m_b%d" % (c + 1))
        p1_reads(c + 1, 0)
        p1_reads(c + 1, 1)
        p1_mfma(c, 3)
a("s_waitcnt lgkmcnt(12)")
a("v_mul_f32 %s, %s, %s" % (v(vNM), v(vNM), v(vRS)))
a("v_mov_b32 %s, %s" % (v(vRS + 1), v(vRS)))
a("v_mov_b32 %s, %s" % (v(vNM + 1), v(vNM)))
stamp("m_p1end")
for i in range(3):
    a("s_waitcnt lgkmcnt(%d)" % (8 - 4 * i))
    for k in range(8):
        r_ = CS + 16 * i + 2 * k
        a("v_pk_mul_f32 %s, %s, %s" % (v(r_, 2), v(r_, 2), v(vNM, 2)))
for i in range(3):
    for k in range(8):
        r_ = ACC + 16 * i + 2 * k
        a("v_pk_fma_f32 %s, %s, %s, %s" % (v(r_, 2), v(r_, 2), v(vRS, 2), v(CS + 16 * i + 2 * k, 2)))
    for k in range(8):
        a("v_cvt_pk_bf16_f32 %s, %s, %s" % (v(PK + 8 * i + k), v(ACC + 16 * i + 2 * k), v(ACC + 16 * i + 2 * k + 1)))
    for m in range(2):
        for k in range(2):
            a("v_permlane32_swap_b32 %s, %s" % (v(PK + 8 * i + 4 * m + k), v(PK + 8 * i + 4 * m + 2 + k)))
    for m in range(2):
        a("buffer_store_dwordx4 %s, %s, %s, %s offen offset:%d sc1" % (v(PK + 8 * i + 4 * m, 4), vQo[0], WS, sA if i < 2 else sC, (2048 * i if i < 2 else 0) + 1024 * m))
stamp("m_epi1")
stamp("rt_epi1")
if OPT["sent"]:
    a("s_barrier")
    a("s_waitcnt vmcnt(6)")
    a("v_and_b32 %s, -8, %s" % (v(vIF), v(vIF)))
    a("v_cmp_ne_u64 vcc, %s, %s" % (sEP, v(vIF, 2)))
    a("s_cbranch_vccz Lfetch_go")
else:
    a("s_waitcnt vmcnt(0)")
    flag_store(sD, " sc1")
    a("s_barrier")

a.label("Lfetch")
poll("v27", vT + 2, "f1")
a.label("Lfetch_go")
stamp("m_f1ok")
stamp("rt_f1ok")
a("v_add_u32 v32, %s, %s" % (sHW4K, vL16))
a("v_add_u32 v33, %s, %s" % (sFD, vL16))
a("s_mov_b32 %s, 0x4000" % sCNT)


def fetch_dma():
    for kind, sb in ((2, sFC), (1, sFB), (0, sFA)):
        if kind == 2:
            dma(vL16, WS, sb, sFD, L_Q, sc1=True)
            dma(vL16, WS, sb, sFD, L_Q + 1024, inst=1024, sc1=True)
        a("s_add_u32 %s, %s, %d" % (sT0, sb, 56 * 512))
        a("s_add_u32 %s, %s, %d" % (sT1, sb, 112 * 512))
        lb = L_KV + kind * 16384
        dma(vL16, WS, sT0, sHW4K, lb, sc1=True)
        dma(vL16, WS, sT0, sHW4K, lb + 1024, inst=1024, sc1=True)
        dma(vL16, WS, sT1, sHW4K, lb + 2048, sc1=True)
        dma(vL16, WS, sT1, sHW4K, lb + 3072, inst=1024, sc1=True)


fetch_dma()
p2_setup()
a.label("Lfetch_val")
if not OPT["sent"]:
    a("s_waitcnt vmcnt(0)")
    a("s_branch Lp2b")
VR = 36
order = [("v33", L_Q), ("v33", L_Q + 1024)] + [("v32", L_KV + kind * 16384 + 1024 * q) for kind in (2, 1, 0) for q in range(4)]
for n, (ad, off) in enumerate(order):
    if n in (0, 6, 10):
        a("s_waitcnt vmcnt(%d)" % {0: 8, 6: 4, 10: 0}[n])
    a("ds_read_b128 %s, %s offset:%d" % (v(VR + 4 * n, 4), ad, off))
a("v_mov_b32 v34, 0")
a("v_mov_b32 v35, 0")
for n in range(14):
    if n in (0, 6, 10):
        a("s_waitcnt lgkmcnt(%d)" % {0: 8, 6: 4, 10: 0}[n])
    a("v_max3_u32 v34, v34, %s, %s" % (v(VR + 4 * n), v(VR + 4 * n + 1)))
    a("v_max3_u32 v35, v35, %s, %s" % (v(VR + 4 * n + 2), v(VR + 4 * n + 3)))
a("v_max_u32 v34, v34, v35")
a("v_cmp_eq_u32 vcc, -1, v34")
a("s_sub_u32 %s, %s, 1" % (sCNT, sCNT))
a("s_cmp_eq_u32 %s, 0" % sCNT)
a("s_cbranch_scc1 Lfetch_done")
a("s_cbranch_vccz Lfetch_done")
fetch_dma()
a("s_branch Lfetch_val")
a.label("Lfetch_done")
if OPT["stamps"]:
    a("v_mov_b32 v30, %s" % sCNT)
    a("v_mov_b32 v31, 0")
    a("s_mov_b64 exec, 1")
    a("buffer_store_dwordx2 v[30:31], %s, %s, %s offen offset:%d" % (vZ, WS, sTSOFF, 30 * 8))
    a("s_mov_b64 exec, -1")
a("s_branch Lp2b")

a.label("Lp2")
p2_setup()
a.label("Lp2b")
stamp("kv_landed")
a("s_barrier")
stamp("b8")
stamp("rt_b8")
a(("s_cmp_ge_u32 %s, 4" if OPT["bm"] else "s_cmp_lt_u32 %s, 4") % sWAVE)
a("s_cbranch_scc1 Lp2go")
bg("B")
a.label("Lp2go")
a("buffer_load_dwordx2 %s, %s, %s, 0 offen sc1" % (v(vGF, 2), vGFA, WS))
a("ds_read_b128 %s, %s" % (v(QF, 4), vQA))
NKB = 6


def kread(i):
    a("ds_read_b128 %s, %s offset:%d" % (v(KB + 4 * (i % NKB), 4), v(vKA[i & 1]), (i >> 1) * 4096))


for i in range(NKB):
    kread(i)
for i in range(17):
    rem = min(NKB - 1, 16 - i)
    a("s_waitcnt lgkmcnt(%d)" % rem)
    if i == 0:
        for k in range(2):
            a("v_cndmask_b32 %s, %s, %s, %s" % (v(QF + k), v(QF + k), vZ, sFQ))
            a("v_cndmask_b32 %s, %s, %s, %s" % (v(QF + 2 + k), v(QF + 2 + k), vZ, sFO))
    cc = v(M0R, 4) if i == 0 else (v(M16R, 4) if i == 16 else "0")
    a("v_mfma_f32_16x16x32_bf16 %s, %s, %s, %s" % (v(SC + 4 * i, 4), v(KB + 4 * (i % NKB), 4), v(QF, 4), cc))
    if i + NKB < 17:
        kread(i + NKB)


def vread(n):
    p, dt = n >> 1, n & 1
    for b in range(2):
        par = b if p < 8 else 0
        a("ds_read_b64_tr_b16 %s, %s offset:%d" % (v(VB + 4 * (n % NKB) + 2 * b, 2), v(vVA[par]), 2048 + p * 4096 + dt * 1024))


for n in range(NKB):
    vread(n)
a("s_cmp_ge_u32 %s, 2" % sG)
a("s_cbranch_scc1 Lnoinv")
a("s_lshl_b32 %s, %s, 3" % (sT0, sG))
a("s_add_u32 %s, %s, %s" % (sT0, sT0, sWAVE))
a("s_sub_u32 %s, 16, %s" % (sT0, sT0))
for i in range(16):
    a("s_cmp_le_u32 %s, %d" % (sT0, i))
    a("s_cbranch_scc1 Lnoinv")
    for c in range(4):
        a("v_mov_b32 %s, %s" % (v(SC + 4 * i + c), vNEG))
a.label("Lnoinv")
vM, vM2 = v(vT), v(vT + 1)
a("v_max3_f32 %s, %s, %s, %s" % (vM, v(SC), v(SC + 1), v(SC + 2)))
a("v_max3_f32 %s, %s, %s, %s" % (vM2, v(SC + 3), v(SC + 4), v(SC + 5)))
i = 6
flip = 0
while i < 68:
    tgt = vM if flip == 0 else vM2
    a("v_max3_f32 %s, %s, %s, %s" % (tgt, tgt, v(SC + i), v(SC + i + 1)))
    i += 2
    flip ^= 1
a("v_max_f32 %s, %s, %s" % (vM, vM, vM2))
a("v_mov_b32 %s, %s" % (vM2, vM))
a("v_permlane32_swap_b32 %s, %s" % (vM, vM2))
a("v_max_f32 %s, %s, %s" % (vM, vM, vM2))
a("v_mov_b32 %s, %s" % (vM2, vM))
a("v_permlane16_swap_b32 %s, %s" % (vM, vM2))
a("v_max_f32 %s, %s, %s" % (vM, vM, vM2))
CSC = (28.0 ** -0.5) * math.log2(math.e)
a("s_mov_b32 %s, %s" % (sT0, f32(CSC)))
a("v_mul_f32 %s, %s, %s" % (vM, f32(-CSC), vM))
for p in range(9):
    ne = 8 if p < 8 else 4
    for i in range(ne):
        a("v_fma_f32 %s, %s, %s, %s" % (v(SC + 8 * p + i), v(SC + 8 * p + i), sT0, vM))
    for i in range(ne):
        a("v_exp_f32 %s, %s" % (v(SC + 8 * p + i), v(SC + 8 * p + i)))
    pf = PF + 4 * (p % 2) if p < 8 else PF + 8
    for i in range(ne // 2):
        a("v_cvt_pk_bf16_f32 %s, %s, %s" % (v(pf + i), v(SC + 8 * p + 2 * i), v(SC + 8 * p + 2 * i + 1)))
    a("v_mfma_f32_16x16x32_bf16 %s, %s, %s, %s" % (v(LS, 4), v(ONE4, 4), v(pf, 4), "0" if p == 0 else v(LS, 4)))
    for dt in range(2):
        n = 2 * p + dt
        rem = min(NKB - 1, 17 - n)
        a("s_waitcnt lgkmcnt(%d)" % (2 * rem))
        cc = "0" if p == 0 else v(OA + 4 * dt, 4)
        a("v_mfma_f32_16x16x32_bf16 %s, %s, %s, %s" % (v(OA + 4 * dt, 4), v(VB + 4 * (n % NKB), 4), v(pf, 4), cc))
        if n + NKB < 18:
            vread(n + NKB)
    if p == 6:
        a("s_waitcnt vmcnt(0)")
        a("v_and_b32 %s, -8, %s" % (v(vT + 4), v(vGF)))
        a("v_mov_b32 %s, %s" % (v(vT + 5), v(vGF + 1)))
        a("v_cmp_ne_u64 vcc, %s, %s" % (sEP, v(vT + 4, 2)))
        a("s_cbranch_vccz Lgf_ok")
        poll(vGFA, vT + 4, "gf")
        a("buffer_load_dwordx2 %s, %s, %s, 0 offen sc1" % (v(vGF, 2), vGFA, WS))
        a("s_waitcnt vmcnt(0)")
        a.label("Lgf_ok")
        a("v_cmp_ne_u32 vcc, %s, %s" % (v(vGF), v(vFLG)))
        a("s_cmp_eq_u64 vcc, 0")
        a("s_cselect_b32 %s, %d, 0" % (sFAST, 0 if OPT["force_slow"] else 1))
stamp("att_done")
if OPT["stamps"]:
    a("v_mov_b32 v30, %s" % sXCC)
    a("v_mov_b32 v31, %s" % sFAST)
    a("s_mov_b64 exec, 1")
    a("buffer_store_dwordx2 v[30:31], %s, %s, %s offen offset:%d" % (vZ, WS, sTSOFF, 31 * 8))
    a("s_mov_b64 exec, -1")
a("v_rcp_f32 %s, %s" % (v(vT + 2), v(LS)))
a("v_cndmask_b32 %s, %s, %s, %s" % (v(vT), v(vT + 2), vZ, sFQ))
a("v_cndmask_b32 %s, %s, %s, %s" % (v(vT + 1), v(vT + 2), vZ, sFO))
for i in range(4):
    a("v_mul_f32 %s, %s, %s" % (v(OA + i), v(OA + i), v(vT)))
    a("v_mul_f32 %s, %s, %s" % (v(OA + 4 + i), v(OA + 4 + i), v(vT + 1)))
OP = 136
for i in range(4):
    a("v_cvt_pk_bf16_f32 %s, %s, %s" % (v(OP + i), v(OA + 2 * i), v(OA + 2 * i + 1)))
publish(["buffer_store_dwordx4 %s, %s, %s, %s offen{sc}" % (v(OP, 4), vOA, WS, sE)], sF, data_sc1=bool(OPT["ohsc"]))
if OPT["ohsc"]:
    a("buffer_load_dword v26, %s, %s, %s offen sc1" % (vOA, WS, sE))
stamp("o_pub")
stamp("rt_opub")
a("s_cmp_ge_u32 %s, 4" % sWAVE)
a("s_cbranch_scc1 Lhelper2")

if OPT["prio"]:
    a("s_setprio %d" % OPT["prio"])
a("s_cmp_ge_u32 %s, 14" % sJ)
a("s_cbranch_scc1 Lp3_idle")
AK, AS = 32, 48
OF = 64
WB = 128
vWk, vWs = "v160", "v161"
vEXW, vEXR, vHA, vHSA, vF2A = "v162", "v163", "v164", "v165", "v166"


def tr_base_128(dkeep, dsend, hmul, base_s, base_imm):
    a("v_lshrrev_b32 %s, 2, %s" % (v(vT), vR))
    a("v_lshrrev_b32 %s, 1, %s" % (v(vT + 1), v(vT)))
    a("v_xor_b32 %s, %s, %s" % (v(vT + 1), sKH, v(vT + 1)))
    a("v_lshl_add_u32 %s, %s, %d, %s" % (v(vT), vH, {4: 2, 8: 3}[hmul], v(vT)))
    a("v_lshlrev_b32 %s, 7, %s" % (v(vT), v(vT)))
    a("v_bfe_u32 %s, %s, 4, 1" % (v(vT + 2), vL))
    a("v_lshl_add_u32 %s, %s, 5, %s" % (v(vT), v(vT + 2), v(vT)))
    a("v_and_b32 %s, 3, %s" % (v(vT + 2), vL))
    a("v_lshl_add_u32 %s, %s, 3, %s" % (v(vT), v(vT + 2), v(vT)))
    a("v_add_u32 %s, %s, %s" % (v(vT), base_s, v(vT)))
    if base_imm:
        a("v_add_u32 %s, %d, %s" % (v(vT), base_imm, v(vT)))
    a("v_lshl_add_u32 %s, %s, 6, %s" % (dkeep, v(vT + 1), v(vT)))
    a("v_xor_b32 %s, 64, %s" % (dsend, dkeep))


def ex_addrs():
    a("v_add_u32 %s, %s, %s" % (vEXW, sHW4K, vL16))
    a("v_xor_b32 %s, 0x2000, %s" % (vEXR, vEXW))
    a("v_add_u32 %s, %d, %s" % (vEXW, L_SCR, vEXW))
    a("v_add_u32 %s, %d, %s" % (vEXR, L_SCR, vEXR))


for hm in (4, 8):
    for nt in range(2):
        assert lds_conflicts([(hm * (l >> 5) + ((l & 15) >> 2)) * 128 + ((nt ^ (((l & 15) >> 3) & 1)) * 64) + ((l >> 4) & 1) * 32 + (l & 3) * 8 for l in range(64)], "tr") == 0
a("s_mul_i32 %s, %s, %d" % (sT0, sKH, 224 * 128))
tr_base_128(vWk, vWs, 4, sT0, L_WO)
ex_addrs()
sum_s(sT0, [(sG, 1024), (sMH2, 512), (sMH, 256), (sKH, 64)], WS_F2)
a("v_bfe_u32 %s, %s, 3, 1" % (v(vT), vL))
a("v_lshlrev_b32 %s, 7, %s" % (v(vT), v(vT)))
a("v_and_b32 %s, 7, %s" % (v(vT + 1), vL))
a("v_lshl_add_u32 %s, %s, 3, %s" % (v(vT), v(vT + 1), v(vT)))
a("v_add_u32 %s, %s, %s" % (vF2A, sT0, v(vT)))
sum_s(sT4, [(sTILE, 32768), (sKH, 16384)], WS_O)
sum_s(sA, [(sTILE, 28 * 1024), (sNB, 2048), (sKH, 1024)], WS_H)
sum_s(sB, [(sTILE, 4096), (sNB, 512), (sKH, 256)], WS_HS)
sum_s(sC, [(sTILE, 128), (sNB, 16), (sKH, 8)], WS_F3)
a("v_bfe_u32 %s, %s, 4, 1" % (v(vT), vL))
a("v_mul_u32_u24 %s, %d, %s" % (v(vT), 14 * 1024, v(vT)))
a("v_lshl_add_u32 %s, %s, 8, %s" % (v(vT), vH, v(vT)))
a("v_lshl_add_u32 %s, %s, 4, %s" % (vHA, vR, v(vT)))
a("v_lshlrev_b32 %s, 3, %s" % (vHSA, vL31))
XF = 168
for i in range(8):
    a("v_lshlrev_b32 %s, 16, %s" % (v(XF + 2 * i), v(vXRES + i)))
    a("v_and_b32 %s, 0xffff0000, %s" % (v(XF + 2 * i + 1), v(vXRES + i)))
a("v_mov_b32 v167, 0x3f803f80")
a("s_barrier")
stamp("b9")


def p3_wread(s):
    head, ab = s >> 1, s & 1
    wb = WB + 8 * (s % 4)
    r0 = (28 * head - 4 * (head & 1) + 8 * ab) * 128
    for k, base in enumerate((vWk, vWs)):
        a("ds_read_b64_tr_b16 %s, %s offset:%d" % (v(wb + 4 * k, 2), base, r0))
        a("ds_read_b64_tr_b16 %s, %s offset:%d" % (v(wb + 4 * k + 2, 2), base, r0 + 16 * 128))


def p3_load(s):
    if s and s % 4 == 0:
        a("s_add_u32 %s, %s, 4096" % (sT4, sT4))
    a("buffer_load_dwordx4 %s, %s, %s, %s offen offset:%d sc1" % (v(OF + 4 * s, 4), vL16, WS, sT4, (s % 4) * 1024))


for s in range(3):
    p3_wread(s)
poll(vF2A, vT + 2, "f2")
stamp("f2ok")
stamp("rt_f2ok")
UP = OPT["up3"]
for s in range(UP):
    p3_load(s)
for s in range(16):
    a("s_waitcnt vmcnt(%d) lgkmcnt(%d)" % (min(UP - 1, 15 - s), min(8, 4 * (15 - s))))
    if s + 3 < 16:
        p3_wread(s + 3)
    wb = WB + 8 * (s % 4)
    a("v_mfma_f32_32x32x16_bf16 %s, %s, %s, %s" % (v(AS, 16), v(wb + 4, 4), v(OF + 4 * s, 4), "0" if s == 0 else v(AS, 16)))
    if s + UP < 16:
        p3_load(s + UP)
    if OPT["b9b"] and s + UP == 15:
        a("s_barrier")
    a("v_mfma_f32_32x32x16_bf16 %s, %s, %s, %s" % (v(AK, 16), v(wb, 4), v(OF + 4 * s, 4), "0" if s == 0 else v(AK, 16)))
stamp("p3_mfma")


def exchange():
    for i in range(4):
        a("ds_write_b128 %s, %s offset:%d" % (vEXW, v(AS + 4 * i, 4), 1024 * i))
    a("s_waitcnt lgkmcnt(0)")
    a("s_barrier")
    for i in range(4):
        a("ds_read_b128 %s, %s offset:%d" % (v(AS + 4 * i, 4), vEXR, 1024 * i))


def residual_add(out):
    for i in range(4):
        a("s_waitcnt lgkmcnt(%d)" % (3 - i))
        for k in range(2):
            r_ = 4 * i + 2 * k
            a("v_pk_add_f32 %s, %s, %s" % (v(AK + r_, 2), v(AK + r_, 2), v(AS + r_, 2)))
        for k in range(2):
            r_ = 4 * i + 2 * k
            a("v_cvt_pk_bf16_f32 %s, %s, %s" % (v(AS + r_), v(AK + r_), v(AK + r_ + 1)))
        for k in range(2):
            r_ = 4 * i + 2 * k
            a("v_lshlrev_b32 %s, 16, %s" % (v(AK + r_), v(AS + r_)))
            a("v_and_b32 %s, 0xffff0000, %s" % (v(AK + r_ + 1), v(AS + r_)))
        for k in range(2):
            r_ = 4 * i + 2 * k
            a("v_pk_add_f32 %s, %s, %s" % (v(AK + r_, 2), v(AK + r_, 2), v(XF + r_, 2)))
        for k in range(2):
            r_ = 4 * i + 2 * k
            a("v_cvt_pk_bf16_f32 %s, %s, %s" % (v(out + 2 * i + k), v(AK + r_), v(AK + r_ + 1)))


exchange()
residual_add(vXRES)
stamp("p3_res")
a("v_mov_b32 %s, 0" % v(AS))
a("v_mov_b32 %s, 0" % v(AS + 1))
st3 = ["buffer_store_dwordx4 %s, %s, %s, %s offen{sc}" % (v(vXRES, 4), vHA, WS, sA),
       "buffer_store_dwordx4 %s, %s, %s, %s offen offset:512{sc}" % (v(vXRES + 4, 4), vHA, WS, sA)]
for i in range(8):
    st3.append("v_dot2c_f32_bf16 %s, %s, v167" % (v(AS), v(vXRES + i)))
    st3.append("v_dot2c_f32_bf16 %s, %s, %s" % (v(AS + 1), v(vXRES + i), v(vXRES + i)))
st3 += ["v_mov_b32 %s, %s" % (v(AS + 2), v(AS)), "v_mov_b32 %s, %s" % (v(AS + 3), v(AS + 1)),
        "v_permlane32_swap_b32 %s, %s" % (v(AS), v(AS + 2)), "v_permlane32_swap_b32 %s, %s" % (v(AS + 1), v(AS + 3)),
        "v_pk_add_f32 %s, %s, %s" % (v(AS, 2), v(AS, 2), v(AS + 2, 2)),
        "buffer_store_dwordx2 %s, %s, %s, %s offen{sc}" % (v(AS, 2), vHSA, WS, sB)]
publish(st3, sC, data_sc1=bool(OPT["ohsc"]))
if OPT["ohsc"]:
    a("buffer_load_dword v26, %s, %s, %s offen sc1" % (vHA, WS, sA))
    a("buffer_load_dword v26, %s, %s, %s offen offset:512 sc1" % (vHA, WS, sA))
    a("buffer_load_dword v26, %s, %s, %s offen sc1" % (vHSA, WS, sB))
stamp("h_pub")
stamp("rt_hpub")
a("s_branch Lp3_done")
a.label("Lp3_idle")
a("s_barrier")
if OPT["b9b"]:
    a("s_barrier")
a("s_barrier")
a.label("Lp3_done")

HF = 32
A4 = 144
W4 = 200
SPR = 232
NM4, RS4 = [246, 248], [250, 252]
vW4a, vW4b, vW4c, vSPA = "v254", "v255", "v27", "v28"
a("v_lshrrev_b32 %s, 1, %s" % (v(vT), vQ4))
a("v_lshlrev_b32 %s, 4, %s" % (v(vT), v(vT)))
a("v_and_b32 %s, 1, %s" % (v(vT + 1), vQ4))
a("v_lshl_add_u32 %s, %s, 2, %s" % (v(vT), v(vT + 1), v(vT)))
a("v_lshrrev_b32 %s, 2, %s" % (v(vT + 1), vR))
a("v_add_u32 %s, %s, %s" % (v(vT), v(vT), v(vT + 1)))
a("v_mul_u32_u24 %s, 224, %s" % (v(vT), v(vT)))
a("v_and_b32 %s, 3, %s" % (v(vT + 1), vL))
a("v_lshl_add_u32 %s, %s, 3, %s" % (vW4a, v(vT + 1), v(vT)))
a("v_add_u32 %s, %d, %s" % (vW4b, 8 * 7168, vW4a))
a("v_add_u32 %s, %d, %s" % (vW4c, L_W1U, vW4a))
assert lds_conflicts([(16 * (l >> 5) + 4 * ((l >> 4) & 1) + ((l & 15) >> 2)) * 224 + (l & 3) * 8 for l in range(64)], "tr") == 0
sum_s(sT1, [(sTILE4, 128)], WS_F3)
a("v_min_u32 %s, 13, %s" % (v(vT), vR))
a("v_lshlrev_b32 %s, 3, %s" % (v(vT), v(vT)))
a("v_add_u32 %s, %s, %s" % (v(vT), sT1, v(vT)))
sum_s(sT4, [(sTILE4, 28 * 1024)], WS_H)
a("s_add_u32 %s, %s, %d" % (sE, sT4, 14 * 1024))
sum_s(sT3, [(sTILE4, 4096)], WS_HS)
a("v_mul_u32_u24 %s, %d, %s" % (vSPA, 7 * 256, vH))
a("v_lshl_add_u32 %s, %s, 3, %s" % (vSPA, vL31, vSPA))
sum_s(sA, [(sTILE4, 112 * 1024), (sJ, 7168)], WS_H1)
a("s_add_u32 %s, %s, 4096" % (sB, sA))
sum_s(sC, [(sTILE4, 128), (sJ, 8)], WS_F4)
a("s_barrier")
stamp("b11")
NW4 = 8
AHEAD = 7


def p4_wread(q):
    ks, nt = divmod(q, 7)
    if ks < 8:
        base, off = vW4a, ks * 7168
    elif ks < 12:
        base, off = vW4b, (ks - 8) * 7168
    else:
        base, off = vW4c, (ks - 12) * 7168
    wb = W4 + 4 * (q % NW4)
    a("ds_read_b64_tr_b16 %s, %s offset:%d" % (v(wb, 2), base, off + nt * 32))
    a("ds_read_b64_tr_b16 %s, %s offset:%d" % (v(wb + 2, 2), base, off + nt * 32 + 8 * 224))


def p4_load(ks, mt):
    if mt == 0 and ks and ks % 4 == 0:
        a("s_add_u32 %s, %s, 4096" % (sT4, sT4))
        a("s_add_u32 %s, %s, 4096" % (sE, sE))
    a("buffer_load_dwordx4 %s, %s, %s, %s offen offset:%d sc1" % (v(HF + 4 * (mt * 14 + ks), 4), vL16, WS, (sT4, sE)[mt], (ks % 4) * 1024))


for q in range(AHEAD):
    p4_wread(q)
poll(v(vT), vT + 2, "f3")
stamp("f3ok")
stamp("rt_f3ok")
UP = OPT["up4"]
for ks in range(UP):
    p4_load(ks, 0)
    p4_load(ks, 1)
    if ks == 1:
        for i in range(7):
            a("buffer_load_dwordx2 %s, %s, %s, %s offen offset:%d sc1" % (v(SPR + 2 * i, 2), vSPA, WS, sT3, 256 * i))
assert UP >= 3
for ks in range(14):
    if ks == 3:
        for i in range(1, 7):
            a("v_pk_add_f32 %s, %s, %s" % (v(SPR, 2), v(SPR, 2), v(SPR + 2 * i, 2)))
        xhalf_sum(v(SPR), v(SPR + 2))
        xhalf_sum(v(SPR + 1), v(SPR + 2))
        ln_finish(v(SPR), v(SPR + 1), v(NM4[0]), v(RS4[0]), v(SPR + 2))
        a("v_mul_f32 %s, %s, %s" % (v(NM4[0]), v(NM4[0]), v(RS4[0])))
        a("v_mov_b32 %s, %s" % (v(NM4[1]), v(NM4[0])))
        a("v_mov_b32 %s, %s" % (v(RS4[1]), v(RS4[0])))
        a("v_permlane16_swap_b32 %s, %s" % (v(NM4[0]), v(NM4[1])))
        a("v_permlane16_swap_b32 %s, %s" % (v(RS4[0]), v(RS4[1])))
        for r_ in NM4 + RS4:
            a("v_mov_b32 %s, %s" % (v(r_ + 1), v(r_)))
    if ks in (1, 7):
        stamp("p4_k%d" % ks)
    for nt in range(7):
        q = ks * 7 + nt
        if q == 7 * OPT["kb"] + 2:
            a("s_barrier")
        if q == 7 * OPT["kb"] + 9:
            a("s_barrier")
        lg = min(2 * (AHEAD - 1), 2 * (97 - q))
        if OPT["w2"] and nt in (0, 2, 4):
            lg = max(0, min(2 * (AHEAD - 2), 2 * (97 - q - 1)))
        if nt == 0:
            later = 2 * (min(13, ks + UP - 1) - ks) + (7 if ks <= 1 else 0)
            a("s_waitcnt vmcnt(%d) lgkmcnt(%d)" % (later, lg))
        elif not OPT["w2"] or nt in (2, 4, 6):
            a("s_waitcnt lgkmcnt(%d)" % lg)
        if q + AHEAD < 98:
            p4_wread(q + AHEAD)
        wb = W4 + 4 * (q % NW4)
        for mt in range(2):
            acc = v(A4 + 4 * (mt * 7 + nt), 4)
            a("v_mfma_f32_16x16x32_bf16 %s, %s, %s, %s" % (acc, v(wb, 4), v(HF + 4 * (mt * 14 + ks), 4), "0" if ks == 0 else acc))
        if nt < 2 and ks + UP < 14:
            p4_load(ks + UP, nt)
stamp("p4_mfma")
CS4 = 200
a("v_lshlrev_b32 %s, 4, %s" % (v(vT), vQ4))
a("v_add_u32 %s, %d, %s" % (v(vT), L_CS1, v(vT)))
for nt in range(7):
    a("ds_read_b128 %s, %s offset:%d" % (v(CS4 + 4 * nt, 4), v(vT), 64 * nt))
a("v_lshlrev_b32 %s, 9, %s" % (v(vT), vQ4))
a("v_lshl_add_u32 %s, %s, 4, %s" % (v(vT), vR, v(vT)))
a("v_lshrrev_b32 %s, 1, %s" % (v(vT + 1), vQ4))
a("v_lshlrev_b32 %s, 9, %s" % (v(vT + 1), v(vT + 1)))
a("v_lshl_add_u32 %s, %s, 4, %s" % (v(vT + 1), vR, v(vT + 1)))
a("v_and_b32 %s, 1, %s" % (v(vT + 3), vQ4))
a("v_lshl_add_u32 %s, %s, 3, %s" % (v(vT + 1), v(vT + 3), v(vT + 1)))
H1P = 32
TT = 64
st = ["s_waitcnt lgkmcnt(0)"]
for mt in range(2):
    for p in range(4):
        nts = (2 * p, 2 * p + 1) if p < 3 else (6,)
        for nt in nts:
            for c in range(2):
                st.append("v_pk_mul_f32 %s, %s, %s" % (v(TT + 4 * (nt & 1) + 2 * c, 2), v(CS4 + 4 * nt + 2 * c, 2), v(NM4[mt], 2)))
        for nt in nts:
            acc = A4 + 4 * (mt * 7 + nt)
            for c in range(2):
                st.append("v_pk_fma_f32 %s, %s, %s, %s" % (v(acc + 2 * c, 2), v(acc + 2 * c, 2), v(RS4[mt], 2), v(TT + 4 * (nt & 1) + 2 * c, 2)))
        for nt in nts:
            acc = A4 + 4 * (mt * 7 + nt)
            hp = H1P + 16 * mt + 2 * nt
            for c in range(2):
                st.append("v_cvt_pk_bf16_f32 %s, %s, %s" % (v(hp + c), v(acc + 2 * c), v(acc + 2 * c + 1)))
        for nt in nts:
            hp = H1P + 16 * mt + 2 * nt
            for c in range(2):
                st.append("v_pk_max_i16 %s, %s, %s" % (v(hp + c), v(hp + c), vZ))
        if p < 3:
            so, off = (sA, p * 2048 + mt * 256) if p < 2 else (sB, mt * 256)
            st.append("buffer_store_dwordx4 %s, %s, %s, %s offen offset:%d{sc}" % (v(H1P + 16 * mt + 4 * p, 4), v(vT), WS, so, off))
        else:
            st.append("buffer_store_dwordx2 %s, %s, %s, %s offen offset:%d{sc}" % (v(H1P + 16 * mt + 12, 2), v(vT + 1), WS, sB, 2048 + mt * 256))
publish(st, sC, data_sc1=bool(OPT["h1sc"]))
if OPT["st4"]:
    a("v_min_u32 %s, 55, %s" % (v(vT), vL))
    a("v_lshlrev_b32 %s, 7, %s" % (v(vT), v(vT)))
    a("buffer_load_dword v26, %s, %s, %s offen sc1" % (v(vT), WS, sA))
stamp("h1_pub")
stamp("rt_h1pub")
a("s_cmp_ge_u32 %s, 14" % sJ)
a("s_cbranch_scc1 Lend")

RF = 64
NRF = 16
WB5 = 128
AD5 = 208
a("s_mul_i32 %s, %s, %d" % (sT0, sKH, UNIT))
for pat, hm in enumerate((4, 8)):
    tr_base_128(v(AD5 + 6 * pat), v(AD5 + 6 * pat + 1), hm, sT0, 0)
    for b, off in ((1, 4 * UNIT), (2, L_WO)):
        for k in range(2):
            a("v_add_u32 %s, %d, %s" % (v(AD5 + 6 * pat + 2 * b + k), off, v(AD5 + 6 * pat + k)))
UMAP = {0: (2, 0), 1: (2, 2 * UNIT), 2: (0, 0), 3: (0, 2 * UNIT), 4: (1, 0), 5: (2, 0), 6: (2, 2 * UNIT), 7: (0, 0)}


def p5_wread(i):
    n, u = divmod(i, 7)
    b, off = UMAP[n]
    wb = WB5 + 8 * (i % 4)
    if u < 6:
        pat, r0, d2 = 0, 32 * (u >> 1) + 8 * (u & 1), 16
    else:
        pat, r0, d2 = 1, 96, 4
    for k in range(2):
        base = v(AD5 + 6 * pat + 2 * b + k)
        a("ds_read_b64_tr_b16 %s, %s offset:%d" % (v(wb + 4 * k, 2), base, off + r0 * 128))
        a("ds_read_b64_tr_b16 %s, %s offset:%d" % (v(wb + 4 * k + 2, 2), base, off + (r0 + d2) * 128))


ex_addrs()
for i in range(8):
    a("v_lshlrev_b32 %s, 16, %s" % (v(XF + 2 * i), v(vXRES + i)))
    a("v_and_b32 %s, 0xffff0000, %s" % (v(XF + 2 * i + 1), v(vXRES + i)))
sum_s(sT0, [(sTILE, 128), (sKH, 64)], WS_F4)
a("v_and_b32 %s, 7, %s" % (v(vT), vL))
a("v_lshlrev_b32 %s, 3, %s" % (v(vT), v(vT)))
a("v_add_u32 %s, %s, %s" % (v(vT), sT0, v(vT)))
sum_s(sT4, [(sTILE, 112 * 1024), (sKH, 56 * 1024)], WS_H1)
a("s_barrier")
stamp("b12")
for i in range(3):
    p5_wread(i)
poll(v(vT), vT + 2, "f4")
stamp("f4ok")
stamp("rt_f4ok")


def p5_load(i):
    n, u = divmod(i, 7)
    if u == 0:
        a("s_add_u32 %s, %s, %d" % (sT0, sNB, n))
        a("s_and_b32 %s, %s, 7" % (sT0, sT0))
        a("s_mul_i32 %s, %s, 7168" % (sT0, sT0))
        a("s_add_u32 %s, %s, %s" % (sT3, sT4, sT0))
    if u == 4:
        a("s_add_u32 %s, %s, 4096" % (sT3, sT3))
    a("buffer_load_dwordx4 %s, %s, %s, %s offen offset:%d sc1" % (v(RF + 4 * (i % NRF), 4), vL16, WS, sT3, (u % 4) * 1024))


UP = OPT["up5"]
assert UP < NRF
for i in range(UP):
    p5_load(i)
BARS = {14, 21, 35}
nread = 3
for i in range(56):
    if i in BARS:
        a("s_barrier")
        stamp("p5_b%d" % i)
    while nread < 56 and nread <= i + 2 and not any(i < b <= nread for b in BARS):
        p5_wread(nread)
        nread += 1
    lg = 4 * (nread - 1 - i)
    vm = min(UP - 1, 55 - i)
    a("s_waitcnt vmcnt(%d) lgkmcnt(%d)" % (vm, lg))
    if nread < 56 and nread <= i + 3 and not any(i < b <= nread for b in BARS):
        p5_wread(nread)
        nread += 1
    wb = WB5 + 8 * (i % 4)
    rf = v(RF + 4 * (i % NRF), 4)
    a("v_mfma_f32_32x32x16_bf16 %s, %s, %s, %s" % (v(AS, 16), v(wb + 4, 4), rf, "0" if i == 0 else v(AS, 16)))
    if i + UP < 56:
        p5_load(i + UP)
    a("v_mfma_f32_32x32x16_bf16 %s, %s, %s, %s" % (v(AK, 16), v(wb, 4), rf, "0" if i == 0 else v(AK, 16)))
stamp("p5_mfma")
exchange()
OUTP = 64
residual_add(OUTP)
for jj in range(4):
    a("buffer_store_dwordx2 %s, %s, %s, %s offen offset:%d" % (v(OUTP + 2 * jj, 2), vXOFF, OUT, sXO, 16 * jj))
stamp("end")
stamp("rt_end")
a("s_endpgm")

a.label("Lhelper2")
a("s_barrier")
bg("C")
if OPT["b9b"]:
    a("s_barrier")
bg("C2")
stamp("h_w1b")
if OPT["pt_h1"] == 1:
    sum_s(sT0, [(sG, 448 * 1024), (sJ, 28 * 1024), (sHW, 7168)], WS_H1)
    touch_lines(WS, sT0, 56, sc1=True)
C1 = 32
C1B = 40
cA, cB, cONE = "v68", "v69", "v70"
RS0 = 72
a("v_lshrrev_b32 %s, 1, %s" % (v(vT), vQ4))
a("v_lshlrev_b32 %s, 4, %s" % (v(vT), v(vT)))
a("v_and_b32 %s, 1, %s" % (v(vT + 1), vQ4))
a("v_lshl_add_u32 %s, %s, 2, %s" % (v(vT), v(vT + 1), v(vT)))
a("v_lshrrev_b32 %s, 2, %s" % (v(vT + 1), vR))
a("v_add_u32 %s, %s, %s" % (v(vT), v(vT), v(vT + 1)))
a("v_mul_u32_u24 %s, 224, %s" % (v(vT), v(vT)))
a("v_and_b32 %s, 3, %s" % (v(vT + 1), vL))
a("v_lshl_add_u32 %s, %s, 3, %s" % (cA, v(vT + 1), v(vT)))
a("s_mul_i32 %s, %s, 7168" % (sT0, sHW))
a("v_add_u32 %s, %s, %s" % (cA, sT0, cA))
a("v_add_u32 %s, %d, %s" % (cB, L_W1U, cA))
a("v_mov_b32 %s, 0x3f803f80" % cONE)
for nt in range(7):
    a("v_mov_b32 %s, 0" % v(C1 + nt))


def cs1_block(base, off):
    for nt in range(7):
        a("ds_read_b64_tr_b16 %s, %s offset:%d" % (v(C1B + 4 * nt, 2), base, off + nt * 32))
        a("ds_read_b64_tr_b16 %s, %s offset:%d" % (v(C1B + 4 * nt + 2, 2), base, off + nt * 32 + 8 * 224))
    a("s_waitcnt lgkmcnt(0)")
    for i in range(4):
        for nt in range(7):
            a("v_dot2c_f32_bf16 %s, %s, %s" % (v(C1 + nt), v(C1B + 4 * nt + i), cONE))


cs1_block(cA, 8 * 7168)
a("s_barrier")
a("s_waitcnt vmcnt(0)")
stamp("h_w1_landed")
cs1_block(cA, 0)
cs1_block(cA, 4 * 7168)
a("s_barrier")


def unit_index(dst, n_s, n_imm):
    if n_s:
        a("s_add_u32 %s, %s, %s" % (dst, sNB, n_s))
        if n_imm:
            a("s_add_u32 %s, %s, %d" % (dst, dst, n_imm))
    else:
        a("s_add_u32 %s, %s, %d" % (dst, sNB, n_imm))
    a("s_and_b32 %s, %s, 7" % (dst, dst))
    a("s_lshl_b32 %s, %s, 3" % (sT5, sMH))
    a("s_add_u32 %s, %s, %s" % (dst, dst, sT5))


def w2_rows(n, to_reg=None, lds_s=None, lds_imm=0):
    for i in range(n):
        if to_reg is None:
            dma(vWO, W2, sT3, lds_s, lds_imm + i * 1024)
        elif not OPT["nobg"]:
            a("buffer_load_dwordx4 %s, %s, %s, %s offen" % (v(to_reg + 4 * i, 4), vWO, W2, sT3))
        if i < n - 1:
            a("s_add_u32 %s, %s, %d" % (sT3, sT3, 8 * 896))


def stage(nfull, nhalf, reg):
    unit_index(sT0, sKH, nfull)
    a("s_mul_i32 %s, %s, %d" % (sT3, sT0, 112 * 896))
    w2_rows(14, to_reg=reg)
    unit_index(sT0, None, nhalf)
    sum_s(sT3, [(sT0, 112 * 896), (sKH, 7 * 8 * 896)])
    w2_rows(7, to_reg=reg + 56)


def dump(reg, n, addr, off):
    for i in range(n):
        a("ds_write_b128 %s, %s offset:%d" % (addr, v(reg + 4 * i, 4), off + 1024 * i))


lab = a.newlabel("Lnou")
a("s_cmp_ge_u32 %s, 2" % sHW)
a("s_cbranch_scc1 %s" % lab)
w1_block(12)
a("s_waitcnt vmcnt(0)")
cs1_block(cB, 0)
a.label(lab)
bg("D")
for nt in range(7):
    xhalf_sum(v(C1 + nt), v(vT))
    xrow_sum(v(C1 + nt), v(vT))
sum_s(sT0, [(sHW, 448)], L_CSP)
a("v_lshl_add_u32 %s, %s, 2, %s" % (v(vT), vR, sT0))
for nt in range(7):
    a("ds_write_b32 %s, %s offset:%d" % (v(vT), v(C1 + nt), 64 * nt))
a("s_waitcnt lgkmcnt(0)")
a("s_barrier")
lab = a.newlabel("Lnocs1")
a("s_cmp_lg_u32 %s, 4" % sWAVE)
a("s_cbranch_scc1 %s" % lab)
a("v_min_u32 %s, 55, %s" % (v(vT), vL))
a("v_lshlrev_b32 %s, 3, %s" % (v(vT), v(vT)))
a("v_add_u32 %s, %d, %s" % (v(vT + 1), L_CSP, v(vT)))
for k in range(4):
    a("ds_read_b64 %s, %s offset:%d" % (v(40 + 2 * k, 2), v(vT + 1), 448 * k))
a("s_waitcnt lgkmcnt(0)")
for c in range(2):
    a("v_add_f32 %s, %s, %s" % (v(40 + c), v(40 + c), v(42 + c)))
    a("v_add_f32 %s, %s, %s" % (v(44 + c), v(44 + c), v(46 + c)))
    a("v_add_f32 %s, %s, %s" % (v(40 + c), v(40 + c), v(44 + c)))
a("v_add_u32 %s, %d, %s" % (v(vT + 1), L_CS1, v(vT)))
a("ds_write_b64 %s, %s" % (v(vT + 1), v(40, 2)))
a("s_waitcnt lgkmcnt(0)")
a.label(lab)
a("s_barrier")
bg("D2")
a("s_cmp_ge_u32 %s, 14" % sJ)
a("s_cbranch_scc1 Lend")
unit_index(sT0, sKH, 0)
a("s_mul_i32 %s, %s, %d" % (sT3, sT0, 112 * 896))
a("s_mul_i32 %s, %s, %d" % (sT1, sHW, UNIT))
w2_rows(14, lds_s=sT1, lds_imm=L_WO)
stage(2, 4, RS0)
if OPT["r2early"]:
    stage(5, 7, RS0 + 84)
a("v_add_u32 v40, %s, %s" % (sT1, vL16))
a("v_add_u32 v41, %d, v40" % L_WO)
sum_s(sT1, [(sMH, UNIT), (sKH, 7168)])
a("v_add_u32 v42, %s, %s" % (sT1, vL16))
stamp("h_w2_issued")
NR = 0 if OPT["nobg"] else 21
a("s_waitcnt vmcnt(%d)" % (2 * NR if OPT["r2early"] else NR))
stamp("h_w2a_landed")
a("s_barrier")
a("s_waitcnt vmcnt(%d)" % (NR if OPT["r2early"] else 0))
dump(RS0, 14, "v40", 0)
dump(RS0 + 56, 7, "v42", 4 * UNIT)
if not OPT["r2early"]:
    stage(5, 7, RS0 + 84)
a("s_waitcnt lgkmcnt(0)")
stamp("h_w2b_landed")
a("s_barrier")
a("s_waitcnt vmcnt(0)")
dump(RS0 + 84, 14, "v41", 0)
a("s_barrier")
dump(RS0 + 84 + 56, 7, "v42", 0)
a("s_waitcnt lgkmcnt(0)")
a("s_barrier")
a("s_barrier")
a.label("Lend")
a("s_endpgm")
a.raw("Lcode_end:")
a.raw('.section .rodata,"a"')
a.raw(".p2align 6")
a.raw(".amdhsa_kernel %s" % KNAME)
a.raw("  .amdhsa_next_free_vgpr 256")
a.raw("  .amdhsa_next_free_sgpr 102")
a.raw("  .amdhsa_accum_offset 256")
a.raw("  .amdhsa_group_segment_fixed_size 0")
a.raw("  .amdhsa_kernarg_size 72")
a.raw("  .amdhsa_user_sgpr_count 2")
a.raw("  .amdhsa_user_sgpr_kernarg_segment_ptr 1")
a.raw("  .amdhsa_system_sgpr_workgroup_id_x 1")
a.raw(".end_amdhsa_kernel")
open(sys.argv[1], "w").write(a.text())
json.dump(STAMPS, open(sys.argv[1] + ".stamps.json", "w"))
print("instructions:", a.count)
```

```python
import sys, math, struct, re, json
from asmlib import Asm, lds_conflicts

KNAME = "sequential_preLN__sliding_block__dense_activation_relu__prompt_kernel"
OPT = dict(stamps="", force_slow=0, nobg=0, t_w1=1, t_w2=1, pt_h1=0, up3=8, up4=8, up5=8, dry=0, psleep=0, gw=0, rotj=0, init2=1, pt_c=3, h1sc=1, bgA=1, ic=2, fc=4, P3="", A="wo", B="w18+tw1", C="w10+w14", C2="", D="tw2", b9b=0, warm=0, kb=5, r2early=1, D2="", st4=0, ohsc=0, svc="", bm=0, prio=0, w2=1, diag=0, nt=0, sent=1, dbg=0)
for a_ in sys.argv[2:]:
    k_, v_ = a_.split("=")
    OPT[k_] = v_ if isinstance(OPT[k_], str) else int(v_)


def f32(x):
    return "0x%08x" % struct.unpack("<I", struct.pack("<f", x))[0]


QT = 336 * 256
WS_QKV = 0
WS_O = 6 << 20
WS_H = 8 << 20
WS_H1 = 10 << 20
WS_F1 = 17 << 20
WS_F2 = WS_F1 + 0x10000
WS_F3 = WS_F1 + 0x20000
WS_F4 = WS_F1 + 0x30000
WS_HS = WS_F1 + 0x40000
WS_ST = WS_F1 + 0x80000
WS_TS = 18 << 20
WS_SIZE = 32 << 20

L_XR = 86016
L_KV = 0
L_Q = 12 * 4096
L_WO = 86016
L_W1U = 144384
L_SCR = 144384
L_CSP = 158720
L_MISC = 160768
L_CS = L_MISC
L_ST = L_MISC + 384
L_EP = L_ST + 1024
L_CS1 = L_EP + 64
LDS_BYTES = 163840
UNIT = 14336

X, WQKV, WO, W1, W2, OUT, DBG, WS = ["s[%d:%d]" % (4 + 4 * i, 7 + 4 * i) for i in range(8)]
sG, sJ, sWAVE, sR0, sXCC, sFAST = "s36", "s37", "s38", "s39", "s40", "s41"
sEP = "s[42:43]"
sEPL, sEPH = "s42", "s43"
sROT, sHW, sMH2, sNB, sKH, sMH = "s44", "s45", "s46", "s47", "s48", "s49"
sHI = "s[50:51]"
sLT48 = "s[52:53]"
sQ3 = "s[54:55]"
sHW1K, sHW4K = "s56", "s57"
sCNT = "s58"
sSLOT = "s59"
sT0, sT1, sT2, sT3, sT4, sT5 = "s60", "s61", "s62", "s63", "s64", "s65"
sTS = "s[66:67]"
sTSOFF = "s68"
sXO = "s69"
sCX, sCW = "s70", "s71"
sTILE, sTILE4 = "s72", "s73"
sA, sB, sC, sD, sE, sF = "s74", "s75", "s76", "s77", "s78", "s79"

vL, vL31, vH, vR, vQ4, vL16, vTMP = "v1", "v2", "v3", "v4", "v5", "v6", "v7"
vXRES = 8
vFLG = 16
vT = 18
vZ = "v24"
vXOFF = "v25"
HP = 240


def v(i, n=1):
    return "v%d" % i if n == 1 else "v[%d:%d]" % (i, i + n - 1)


a = Asm()
STAMPS = {}


DBGW = {"t0": 2, "rt_start": 3, "m_b0": 4, "m_p1end": 5, "b8": 6, "o_pub": 7, "f2ok": 8, "h_pub": 9, "f3ok": 10, "h1_pub": 11, "f4ok": 12, "end": 13, "rt_end": 14}


def stamp(name):
    if OPT["dbg"] and name in DBGW:
        lab = a.newlabel("Ldbg")
        a("s_lshl_b32 s93, s2, 3")
        a("s_add_u32 s93, s93, %s" % sWAVE)
        a("s_cmp_lg_u32 s93, %d" % (OPT["dbg"] * 8))
        a("s_cbranch_scc1 %s" % lab)
        a(("s_memrealtime %s" if name.startswith("rt_") else "s_memtime %s") % sTS)
        a("s_waitcnt lgkmcnt(0)")
        a("v_mov_b32 v30, s66")
        a("v_mov_b32 v29, 0")
        a("s_mov_b64 exec, 1")
        a("buffer_store_dword v30, v29, %s, 0 offen offset:%d" % (DBG, DBGW[name] * 4))
        a("s_mov_b64 exec, -1")
        a.label(lab)
        return
    if not OPT["stamps"] or not (name == "t0" or re.fullmatch(OPT["stamps"], name)):
        return
    idx = STAMPS.setdefault(name, len(STAMPS))
    assert idx < 30
    a(("s_memrealtime %s" if name.startswith("rt_") else "s_memtime %s") % sTS)
    a("s_waitcnt lgkmcnt(0)")
    a("v_mov_b32 v30, s66")
    a("v_mov_b32 v31, s67")
    a("v_mov_b32 v29, 0")
    a("s_mov_b64 exec, 1")
    a("buffer_store_dwordx2 v[30:31], v29, %s, %s offen offset:%d" % (WS, sTSOFF, idx * 8))
    a("s_mov_b64 exec, -1")


def dma(voff, srd, soff, lds_s, lds_imm, inst=0, sc1=False):
    if OPT["nobg"] and srd in (WO, W1, W2):
        return
    m = lds_imm - inst
    if lds_s is None:
        a("s_mov_b32 m0, %d" % m)
    else:
        a("s_add_u32 m0, %s, %d" % (lds_s, m))
    nt = (srd == X and OPT["nt"] & 1) or (srd == WQKV and OPT["nt"] & 2) or (srd in (WO, W1) and OPT["nt"] & 16)
    a("buffer_load_dwordx4 %s, %s, %s offen%s%s%s lds" % (voff, srd, soff, (" offset:%d" % inst) if inst else "", " sc1" if sc1 else "", " nt" if nt else ""))


def sum_s(dst, terms, const=0):
    first = True
    for sreg, mult in terms:
        tgt = dst if first else sT5
        if mult == 1:
            if first:
                a("s_mov_b32 %s, %s" % (dst, sreg))
            else:
                a("s_add_u32 %s, %s, %s" % (dst, dst, sreg))
            first = False
            continue
        if mult & (mult - 1) == 0:
            a("s_lshl_b32 %s, %s, %d" % (tgt, sreg, mult.bit_length() - 1))
        else:
            a("s_mul_i32 %s, %s, %d" % (tgt, sreg, mult))
        if not first:
            a("s_add_u32 %s, %s, %s" % (dst, dst, sT5))
        first = False
    if const:
        a("s_add_u32 %s, %s, %d" % (dst, dst, const))


def poll(vaddr, vd, name):
    lp, dn = a.newlabel("Lpoll_" + name), a.newlabel("Lpolld_" + name)
    a("s_mov_b32 %s, 0x20000" % sCNT)
    a.label(lp)
    a("buffer_load_dwordx2 %s, %s, %s, 0 offen sc1" % (v(vd, 2), vaddr, WS))
    a("s_sub_u32 %s, %s, 1" % (sCNT, sCNT))
    a("s_waitcnt vmcnt(0)")
    a("v_and_b32 %s, -8, %s" % (v(vd), v(vd)))
    a("v_cmp_ne_u64 vcc, %s, %s" % (sEP, v(vd, 2)))
    a("s_cmp_eq_u32 %s, 0" % sCNT)
    a("s_cbranch_scc1 %s" % dn)
    if OPT["psleep"]:
        a("s_cbranch_vccz %s" % dn)
        a("s_sleep %d" % OPT["psleep"])
        a("s_branch %s" % lp)
    else:
        a("s_cbranch_vccnz %s" % lp)
    a.label(dn)


def flag_store(soff, sc):
    a("s_mov_b64 exec, 1")
    a("buffer_store_dwordx2 %s, %s, %s, %s offen%s" % (v(vFLG, 2), vZ, WS, soff, sc))
    a("s_mov_b64 exec, -1")


def publish(stores, flag_soff, data_sc1=False):
    if data_sc1:
        for s_ in stores:
            a(s_.format(sc=" sc1"))
        stores = []

    def emit(sc):
        for s_ in stores:
            a(s_.format(sc=sc))
        a("s_waitcnt vmcnt(0)")
        flag_store(flag_soff, sc)
    ls, le = a.newlabel("Lslow"), a.newlabel("Lpub")
    a("s_cmp_eq_u32 %s, 0" % sFAST)
    a("s_cbranch_scc1 %s" % ls)
    emit("")
    a("s_branch %s" % le)
    a.label(ls)
    emit(" sc1")
    a.label(le)


def bf16r(dst, src):
    a("v_cvt_pk_bf16_f32 %s, %s, %s" % (dst, src, src))
    a("v_and_b32 %s, 0xffff0000, %s" % (dst, dst))


def ln_finish(sx, sxx, negmean, rstd, t0):
    a("v_mul_f32 %s, %s, %s" % (sx, f32(1.0 / 448), sx))
    a("v_mul_f32 %s, %s, %s" % (sxx, f32(1.0 / 448), sxx))
    a("v_fma_f32 %s, -%s, %s, %s" % (sxx, sx, sx, sxx))
    a("v_max_f32 %s, 0, %s" % (sxx, sxx))
    bf16r(sxx, sxx)
    a("v_add_f32 %s, %s, %s" % (sxx, f32(1e-5), sxx))
    bf16r(sxx, sxx)
    a("v_sqrt_f32 %s, %s" % (sxx, sxx))
    bf16r(sxx, sxx)
    a("v_rcp_f32 %s, %s" % (rstd, sxx))
    bf16r(t0, sx)
    a("v_sub_f32 %s, 0, %s" % (negmean, t0))


def xhalf_sum(x, t):
    a("v_mov_b32 %s, %s" % (t, x))
    a("v_permlane32_swap_b32 %s, %s" % (x, t))
    a("v_add_f32 %s, %s, %s" % (x, x, t))


def xrow_sum(x, t):
    a("v_mov_b32 %s, %s" % (t, x))
    a("v_permlane16_swap_b32 %s, %s" % (x, t))
    a("v_add_f32 %s, %s, %s" % (x, x, t))


def get_epoch_spin(name):
    lp, dn = "Lep_%s" % name, "Lepd_%s" % name
    a("s_mov_b32 %s, 0x20000" % sCNT)
    a.label(lp)
    a("s_waitcnt vmcnt(0)")
    a("v_readfirstlane_b32 %s, %s" % (sEPL, v(vFLG)))
    a("v_readfirstlane_b32 %s, %s" % (sEPH, v(vFLG + 1)))
    a("s_cmp_lg_u32 %s, 0" % sEPL)
    a("s_cbranch_scc1 %s" % dn)
    a("buffer_load_dwordx2 %s, %s, %s, 0 offen sc1" % (v(vFLG, 2), vZ, DBG))
    a("s_sub_u32 %s, %s, 1" % (sCNT, sCNT))
    a("s_cmp_lg_u32 %s, 0" % sCNT)
    a("s_cbranch_scc1 %s" % lp)
    a.label(dn)


hdr = open("sequential_preLN__sliding_block__dense_activation_relu__prompt.s.ref").read().split("\n")
for ln in hdr:
    if ln.startswith("; @launch"):
        a.raw("; @launch grid=(256,1,1) block=(512,1,1) lds=%d" % LDS_BYTES)
        break
    a.raw(ln)
a.raw('.amdgcn_target "amdgcn-amd-amdhsa--gfx950"')
a.raw(".text")
a.raw(".globl %s" % KNAME)
a.raw(".p2align 8")
a.raw(".type %s,@function" % KNAME)
a.raw("%s:" % KNAME)

if OPT["diag"]:
    a("s_memtime s[96:97]")
a("s_load_dwordx16 s[72:87], s[0:1], 0")
a("s_load_dwordx2 s[88:89], s[0:1], 64")
a("s_getpc_b64 s[90:91]")
a.raw("Lpc:")
a("v_and_b32 %s, 63, v0" % vL)
a("v_lshrrev_b32 %s, 6, v0" % vTMP)
a("s_lshr_b32 %s, s2, 3" % sSLOT)
a("v_readfirstlane_b32 %s, %s" % (sWAVE, vTMP))
a("v_lshlrev_b32 %s, 7, %s" % (v(vT), vL))
a("s_cmp_ge_u32 s2, 256")
a("s_cbranch_scc1 Lend")
a("s_add_u32 %s, %s, %s" % (sT0, sSLOT, sWAVE))
a("s_and_b32 %s, %s, 7" % (sT0, sT0))
a("s_lshl_b32 %s, %s, 13" % (sT0, sT0))
a("v_add_u32 %s, %s, %s" % (v(vT), sT0, v(vT)))
a("v_min_u32 %s, Lcode_end-Lpc-4, %s" % (v(vT), v(vT)))
a("v_mov_b32 %s, s91" % v(vT + 1))
a("v_add_co_u32 %s, vcc, s90, %s" % (v(vT), v(vT)))
a("v_addc_co_u32 %s, vcc, 0, %s, vcc" % (v(vT + 1), v(vT + 1)))
a("s_cmp_ge_u32 %s, 2" % sWAVE)
a("s_cbranch_scc1 Lnocp")
a("global_load_dword v26, %s, off" % v(vT, 2))
a.label("Lnocp")
a("v_and_b32 %s, 31, v0" % vL31)
a("v_bfe_u32 %s, v0, 5, 1" % vH)
a("v_and_b32 %s, 15, v0" % vR)
a("v_bfe_u32 %s, v0, 4, 2" % vQ4)
a("v_lshlrev_b32 %s, 4, %s" % (vL16, vL))
a("v_mov_b32 %s, 0" % vZ)
a("s_and_b32 %s, s2, 7" % sT0)
a("s_lshr_b32 %s, %s, 4" % (sT2, sSLOT))
a("s_lshl_b32 %s, %s, 1" % (sG, sT0))
a("s_add_u32 %s, %s, %s" % (sG, sG, sT2))
a("s_and_b32 %s, %s, 15" % (sJ, sSLOT))
a("s_lshl_b32 %s, %s, 7" % (sR0, sG))
a("s_and_b32 %s, %s, 3" % (sHW, sWAVE))
a("s_lshl_b32 %s, %s, 10" % (sHW1K, sHW))
a("s_lshl_b32 %s, %s, 12" % (sHW4K, sHW))
if OPT["rotj"]:
    a("s_mul_i32 %s, %s, 3" % (sT3, sT2))
    a("s_add_u32 %s, %s, %s" % (sROT, sJ, sT3))
    for _ in range(2):
        a("s_sub_u32 %s, %s, 7" % (sT3, sROT))
        a("s_cmp_ge_u32 %s, 7" % sROT)
        a("s_cselect_b32 %s, %s, %s" % (sROT, sT3, sROT))
else:
    a("s_lshl_b32 %s, %s, 2" % (sROT, sT2))
vX = [32, 33, 34, 35]
vW = [36, 37, 38]
a("v_lshrrev_b32 %s, 3, %s" % (v(vT), vL))
a("s_lshl_b32 %s, %s, 5" % (sT0, sHW))
a("s_add_u32 %s, %s, %s" % (sT0, sT0, sR0))
a("v_add_u32 %s, %s, %s" % (v(vT), sT0, v(vT)))
a("v_mul_u32_u24 %s, 896, %s" % (v(vT), v(vT)))
a("v_and_b32 %s, 7, %s" % (v(vT + 1), vL))
a("v_xor_b32 %s, %s, %s" % (v(vT + 1), v(vT + 1), vQ4))
a("v_xor_b32 %s, 4, %s" % (v(vT + 2), v(vT + 1)))
for ii in range(4):
    a("v_lshl_add_u32 %s, %s, 4, %s" % (v(vX[ii]), v(vT + 1 + (ii & 1)), v(vT)))
    if ii:
        a("v_add_u32 %s, %d, %s" % (v(vX[ii]), ii * 8 * 896, v(vX[ii])))
a("s_mul_i32 %s, %s, %d" % (sT0, sHW, 16 * 2688))
a("s_mul_i32 %s, %s, 192" % (sT1, sJ))
a("s_add_u32 %s, %s, %s" % (sT0, sT0, sT1))
M12 = (1 << 16) // 12 + 1
for i in range(192):
    assert (i * M12) >> 16 == i // 12
for k in range(3):
    a("v_add_u32 %s, %d, %s" % (v(vT), 64 * k, vL))
    a("v_mul_u32_u24 %s, %d, %s" % (v(vT + 1), M12, v(vT)))
    a("v_lshrrev_b32 %s, 16, %s" % (v(vT + 1), v(vT + 1)))
    a("v_mul_u32_u24 %s, %d, %s" % (v(vT + 1), 2688 - 192, v(vT + 1)))
    a("v_lshl_add_u32 %s, %s, 4, %s" % (v(vW[k]), v(vT), v(vT + 1)))
    a("v_add_u32 %s, %s, %s" % (v(vW[k]), sT0, v(vW[k])))
if OPT["warm"]:
    a("s_mul_i32 %s, %s, 14" % (sT0, sT2))
    a("s_add_u32 %s, %s, %s" % (sT0, sT0, sJ))
    a("s_lshl_b32 %s, %s, 3" % (sT0, sT0))
    a("s_add_u32 %s, %s, %s" % (sT0, sT0, sWAVE))
    if OPT["warm"] in (1, 4):
        a("v_min_u32 v39, 41, %s" % vL)
        a("v_mul_u32_u24 v39, 224, v39")
        a("v_add_u32 v39, %s, v39" % sT0)
        a("v_lshlrev_b32 v39, 7, v39")
    else:
        a("s_mul_i32 %s, %s, 42" % (sT0, sT0))
        a("v_min_u32 v39, 41, %s" % vL)
        a("v_add_u32 v39, %s, v39" % sT0)
        a("v_lshlrev_b32 v39, 7, v39")
    sum_s(sT0, [(sJ, 8), (sWAVE, 1)])
    sum_s(sT1, [(sT0, 1024), (sR0, 896)])
    a("v_and_b32 v40, 7, %s" % vL)
    a("v_lshlrev_b32 v40, 7, v40")
    a("v_add_u32 v40, %s, v40" % sT1)
    a("s_mov_b32 %s, 0" % sROT)
a("s_mov_b32 %s, %s" % (sCX, sROT))
a("s_mov_b32 %s, %s" % (sCW, sROT))
a("s_mul_i32 s92, %s, 3072" % sHW)
sizes = [1835008, 1204224, 401408, 1605632, 1605632, 1835008, 256, WS_SIZE]
srcs = [72, 74, 76, 80, 82, 84, 86, 88]
for i in range(8):
    a("s_mov_b32 s%d, %d" % (4 + 4 * i + 2, sizes[i]))
    a("s_mov_b32 s%d, 0x00020000" % (4 + 4 * i + 3))
a("s_waitcnt lgkmcnt(0)")
for i in range(8):
    a("s_mov_b64 s[%d:%d], s[%d:%d]" % (4 + 4 * i, 5 + 4 * i, srcs[i], srcs[i] + 1))
a("s_cmp_ge_u32 %s, 14" % sJ)
a("s_cbranch_scc1 Lservice")
if OPT["warm"]:
    if OPT["warm"] >= 3:
        a("buffer_load_dword v26, v40, %s, 0 offen" % X)
    a("buffer_load_dword v26, v39, %s, 0 offen" % WQKV)
a("s_cmp_lt_u32 %s, 4" % sWAVE)
a("s_cbranch_scc1 Lmfma")


def common_setup():
    a("s_lshr_b32 %s, %s, 1" % (sKH, sHW))
    a("s_and_b32 %s, %s, 1" % (sMH, sHW))
    a("s_cmp_ge_u32 %s, 7" % sJ)
    a("s_cselect_b32 %s, 1, 0" % sMH2)
    a("s_mul_i32 %s, %s, 7" % (sT3, sMH2))
    a("s_sub_u32 %s, %s, %s" % (sNB, sJ, sT3))
    a("s_min_u32 %s, %s, 6" % (sNB, sNB))
    a("s_getreg_b32 %s, hwreg(HW_REG_XCC_ID)" % sXCC)
    a("s_and_b32 %s, %s, 7" % (sXCC, sXCC))
    a("s_mov_b32 s50, 0")
    a("s_mov_b32 s51, -1")
    a("s_mov_b32 s52, -1")
    a("s_mov_b32 s53, 0xffff")
    a("s_mov_b32 s54, 0")
    a("s_mov_b32 s55, 0xffff0000")
    a("s_mov_b32 %s, 0" % sFAST)
    a("s_mov_b32 %s, 0" % sEPL)
    a("s_mov_b32 %s, 0" % sEPH)
    if OPT["stamps"]:
        sum_s(sTSOFF, [("s2", 2048), (sWAVE, 256)], WS_TS)
    sum_s(sTILE, [(sG, 4), (sMH2, 2), (sMH, 1)])
    sum_s(sXO, [(sTILE, 32 * 896), (sNB, 128), (sKH, 64)])
    sum_s(sTILE4, [(sG, 4), (sHW, 1)])
    a("v_mul_u32_u24 %s, 896, %s" % (vXOFF, vL31))
    a("v_lshl_add_u32 %s, %s, 3, %s" % (vXOFF, vH, vXOFF))
    a("v_lshlrev_b32 %s, 7, %s" % (v(HP + 8), vL))
    a("v_lshrrev_b32 %s, 3, %s" % (v(vT), vL))
    a("v_mul_u32_u24 %s, 896, %s" % (v(vT), v(vT)))
    a("v_bfe_u32 %s, %s, 4, 1" % (v(vT + 1), vL))
    a("v_lshlrev_b32 %s, 2, %s" % (v(vT + 1), v(vT + 1)))
    a("v_and_b32 %s, 7, %s" % (v(vT + 2), vL))
    a("v_xor_b32 %s, %s, %s" % (v(vT + 1), v(vT + 1), v(vT + 2)))
    a("v_lshl_add_u32 %s, %s, 4, %s" % (v(HP), v(vT + 1), v(vT)))
    a("s_lshl_b32 %s, %s, 7" % (sT0, sNB))
    a("v_add_u32 %s, %s, %s" % (v(HP), sT0, v(HP)))
    a("s_mul_i32 %s, %s, 224" % (sT0, sJ))
    for k in range(7):
        a("v_add_u32 %s, %d, %s" % (v(vT), 64 * k, vL))
        a("v_mul_u32_u24 %s, %d, %s" % (v(vT + 1), (1 << 16) // 14 + 1, v(vT)))
        a("v_lshrrev_b32 %s, 16, %s" % (v(vT + 1), v(vT + 1)))
        a("v_mul_u32_u24 %s, %d, %s" % (v(vT + 1), 3584 - 224, v(vT + 1)))
        a("v_lshl_add_u32 %s, %s, 4, %s" % (v(HP + 1 + k), v(vT), v(vT + 1)))
        a("v_add_u32 %s, %s, %s" % (v(HP + 1 + k), sT0, v(HP + 1 + k)))


for i in range(448):
    assert (i * ((1 << 16) // 14 + 1)) >> 16 == i // 14
vWO = v(HP)
vW1 = [HP + 1 + k for k in range(7)]
vTCH = v(HP + 8)


def tr_base_192(dst, t0):
    a("v_lshrrev_b32 %s, 2, %s" % (t0, vR))
    a("v_lshl_add_u32 %s, %s, 3, %s" % (t0, vH, t0))
    a("v_mul_u32_u24 %s, 192, %s" % (dst, t0))
    a("v_bfe_u32 %s, %s, 4, 1" % (t0, vL))
    a("v_lshl_add_u32 %s, %s, 5, %s" % (dst, t0, dst))
    a("v_and_b32 %s, 3, %s" % (t0, vL))
    a("v_lshl_add_u32 %s, %s, 3, %s" % (dst, t0, dst))


assert lds_conflicts([(8 * (l >> 5) + ((l & 15) >> 2)) * 192 + ((l >> 4) & 1) * 32 + (l & 3) * 8 for l in range(64)], "tr") == 0


def w1_block(base):
    a("s_add_u32 %s, %s, %d" % (sT0, sHW, base))
    a("s_mul_i32 %s, %s, %d" % (sT1, sT0, 32 * 3584))
    a("s_mul_i32 %s, %s, 7168" % (sT2, sHW))
    ldsb = base * 7168 if base < 12 else L_W1U + (base - 12) * 7168
    for k in range(7):
        dma(v(vW1[k]), W1, sT1, sT2, ldsb + k * 1024)


def touch_lines(srd, s_base, n, sc1=False):
    cnt = 0
    done = 0
    while done < n:
        k = min(64, n - done)
        if k < 64:
            a("v_min_u32 %s, %d, %s" % (v(vT), (k - 1) * 128, vTCH))
            vo = v(vT)
        else:
            vo = vTCH
        nt = (srd == WS and OPT["nt"] & 8) or (srd != WS and OPT["nt"] & 4)
        a("buffer_load_dword v26, %s, %s, %s offen%s%s" % (vo, srd, s_base, " sc1" if sc1 else "", " nt" if nt else ""))
        cnt += 1
        done += k
        if done < n:
            a("s_add_u32 %s, %s, %d" % (s_base, s_base, 64 * 128))
    return cnt


def touch_range(srd, base, total):
    if OPT["nobg"]:
        return 0
    per = total // 128 // 128
    assert per * 128 * 128 == total, (total, per)
    sum_s(sT0, [(sSLOT, 4 * per * 128), (sHW, per * 128)], base)
    return touch_lines(srd, sT0, per)


def wo_dma():
    a("s_mul_i32 %s, %s, %d" % (sT0, sHW, 8 * 896))
    for k in range(15):
        if k == 14:
            a("s_mov_b32 %s, %d" % (sT0, 56 * 8 * 896))
            dma(vWO, WO, sT0, None, L_WO + 56 * 1024)
        else:
            dma(vWO, WO, sT0, sHW1K, L_WO + k * 4096)
            a("s_add_u32 %s, %s, %d" % (sT0, sT0, 32 * 896))


def bg(slot):
    n = 0
    for it in [x for x in OPT[slot].split("+") if x]:
        if it == "wo":
            wo_dma(); n += 15
        elif it == "w18":
            w1_block(8); n += 7
        elif it == "w10":
            w1_block(0); n += 7
        elif it == "w14":
            w1_block(4); n += 7
        elif it == "tw1":
            n += touch_range(W1, 0, 256 * 3584)
        elif it == "tw1u":
            n += touch_range(W1, 384 * 3584, 64 * 3584)
        elif it == "tw1a":
            n += touch_range(W1, 0, 1605632)
        elif it == "two":
            n += touch_range(WO, 0, 393216)
        elif it == "tw2":
            n += touch_range(W2, 0, 1605632)
        elif it == "tw2a":
            n += touch_range(W2, 0, 802816)
        elif it == "tw2b":
            n += touch_range(W2, 802816, 802816)
        elif it == "tw2r":
            n += touch_range(W2, 393216, 1605632 - 393216 - 0 * 16384) if False else touch_range(W2, 393216, 1212416)
        elif it == "w2a":
            pass
        else:
            raise ValueError(it)
    return n


def vpad_prefill():
    a("v_mov_b32 %s, 0x3f80" % v(vT + 2))
    a("v_mov_b32 %s, 0" % v(vT + 3))
    a("s_mul_i32 %s, %s, %d" % (sT0, sHW, 3 * 4096))
    a("v_lshlrev_b32 %s, 3, %s" % (v(vT), vL31))
    a("v_lshl_add_u32 %s, %s, 12, %s" % (v(vT), vH, v(vT)))
    a("v_add_u32 %s, %s, %s" % (v(vT), sT0, v(vT)))
    a("ds_write_b64 %s, %s offset:%d" % (v(vT), v(vT + 2, 2), L_KV + 2048 + 1792))
    a("ds_write_b64 %s, %s offset:%d" % (v(vT), v(vT + 2, 2), L_KV + 4096 + 2048 + 1792))


sFA, sFB, sFC, sFD = "s84", "s85", "s86", "s87"
vIF = 236


def fetch_setup():
    a("v_lshrrev_b32 %s, 3, %s" % (v(vT), vL))
    a("v_min_u32 %s, 2, %s" % (v(vT), v(vT)))
    a("v_bfe_u32 %s, %s, 1, 2" % (v(vT + 1), vL))
    a("v_min_u32 %s, 2, %s" % (v(vT + 1), v(vT + 1)))
    a("v_cmp_gt_u32 vcc, 2, %s" % v(vT))
    a("v_max_u32 %s, 1, %s" % (v(vT + 2), v(vT + 1)))
    a("v_cndmask_b32 %s, %s, %s, vcc" % (v(vT + 1), v(vT + 1), v(vT + 2)))
    a("v_mul_u32_u24 %s, 448, %s" % (v(vT + 1), v(vT + 1)))
    a("v_and_b32 %s, 1, %s" % (v(vT + 2), vL))
    a("v_mul_u32_u24 %s, 31, %s" % (v(vT + 2), v(vT + 2)))
    a("s_mul_i32 %s, %s, 7" % (sT0, sJ))
    a("s_lshr_b32 %s, %s, 1" % (sE, sT0))
    a("s_lshl_b32 %s, %s, 3" % (sT0, sE))
    a("v_add3_u32 %s, %s, %s, %s" % (v(vT + 1), v(vT + 1), v(vT + 2), sT0))
    M96 = (1 << 18) // 96 + 1
    for i in range(1348):
        assert (i * M96) >> 18 == i // 96
    a("v_mul_u32_u24 %s, %d, %s" % (v(vT + 1), M96, v(vT + 1)))
    a("v_lshrrev_b32 %s, 18, %s" % (v(vT + 1), v(vT + 1)))
    a("v_min_u32 %s, 13, %s" % (v(vT + 1), v(vT + 1)))
    a("v_add_u32 %s, %s, %s" % (v(vT + 2), sG, v(vT)))
    a("v_cmp_gt_u32 vcc, 2, %s" % v(vT + 2))
    a("v_subrev_u32 %s, 2, %s" % (v(vT + 2), v(vT + 2)))
    a("v_mov_b32 %s, %s" % (v(vT + 3), sG))
    a("v_cndmask_b32 %s, %s, %s, vcc" % (v(vT + 2), v(vT + 2), v(vT + 3)))
    a("v_lshlrev_b32 %s, 9, %s" % (v(vT + 2), v(vT + 2)))
    a("v_lshl_add_u32 %s, %s, 3, %s" % (v(vT + 2), v(vT + 1), v(vT + 2)))
    sum_s(sT0, [(sHW, 128)], WS_F1)
    a("v_add_u32 v27, %s, %s" % (sT0, v(vT + 2)))
    sum_s(sFC, [(sTILE4, QT), (sE, 512)], WS_QKV)
    a("s_sub_u32 %s, %s, %d" % (sFB, sFC, 4 * QT))
    a("s_sub_u32 %s, %s, %d" % (sFA, sFC, 8 * QT))
    a("s_cmp_lt_u32 %s, 1" % sG)
    a("s_cselect_b32 %s, 0x40000000, %s" % (sFB, sFB))
    a("s_cmp_lt_u32 %s, 2" % sG)
    a("s_cselect_b32 %s, 0x40000000, %s" % (sFA, sFA))
    a("s_lshl_b32 %s, %s, 11" % (sFD, sHW))


SC, KB, QF, M0R, M16R, PF, VB, OA = 32, 100, 124, 128, 132, 136, 148, 172
LS, ONE4 = 196, 200
vKA = [180, 181]
vVA = [184, 185]
vQA = "v186"
vNEG, vGFA, vGF, vOA = "v188", "v189", 190, "v192"
sFQ, sFO = "s[80:81]", "s[82:83]"


def p2_setup():
    a("s_mul_i32 %s, %s, 7" % (sT4, sJ))
    a("s_lshr_b32 %s, %s, 1" % (sT4, sT4))
    a("v_add_u32 %s, %s, %s" % (v(vT + 3), sT4, vQ4))
    a("v_and_b32 %s, 1, %s" % (v(vT + 3), v(vT + 3)))
    a("v_mul_u32_u24 %s, 12, %s" % (v(vT + 3), v(vT + 3)))
    a("v_bfe_u32 %s, %s, 1, 1" % (v(vT + 4), vR))
    a("v_add_u32 %s, %s, %s" % (v(vT + 5), sT4, v(vT + 4)))
    a("v_and_b32 %s, 1, %s" % (v(vT + 5), v(vT + 5)))
    a("v_mul_u32_u24 %s, 12, %s" % (v(vT + 5), v(vT + 5)))
    for par in range(2):
        a("s_add_u32 %s, %s, %d" % (sT0, sWAVE, par))
        a("s_lshr_b32 %s, %s, 1" % (sT1, sT0))
        a("s_lshl_b32 %s, %s, 12" % (sT1, sT1))
        a("s_and_b32 %s, %s, 1" % (sT0, sT0))
        a("s_lshl_b32 %s, %s, 4" % (sT0, sT0))
        a("v_add_u32 %s, %s, %s" % (v(vT), sT0, vR))
        a("v_xor_b32 %s, %s, %s" % (v(vT), v(vT), v(vT + 3)))
        a("v_lshlrev_b32 %s, 4, %s" % (v(vT), v(vT)))
        a("v_lshl_add_u32 %s, %s, 9, %s" % (v(vT), vQ4, v(vT)))
        a("v_add_u32 %s, %s, %s" % (v(vKA[par]), sT1, v(vT)))
        if par == 0:
            a("s_lshr_b32 %s, %s, 1" % (sT2, sT1))
            a("s_add_u32 %s, %s, %d" % (sT2, sT2, L_Q))
            a("v_add_u32 %s, %s, %s" % (vQA, sT2, v(vT)))
        a("v_lshrrev_b32 %s, 2, %s" % (v(vT), vR))
        a("v_lshl_add_u32 %s, %s, 2, %s" % (v(vT), vQ4, v(vT)))
        a("v_add_u32 %s, %s, %s" % (v(vT), sT0, v(vT)))
        a("v_xor_b32 %s, %s, %s" % (v(vT), v(vT), v(vT + 5)))
        a("v_lshlrev_b32 %s, 4, %s" % (v(vT), v(vT)))
        a("v_lshl_add_u32 %s, %s, 9, %s" % (v(vT), v(vT + 4), v(vT)))
        a("v_and_b32 %s, 1, %s" % (v(vT + 1), vR))
        a("v_lshl_add_u32 %s, %s, 3, %s" % (v(vT), v(vT + 1), v(vT)))
        a("v_add_u32 %s, %s, %s" % (v(vVA[par]), sT1, v(vT)))
    for o_ in range(2):
        for half in range(2):
            assert lds_conflicts([(l >> 4) * 512 + (((16 * half + (l & 15)) ^ (12 * ((o_ + (l >> 4)) & 1))) * 16) for l in range(64)], "b128") == 0
            assert lds_conflicts([((l >> 1) & 1) * 512 + (((16 * half + 4 * (l >> 4) + ((l & 15) >> 2)) ^ (12 * ((o_ + ((l >> 1) & 1)) & 1))) * 16) + (l & 1) * 8 for l in range(64)], "tr") == 0
    a("s_and_b32 %s, %s, 1" % (sT0, sJ))
    a("s_cmp_eq_u32 %s, 0" % sT0)
    a("s_cselect_b32 s80, 0, 0xffff")
    a("s_mov_b32 s81, 0")
    a("s_mov_b32 s82, 0")
    a("s_cselect_b32 s83, 0xffff0000, 0")
    for k in range(4):
        a("v_mov_b32 %s, 0x3f803f80" % v(ONE4 + k))
    a("v_mov_b32 %s, 0xf149f2ca" % vNEG)
    a("v_lshlrev_b32 %s, 2, %s" % (v(vT), vQ4))
    a("v_sub_u32 %s, %s, %s" % (v(vT), v(vT), vR))
    for c in range(4):
        a("v_cmp_lt_i32 vcc, %d, %s" % (-c, v(vT)))
        a("v_cndmask_b32 %s, %s, %s, vcc" % (v(M0R + c), vNEG, vZ))
        a("v_cndmask_b32 %s, %s, %s, vcc" % (v(M16R + c), vZ, vNEG))
    sum_s(sT0, [(sG, 512)], WS_F1)
    a("v_lshlrev_b32 %s, 3, %s" % (vGFA, vR))
    a("v_add_u32 %s, %s, %s" % (vGFA, sT0, vGFA))
    a("s_lshr_b32 %s, %s, 1" % (sT1, sWAVE))
    a("s_and_b32 %s, %s, 1" % (sT2, sWAVE))
    sum_s(sE, [(sG, 131072), (sT1, 32768), (sJ, 2048), (sT2, 256)], WS_O)
    sum_s(sF, [(sG, 1024), (sWAVE, 128), (sJ, 8)], WS_F2)
    a("v_lshlrev_b32 %s, 9, %s" % (vOA, vQ4))
    a("v_lshl_add_u32 %s, %s, 4, %s" % (vOA, vR, vOA))
    a("v_mov_b32 %s, 0" % v(PF + 8 + 2))
    a("v_mov_b32 %s, 0" % v(PF + 8 + 3))




def adv(s):
    a("s_add_u32 %s, %s, 1" % (s, s))
    a("s_cmp_eq_u32 %s, 7" % s)
    a("s_cselect_b32 %s, 0, %s" % (s, s))


def issue_w(c):
    a("s_mul_i32 %s, %s, %d" % (sT1, sCW, 64 * 2688))
    for k in range(3):
        dma(v(vW[k]), WQKV, sT1, "s92", c * 12288 + k * 1024)
    adv(sCW)


def issue_x(c):
    a("s_lshl_b32 %s, %s, 7" % (sT0, sCX))
    for ii in range(4):
        dma(v(vX[ii]), X, sT0, sHW4K, L_XR + (c % 4) * 16384 + ii * 1024)
    adv(sCX)


GW = [{0: [0, 1], 1: [2, 3], 2: [4], 3: [5], 4: [6], 5: [], 6: []},
      {0: [0], 1: [1], 2: [2, 3], 3: [4, 5], 4: [6], 5: [], 6: []},
      {0: [0], 1: [1, 2], 2: [3, 4], 3: [5], 4: [6], 5: [], 6: []}][OPT["gw"]]


def issue_group(c):
    ws = list(GW[c])
    while ws and (ws[0] <= c or (OPT["gw"] == 0 and c <= 1)):
        issue_w(ws.pop(0))
    issue_x(c)
    for w_ in ws:
        issue_w(w_)
    return 4 + 3 * len(GW[c])


if OPT["warm"]:
    common_setup()
    a("s_waitcnt vmcnt(0)")
if OPT["diag"]:
    a("s_memtime s[98:99]")
    issue_w(0)
    a("s_waitcnt vmcnt(0)")
    a("s_memtime s[100:101]")
    a("s_mov_b32 %s, %s" % (sCW, sROT))
groups = [issue_group(0), issue_group(1)]
if not OPT["warm"]:
    common_setup()
if OPT["diag"]:
    a("s_waitcnt lgkmcnt(0)")
    for nm, r_ in (("d_entry", 96), ("d_karg", 98), ("d_first", 100)):
        idx = STAMPS.setdefault("t0", 0)
        idx = STAMPS.setdefault(nm, len(STAMPS))
        a("v_mov_b32 v30, s%d" % r_)
        a("v_mov_b32 v31, s%d" % (r_ + 1))
        a("s_mov_b64 exec, 1")
        a("buffer_store_dwordx2 v[30:31], %s, %s, %s offen offset:%d" % (vZ, WS, sTSOFF, idx * 8))
        a("s_mov_b64 exec, -1")
    groups[-1] += 3
stamp("t0")
stamp("rt_start")
hCS = [48, 49, 50, 51, 52, 53]
hWA, hWA2 = "v54", "v55"
HBW = 60
hST = 76
for r_ in hCS:
    a("v_mov_b32 %s, 0" % v(r_))
tr_base_192(hWA, v(vT))
a("v_add_u32 %s, s92, %s" % (hWA, hWA))
a("v_add_u32 %s, %d, %s" % (hWA2, 5 * 12288, hWA))
a("v_lshlrev_b32 v56, 4, %s" % vL31)
a("v_mov_b32 v57, 0x3f803f80")
sum_s(sA, [(sTILE4, 512)], WS_ST)


def colsum_w(c):
    if OPT["dry"] & 1:
        return
    base, off = (hWA2, (c - 5) * 12288) if c >= 5 else (hWA, c * 12288)
    for p3 in range(3):
        for hh in range(2):
            a("ds_read_b64_tr_b16 %s, %s offset:%d" % (v(HBW + 4 * p3 + 2 * hh, 2), base, off + p3 * 64 + hh * 768))
    a("s_waitcnt lgkmcnt(0)")
    for i in range(4):
        for p3 in range(3):
            a("v_dot2c_f32_bf16 %s, %s, v57" % (v(hCS[2 * p3]), v(HBW + 4 * p3 + i)))


for c in range(7):
    after = sum(groups[c + 1:])
    if c == 6:
        a("v_mov_b32 %s, %d" % (v(vT), L_EP))
        a("ds_read_b64 %s, %s" % (v(vFLG, 2), v(vT)))
        a("s_waitcnt lgkmcnt(0)")
        a("v_readfirstlane_b32 %s, %s" % (sEPL, v(vFLG)))
        a("v_readfirstlane_b32 %s, %s" % (sEPH, v(vFLG + 1)))
        a("v_or_b32 %s, %s, %s" % (v(vFLG), sXCC, v(vFLG)))
        a("s_mov_b32 %s, 0x20000" % sCNT)
        a("s_waitcnt vmcnt(%d)" % sum(groups[8:]))
        a.label("Lst_loop")
        a("v_cmp_ne_u32 vcc, %s, %s" % (sEPL, v(hST + 1)))
        a("v_cmp_ne_u32 s[94:95], %s, %s" % (sEPH, v(hST + 3)))
        a("s_or_b64 vcc, vcc, s[94:95]")
        a("s_cbranch_scc0 Lst_ok")
        a("buffer_load_dwordx4 %s, v56, %s, %s offen sc1" % (v(hST, 4), WS, sA))
        a("s_sub_u32 %s, %s, 1" % (sCNT, sCNT))
        a("s_waitcnt vmcnt(0)")
        a("s_cmp_lg_u32 %s, 0" % sCNT)
        a("s_cbranch_scc1 Lst_loop")
        a.label("Lst_ok")
        sum_s(sT0, [(sHW, 256)], L_ST)
        a("v_lshl_add_u32 %s, %s, 2, %s" % (v(vT), vL31, sT0))
        a("ds_write_b32 %s, %s" % (v(vT), v(hST)))
        a("ds_write_b32 %s, %s offset:128" % (v(vT), v(hST + 2)))
        a("s_waitcnt lgkmcnt(0)")
    else:
        a("s_waitcnt vmcnt(%d)" % after)
    a("s_barrier")
    stamp("h_b%d" % c)
    if c == 0:
        groups.append(issue_group(2))
    if c + 3 <= 6:
        groups.append(issue_group(c + 3))
    if c == 3:
        a("buffer_load_dwordx4 %s, v56, %s, %s offen sc1" % (v(hST, 4), WS, sA))
        groups.append(1)
    if c == 3 and OPT["P3"]:
        groups.append(bg("P3"))
    if c == OPT["pt_c"] and OPT["pt_h1"] == 3:
        sum_s(sT0, [(sG, 448 * 1024), (sJ, 32 * 1024), (sHW, 8192)], WS_H1)
        groups.append(touch_lines(WS, sT0, 64, sc1=True))
    for w_ in GW[c]:
        colsum_w(w_)
    if c == 4:
        for p3 in range(3):
            a("v_add_f32 %s, %s, %s" % (v(hCS[2 * p3]), v(hCS[2 * p3]), v(hCS[2 * p3 + 1])))
            xhalf_sum(v(hCS[2 * p3]), v(vT))
        sum_s(sT0, [(sHW, 384)], L_CSP)
        a("v_lshl_add_u32 %s, %s, 2, %s" % (v(vT), vL31, sT0))
        for p3 in range(3):
            a("ds_write_b32 %s, %s offset:%d" % (v(vT), v(hCS[2 * p3]), 128 * p3))
        a("s_waitcnt lgkmcnt(0)")
    if c == 5:
        a("s_min_u32 %s, %s, 2" % (sT0, sHW))
        a("s_lshl_b32 %s, %s, 7" % (sT0, sT0))
        a("s_add_u32 %s, %s, %d" % (sT1, sT0, L_CSP))
        a("v_lshl_add_u32 %s, %s, 2, %s" % (v(vT + 4), vL31, sT1))
        a("s_add_u32 %s, %s, %d" % (sT1, sT0, L_CS))
        a("v_lshl_add_u32 %s, %s, 2, %s" % (v(vT + 5), vL31, sT1))
        for k in range(4):
            a("ds_read_b32 %s, %s offset:%d" % (v(HBW + k), v(vT + 4), 384 * k))
        a("s_waitcnt lgkmcnt(0)")
        a("v_add_f32 %s, %s, %s" % (v(HBW), v(HBW), v(HBW + 1)))
        a("v_add_f32 %s, %s, %s" % (v(HBW + 2), v(HBW + 2), v(HBW + 3)))
        a("v_add_f32 %s, %s, %s" % (v(HBW), v(HBW), v(HBW + 2)))
        a("ds_write_b32 %s, %s" % (v(vT + 5), v(HBW)))
a("s_barrier")
bg("A")
stamp("h_wo")
a("s_branch Lp2")

a.label("Lservice")
a("s_sub_u32 %s, %s, 14" % (sT0, sJ))
sum_s(sT1, [(sT0, 64), (sWAVE, 8), (sR0, 1)])
a("s_mul_i32 %s, %s, 896" % (sT2, sT1))
a("v_lshrrev_b32 %s, 3, %s" % (v(vT), vL))
a("v_mul_u32_u24 %s, 896, %s" % (v(40), v(vT)))
a("v_and_b32 %s, 7, %s" % (v(vT + 1), vL))
a("v_lshl_add_u32 %s, %s, 4, %s" % (v(40), v(vT + 1), v(40)))
SX = 44
for i in range(7):
    a("buffer_load_dwordx4 %s, v40, %s, %s offen offset:%d%s" % (v(SX + 4 * i, 4), X, sT2, 128 * i, " nt" if OPT["nt"] & 1 else ""))
a("buffer_load_dwordx2 %s, %s, %s, 0 offen sc1" % (v(vFLG, 2), vZ, DBG))
a("s_lshl_b32 %s, %s, 4" % (sA, sT1))
a("s_add_u32 %s, %s, %d" % (sA, sA, WS_ST))
a("v_lshlrev_b32 v41, 4, %s" % v(vT))
common_setup()
stamp("t0")
stamp("rt_start")
a("v_mov_b32 v42, 0")
a("v_mov_b32 v43, 0")
a("v_mov_b32 v39, 0x3f803f80")
a("s_waitcnt vmcnt(1)")
for i in range(28):
    a("v_dot2c_f32_bf16 v42, %s, v39" % v(SX + i))
    a("v_dot2c_f32_bf16 v43, %s, %s" % (v(SX + i), v(SX + i)))
for sw in (0x041F, 0x081F, 0x101F):
    a("ds_swizzle_b32 %s, v42 offset:0x%x" % (v(vT + 2), sw))
    a("ds_swizzle_b32 %s, v43 offset:0x%x" % (v(vT + 3), sw))
    a("s_waitcnt lgkmcnt(0)")
    a("v_add_f32 v42, v42, %s" % v(vT + 2))
    a("v_add_f32 v43, v43, %s" % v(vT + 3))
ln_finish("v42", "v43", v(SX), v(SX + 2), v(vT + 2))
get_epoch_spin("svc")
a("v_mov_b32 %s, %s" % (v(SX + 1), sEPL))
a("v_mov_b32 %s, %s" % (v(SX + 3), sEPH))
a("v_or_b32 %s, %s, %s" % (v(vFLG), sXCC, v(vFLG)))
a("buffer_store_dwordx4 %s, v41, %s, %s offen sc1" % (v(SX, 4), WS, sA))
sum_s(sT0, [(sG, 512), (sJ, 8)], WS_F1)
flag_store(sT0, " sc1")
stamp("svc_st")
a("s_waitcnt vmcnt(0)")
a("s_barrier")
a("s_sub_u32 %s, %s, 14" % (sT0, sJ))
sum_s(sT4, [(sT0, 8), (sWAVE, 1)])
if not OPT["ohsc"]:
    sum_s(sT1, [(sG, 131072), (sT4, 8192)], WS_O)
    touch_lines(WS, sT1, 64, sc1=True)
    sum_s(sT1, [(sG, 114688), (sT4, 7168)], WS_H)
    touch_lines(WS, sT1, 56, sc1=True)
    sum_s(sT1, [(sG, 16384), (sT4, 1024)], WS_HS)
    touch_lines(WS, sT1, 8, sc1=True)
sum_s(sT1, [(sG, 1024)], WS_F2)
touch_lines(WS, sT1, 8, sc1=True)
sum_s(sT1, [(sG, 512)], WS_F3)
touch_lines(WS, sT1, 4, sc1=True)
sum_s(sT1, [(sG, 512)], WS_F4)
touch_lines(WS, sT1, 4, sc1=True)
a("s_and_b32 %s, %s, 1" % (sT0, sG))
sum_s(sT3, [(sT0, 16), (sT4, 1)])
for it in [x for x in OPT["svc"].split("+") if x]:
    srd, base, total = {"wo": (WO, 0, 401408), "w2q": (W2, 0, 401408), "w2q2": (W2, 401408, 401408), "w1q": (W1, 0, 401408)}[it]
    per = total // 128 // 32
    sum_s(sT1, [(sT3, per * 128)], base)
    touch_lines(srd, sT1, per)
if OPT["pt_h1"] == 2:
    sum_s(sT1, [(sG, 448 * 1024), (sT4, 28 * 1024)], WS_H1)
    touch_lines(WS, sT1, 224, sc1=True)
fetch_setup()
a("s_cmp_lt_u32 %s, 4" % sWAVE)
a("s_cbranch_scc1 Lfetch")
if "w18" in OPT["A"]:
    w1_block(8)
a("s_branch Lp2")

a.label("Lmfma")
a("s_or_b32 %s, s2, %s" % (sT0, sWAVE))
a("s_cmp_lg_u32 %s, 0" % sT0)
a("s_cbranch_scc1 Lnoep")
a("s_memrealtime s[94:95]")
a("s_waitcnt lgkmcnt(0)")
a("s_lshl_b32 %s, s94, 4" % sT1)
a("s_or_b32 %s, %s, 8" % (sT1, sT1))
a("s_mul_i32 %s, s94, 0x9e3779b1" % sT2)
a("s_add_u32 %s, %s, s95" % (sT2, sT2))
a("v_mov_b32 %s, %s" % (v(vT), sT1))
a("v_mov_b32 %s, %s" % (v(vT + 1), sT2))
a("s_mov_b64 exec, 1")
a("buffer_store_dwordx2 %s, %s, %s, 0 offen sc1" % (v(vT, 2), vZ, DBG))
a("s_mov_b64 exec, -1")
a.label("Lnoep")
common_setup()
stamp("t0")
stamp("rt_start")
ACC = 32
FB = 80
vXA = [148, 149, 150, 151]
vWA, vWA2 = "v152", "v153"
vSA, vCA = "v154", "v155"
vQo = ["v156", "v157"]
CS = 160
PK = 208
vNM, vRS = 232, 234
a("v_bfe_u32 %s, %s, 1, 3" % (v(vT), vL31))
a("v_xor_b32 %s, %s, %s" % (v(vT), v(vT), vH))
a("v_lshlrev_b32 %s, 7, %s" % (v(vT + 1), vL31))
a("v_add_u32 %s, %s, %s" % (v(vT + 1), sHW4K, v(vT + 1)))
a("v_add_u32 %s, %d, %s" % (v(vT + 1), L_XR, v(vT + 1)))
for s in range(4):
    a("v_xor_b32 %s, %d, %s" % (v(vT + 2), 2 * s, v(vT)))
    a("v_lshl_add_u32 %s, %s, 4, %s" % (v(vXA[s]), v(vT + 2), v(vT + 1)))
    assert lds_conflicts([(l & 31) * 128 + (((2 * s + (l >> 5)) ^ (((l & 31) >> 1) & 7)) * 16) for l in range(64)], "b128") == 0
tr_base_192(vWA, v(vT))
a("v_add_u32 %s, %d, %s" % (vWA2, 5 * 12288, vWA))
sum_s(sT0, [(sHW, 256)], L_ST)
a("v_lshl_add_u32 %s, %s, 2, %s" % (vSA, vL31, sT0))
a("v_lshlrev_b32 %s, 4, %s" % (vCA, vH))
a("v_add_u32 %s, %d, %s" % (vCA, L_CS, vCA))
a("v_mul_u32_u24 %s, 12, %s" % (v(vT), vH))
a("v_xor_b32 %s, %s, %s" % (v(vT), v(vT), vL))
a("v_lshlrev_b32 %s, 4, %s" % (vQo[0], v(vT)))
sum_s(sA, [(sTILE4, QT), (sJ, 12 * 512)], WS_QKV)
a("s_add_u32 %s, %s, 4096" % (sC, sA))
sum_s(sD, [(sTILE4, 128), (sJ, 8)], WS_F1)


def p1_reads(c, s):
    if OPT["dry"] & 2:
        return
    fb = FB + 16 * s
    a("ds_read_b128 %s, %s offset:%d" % (v(fb, 4), v(vXA[s]), (c % 4) * 16384))
    base, off = (vWA2, (c - 5) * 12288) if c >= 5 else (vWA, c * 12288)
    for p3 in range(3):
        for hh in range(2):
            a("ds_read_b64_tr_b16 %s, %s offset:%d" % (v(fb + 4 + 4 * p3 + 2 * hh, 2), base, off + p3 * 64 + s * 3072 + hh * 768))


def p1_mfma(c, s, fill=None):
    if OPT["dry"] & 2:
        return
    fb = FB + 16 * s
    first = (c == 0 and s == 0)
    for p3 in range(3):
        acc = v(ACC + 16 * p3, 16)
        a("v_mfma_f32_32x32x16_bf16 %s, %s, %s, %s" % (acc, v(fb + 4 + 4 * p3, 4), v(fb, 4), "0" if first else acc))
        if fill:
            for _ in range(6):
                if fill:
                    a(fill.pop(0))


for k in range(4):
    a("v_mov_b32 %s, -1" % v(PK + k))
def sentinel_init():
    for i in range(6 if OPT["sent"] else 0):
        a("buffer_store_dwordx4 %s, %s, %s, %s offen offset:%d sc1" % (v(PK, 4), vL16, WS, sA if i < 4 else sC, 1024 * (i % 4)))
    a("buffer_load_dwordx2 %s, %s, %s, 0 offen sc1" % (v(vFLG, 2), vZ, DBG))


if OPT["ic"] < 0:
    sentinel_init()
fetch_setup()
a("s_barrier")
stamp("m_b0")
p1_reads(0, 0)
p1_reads(0, 1)
for c in range(7):
    fill = []
    if c == 1:
        for jj in range(4):
            a("buffer_load_dwordx2 %s, %s, %s, %s offen offset:%d" % (v(vXRES + 2 * jj, 2), vXOFF, X, sXO, 16 * jj))
    if c == OPT["ic"]:
        sentinel_init()
    if c == 6 and OPT["sent"]:
        a("buffer_load_dwordx2 %s, v27, %s, 0 offen sc1" % (v(vIF, 2), WS))
    a("s_waitcnt lgkmcnt(7)")
    p1_mfma(c, 0)
    p1_reads(c, 2)
    a("s_waitcnt lgkmcnt(7)")
    p1_mfma(c, 1)
    p1_reads(c, 3)
    if c == 6:
        a("ds_read_b32 %s, %s" % (v(vNM), vSA))
        a("ds_read_b32 %s, %s offset:128" % (v(vRS), vSA))
        a("s_waitcnt lgkmcnt(9)")
        p1_mfma(c, 2)
        a("s_waitcnt lgkmcnt(2)")
        for i in range(12):
            a("ds_read_b128 %s, %s offset:%d" % (v(CS + 4 * i, 4), vCA, 32 * i))
        p1_mfma(c, 3)
    else:
        a("s_waitcnt lgkmcnt(7)")
        p1_mfma(c, 2)
        if c == OPT["fc"]:
            get_epoch_spin("m")
            a("v_mov_b32 %s, %d" % (v(vT + 2), L_EP))
            a("ds_write_b64 %s, %s" % (v(vT + 2), v(vFLG, 2)))
            a("v_or_b32 %s, %s, %s" % (v(vFLG), sXCC, v(vFLG)))
            if OPT["sent"]:
                flag_store(sD, " sc1")
        a("s_waitcnt lgkmcnt(0)")
        a("s_barrier")
        stamp("m_b%d" % (c + 1))
        p1_reads(c + 1, 0)
        p1_reads(c + 1, 1)
        p1_mfma(c, 3)
a("s_waitcnt lgkmcnt(12)")
a("v_mul_f32 %s, %s, %s" % (v(vNM), v(vNM), v(vRS)))
a("v_mov_b32 %s, %s" % (v(vRS + 1), v(vRS)))
a("v_mov_b32 %s, %s" % (v(vNM + 1), v(vNM)))
stamp("m_p1end")
for i in range(3):
    a("s_waitcnt lgkmcnt(%d)" % (8 - 4 * i))
    for k in range(8):
        r_ = CS + 16 * i + 2 * k
        a("v_pk_mul_f32 %s, %s, %s" % (v(r_, 2), v(r_, 2), v(vNM, 2)))
for i in range(3):
    for k in range(8):
        r_ = ACC + 16 * i + 2 * k
        a("v_pk_fma_f32 %s, %s, %s, %s" % (v(r_, 2), v(r_, 2), v(vRS, 2), v(CS + 16 * i + 2 * k, 2)))
    for k in range(8):
        a("v_cvt_pk_bf16_f32 %s, %s, %s" % (v(PK + 8 * i + k), v(ACC + 16 * i + 2 * k), v(ACC + 16 * i + 2 * k + 1)))
    for m in range(2):
        for k in range(2):
            a("v_permlane32_swap_b32 %s, %s" % (v(PK + 8 * i + 4 * m + k), v(PK + 8 * i + 4 * m + 2 + k)))
    for m in range(2):
        a("buffer_store_dwordx4 %s, %s, %s, %s offen offset:%d sc1" % (v(PK + 8 * i + 4 * m, 4), vQo[0], WS, sA if i < 2 else sC, (2048 * i if i < 2 else 0) + 1024 * m))
stamp("m_epi1")
stamp("rt_epi1")
if OPT["sent"]:
    a("s_barrier")
    a("s_waitcnt vmcnt(6)")
    a("v_and_b32 %s, -8, %s" % (v(vIF), v(vIF)))
    a("v_cmp_ne_u64 vcc, %s, %s" % (sEP, v(vIF, 2)))
    a("s_cbranch_vccz Lfetch_go")
else:
    a("s_waitcnt vmcnt(0)")
    flag_store(sD, " sc1")
    a("s_barrier")

a.label("Lfetch")
poll("v27", vT + 2, "f1")
a.label("Lfetch_go")
stamp("m_f1ok")
stamp("rt_f1ok")
a("v_add_u32 v32, %s, %s" % (sHW4K, vL16))
a("v_add_u32 v33, %s, %s" % (sFD, vL16))
a("s_mov_b32 %s, 0x4000" % sCNT)


def fetch_dma():
    for kind, sb in ((2, sFC), (1, sFB), (0, sFA)):
        if kind == 2:
            dma(vL16, WS, sb, sFD, L_Q, sc1=True)
            dma(vL16, WS, sb, sFD, L_Q + 1024, inst=1024, sc1=True)
        a("s_add_u32 %s, %s, %d" % (sT0, sb, 56 * 512))
        a("s_add_u32 %s, %s, %d" % (sT1, sb, 112 * 512))
        lb = L_KV + kind * 16384
        dma(vL16, WS, sT0, sHW4K, lb, sc1=True)
        dma(vL16, WS, sT0, sHW4K, lb + 1024, inst=1024, sc1=True)
        dma(vL16, WS, sT1, sHW4K, lb + 2048, sc1=True)
        dma(vL16, WS, sT1, sHW4K, lb + 3072, inst=1024, sc1=True)


fetch_dma()
p2_setup()
a.label("Lfetch_val")
if not OPT["sent"]:
    a("s_waitcnt vmcnt(0)")
    a("s_branch Lp2b")
VR = 36
order = [("v33", L_Q), ("v33", L_Q + 1024)] + [("v32", L_KV + kind * 16384 + 1024 * q) for kind in (2, 1, 0) for q in range(4)]
for n, (ad, off) in enumerate(order):
    if n in (0, 6, 10):
        a("s_waitcnt vmcnt(%d)" % {0: 8, 6: 4, 10: 0}[n])
    a("ds_read_b128 %s, %s offset:%d" % (v(VR + 4 * n, 4), ad, off))
a("v_mov_b32 v34, 0")
a("v_mov_b32 v35, 0")
for n in range(14):
    if n in (0, 6, 10):
        a("s_waitcnt lgkmcnt(%d)" % {0: 8, 6: 4, 10: 0}[n])
    a("v_max3_u32 v34, v34, %s, %s" % (v(VR + 4 * n), v(VR + 4 * n + 1)))
    a("v_max3_u32 v35, v35, %s, %s" % (v(VR + 4 * n + 2), v(VR + 4 * n + 3)))
a("v_max_u32 v34, v34, v35")
a("v_cmp_eq_u32 vcc, -1, v34")
a("s_sub_u32 %s, %s, 1" % (sCNT, sCNT))
a("s_cmp_eq_u32 %s, 0" % sCNT)
a("s_cbranch_scc1 Lfetch_done")
a("s_cbranch_vccz Lfetch_done")
fetch_dma()
a("s_branch Lfetch_val")
a.label("Lfetch_done")
if OPT["stamps"]:
    a("v_mov_b32 v30, %s" % sCNT)
    a("v_mov_b32 v31, 0")
    a("s_mov_b64 exec, 1")
    a("buffer_store_dwordx2 v[30:31], %s, %s, %s offen offset:%d" % (vZ, WS, sTSOFF, 30 * 8))
    a("s_mov_b64 exec, -1")
a("s_branch Lp2b")

a.label("Lp2")
p2_setup()
a.label("Lp2b")
stamp("kv_landed")
a("s_barrier")
stamp("b8")
stamp("rt_b8")
a(("s_cmp_ge_u32 %s, 4" if OPT["bm"] else "s_cmp_lt_u32 %s, 4") % sWAVE)
a("s_cbranch_scc1 Lp2go")
bg("B")
a.label("Lp2go")
a("buffer_load_dwordx2 %s, %s, %s, 0 offen sc1" % (v(vGF, 2), vGFA, WS))
a("ds_read_b128 %s, %s" % (v(QF, 4), vQA))
NKB = 6


def kread(i):
    a("ds_read_b128 %s, %s offset:%d" % (v(KB + 4 * (i % NKB), 4), v(vKA[i & 1]), (i >> 1) * 4096))


for i in range(NKB):
    kread(i)
for i in range(17):
    rem = min(NKB - 1, 16 - i)
    a("s_waitcnt lgkmcnt(%d)" % rem)
    if i == 0:
        for k in range(2):
            a("v_cndmask_b32 %s, %s, %s, %s" % (v(QF + k), v(QF + k), vZ, sFQ))
            a("v_cndmask_b32 %s, %s, %s, %s" % (v(QF + 2 + k), v(QF + 2 + k), vZ, sFO))
    cc = v(M0R, 4) if i == 0 else (v(M16R, 4) if i == 16 else "0")
    a("v_mfma_f32_16x16x32_bf16 %s, %s, %s, %s" % (v(SC + 4 * i, 4), v(KB + 4 * (i % NKB), 4), v(QF, 4), cc))
    if i + NKB < 17:
        kread(i + NKB)


def vread(n):
    p, dt = n >> 1, n & 1
    for b in range(2):
        par = b if p < 8 else 0
        a("ds_read_b64_tr_b16 %s, %s offset:%d" % (v(VB + 4 * (n % NKB) + 2 * b, 2), v(vVA[par]), 2048 + p * 4096 + dt * 1024))


for n in range(NKB):
    vread(n)
a("s_cmp_ge_u32 %s, 2" % sG)
a("s_cbranch_scc1 Lnoinv")
a("s_lshl_b32 %s, %s, 3" % (sT0, sG))
a("s_add_u32 %s, %s, %s" % (sT0, sT0, sWAVE))
a("s_sub_u32 %s, 16, %s" % (sT0, sT0))
for i in range(16):
    a("s_cmp_le_u32 %s, %d" % (sT0, i))
    a("s_cbranch_scc1 Lnoinv")
    for c in range(4):
        a("v_mov_b32 %s, %s" % (v(SC + 4 * i + c), vNEG))
a.label("Lnoinv")
vM, vM2 = v(vT), v(vT + 1)
a("v_max3_f32 %s, %s, %s, %s" % (vM, v(SC), v(SC + 1), v(SC + 2)))
a("v_max3_f32 %s, %s, %s, %s" % (vM2, v(SC + 3), v(SC + 4), v(SC + 5)))
i = 6
flip = 0
while i < 68:
    tgt = vM if flip == 0 else vM2
    a("v_max3_f32 %s, %s, %s, %s" % (tgt, tgt, v(SC + i), v(SC + i + 1)))
    i += 2
    flip ^= 1
a("v_max_f32 %s, %s, %s" % (vM, vM, vM2))
a("v_mov_b32 %s, %s" % (vM2, vM))
a("v_permlane32_swap_b32 %s, %s" % (vM, vM2))
a("v_max_f32 %s, %s, %s" % (vM, vM, vM2))
a("v_mov_b32 %s, %s" % (vM2, vM))
a("v_permlane16_swap_b32 %s, %s" % (vM, vM2))
a("v_max_f32 %s, %s, %s" % (vM, vM, vM2))
CSC = (28.0 ** -0.5) * math.log2(math.e)
a("s_mov_b32 %s, %s" % (sT0, f32(CSC)))
a("v_mul_f32 %s, %s, %s" % (vM, f32(-CSC), vM))
for p in range(9):
    ne = 8 if p < 8 else 4
    for i in range(ne):
        a("v_fma_f32 %s, %s, %s, %s" % (v(SC + 8 * p + i), v(SC + 8 * p + i), sT0, vM))
    for i in range(ne):
        a("v_exp_f32 %s, %s" % (v(SC + 8 * p + i), v(SC + 8 * p + i)))
    pf = PF + 4 * (p % 2) if p < 8 else PF + 8
    for i in range(ne // 2):
        a("v_cvt_pk_bf16_f32 %s, %s, %s" % (v(pf + i), v(SC + 8 * p + 2 * i), v(SC + 8 * p + 2 * i + 1)))
    a("v_mfma_f32_16x16x32_bf16 %s, %s, %s, %s" % (v(LS, 4), v(ONE4, 4), v(pf, 4), "0" if p == 0 else v(LS, 4)))
    for dt in range(2):
        n = 2 * p + dt
        rem = min(NKB - 1, 17 - n)
        a("s_waitcnt lgkmcnt(%d)" % (2 * rem))
        cc = "0" if p == 0 else v(OA + 4 * dt, 4)
        a("v_mfma_f32_16x16x32_bf16 %s, %s, %s, %s" % (v(OA + 4 * dt, 4), v(VB + 4 * (n % NKB), 4), v(pf, 4), cc))
        if n + NKB < 18:
            vread(n + NKB)
    if p == 6:
        a("s_waitcnt vmcnt(0)")
        a("v_and_b32 %s, -8, %s" % (v(vT + 4), v(vGF)))
        a("v_mov_b32 %s, %s" % (v(vT + 5), v(vGF + 1)))
        a("v_cmp_ne_u64 vcc, %s, %s" % (sEP, v(vT + 4, 2)))
        a("s_cbranch_vccz Lgf_ok")
        poll(vGFA, vT + 4, "gf")
        a("buffer_load_dwordx2 %s, %s, %s, 0 offen sc1" % (v(vGF, 2), vGFA, WS))
        a("s_waitcnt vmcnt(0)")
        a.label("Lgf_ok")
        a("v_cmp_ne_u32 vcc, %s, %s" % (v(vGF), v(vFLG)))
        a("s_cmp_eq_u64 vcc, 0")
        a("s_cselect_b32 %s, %d, 0" % (sFAST, 0 if OPT["force_slow"] else 1))
stamp("att_done")
if OPT["stamps"]:
    a("v_mov_b32 v30, %s" % sXCC)
    a("v_mov_b32 v31, %s" % sFAST)
    a("s_mov_b64 exec, 1")
    a("buffer_store_dwordx2 v[30:31], %s, %s, %s offen offset:%d" % (vZ, WS, sTSOFF, 31 * 8))
    a("s_mov_b64 exec, -1")
a("v_rcp_f32 %s, %s" % (v(vT + 2), v(LS)))
a("v_cndmask_b32 %s, %s, %s, %s" % (v(vT), v(vT + 2), vZ, sFQ))
a("v_cndmask_b32 %s, %s, %s, %s" % (v(vT + 1), v(vT + 2), vZ, sFO))
for i in range(4):
    a("v_mul_f32 %s, %s, %s" % (v(OA + i), v(OA + i), v(vT)))
    a("v_mul_f32 %s, %s, %s" % (v(OA + 4 + i), v(OA + 4 + i), v(vT + 1)))
OP = 136
for i in range(4):
    a("v_cvt_pk_bf16_f32 %s, %s, %s" % (v(OP + i), v(OA + 2 * i), v(OA + 2 * i + 1)))
publish(["buffer_store_dwordx4 %s, %s, %s, %s offen{sc}" % (v(OP, 4), vOA, WS, sE)], sF, data_sc1=bool(OPT["ohsc"]))
if OPT["ohsc"]:
    a("buffer_load_dword v26, %s, %s, %s offen sc1" % (vOA, WS, sE))
stamp("o_pub")
stamp("rt_opub")
a("s_cmp_ge_u32 %s, 4" % sWAVE)
a("s_cbranch_scc1 Lhelper2")

if OPT["prio"]:
    a("s_setprio %d" % OPT["prio"])
a("s_cmp_ge_u32 %s, 14" % sJ)
a("s_cbranch_scc1 Lp3_idle")
AK, AS = 32, 48
OF = 64
WB = 128
vWk, vWs = "v160", "v161"
vEXW, vEXR, vHA, vHSA, vF2A = "v162", "v163", "v164", "v165", "v166"


def tr_base_128(dkeep, dsend, hmul, base_s, base_imm):
    a("v_lshrrev_b32 %s, 2, %s" % (v(vT), vR))
    a("v_lshrrev_b32 %s, 1, %s" % (v(vT + 1), v(vT)))
    a("v_xor_b32 %s, %s, %s" % (v(vT + 1), sKH, v(vT + 1)))
    a("v_lshl_add_u32 %s, %s, %d, %s" % (v(vT), vH, {4: 2, 8: 3}[hmul], v(vT)))
    a("v_lshlrev_b32 %s, 7, %s" % (v(vT), v(vT)))
    a("v_bfe_u32 %s, %s, 4, 1" % (v(vT + 2), vL))
    a("v_lshl_add_u32 %s, %s, 5, %s" % (v(vT), v(vT + 2), v(vT)))
    a("v_and_b32 %s, 3, %s" % (v(vT + 2), vL))
    a("v_lshl_add_u32 %s, %s, 3, %s" % (v(vT), v(vT + 2), v(vT)))
    a("v_add_u32 %s, %s, %s" % (v(vT), base_s, v(vT)))
    if base_imm:
        a("v_add_u32 %s, %d, %s" % (v(vT), base_imm, v(vT)))
    a("v_lshl_add_u32 %s, %s, 6, %s" % (dkeep, v(vT + 1), v(vT)))
    a("v_xor_b32 %s, 64, %s" % (dsend, dkeep))


def ex_addrs():
    a("v_add_u32 %s, %s, %s" % (vEXW, sHW4K, vL16))
    a("v_xor_b32 %s, 0x2000, %s" % (vEXR, vEXW))
    a("v_add_u32 %s, %d, %s" % (vEXW, L_SCR, vEXW))
    a("v_add_u32 %s, %d, %s" % (vEXR, L_SCR, vEXR))


for hm in (4, 8):
    for nt in range(2):
        assert lds_conflicts([(hm * (l >> 5) + ((l & 15) >> 2)) * 128 + ((nt ^ (((l & 15) >> 3) & 1)) * 64) + ((l >> 4) & 1) * 32 + (l & 3) * 8 for l in range(64)], "tr") == 0
a("s_mul_i32 %s, %s, %d" % (sT0, sKH, 224 * 128))
tr_base_128(vWk, vWs, 4, sT0, L_WO)
ex_addrs()
sum_s(sT0, [(sG, 1024), (sMH2, 512), (sMH, 256), (sKH, 64)], WS_F2)
a("v_bfe_u32 %s, %s, 3, 1" % (v(vT), vL))
a("v_lshlrev_b32 %s, 7, %s" % (v(vT), v(vT)))
a("v_and_b32 %s, 7, %s" % (v(vT + 1), vL))
a("v_lshl_add_u32 %s, %s, 3, %s" % (v(vT), v(vT + 1), v(vT)))
a("v_add_u32 %s, %s, %s" % (vF2A, sT0, v(vT)))
sum_s(sT4, [(sTILE, 32768), (sKH, 16384)], WS_O)
sum_s(sA, [(sTILE, 28 * 1024), (sNB, 2048), (sKH, 1024)], WS_H)
sum_s(sB, [(sTILE, 4096), (sNB, 512), (sKH, 256)], WS_HS)
sum_s(sC, [(sTILE, 128), (sNB, 16), (sKH, 8)], WS_F3)
a("v_bfe_u32 %s, %s, 4, 1" % (v(vT), vL))
a("v_mul_u32_u24 %s, %d, %s" % (v(vT), 14 * 1024, v(vT)))
a("v_lshl_add_u32 %s, %s, 8, %s" % (v(vT), vH, v(vT)))
a("v_lshl_add_u32 %s, %s, 4, %s" % (vHA, vR, v(vT)))
a("v_lshlrev_b32 %s, 3, %s" % (vHSA, vL31))
XF = 168
for i in range(8):
    a("v_lshlrev_b32 %s, 16, %s" % (v(XF + 2 * i), v(vXRES + i)))
    a("v_and_b32 %s, 0xffff0000, %s" % (v(XF + 2 * i + 1), v(vXRES + i)))
a("v_mov_b32 v167, 0x3f803f80")
a("s_barrier")
stamp("b9")


def p3_wread(s):
    head, ab = s >> 1, s & 1
    wb = WB + 8 * (s % 4)
    r0 = (28 * head - 4 * (head & 1) + 8 * ab) * 128
    for k, base in enumerate((vWk, vWs)):
        a("ds_read_b64_tr_b16 %s, %s offset:%d" % (v(wb + 4 * k, 2), base, r0))
        a("ds_read_b64_tr_b16 %s, %s offset:%d" % (v(wb + 4 * k + 2, 2), base, r0 + 16 * 128))


def p3_load(s):
    if s and s % 4 == 0:
        a("s_add_u32 %s, %s, 4096" % (sT4, sT4))
    a("buffer_load_dwordx4 %s, %s, %s, %s offen offset:%d sc1" % (v(OF + 4 * s, 4), vL16, WS, sT4, (s % 4) * 1024))


for s in range(3):
    p3_wread(s)
poll(vF2A, vT + 2, "f2")
stamp("f2ok")
stamp("rt_f2ok")
UP = OPT["up3"]
for s in range(UP):
    p3_load(s)
for s in range(16):
    a("s_waitcnt vmcnt(%d) lgkmcnt(%d)" % (min(UP - 1, 15 - s), min(8, 4 * (15 - s))))
    if s + 3 < 16:
        p3_wread(s + 3)
    wb = WB + 8 * (s % 4)
    a("v_mfma_f32_32x32x16_bf16 %s, %s, %s, %s" % (v(AS, 16), v(wb + 4, 4), v(OF + 4 * s, 4), "0" if s == 0 else v(AS, 16)))
    if s + UP < 16:
        p3_load(s + UP)
    if OPT["b9b"] and s + UP == 15:
        a("s_barrier")
    a("v_mfma_f32_32x32x16_bf16 %s, %s, %s, %s" % (v(AK, 16), v(wb, 4), v(OF + 4 * s, 4), "0" if s == 0 else v(AK, 16)))
stamp("p3_mfma")


def exchange():
    for i in range(4):
        a("ds_write_b128 %s, %s offset:%d" % (vEXW, v(AS + 4 * i, 4), 1024 * i))
    a("s_waitcnt lgkmcnt(0)")
    a("s_barrier")
    for i in range(4):
        a("ds_read_b128 %s, %s offset:%d" % (v(AS + 4 * i, 4), vEXR, 1024 * i))


def residual_add(out):
    for i in range(4):
        a("s_waitcnt lgkmcnt(%d)" % (3 - i))
        for k in range(2):
            r_ = 4 * i + 2 * k
            a("v_pk_add_f32 %s, %s, %s" % (v(AK + r_, 2), v(AK + r_, 2), v(AS + r_, 2)))
        for k in range(2):
            r_ = 4 * i + 2 * k
            a("v_cvt_pk_bf16_f32 %s, %s, %s" % (v(AS + r_), v(AK + r_), v(AK + r_ + 1)))
        for k in range(2):
            r_ = 4 * i + 2 * k
            a("v_lshlrev_b32 %s, 16, %s" % (v(AK + r_), v(AS + r_)))
            a("v_and_b32 %s, 0xffff0000, %s" % (v(AK + r_ + 1), v(AS + r_)))
        for k in range(2):
            r_ = 4 * i + 2 * k
            a("v_pk_add_f32 %s, %s, %s" % (v(AK + r_, 2), v(AK + r_, 2), v(XF + r_, 2)))
        for k in range(2):
            r_ = 4 * i + 2 * k
            a("v_cvt_pk_bf16_f32 %s, %s, %s" % (v(out + 2 * i + k), v(AK + r_), v(AK + r_ + 1)))


exchange()
residual_add(vXRES)
stamp("p3_res")
a("v_mov_b32 %s, 0" % v(AS))
a("v_mov_b32 %s, 0" % v(AS + 1))
st3 = ["buffer_store_dwordx4 %s, %s, %s, %s offen{sc}" % (v(vXRES, 4), vHA, WS, sA),
       "buffer_store_dwordx4 %s, %s, %s, %s offen offset:512{sc}" % (v(vXRES + 4, 4), vHA, WS, sA)]
for i in range(8):
    st3.append("v_dot2c_f32_bf16 %s, %s, v167" % (v(AS), v(vXRES + i)))
    st3.append("v_dot2c_f32_bf16 %s, %s, %s" % (v(AS + 1), v(vXRES + i), v(vXRES + i)))
st3 += ["v_mov_b32 %s, %s" % (v(AS + 2), v(AS)), "v_mov_b32 %s, %s" % (v(AS + 3), v(AS + 1)),
        "v_permlane32_swap_b32 %s, %s" % (v(AS), v(AS + 2)), "v_permlane32_swap_b32 %s, %s" % (v(AS + 1), v(AS + 3)),
        "v_pk_add_f32 %s, %s, %s" % (v(AS, 2), v(AS, 2), v(AS + 2, 2)),
        "buffer_store_dwordx2 %s, %s, %s, %s offen{sc}" % (v(AS, 2), vHSA, WS, sB)]
publish(st3, sC, data_sc1=bool(OPT["ohsc"]))
if OPT["ohsc"]:
    a("buffer_load_dword v26, %s, %s, %s offen sc1" % (vHA, WS, sA))
    a("buffer_load_dword v26, %s, %s, %s offen offset:512 sc1" % (vHA, WS, sA))
    a("buffer_load_dword v26, %s, %s, %s offen sc1" % (vHSA, WS, sB))
stamp("h_pub")
stamp("rt_hpub")
a("s_branch Lp3_done")
a.label("Lp3_idle")
a("s_barrier")
if OPT["b9b"]:
    a("s_barrier")
a("s_barrier")
a.label("Lp3_done")

HF = 32
A4 = 144
W4 = 200
SPR = 232
NM4, RS4 = [246, 248], [250, 252]
vW4a, vW4b, vW4c, vSPA = "v254", "v255", "v27", "v28"
a("v_lshrrev_b32 %s, 1, %s" % (v(vT), vQ4))
a("v_lshlrev_b32 %s, 4, %s" % (v(vT), v(vT)))
a("v_and_b32 %s, 1, %s" % (v(vT + 1), vQ4))
a("v_lshl_add_u32 %s, %s, 2, %s" % (v(vT), v(vT + 1), v(vT)))
a("v_lshrrev_b32 %s, 2, %s" % (v(vT + 1), vR))
a("v_add_u32 %s, %s, %s" % (v(vT), v(vT), v(vT + 1)))
a("v_mul_u32_u24 %s, 224, %s" % (v(vT), v(vT)))
a("v_and_b32 %s, 3, %s" % (v(vT + 1), vL))
a("v_lshl_add_u32 %s, %s, 3, %s" % (vW4a, v(vT + 1), v(vT)))
a("v_add_u32 %s, %d, %s" % (vW4b, 8 * 7168, vW4a))
a("v_add_u32 %s, %d, %s" % (vW4c, L_W1U, vW4a))
assert lds_conflicts([(16 * (l >> 5) + 4 * ((l >> 4) & 1) + ((l & 15) >> 2)) * 224 + (l & 3) * 8 for l in range(64)], "tr") == 0
sum_s(sT1, [(sTILE4, 128)], WS_F3)
a("v_min_u32 %s, 13, %s" % (v(vT), vR))
a("v_lshlrev_b32 %s, 3, %s" % (v(vT), v(vT)))
a("v_add_u32 %s, %s, %s" % (v(vT), sT1, v(vT)))
sum_s(sT4, [(sTILE4, 28 * 1024)], WS_H)
a("s_add_u32 %s, %s, %d" % (sE, sT4, 14 * 1024))
sum_s(sT3, [(sTILE4, 4096)], WS_HS)
a("v_mul_u32_u24 %s, %d, %s" % (vSPA, 7 * 256, vH))
a("v_lshl_add_u32 %s, %s, 3, %s" % (vSPA, vL31, vSPA))
sum_s(sA, [(sTILE4, 112 * 1024), (sJ, 7168)], WS_H1)
a("s_add_u32 %s, %s, 4096" % (sB, sA))
sum_s(sC, [(sTILE4, 128), (sJ, 8)], WS_F4)
a("s_barrier")
stamp("b11")
NW4 = 8
AHEAD = 7


def p4_wread(q):
    ks, nt = divmod(q, 7)
    if ks < 8:
        base, off = vW4a, ks * 7168
    elif ks < 12:
        base, off = vW4b, (ks - 8) * 7168
    else:
        base, off = vW4c, (ks - 12) * 7168
    wb = W4 + 4 * (q % NW4)
    a("ds_read_b64_tr_b16 %s, %s offset:%d" % (v(wb, 2), base, off + nt * 32))
    a("ds_read_b64_tr_b16 %s, %s offset:%d" % (v(wb + 2, 2), base, off + nt * 32 + 8 * 224))


def p4_load(ks, mt):
    if mt == 0 and ks and ks % 4 == 0:
        a("s_add_u32 %s, %s, 4096" % (sT4, sT4))
        a("s_add_u32 %s, %s, 4096" % (sE, sE))
    a("buffer_load_dwordx4 %s, %s, %s, %s offen offset:%d sc1" % (v(HF + 4 * (mt * 14 + ks), 4), vL16, WS, (sT4, sE)[mt], (ks % 4) * 1024))


for q in range(AHEAD):
    p4_wread(q)
poll(v(vT), vT + 2, "f3")
stamp("f3ok")
stamp("rt_f3ok")
UP = OPT["up4"]
for ks in range(UP):
    p4_load(ks, 0)
    p4_load(ks, 1)
    if ks == 1:
        for i in range(7):
            a("buffer_load_dwordx2 %s, %s, %s, %s offen offset:%d sc1" % (v(SPR + 2 * i, 2), vSPA, WS, sT3, 256 * i))
assert UP >= 3
for ks in range(14):
    if ks == 3:
        for i in range(1, 7):
            a("v_pk_add_f32 %s, %s, %s" % (v(SPR, 2), v(SPR, 2), v(SPR + 2 * i, 2)))
        xhalf_sum(v(SPR), v(SPR + 2))
        xhalf_sum(v(SPR + 1), v(SPR + 2))
        ln_finish(v(SPR), v(SPR + 1), v(NM4[0]), v(RS4[0]), v(SPR + 2))
        a("v_mul_f32 %s, %s, %s" % (v(NM4[0]), v(NM4[0]), v(RS4[0])))
        a("v_mov_b32 %s, %s" % (v(NM4[1]), v(NM4[0])))
        a("v_mov_b32 %s, %s" % (v(RS4[1]), v(RS4[0])))
        a("v_permlane16_swap_b32 %s, %s" % (v(NM4[0]), v(NM4[1])))
        a("v_permlane16_swap_b32 %s, %s" % (v(RS4[0]), v(RS4[1])))
        for r_ in NM4 + RS4:
            a("v_mov_b32 %s, %s" % (v(r_ + 1), v(r_)))
    if ks in (1, 7):
        stamp("p4_k%d" % ks)
    for nt in range(7):
        q = ks * 7 + nt
        if q == 7 * OPT["kb"] + 2:
            a("s_barrier")
        if q == 7 * OPT["kb"] + 9:
            a("s_barrier")
        lg = min(2 * (AHEAD - 1), 2 * (97 - q))
        if OPT["w2"] and nt in (0, 2, 4):
            lg = max(0, min(2 * (AHEAD - 2), 2 * (97 - q - 1)))
        if nt == 0:
            later = 2 * (min(13, ks + UP - 1) - ks) + (7 if ks <= 1 else 0)
            a("s_waitcnt vmcnt(%d) lgkmcnt(%d)" % (later, lg))
        elif not OPT["w2"] or nt in (2, 4, 6):
            a("s_waitcnt lgkmcnt(%d)" % lg)
        if q + AHEAD < 98:
            p4_wread(q + AHEAD)
        wb = W4 + 4 * (q % NW4)
        for mt in range(2):
            acc = v(A4 + 4 * (mt * 7 + nt), 4)
            a("v_mfma_f32_16x16x32_bf16 %s, %s, %s, %s" % (acc, v(wb, 4), v(HF + 4 * (mt * 14 + ks), 4), "0" if ks == 0 else acc))
        if nt < 2 and ks + UP < 14:
            p4_load(ks + UP, nt)
stamp("p4_mfma")
CS4 = 200
a("v_lshlrev_b32 %s, 4, %s" % (v(vT), vQ4))
a("v_add_u32 %s, %d, %s" % (v(vT), L_CS1, v(vT)))
for nt in range(7):
    a("ds_read_b128 %s, %s offset:%d" % (v(CS4 + 4 * nt, 4), v(vT), 64 * nt))
a("v_lshlrev_b32 %s, 9, %s" % (v(vT), vQ4))
a("v_lshl_add_u32 %s, %s, 4, %s" % (v(vT), vR, v(vT)))
a("v_lshrrev_b32 %s, 1, %s" % (v(vT + 1), vQ4))
a("v_lshlrev_b32 %s, 9, %s" % (v(vT + 1), v(vT + 1)))
a("v_lshl_add_u32 %s, %s, 4, %s" % (v(vT + 1), vR, v(vT + 1)))
a("v_and_b32 %s, 1, %s" % (v(vT + 3), vQ4))
a("v_lshl_add_u32 %s, %s, 3, %s" % (v(vT + 1), v(vT + 3), v(vT + 1)))
H1P = 32
TT = 64
st = ["s_waitcnt lgkmcnt(0)"]
for mt in range(2):
    for p in range(4):
        nts = (2 * p, 2 * p + 1) if p < 3 else (6,)
        for nt in nts:
            for c in range(2):
                st.append("v_pk_mul_f32 %s, %s, %s" % (v(TT + 4 * (nt & 1) + 2 * c, 2), v(CS4 + 4 * nt + 2 * c, 2), v(NM4[mt], 2)))
        for nt in nts:
            acc = A4 + 4 * (mt * 7 + nt)
            for c in range(2):
                st.append("v_pk_fma_f32 %s, %s, %s, %s" % (v(acc + 2 * c, 2), v(acc + 2 * c, 2), v(RS4[mt], 2), v(TT + 4 * (nt & 1) + 2 * c, 2)))
        for nt in nts:
            acc = A4 + 4 * (mt * 7 + nt)
            hp = H1P + 16 * mt + 2 * nt
            for c in range(2):
                st.append("v_cvt_pk_bf16_f32 %s, %s, %s" % (v(hp + c), v(acc + 2 * c), v(acc + 2 * c + 1)))
        for nt in nts:
            hp = H1P + 16 * mt + 2 * nt
            for c in range(2):
                st.append("v_pk_max_i16 %s, %s, %s" % (v(hp + c), v(hp + c), vZ))
        if p < 3:
            so, off = (sA, p * 2048 + mt * 256) if p < 2 else (sB, mt * 256)
            st.append("buffer_store_dwordx4 %s, %s, %s, %s offen offset:%d{sc}" % (v(H1P + 16 * mt + 4 * p, 4), v(vT), WS, so, off))
        else:
            st.append("buffer_store_dwordx2 %s, %s, %s, %s offen offset:%d{sc}" % (v(H1P + 16 * mt + 12, 2), v(vT + 1), WS, sB, 2048 + mt * 256))
publish(st, sC, data_sc1=bool(OPT["h1sc"]))
if OPT["st4"]:
    a("v_min_u32 %s, 55, %s" % (v(vT), vL))
    a("v_lshlrev_b32 %s, 7, %s" % (v(vT), v(vT)))
    a("buffer_load_dword v26, %s, %s, %s offen sc1" % (v(vT), WS, sA))
stamp("h1_pub")
stamp("rt_h1pub")
a("s_cmp_ge_u32 %s, 14" % sJ)
a("s_cbranch_scc1 Lend")

RF = 64
NRF = 16
WB5 = 128
AD5 = 208
a("s_mul_i32 %s, %s, %d" % (sT0, sKH, UNIT))
for pat, hm in enumerate((4, 8)):
    tr_base_128(v(AD5 + 6 * pat), v(AD5 + 6 * pat + 1), hm, sT0, 0)
    for b, off in ((1, 4 * UNIT), (2, L_WO)):
        for k in range(2):
            a("v_add_u32 %s, %d, %s" % (v(AD5 + 6 * pat + 2 * b + k), off, v(AD5 + 6 * pat + k)))
UMAP = {0: (2, 0), 1: (2, 2 * UNIT), 2: (0, 0), 3: (0, 2 * UNIT), 4: (1, 0), 5: (2, 0), 6: (2, 2 * UNIT), 7: (0, 0)}


def p5_wread(i):
    n, u = divmod(i, 7)
    b, off = UMAP[n]
    wb = WB5 + 8 * (i % 4)
    if u < 6:
        pat, r0, d2 = 0, 32 * (u >> 1) + 8 * (u & 1), 16
    else:
        pat, r0, d2 = 1, 96, 4
    for k in range(2):
        base = v(AD5 + 6 * pat + 2 * b + k)
        a("ds_read_b64_tr_b16 %s, %s offset:%d" % (v(wb + 4 * k, 2), base, off + r0 * 128))
        a("ds_read_b64_tr_b16 %s, %s offset:%d" % (v(wb + 4 * k + 2, 2), base, off + (r0 + d2) * 128))


ex_addrs()
for i in range(8):
    a("v_lshlrev_b32 %s, 16, %s" % (v(XF + 2 * i), v(vXRES + i)))
    a("v_and_b32 %s, 0xffff0000, %s" % (v(XF + 2 * i + 1), v(vXRES + i)))
sum_s(sT0, [(sTILE, 128), (sKH, 64)], WS_F4)
a("v_and_b32 %s, 7, %s" % (v(vT), vL))
a("v_lshlrev_b32 %s, 3, %s" % (v(vT), v(vT)))
a("v_add_u32 %s, %s, %s" % (v(vT), sT0, v(vT)))
sum_s(sT4, [(sTILE, 112 * 1024), (sKH, 56 * 1024)], WS_H1)
a("s_barrier")
stamp("b12")
for i in range(3):
    p5_wread(i)
poll(v(vT), vT + 2, "f4")
stamp("f4ok")
stamp("rt_f4ok")


def p5_load(i):
    n, u = divmod(i, 7)
    if u == 0:
        a("s_add_u32 %s, %s, %d" % (sT0, sNB, n))
        a("s_and_b32 %s, %s, 7" % (sT0, sT0))
        a("s_mul_i32 %s, %s, 7168" % (sT0, sT0))
        a("s_add_u32 %s, %s, %s" % (sT3, sT4, sT0))
    if u == 4:
        a("s_add_u32 %s, %s, 4096" % (sT3, sT3))
    a("buffer_load_dwordx4 %s, %s, %s, %s offen offset:%d sc1" % (v(RF + 4 * (i % NRF), 4), vL16, WS, sT3, (u % 4) * 1024))


UP = OPT["up5"]
assert UP < NRF
for i in range(UP):
    p5_load(i)
BARS = {14, 21, 35}
nread = 3
for i in range(56):
    if i in BARS:
        a("s_barrier")
        stamp("p5_b%d" % i)
    while nread < 56 and nread <= i + 2 and not any(i < b <= nread for b in BARS):
        p5_wread(nread)
        nread += 1
    lg = 4 * (nread - 1 - i)
    vm = min(UP - 1, 55 - i)
    a("s_waitcnt vmcnt(%d) lgkmcnt(%d)" % (vm, lg))
    if nread < 56 and nread <= i + 3 and not any(i < b <= nread for b in BARS):
        p5_wread(nread)
        nread += 1
    wb = WB5 + 8 * (i % 4)
    rf = v(RF + 4 * (i % NRF), 4)
    a("v_mfma_f32_32x32x16_bf16 %s, %s, %s, %s" % (v(AS, 16), v(wb + 4, 4), rf, "0" if i == 0 else v(AS, 16)))
    if i + UP < 56:
        p5_load(i + UP)
    a("v_mfma_f32_32x32x16_bf16 %s, %s, %s, %s" % (v(AK, 16), v(wb, 4), rf, "0" if i == 0 else v(AK, 16)))
stamp("p5_mfma")
exchange()
OUTP = 64
residual_add(OUTP)
for jj in range(4):
    a("buffer_store_dwordx2 %s, %s, %s, %s offen offset:%d" % (v(OUTP + 2 * jj, 2), vXOFF, OUT, sXO, 16 * jj))
stamp("end")
stamp("rt_end")
a("s_endpgm")

a.label("Lhelper2")
a("s_barrier")
bg("C")
if OPT["b9b"]:
    a("s_barrier")
bg("C2")
stamp("h_w1b")
if OPT["pt_h1"] == 1:
    sum_s(sT0, [(sG, 448 * 1024), (sJ, 28 * 1024), (sHW, 7168)], WS_H1)
    touch_lines(WS, sT0, 56, sc1=True)
C1 = 32
C1B = 40
cA, cB, cONE = "v68", "v69", "v70"
RS0 = 72
a("v_lshrrev_b32 %s, 1, %s" % (v(vT), vQ4))
a("v_lshlrev_b32 %s, 4, %s" % (v(vT), v(vT)))
a("v_and_b32 %s, 1, %s" % (v(vT + 1), vQ4))
a("v_lshl_add_u32 %s, %s, 2, %s" % (v(vT), v(vT + 1), v(vT)))
a("v_lshrrev_b32 %s, 2, %s" % (v(vT + 1), vR))
a("v_add_u32 %s, %s, %s" % (v(vT), v(vT), v(vT + 1)))
a("v_mul_u32_u24 %s, 224, %s" % (v(vT), v(vT)))
a("v_and_b32 %s, 3, %s" % (v(vT + 1), vL))
a("v_lshl_add_u32 %s, %s, 3, %s" % (cA, v(vT + 1), v(vT)))
a("s_mul_i32 %s, %s, 7168" % (sT0, sHW))
a("v_add_u32 %s, %s, %s" % (cA, sT0, cA))
a("v_add_u32 %s, %d, %s" % (cB, L_W1U, cA))
a("v_mov_b32 %s, 0x3f803f80" % cONE)
for nt in range(7):
    a("v_mov_b32 %s, 0" % v(C1 + nt))


def cs1_block(base, off):
    for nt in range(7):
        a("ds_read_b64_tr_b16 %s, %s offset:%d" % (v(C1B + 4 * nt, 2), base, off + nt * 32))
        a("ds_read_b64_tr_b16 %s, %s offset:%d" % (v(C1B + 4 * nt + 2, 2), base, off + nt * 32 + 8 * 224))
    a("s_waitcnt lgkmcnt(0)")
    for i in range(4):
        for nt in range(7):
            a("v_dot2c_f32_bf16 %s, %s, %s" % (v(C1 + nt), v(C1B + 4 * nt + i), cONE))


cs1_block(cA, 8 * 7168)
a("s_barrier")
a("s_waitcnt vmcnt(0)")
stamp("h_w1_landed")
cs1_block(cA, 0)
cs1_block(cA, 4 * 7168)
a("s_barrier")


def unit_index(dst, n_s, n_imm):
    if n_s:
        a("s_add_u32 %s, %s, %s" % (dst, sNB, n_s))
        if n_imm:
            a("s_add_u32 %s, %s, %d" % (dst, dst, n_imm))
    else:
        a("s_add_u32 %s, %s, %d" % (dst, sNB, n_imm))
    a("s_and_b32 %s, %s, 7" % (dst, dst))
    a("s_lshl_b32 %s, %s, 3" % (sT5, sMH))
    a("s_add_u32 %s, %s, %s" % (dst, dst, sT5))


def w2_rows(n, to_reg=None, lds_s=None, lds_imm=0):
    for i in range(n):
        if to_reg is None:
            dma(vWO, W2, sT3, lds_s, lds_imm + i * 1024)
        elif not OPT["nobg"]:
            a("buffer_load_dwordx4 %s, %s, %s, %s offen" % (v(to_reg + 4 * i, 4), vWO, W2, sT3))
        if i < n - 1:
            a("s_add_u32 %s, %s, %d" % (sT3, sT3, 8 * 896))


def stage(nfull, nhalf, reg):
    unit_index(sT0, sKH, nfull)
    a("s_mul_i32 %s, %s, %d" % (sT3, sT0, 112 * 896))
    w2_rows(14, to_reg=reg)
    unit_index(sT0, None, nhalf)
    sum_s(sT3, [(sT0, 112 * 896), (sKH, 7 * 8 * 896)])
    w2_rows(7, to_reg=reg + 56)


def dump(reg, n, addr, off):
    for i in range(n):
        a("ds_write_b128 %s, %s offset:%d" % (addr, v(reg + 4 * i, 4), off + 1024 * i))


lab = a.newlabel("Lnou")
a("s_cmp_ge_u32 %s, 2" % sHW)
a("s_cbranch_scc1 %s" % lab)
w1_block(12)
a("s_waitcnt vmcnt(0)")
cs1_block(cB, 0)
a.label(lab)
bg("D")
for nt in range(7):
    xhalf_sum(v(C1 + nt), v(vT))
    xrow_sum(v(C1 + nt), v(vT))
sum_s(sT0, [(sHW, 448)], L_CSP)
a("v_lshl_add_u32 %s, %s, 2, %s" % (v(vT), vR, sT0))
for nt in range(7):
    a("ds_write_b32 %s, %s offset:%d" % (v(vT), v(C1 + nt), 64 * nt))
a("s_waitcnt lgkmcnt(0)")
a("s_barrier")
lab = a.newlabel("Lnocs1")
a("s_cmp_lg_u32 %s, 4" % sWAVE)
a("s_cbranch_scc1 %s" % lab)
a("v_min_u32 %s, 55, %s" % (v(vT), vL))
a("v_lshlrev_b32 %s, 3, %s" % (v(vT), v(vT)))
a("v_add_u32 %s, %d, %s" % (v(vT + 1), L_CSP, v(vT)))
for k in range(4):
    a("ds_read_b64 %s, %s offset:%d" % (v(40 + 2 * k, 2), v(vT + 1), 448 * k))
a("s_waitcnt lgkmcnt(0)")
for c in range(2):
    a("v_add_f32 %s, %s, %s" % (v(40 + c), v(40 + c), v(42 + c)))
    a("v_add_f32 %s, %s, %s" % (v(44 + c), v(44 + c), v(46 + c)))
    a("v_add_f32 %s, %s, %s" % (v(40 + c), v(40 + c), v(44 + c)))
a("v_add_u32 %s, %d, %s" % (v(vT + 1), L_CS1, v(vT)))
a("ds_write_b64 %s, %s" % (v(vT + 1), v(40, 2)))
a("s_waitcnt lgkmcnt(0)")
a.label(lab)
a("s_barrier")
bg("D2")
a("s_cmp_ge_u32 %s, 14" % sJ)
a("s_cbranch_scc1 Lend")
unit_index(sT0, sKH, 0)
a("s_mul_i32 %s, %s, %d" % (sT3, sT0, 112 * 896))
a("s_mul_i32 %s, %s, %d" % (sT1, sHW, UNIT))
w2_rows(14, lds_s=sT1, lds_imm=L_WO)
stage(2, 4, RS0)
if OPT["r2early"]:
    stage(5, 7, RS0 + 84)
a("v_add_u32 v40, %s, %s" % (sT1, vL16))
a("v_add_u32 v41, %d, v40" % L_WO)
sum_s(sT1, [(sMH, UNIT), (sKH, 7168)])
a("v_add_u32 v42, %s, %s" % (sT1, vL16))
stamp("h_w2_issued")
NR = 0 if OPT["nobg"] else 21
a("s_waitcnt vmcnt(%d)" % (2 * NR if OPT["r2early"] else NR))
stamp("h_w2a_landed")
a("s_barrier")
a("s_waitcnt vmcnt(%d)" % (NR if OPT["r2early"] else 0))
dump(RS0, 14, "v40", 0)
dump(RS0 + 56, 7, "v42", 4 * UNIT)
if not OPT["r2early"]:
    stage(5, 7, RS0 + 84)
a("s_waitcnt lgkmcnt(0)")
stamp("h_w2b_landed")
a("s_barrier")
a("s_waitcnt vmcnt(0)")
dump(RS0 + 84, 14, "v41", 0)
a("s_barrier")
dump(RS0 + 84 + 56, 7, "v42", 0)
a("s_waitcnt lgkmcnt(0)")
a("s_barrier")
a("s_barrier")
a.label("Lend")
a("s_endpgm")
a.raw("Lcode_end:")
a.raw('.section .rodata,"a"')
a.raw(".p2align 6")
a.raw(".amdhsa_kernel %s" % KNAME)
a.raw("  .amdhsa_next_free_vgpr 256")
a.raw("  .amdhsa_next_free_sgpr 102")
a.raw("  .amdhsa_accum_offset 256")
a.raw("  .amdhsa_group_segment_fixed_size 0")
a.raw("  .amdhsa_kernarg_size 72")
a.raw("  .amdhsa_user_sgpr_count 2")
a.raw("  .amdhsa_user_sgpr_kernarg_segment_ptr 1")
a.raw("  .amdhsa_system_sgpr_workgroup_id_x 1")
a.raw(".end_amdhsa_kernel")
open(sys.argv[1], "w").write(a.text())
json.dump(STAMPS, open(sys.argv[1] + ".stamps.json", "w"))
print("instructions:", a.count)
```

```python
import sys, math, struct, re, json
from asmlib import Asm, lds_conflicts

KNAME = "sequential_preLN__sliding_block__dense_activation_relu__prompt_kernel"
OPT = dict(stamps="", force_slow=0, nobg=0, t_w1=1, t_w2=1, pt_h1=0, up3=8, up4=8, up5=8, dry=0, psleep=0, gw=0, rotj=0, init2=1, pt_c=3, h1sc=1, bgA=1, ic=2, fc=4, P3="", A="wo", B="w18+tw1", C="w10+w14", C2="", D="tw2", b9b=0, warm=0, kb=5, r2early=1, D2="", st4=0, ohsc=0, svc="", bm=0, prio=0, w2=1, diag=0, nt=0, sent=1, dbg=0, tlb=0)
for a_ in sys.argv[2:]:
    k_, v_ = a_.split("=")
    OPT[k_] = v_ if isinstance(OPT[k_], str) else int(v_)


def f32(x):
    return "0x%08x" % struct.unpack("<I", struct.pack("<f", x))[0]


QT = 336 * 256
WS_QKV = 0
WS_O = 6 << 20
WS_H = 8 << 20
WS_H1 = 10 << 20
WS_F1 = 17 << 20
WS_F2 = WS_F1 + 0x10000
WS_F3 = WS_F1 + 0x20000
WS_F4 = WS_F1 + 0x30000
WS_HS = WS_F1 + 0x40000
WS_ST = WS_F1 + 0x80000
WS_TS = 18 << 20
WS_SIZE = 32 << 20

L_XR = 86016
L_KV = 0
L_Q = 12 * 4096
L_WO = 86016
L_W1U = 144384
L_SCR = 144384
L_CSP = 158720
L_MISC = 160768
L_CS = L_MISC
L_ST = L_MISC + 384
L_EP = L_ST + 1024
L_CS1 = L_EP + 64
LDS_BYTES = 163840
UNIT = 14336

X, WQKV, WO, W1, W2, OUT, DBG, WS = ["s[%d:%d]" % (4 + 4 * i, 7 + 4 * i) for i in range(8)]
sG, sJ, sWAVE, sR0, sXCC, sFAST = "s36", "s37", "s38", "s39", "s40", "s41"
sEP = "s[42:43]"
sEPL, sEPH = "s42", "s43"
sROT, sHW, sMH2, sNB, sKH, sMH = "s44", "s45", "s46", "s47", "s48", "s49"
sHI = "s[50:51]"
sLT48 = "s[52:53]"
sQ3 = "s[54:55]"
sHW1K, sHW4K = "s56", "s57"
sCNT = "s58"
sSLOT = "s59"
sT0, sT1, sT2, sT3, sT4, sT5 = "s60", "s61", "s62", "s63", "s64", "s65"
sTS = "s[66:67]"
sTSOFF = "s68"
sXO = "s69"
sCX, sCW = "s70", "s71"
sTILE, sTILE4 = "s72", "s73"
sA, sB, sC, sD, sE, sF = "s74", "s75", "s76", "s77", "s78", "s79"

vL, vL31, vH, vR, vQ4, vL16, vTMP = "v1", "v2", "v3", "v4", "v5", "v6", "v7"
vXRES = 8
vFLG = 16
vT = 18
vZ = "v24"
vXOFF = "v25"
HP = 240


def v(i, n=1):
    return "v%d" % i if n == 1 else "v[%d:%d]" % (i, i + n - 1)


a = Asm()
STAMPS = {}


DBGW = {"t0": 2, "rt_start": 3, "m_b0": 4, "m_p1end": 5, "b8": 6, "o_pub": 7, "f2ok": 8, "h_pub": 9, "f3ok": 10, "h1_pub": 11, "f4ok": 12, "end": 13, "rt_end": 14}


def stamp(name):
    if OPT["dbg"] and name in DBGW:
        lab = a.newlabel("Ldbg")
        a("s_lshl_b32 s93, s2, 3")
        a("s_add_u32 s93, s93, %s" % sWAVE)
        a("s_cmp_lg_u32 s93, %d" % (OPT["dbg"] * 8))
        a("s_cbranch_scc1 %s" % lab)
        a(("s_memrealtime %s" if name.startswith("rt_") else "s_memtime %s") % sTS)
        a("s_waitcnt lgkmcnt(0)")
        a("v_mov_b32 v30, s66")
        a("v_mov_b32 v29, 0")
        a("s_mov_b64 exec, 1")
        a("buffer_store_dword v30, v29, %s, 0 offen offset:%d" % (DBG, DBGW[name] * 4))
        a("s_mov_b64 exec, -1")
        a.label(lab)
        return
    if not OPT["stamps"] or not (name == "t0" or re.fullmatch(OPT["stamps"], name)):
        return
    idx = STAMPS.setdefault(name, len(STAMPS))
    assert idx < 30
    a(("s_memrealtime %s" if name.startswith("rt_") else "s_memtime %s") % sTS)
    a("s_waitcnt lgkmcnt(0)")
    a("v_mov_b32 v30, s66")
    a("v_mov_b32 v31, s67")
    a("v_mov_b32 v29, 0")
    a("s_mov_b64 exec, 1")
    a("buffer_store_dwordx2 v[30:31], v29, %s, %s offen offset:%d" % (WS, sTSOFF, idx * 8))
    a("s_mov_b64 exec, -1")


def dma(voff, srd, soff, lds_s, lds_imm, inst=0, sc1=False):
    if OPT["nobg"] and srd in (WO, W1, W2):
        return
    m = lds_imm - inst
    if lds_s is None:
        a("s_mov_b32 m0, %d" % m)
    else:
        a("s_add_u32 m0, %s, %d" % (lds_s, m))
    nt = (srd == X and OPT["nt"] & 1) or (srd == WQKV and OPT["nt"] & 2) or (srd in (WO, W1) and OPT["nt"] & 16)
    a("buffer_load_dwordx4 %s, %s, %s offen%s%s%s lds" % (voff, srd, soff, (" offset:%d" % inst) if inst else "", " sc1" if sc1 else "", " nt" if nt else ""))


def sum_s(dst, terms, const=0):
    first = True
    for sreg, mult in terms:
        tgt = dst if first else sT5
        if mult == 1:
            if first:
                a("s_mov_b32 %s, %s" % (dst, sreg))
            else:
                a("s_add_u32 %s, %s, %s" % (dst, dst, sreg))
            first = False
            continue
        if mult & (mult - 1) == 0:
            a("s_lshl_b32 %s, %s, %d" % (tgt, sreg, mult.bit_length() - 1))
        else:
            a("s_mul_i32 %s, %s, %d" % (tgt, sreg, mult))
        if not first:
            a("s_add_u32 %s, %s, %s" % (dst, dst, sT5))
        first = False
    if const:
        a("s_add_u32 %s, %s, %d" % (dst, dst, const))


def poll(vaddr, vd, name):
    lp, dn = a.newlabel("Lpoll_" + name), a.newlabel("Lpolld_" + name)
    a("s_mov_b32 %s, 0x20000" % sCNT)
    a.label(lp)
    a("buffer_load_dwordx2 %s, %s, %s, 0 offen sc1" % (v(vd, 2), vaddr, WS))
    a("s_sub_u32 %s, %s, 1" % (sCNT, sCNT))
    a("s_waitcnt vmcnt(0)")
    a("v_and_b32 %s, -8, %s" % (v(vd), v(vd)))
    a("v_cmp_ne_u64 vcc, %s, %s" % (sEP, v(vd, 2)))
    a("s_cmp_eq_u32 %s, 0" % sCNT)
    a("s_cbranch_scc1 %s" % dn)
    if OPT["psleep"]:
        a("s_cbranch_vccz %s" % dn)
        a("s_sleep %d" % OPT["psleep"])
        a("s_branch %s" % lp)
    else:
        a("s_cbranch_vccnz %s" % lp)
    a.label(dn)


def flag_store(soff, sc):
    a("s_mov_b64 exec, 1")
    a("buffer_store_dwordx2 %s, %s, %s, %s offen%s" % (v(vFLG, 2), vZ, WS, soff, sc))
    a("s_mov_b64 exec, -1")


def publish(stores, flag_soff, data_sc1=False):
    if data_sc1:
        for s_ in stores:
            a(s_.format(sc=" sc1"))
        stores = []

    def emit(sc):
        for s_ in stores:
            a(s_.format(sc=sc))
        a("s_waitcnt vmcnt(0)")
        flag_store(flag_soff, sc)
    ls, le = a.newlabel("Lslow"), a.newlabel("Lpub")
    a("s_cmp_eq_u32 %s, 0" % sFAST)
    a("s_cbranch_scc1 %s" % ls)
    emit("")
    a("s_branch %s" % le)
    a.label(ls)
    emit(" sc1")
    a.label(le)


def bf16r(dst, src):
    a("v_cvt_pk_bf16_f32 %s, %s, %s" % (dst, src, src))
    a("v_and_b32 %s, 0xffff0000, %s" % (dst, dst))


def ln_finish(sx, sxx, negmean, rstd, t0):
    a("v_mul_f32 %s, %s, %s" % (sx, f32(1.0 / 448), sx))
    a("v_mul_f32 %s, %s, %s" % (sxx, f32(1.0 / 448), sxx))
    a("v_fma_f32 %s, -%s, %s, %s" % (sxx, sx, sx, sxx))
    a("v_max_f32 %s, 0, %s" % (sxx, sxx))
    bf16r(sxx, sxx)
    a("v_add_f32 %s, %s, %s" % (sxx, f32(1e-5), sxx))
    bf16r(sxx, sxx)
    a("v_sqrt_f32 %s, %s" % (sxx, sxx))
    bf16r(sxx, sxx)
    a("v_rcp_f32 %s, %s" % (rstd, sxx))
    bf16r(t0, sx)
    a("v_sub_f32 %s, 0, %s" % (negmean, t0))


def xhalf_sum(x, t):
    a("v_mov_b32 %s, %s" % (t, x))
    a("v_permlane32_swap_b32 %s, %s" % (x, t))
    a("v_add_f32 %s, %s, %s" % (x, x, t))


def xrow_sum(x, t):
    a("v_mov_b32 %s, %s" % (t, x))
    a("v_permlane16_swap_b32 %s, %s" % (x, t))
    a("v_add_f32 %s, %s, %s" % (x, x, t))


def get_epoch_spin(name):
    lp, dn = "Lep_%s" % name, "Lepd_%s" % name
    a("s_mov_b32 %s, 0x20000" % sCNT)
    a.label(lp)
    a("s_waitcnt vmcnt(0)")
    a("v_readfirstlane_b32 %s, %s" % (sEPL, v(vFLG)))
    a("v_readfirstlane_b32 %s, %s" % (sEPH, v(vFLG + 1)))
    a("s_cmp_lg_u32 %s, 0" % sEPL)
    a("s_cbranch_scc1 %s" % dn)
    a("buffer_load_dwordx2 %s, %s, %s, 0 offen sc1" % (v(vFLG, 2), vZ, DBG))
    a("s_sub_u32 %s, %s, 1" % (sCNT, sCNT))
    a("s_cmp_lg_u32 %s, 0" % sCNT)
    a("s_cbranch_scc1 %s" % lp)
    a.label(dn)


hdr = open("sequential_preLN__sliding_block__dense_activation_relu__prompt.s.ref").read().split("\n")
for ln in hdr:
    if ln.startswith("; @launch"):
        a.raw("; @launch grid=(256,1,1) block=(512,1,1) lds=%d" % LDS_BYTES)
        break
    a.raw(ln)
a.raw('.amdgcn_target "amdgcn-amd-amdhsa--gfx950"')
a.raw(".text")
a.raw(".globl %s" % KNAME)
a.raw(".p2align 8")
a.raw(".type %s,@function" % KNAME)
a.raw("%s:" % KNAME)

if OPT["diag"]:
    a("s_memtime s[96:97]")
a("s_load_dwordx16 s[72:87], s[0:1], 0")
a("s_load_dwordx2 s[88:89], s[0:1], 64")
a("s_getpc_b64 s[90:91]")
a.raw("Lpc:")
a("v_and_b32 %s, 63, v0" % vL)
a("v_lshrrev_b32 %s, 6, v0" % vTMP)
a("s_lshr_b32 %s, s2, 3" % sSLOT)
a("v_readfirstlane_b32 %s, %s" % (sWAVE, vTMP))
a("v_lshlrev_b32 %s, 7, %s" % (v(vT), vL))
a("s_cmp_ge_u32 s2, 256")
a("s_cbranch_scc1 Lend")
a("s_add_u32 %s, %s, %s" % (sT0, sSLOT, sWAVE))
a("s_and_b32 %s, %s, 7" % (sT0, sT0))
a("s_lshl_b32 %s, %s, 13" % (sT0, sT0))
a("v_add_u32 %s, %s, %s" % (v(vT), sT0, v(vT)))
a("v_min_u32 %s, Lcode_end-Lpc-4, %s" % (v(vT), v(vT)))
a("v_mov_b32 %s, s91" % v(vT + 1))
a("v_add_co_u32 %s, vcc, s90, %s" % (v(vT), v(vT)))
a("v_addc_co_u32 %s, vcc, 0, %s, vcc" % (v(vT + 1), v(vT + 1)))
a("s_cmp_ge_u32 %s, 2" % sWAVE)
a("s_cbranch_scc1 Lnocp")
a("global_load_dword v26, %s, off" % v(vT, 2))
a.label("Lnocp")
a("v_and_b32 %s, 31, v0" % vL31)
a("v_bfe_u32 %s, v0, 5, 1" % vH)
a("v_and_b32 %s, 15, v0" % vR)
a("v_bfe_u32 %s, v0, 4, 2" % vQ4)
a("v_lshlrev_b32 %s, 4, %s" % (vL16, vL))
a("v_mov_b32 %s, 0" % vZ)
a("s_and_b32 %s, s2, 7" % sT0)
a("s_lshr_b32 %s, %s, 4" % (sT2, sSLOT))
a("s_lshl_b32 %s, %s, 1" % (sG, sT0))
a("s_add_u32 %s, %s, %s" % (sG, sG, sT2))
a("s_and_b32 %s, %s, 15" % (sJ, sSLOT))
a("s_lshl_b32 %s, %s, 7" % (sR0, sG))
a("s_and_b32 %s, %s, 3" % (sHW, sWAVE))
a("s_lshl_b32 %s, %s, 10" % (sHW1K, sHW))
a("s_lshl_b32 %s, %s, 12" % (sHW4K, sHW))
if OPT["rotj"]:
    a("s_mul_i32 %s, %s, 3" % (sT3, sT2))
    a("s_add_u32 %s, %s, %s" % (sROT, sJ, sT3))
    for _ in range(2):
        a("s_sub_u32 %s, %s, 7" % (sT3, sROT))
        a("s_cmp_ge_u32 %s, 7" % sROT)
        a("s_cselect_b32 %s, %s, %s" % (sROT, sT3, sROT))
else:
    a("s_lshl_b32 %s, %s, 2" % (sROT, sT2))
vX = [32, 33, 34, 35]
vW = [36, 37, 38]
a("v_lshrrev_b32 %s, 3, %s" % (v(vT), vL))
a("s_lshl_b32 %s, %s, 5" % (sT0, sHW))
a("s_add_u32 %s, %s, %s" % (sT0, sT0, sR0))
a("v_add_u32 %s, %s, %s" % (v(vT), sT0, v(vT)))
a("v_mul_u32_u24 %s, 896, %s" % (v(vT), v(vT)))
a("v_and_b32 %s, 7, %s" % (v(vT + 1), vL))
a("v_xor_b32 %s, %s, %s" % (v(vT + 1), v(vT + 1), vQ4))
a("v_xor_b32 %s, 4, %s" % (v(vT + 2), v(vT + 1)))
for ii in range(4):
    a("v_lshl_add_u32 %s, %s, 4, %s" % (v(vX[ii]), v(vT + 1 + (ii & 1)), v(vT)))
    if ii:
        a("v_add_u32 %s, %d, %s" % (v(vX[ii]), ii * 8 * 896, v(vX[ii])))
a("s_mul_i32 %s, %s, %d" % (sT0, sHW, 16 * 2688))
a("s_mul_i32 %s, %s, 192" % (sT1, sJ))
a("s_add_u32 %s, %s, %s" % (sT0, sT0, sT1))
M12 = (1 << 16) // 12 + 1
for i in range(192):
    assert (i * M12) >> 16 == i // 12
for k in range(3):
    a("v_add_u32 %s, %d, %s" % (v(vT), 64 * k, vL))
    a("v_mul_u32_u24 %s, %d, %s" % (v(vT + 1), M12, v(vT)))
    a("v_lshrrev_b32 %s, 16, %s" % (v(vT + 1), v(vT + 1)))
    a("v_mul_u32_u24 %s, %d, %s" % (v(vT + 1), 2688 - 192, v(vT + 1)))
    a("v_lshl_add_u32 %s, %s, 4, %s" % (v(vW[k]), v(vT), v(vT + 1)))
    a("v_add_u32 %s, %s, %s" % (v(vW[k]), sT0, v(vW[k])))
if OPT["warm"]:
    a("s_mul_i32 %s, %s, 14" % (sT0, sT2))
    a("s_add_u32 %s, %s, %s" % (sT0, sT0, sJ))
    a("s_lshl_b32 %s, %s, 3" % (sT0, sT0))
    a("s_add_u32 %s, %s, %s" % (sT0, sT0, sWAVE))
    if OPT["warm"] in (1, 4):
        a("v_min_u32 v39, 41, %s" % vL)
        a("v_mul_u32_u24 v39, 224, v39")
        a("v_add_u32 v39, %s, v39" % sT0)
        a("v_lshlrev_b32 v39, 7, v39")
    else:
        a("s_mul_i32 %s, %s, 42" % (sT0, sT0))
        a("v_min_u32 v39, 41, %s" % vL)
        a("v_add_u32 v39, %s, v39" % sT0)
        a("v_lshlrev_b32 v39, 7, v39")
    sum_s(sT0, [(sJ, 8), (sWAVE, 1)])
    sum_s(sT1, [(sT0, 1024), (sR0, 896)])
    a("v_and_b32 v40, 7, %s" % vL)
    a("v_lshlrev_b32 v40, 7, v40")
    a("v_add_u32 v40, %s, v40" % sT1)
    a("s_mov_b32 %s, 0" % sROT)
a("s_mov_b32 %s, %s" % (sCX, sROT))
a("s_mov_b32 %s, %s" % (sCW, sROT))
a("s_mul_i32 s92, %s, 3072" % sHW)
sizes = [1835008, 1204224, 401408, 1605632, 1605632, 1835008, 256, WS_SIZE]
srcs = [72, 74, 76, 80, 82, 84, 86, 88]
for i in range(8):
    a("s_mov_b32 s%d, %d" % (4 + 4 * i + 2, sizes[i]))
    a("s_mov_b32 s%d, 0x00020000" % (4 + 4 * i + 3))
a("s_waitcnt lgkmcnt(0)")
for i in range(8):
    a("s_mov_b64 s[%d:%d], s[%d:%d]" % (4 + 4 * i, 5 + 4 * i, srcs[i], srcs[i] + 1))
a("s_cmp_ge_u32 %s, 14" % sJ)
a("s_cbranch_scc1 Lservice")
if OPT["warm"]:
    if OPT["warm"] >= 3:
        a("buffer_load_dword v26, v40, %s, 0 offen" % X)
    a("buffer_load_dword v26, v39, %s, 0 offen" % WQKV)
a("s_cmp_lt_u32 %s, 4" % sWAVE)
a("s_cbranch_scc1 Lmfma")


def common_setup():
    a("s_lshr_b32 %s, %s, 1" % (sKH, sHW))
    a("s_and_b32 %s, %s, 1" % (sMH, sHW))
    a("s_cmp_ge_u32 %s, 7" % sJ)
    a("s_cselect_b32 %s, 1, 0" % sMH2)
    a("s_mul_i32 %s, %s, 7" % (sT3, sMH2))
    a("s_sub_u32 %s, %s, %s" % (sNB, sJ, sT3))
    a("s_min_u32 %s, %s, 6" % (sNB, sNB))
    a("s_getreg_b32 %s, hwreg(HW_REG_XCC_ID)" % sXCC)
    a("s_and_b32 %s, %s, 7" % (sXCC, sXCC))
    a("s_mov_b32 s50, 0")
    a("s_mov_b32 s51, -1")
    a("s_mov_b32 s52, -1")
    a("s_mov_b32 s53, 0xffff")
    a("s_mov_b32 s54, 0")
    a("s_mov_b32 s55, 0xffff0000")
    a("s_mov_b32 %s, 0" % sFAST)
    a("s_mov_b32 %s, 0" % sEPL)
    a("s_mov_b32 %s, 0" % sEPH)
    if OPT["stamps"]:
        sum_s(sTSOFF, [("s2", 2048), (sWAVE, 256)], WS_TS)
    sum_s(sTILE, [(sG, 4), (sMH2, 2), (sMH, 1)])
    sum_s(sXO, [(sTILE, 32 * 896), (sNB, 128), (sKH, 64)])
    sum_s(sTILE4, [(sG, 4), (sHW, 1)])
    a("v_mul_u32_u24 %s, 896, %s" % (vXOFF, vL31))
    a("v_lshl_add_u32 %s, %s, 3, %s" % (vXOFF, vH, vXOFF))
    a("v_lshlrev_b32 %s, 7, %s" % (v(HP + 8), vL))
    a("v_lshrrev_b32 %s, 3, %s" % (v(vT), vL))
    a("v_mul_u32_u24 %s, 896, %s" % (v(vT), v(vT)))
    a("v_bfe_u32 %s, %s, 4, 1" % (v(vT + 1), vL))
    a("v_lshlrev_b32 %s, 2, %s" % (v(vT + 1), v(vT + 1)))
    a("v_and_b32 %s, 7, %s" % (v(vT + 2), vL))
    a("v_xor_b32 %s, %s, %s" % (v(vT + 1), v(vT + 1), v(vT + 2)))
    a("v_lshl_add_u32 %s, %s, 4, %s" % (v(HP), v(vT + 1), v(vT)))
    a("s_lshl_b32 %s, %s, 7" % (sT0, sNB))
    a("v_add_u32 %s, %s, %s" % (v(HP), sT0, v(HP)))
    a("s_mul_i32 %s, %s, 224" % (sT0, sJ))
    for k in range(7):
        a("v_add_u32 %s, %d, %s" % (v(vT), 64 * k, vL))
        a("v_mul_u32_u24 %s, %d, %s" % (v(vT + 1), (1 << 16) // 14 + 1, v(vT)))
        a("v_lshrrev_b32 %s, 16, %s" % (v(vT + 1), v(vT + 1)))
        a("v_mul_u32_u24 %s, %d, %s" % (v(vT + 1), 3584 - 224, v(vT + 1)))
        a("v_lshl_add_u32 %s, %s, 4, %s" % (v(HP + 1 + k), v(vT), v(vT + 1)))
        a("v_add_u32 %s, %s, %s" % (v(HP + 1 + k), sT0, v(HP + 1 + k)))


for i in range(448):
    assert (i * ((1 << 16) // 14 + 1)) >> 16 == i // 14
vWO = v(HP)
vW1 = [HP + 1 + k for k in range(7)]
vTCH = v(HP + 8)


def tr_base_192(dst, t0):
    a("v_lshrrev_b32 %s, 2, %s" % (t0, vR))
    a("v_lshl_add_u32 %s, %s, 3, %s" % (t0, vH, t0))
    a("v_mul_u32_u24 %s, 192, %s" % (dst, t0))
    a("v_bfe_u32 %s, %s, 4, 1" % (t0, vL))
    a("v_lshl_add_u32 %s, %s, 5, %s" % (dst, t0, dst))
    a("v_and_b32 %s, 3, %s" % (t0, vL))
    a("v_lshl_add_u32 %s, %s, 3, %s" % (dst, t0, dst))


assert lds_conflicts([(8 * (l >> 5) + ((l & 15) >> 2)) * 192 + ((l >> 4) & 1) * 32 + (l & 3) * 8 for l in range(64)], "tr") == 0


def w1_block(base):
    a("s_add_u32 %s, %s, %d" % (sT0, sHW, base))
    a("s_mul_i32 %s, %s, %d" % (sT1, sT0, 32 * 3584))
    a("s_mul_i32 %s, %s, 7168" % (sT2, sHW))
    ldsb = base * 7168 if base < 12 else L_W1U + (base - 12) * 7168
    for k in range(7):
        dma(v(vW1[k]), W1, sT1, sT2, ldsb + k * 1024)


def touch_lines(srd, s_base, n, sc1=False):
    cnt = 0
    done = 0
    while done < n:
        k = min(64, n - done)
        if k < 64:
            a("v_min_u32 %s, %d, %s" % (v(vT), (k - 1) * 128, vTCH))
            vo = v(vT)
        else:
            vo = vTCH
        nt = (srd == WS and OPT["nt"] & 8) or (srd != WS and OPT["nt"] & 4)
        a("buffer_load_dword v26, %s, %s, %s offen%s%s" % (vo, srd, s_base, " sc1" if sc1 else "", " nt" if nt else ""))
        cnt += 1
        done += k
        if done < n:
            a("s_add_u32 %s, %s, %d" % (s_base, s_base, 64 * 128))
    return cnt


def touch_range(srd, base, total):
    if OPT["nobg"]:
        return 0
    per = total // 128 // 128
    assert per * 128 * 128 == total, (total, per)
    sum_s(sT0, [(sSLOT, 4 * per * 128), (sHW, per * 128)], base)
    return touch_lines(srd, sT0, per)


def wo_dma():
    a("s_mul_i32 %s, %s, %d" % (sT0, sHW, 8 * 896))
    for k in range(15):
        if k == 14:
            a("s_mov_b32 %s, %d" % (sT0, 56 * 8 * 896))
            dma(vWO, WO, sT0, None, L_WO + 56 * 1024)
        else:
            dma(vWO, WO, sT0, sHW1K, L_WO + k * 4096)
            a("s_add_u32 %s, %s, %d" % (sT0, sT0, 32 * 896))


def bg(slot):
    n = 0
    for it in [x for x in OPT[slot].split("+") if x]:
        if it == "wo":
            wo_dma(); n += 15
        elif it == "w18":
            w1_block(8); n += 7
        elif it == "w10":
            w1_block(0); n += 7
        elif it == "w14":
            w1_block(4); n += 7
        elif it == "tw1":
            n += touch_range(W1, 0, 256 * 3584)
        elif it == "tw1u":
            n += touch_range(W1, 384 * 3584, 64 * 3584)
        elif it == "tw1a":
            n += touch_range(W1, 0, 1605632)
        elif it == "two":
            n += touch_range(WO, 0, 393216)
        elif it == "tw2":
            n += touch_range(W2, 0, 1605632)
        elif it == "tw2a":
            n += touch_range(W2, 0, 802816)
        elif it == "tw2b":
            n += touch_range(W2, 802816, 802816)
        elif it == "tw2r":
            n += touch_range(W2, 393216, 1605632 - 393216 - 0 * 16384) if False else touch_range(W2, 393216, 1212416)
        elif it == "w2a":
            pass
        else:
            raise ValueError(it)
    return n


def vpad_prefill():
    a("v_mov_b32 %s, 0x3f80" % v(vT + 2))
    a("v_mov_b32 %s, 0" % v(vT + 3))
    a("s_mul_i32 %s, %s, %d" % (sT0, sHW, 3 * 4096))
    a("v_lshlrev_b32 %s, 3, %s" % (v(vT), vL31))
    a("v_lshl_add_u32 %s, %s, 12, %s" % (v(vT), vH, v(vT)))
    a("v_add_u32 %s, %s, %s" % (v(vT), sT0, v(vT)))
    a("ds_write_b64 %s, %s offset:%d" % (v(vT), v(vT + 2, 2), L_KV + 2048 + 1792))
    a("ds_write_b64 %s, %s offset:%d" % (v(vT), v(vT + 2, 2), L_KV + 4096 + 2048 + 1792))


sFA, sFB, sFC, sFD = "s84", "s85", "s86", "s87"
vIF = 236


def fetch_setup():
    a("v_lshrrev_b32 %s, 3, %s" % (v(vT), vL))
    a("v_min_u32 %s, 2, %s" % (v(vT), v(vT)))
    a("v_bfe_u32 %s, %s, 1, 2" % (v(vT + 1), vL))
    a("v_min_u32 %s, 2, %s" % (v(vT + 1), v(vT + 1)))
    a("v_cmp_gt_u32 vcc, 2, %s" % v(vT))
    a("v_max_u32 %s, 1, %s" % (v(vT + 2), v(vT + 1)))
    a("v_cndmask_b32 %s, %s, %s, vcc" % (v(vT + 1), v(vT + 1), v(vT + 2)))
    a("v_mul_u32_u24 %s, 448, %s" % (v(vT + 1), v(vT + 1)))
    a("v_and_b32 %s, 1, %s" % (v(vT + 2), vL))
    a("v_mul_u32_u24 %s, 31, %s" % (v(vT + 2), v(vT + 2)))
    a("s_mul_i32 %s, %s, 7" % (sT0, sJ))
    a("s_lshr_b32 %s, %s, 1" % (sE, sT0))
    a("s_lshl_b32 %s, %s, 3" % (sT0, sE))
    a("v_add3_u32 %s, %s, %s, %s" % (v(vT + 1), v(vT + 1), v(vT + 2), sT0))
    M96 = (1 << 18) // 96 + 1
    for i in range(1348):
        assert (i * M96) >> 18 == i // 96
    a("v_mul_u32_u24 %s, %d, %s" % (v(vT + 1), M96, v(vT + 1)))
    a("v_lshrrev_b32 %s, 18, %s" % (v(vT + 1), v(vT + 1)))
    a("v_min_u32 %s, 13, %s" % (v(vT + 1), v(vT + 1)))
    a("v_add_u32 %s, %s, %s" % (v(vT + 2), sG, v(vT)))
    a("v_cmp_gt_u32 vcc, 2, %s" % v(vT + 2))
    a("v_subrev_u32 %s, 2, %s" % (v(vT + 2), v(vT + 2)))
    a("v_mov_b32 %s, %s" % (v(vT + 3), sG))
    a("v_cndmask_b32 %s, %s, %s, vcc" % (v(vT + 2), v(vT + 2), v(vT + 3)))
    a("v_lshlrev_b32 %s, 9, %s" % (v(vT + 2), v(vT + 2)))
    a("v_lshl_add_u32 %s, %s, 3, %s" % (v(vT + 2), v(vT + 1), v(vT + 2)))
    sum_s(sT0, [(sHW, 128)], WS_F1)
    a("v_add_u32 v27, %s, %s" % (sT0, v(vT + 2)))
    sum_s(sFC, [(sTILE4, QT), (sE, 512)], WS_QKV)
    a("s_sub_u32 %s, %s, %d" % (sFB, sFC, 4 * QT))
    a("s_sub_u32 %s, %s, %d" % (sFA, sFC, 8 * QT))
    a("s_cmp_lt_u32 %s, 1" % sG)
    a("s_cselect_b32 %s, 0x40000000, %s" % (sFB, sFB))
    a("s_cmp_lt_u32 %s, 2" % sG)
    a("s_cselect_b32 %s, 0x40000000, %s" % (sFA, sFA))
    a("s_lshl_b32 %s, %s, 11" % (sFD, sHW))


SC, KB, QF, M0R, M16R, PF, VB, OA = 32, 100, 124, 128, 132, 136, 148, 172
LS, ONE4 = 196, 200
vKA = [180, 181]
vVA = [184, 185]
vQA = "v186"
vNEG, vGFA, vGF, vOA = "v188", "v189", 190, "v192"
sFQ, sFO = "s[80:81]", "s[82:83]"


def p2_setup():
    a("s_mul_i32 %s, %s, 7" % (sT4, sJ))
    a("s_lshr_b32 %s, %s, 1" % (sT4, sT4))
    a("v_add_u32 %s, %s, %s" % (v(vT + 3), sT4, vQ4))
    a("v_and_b32 %s, 1, %s" % (v(vT + 3), v(vT + 3)))
    a("v_mul_u32_u24 %s, 12, %s" % (v(vT + 3), v(vT + 3)))
    a("v_bfe_u32 %s, %s, 1, 1" % (v(vT + 4), vR))
    a("v_add_u32 %s, %s, %s" % (v(vT + 5), sT4, v(vT + 4)))
    a("v_and_b32 %s, 1, %s" % (v(vT + 5), v(vT + 5)))
    a("v_mul_u32_u24 %s, 12, %s" % (v(vT + 5), v(vT + 5)))
    for par in range(2):
        a("s_add_u32 %s, %s, %d" % (sT0, sWAVE, par))
        a("s_lshr_b32 %s, %s, 1" % (sT1, sT0))
        a("s_lshl_b32 %s, %s, 12" % (sT1, sT1))
        a("s_and_b32 %s, %s, 1" % (sT0, sT0))
        a("s_lshl_b32 %s, %s, 4" % (sT0, sT0))
        a("v_add_u32 %s, %s, %s" % (v(vT), sT0, vR))
        a("v_xor_b32 %s, %s, %s" % (v(vT), v(vT), v(vT + 3)))
        a("v_lshlrev_b32 %s, 4, %s" % (v(vT), v(vT)))
        a("v_lshl_add_u32 %s, %s, 9, %s" % (v(vT), vQ4, v(vT)))
        a("v_add_u32 %s, %s, %s" % (v(vKA[par]), sT1, v(vT)))
        if par == 0:
            a("s_lshr_b32 %s, %s, 1" % (sT2, sT1))
            a("s_add_u32 %s, %s, %d" % (sT2, sT2, L_Q))
            a("v_add_u32 %s, %s, %s" % (vQA, sT2, v(vT)))
        a("v_lshrrev_b32 %s, 2, %s" % (v(vT), vR))
        a("v_lshl_add_u32 %s, %s, 2, %s" % (v(vT), vQ4, v(vT)))
        a("v_add_u32 %s, %s, %s" % (v(vT), sT0, v(vT)))
        a("v_xor_b32 %s, %s, %s" % (v(vT), v(vT), v(vT + 5)))
        a("v_lshlrev_b32 %s, 4, %s" % (v(vT), v(vT)))
        a("v_lshl_add_u32 %s, %s, 9, %s" % (v(vT), v(vT + 4), v(vT)))
        a("v_and_b32 %s, 1, %s" % (v(vT + 1), vR))
        a("v_lshl_add_u32 %s, %s, 3, %s" % (v(vT), v(vT + 1), v(vT)))
        a("v_add_u32 %s, %s, %s" % (v(vVA[par]), sT1, v(vT)))
    for o_ in range(2):
        for half in range(2):
            assert lds_conflicts([(l >> 4) * 512 + (((16 * half + (l & 15)) ^ (12 * ((o_ + (l >> 4)) & 1))) * 16) for l in range(64)], "b128") == 0
            assert lds_conflicts([((l >> 1) & 1) * 512 + (((16 * half + 4 * (l >> 4) + ((l & 15) >> 2)) ^ (12 * ((o_ + ((l >> 1) & 1)) & 1))) * 16) + (l & 1) * 8 for l in range(64)], "tr") == 0
    a("s_and_b32 %s, %s, 1" % (sT0, sJ))
    a("s_cmp_eq_u32 %s, 0" % sT0)
    a("s_cselect_b32 s80, 0, 0xffff")
    a("s_mov_b32 s81, 0")
    a("s_mov_b32 s82, 0")
    a("s_cselect_b32 s83, 0xffff0000, 0")
    for k in range(4):
        a("v_mov_b32 %s, 0x3f803f80" % v(ONE4 + k))
    a("v_mov_b32 %s, 0xf149f2ca" % vNEG)
    a("v_lshlrev_b32 %s, 2, %s" % (v(vT), vQ4))
    a("v_sub_u32 %s, %s, %s" % (v(vT), v(vT), vR))
    for c in range(4):
        a("v_cmp_lt_i32 vcc, %d, %s" % (-c, v(vT)))
        a("v_cndmask_b32 %s, %s, %s, vcc" % (v(M0R + c), vNEG, vZ))
        a("v_cndmask_b32 %s, %s, %s, vcc" % (v(M16R + c), vZ, vNEG))
    sum_s(sT0, [(sG, 512)], WS_F1)
    a("v_lshlrev_b32 %s, 3, %s" % (vGFA, vR))
    a("v_add_u32 %s, %s, %s" % (vGFA, sT0, vGFA))
    a("s_lshr_b32 %s, %s, 1" % (sT1, sWAVE))
    a("s_and_b32 %s, %s, 1" % (sT2, sWAVE))
    sum_s(sE, [(sG, 131072), (sT1, 32768), (sJ, 2048), (sT2, 256)], WS_O)
    sum_s(sF, [(sG, 1024), (sWAVE, 128), (sJ, 8)], WS_F2)
    a("v_lshlrev_b32 %s, 9, %s" % (vOA, vQ4))
    a("v_lshl_add_u32 %s, %s, 4, %s" % (vOA, vR, vOA))
    a("v_mov_b32 %s, 0" % v(PF + 8 + 2))
    a("v_mov_b32 %s, 0" % v(PF + 8 + 3))




def adv(s):
    a("s_add_u32 %s, %s, 1" % (s, s))
    a("s_cmp_eq_u32 %s, 7" % s)
    a("s_cselect_b32 %s, 0, %s" % (s, s))


def issue_w(c):
    a("s_mul_i32 %s, %s, %d" % (sT1, sCW, 64 * 2688))
    for k in range(3):
        dma(v(vW[k]), WQKV, sT1, "s92", c * 12288 + k * 1024)
    adv(sCW)


def issue_x(c):
    a("s_lshl_b32 %s, %s, 7" % (sT0, sCX))
    for ii in range(4):
        dma(v(vX[ii]), X, sT0, sHW4K, L_XR + (c % 4) * 16384 + ii * 1024)
    adv(sCX)


GW = [{0: [0, 1], 1: [2, 3], 2: [4], 3: [5], 4: [6], 5: [], 6: []},
      {0: [0], 1: [1], 2: [2, 3], 3: [4, 5], 4: [6], 5: [], 6: []},
      {0: [0], 1: [1, 2], 2: [3, 4], 3: [5], 4: [6], 5: [], 6: []}][OPT["gw"]]


def issue_group(c):
    ws = list(GW[c])
    while ws and (ws[0] <= c or (OPT["gw"] == 0 and c <= 1)):
        issue_w(ws.pop(0))
    issue_x(c)
    for w_ in ws:
        issue_w(w_)
    return 4 + 3 * len(GW[c])


if OPT["warm"]:
    common_setup()
    a("s_waitcnt vmcnt(0)")
if OPT["diag"]:
    a("s_memtime s[98:99]")
    issue_w(0)
    a("s_waitcnt vmcnt(0)")
    a("s_memtime s[100:101]")
    a("s_mov_b32 %s, %s" % (sCW, sROT))
groups = [issue_group(0), issue_group(1)]
if not OPT["warm"]:
    common_setup()
if OPT["diag"]:
    a("s_waitcnt lgkmcnt(0)")
    for nm, r_ in (("d_entry", 96), ("d_karg", 98), ("d_first", 100)):
        idx = STAMPS.setdefault("t0", 0)
        idx = STAMPS.setdefault(nm, len(STAMPS))
        a("v_mov_b32 v30, s%d" % r_)
        a("v_mov_b32 v31, s%d" % (r_ + 1))
        a("s_mov_b64 exec, 1")
        a("buffer_store_dwordx2 v[30:31], %s, %s, %s offen offset:%d" % (vZ, WS, sTSOFF, idx * 8))
        a("s_mov_b64 exec, -1")
    groups[-1] += 3
stamp("t0")
stamp("rt_start")
hCS = [48, 49, 50, 51, 52, 53]
hWA, hWA2 = "v54", "v55"
HBW = 60
hST = 76
for r_ in hCS:
    a("v_mov_b32 %s, 0" % v(r_))
tr_base_192(hWA, v(vT))
a("v_add_u32 %s, s92, %s" % (hWA, hWA))
a("v_add_u32 %s, %d, %s" % (hWA2, 5 * 12288, hWA))
a("v_lshlrev_b32 v56, 4, %s" % vL31)
a("v_mov_b32 v57, 0x3f803f80")
sum_s(sA, [(sTILE4, 512)], WS_ST)


def colsum_w(c):
    if OPT["dry"] & 1:
        return
    base, off = (hWA2, (c - 5) * 12288) if c >= 5 else (hWA, c * 12288)
    for p3 in range(3):
        for hh in range(2):
            a("ds_read_b64_tr_b16 %s, %s offset:%d" % (v(HBW + 4 * p3 + 2 * hh, 2), base, off + p3 * 64 + hh * 768))
    a("s_waitcnt lgkmcnt(0)")
    for i in range(4):
        for p3 in range(3):
            a("v_dot2c_f32_bf16 %s, %s, v57" % (v(hCS[2 * p3]), v(HBW + 4 * p3 + i)))


for c in range(7):
    after = sum(groups[c + 1:])
    if c == 6:
        a("v_mov_b32 %s, %d" % (v(vT), L_EP))
        a("ds_read_b64 %s, %s" % (v(vFLG, 2), v(vT)))
        a("s_waitcnt lgkmcnt(0)")
        a("v_readfirstlane_b32 %s, %s" % (sEPL, v(vFLG)))
        a("v_readfirstlane_b32 %s, %s" % (sEPH, v(vFLG + 1)))
        a("v_or_b32 %s, %s, %s" % (v(vFLG), sXCC, v(vFLG)))
        a("s_mov_b32 %s, 0x20000" % sCNT)
        a("s_waitcnt vmcnt(%d)" % sum(groups[8:]))
        a.label("Lst_loop")
        a("v_cmp_ne_u32 vcc, %s, %s" % (sEPL, v(hST + 1)))
        a("v_cmp_ne_u32 s[94:95], %s, %s" % (sEPH, v(hST + 3)))
        a("s_or_b64 vcc, vcc, s[94:95]")
        a("s_cbranch_scc0 Lst_ok")
        a("buffer_load_dwordx4 %s, v56, %s, %s offen sc1" % (v(hST, 4), WS, sA))
        a("s_sub_u32 %s, %s, 1" % (sCNT, sCNT))
        a("s_waitcnt vmcnt(0)")
        a("s_cmp_lg_u32 %s, 0" % sCNT)
        a("s_cbranch_scc1 Lst_loop")
        a.label("Lst_ok")
        sum_s(sT0, [(sHW, 256)], L_ST)
        a("v_lshl_add_u32 %s, %s, 2, %s" % (v(vT), vL31, sT0))
        a("ds_write_b32 %s, %s" % (v(vT), v(hST)))
        a("ds_write_b32 %s, %s offset:128" % (v(vT), v(hST + 2)))
        a("s_waitcnt lgkmcnt(0)")
    else:
        a("s_waitcnt vmcnt(%d)" % after)
    a("s_barrier")
    stamp("h_b%d" % c)
    if c == 0:
        groups.append(issue_group(2))
    if c + 3 <= 6:
        groups.append(issue_group(c + 3))
    if c == 3:
        a("buffer_load_dwordx4 %s, v56, %s, %s offen sc1" % (v(hST, 4), WS, sA))
        groups.append(1)
    if c == 3 and OPT["P3"]:
        groups.append(bg("P3"))
    if c == OPT["pt_c"] and OPT["pt_h1"] == 3:
        sum_s(sT0, [(sG, 448 * 1024), (sJ, 32 * 1024), (sHW, 8192)], WS_H1)
        groups.append(touch_lines(WS, sT0, 64, sc1=True))
    for w_ in GW[c]:
        colsum_w(w_)
    if c == 4:
        for p3 in range(3):
            a("v_add_f32 %s, %s, %s" % (v(hCS[2 * p3]), v(hCS[2 * p3]), v(hCS[2 * p3 + 1])))
            xhalf_sum(v(hCS[2 * p3]), v(vT))
        sum_s(sT0, [(sHW, 384)], L_CSP)
        a("v_lshl_add_u32 %s, %s, 2, %s" % (v(vT), vL31, sT0))
        for p3 in range(3):
            a("ds_write_b32 %s, %s offset:%d" % (v(vT), v(hCS[2 * p3]), 128 * p3))
        a("s_waitcnt lgkmcnt(0)")
    if c == 5:
        a("s_min_u32 %s, %s, 2" % (sT0, sHW))
        a("s_lshl_b32 %s, %s, 7" % (sT0, sT0))
        a("s_add_u32 %s, %s, %d" % (sT1, sT0, L_CSP))
        a("v_lshl_add_u32 %s, %s, 2, %s" % (v(vT + 4), vL31, sT1))
        a("s_add_u32 %s, %s, %d" % (sT1, sT0, L_CS))
        a("v_lshl_add_u32 %s, %s, 2, %s" % (v(vT + 5), vL31, sT1))
        for k in range(4):
            a("ds_read_b32 %s, %s offset:%d" % (v(HBW + k), v(vT + 4), 384 * k))
        a("s_waitcnt lgkmcnt(0)")
        a("v_add_f32 %s, %s, %s" % (v(HBW), v(HBW), v(HBW + 1)))
        a("v_add_f32 %s, %s, %s" % (v(HBW + 2), v(HBW + 2), v(HBW + 3)))
        a("v_add_f32 %s, %s, %s" % (v(HBW), v(HBW), v(HBW + 2)))
        a("ds_write_b32 %s, %s" % (v(vT + 5), v(HBW)))
a("s_barrier")
bg("A")
stamp("h_wo")
a("s_branch Lp2")

a.label("Lservice")
a("s_sub_u32 %s, %s, 14" % (sT0, sJ))
sum_s(sT1, [(sT0, 64), (sWAVE, 8), (sR0, 1)])
a("s_mul_i32 %s, %s, 896" % (sT2, sT1))
a("v_lshrrev_b32 %s, 3, %s" % (v(vT), vL))
a("v_mul_u32_u24 %s, 896, %s" % (v(40), v(vT)))
a("v_and_b32 %s, 7, %s" % (v(vT + 1), vL))
a("v_lshl_add_u32 %s, %s, 4, %s" % (v(40), v(vT + 1), v(40)))
SX = 44
for i in range(7):
    a("buffer_load_dwordx4 %s, v40, %s, %s offen offset:%d%s" % (v(SX + 4 * i, 4), X, sT2, 128 * i, " nt" if OPT["nt"] & 1 else ""))
a("buffer_load_dwordx2 %s, %s, %s, 0 offen sc1" % (v(vFLG, 2), vZ, DBG))
a("s_lshl_b32 %s, %s, 4" % (sA, sT1))
a("s_add_u32 %s, %s, %d" % (sA, sA, WS_ST))
a("v_lshlrev_b32 v41, 4, %s" % v(vT))
common_setup()
stamp("t0")
stamp("rt_start")
a("v_mov_b32 v42, 0")
a("v_mov_b32 v43, 0")
a("v_mov_b32 v39, 0x3f803f80")
a("s_waitcnt vmcnt(1)")
for i in range(28):
    a("v_dot2c_f32_bf16 v42, %s, v39" % v(SX + i))
    a("v_dot2c_f32_bf16 v43, %s, %s" % (v(SX + i), v(SX + i)))
for sw in (0x041F, 0x081F, 0x101F):
    a("ds_swizzle_b32 %s, v42 offset:0x%x" % (v(vT + 2), sw))
    a("ds_swizzle_b32 %s, v43 offset:0x%x" % (v(vT + 3), sw))
    a("s_waitcnt lgkmcnt(0)")
    a("v_add_f32 v42, v42, %s" % v(vT + 2))
    a("v_add_f32 v43, v43, %s" % v(vT + 3))
ln_finish("v42", "v43", v(SX), v(SX + 2), v(vT + 2))
get_epoch_spin("svc")
a("v_mov_b32 %s, %s" % (v(SX + 1), sEPL))
a("v_mov_b32 %s, %s" % (v(SX + 3), sEPH))
a("v_or_b32 %s, %s, %s" % (v(vFLG), sXCC, v(vFLG)))
a("buffer_store_dwordx4 %s, v41, %s, %s offen sc1" % (v(SX, 4), WS, sA))
sum_s(sT0, [(sG, 512), (sJ, 8)], WS_F1)
flag_store(sT0, " sc1")
stamp("svc_st")
a("s_waitcnt vmcnt(0)")
a("s_barrier")
a("s_sub_u32 %s, %s, 14" % (sT0, sJ))
sum_s(sT4, [(sT0, 8), (sWAVE, 1)])
if not OPT["ohsc"]:
    sum_s(sT1, [(sG, 131072), (sT4, 8192)], WS_O)
    touch_lines(WS, sT1, 64, sc1=True)
    sum_s(sT1, [(sG, 114688), (sT4, 7168)], WS_H)
    touch_lines(WS, sT1, 56, sc1=True)
    sum_s(sT1, [(sG, 16384), (sT4, 1024)], WS_HS)
    touch_lines(WS, sT1, 8, sc1=True)
sum_s(sT1, [(sG, 1024)], WS_F2)
touch_lines(WS, sT1, 8, sc1=True)
sum_s(sT1, [(sG, 512)], WS_F3)
touch_lines(WS, sT1, 4, sc1=True)
sum_s(sT1, [(sG, 512)], WS_F4)
touch_lines(WS, sT1, 4, sc1=True)
a("s_and_b32 %s, %s, 1" % (sT0, sG))
sum_s(sT3, [(sT0, 16), (sT4, 1)])
for it in [x for x in OPT["svc"].split("+") if x]:
    srd, base, total = {"wo": (WO, 0, 401408), "w2q": (W2, 0, 401408), "w2q2": (W2, 401408, 401408), "w1q": (W1, 0, 401408)}[it]
    per = total // 128 // 32
    sum_s(sT1, [(sT3, per * 128)], base)
    touch_lines(srd, sT1, per)
if OPT["pt_h1"] == 2:
    sum_s(sT1, [(sG, 448 * 1024), (sT4, 28 * 1024)], WS_H1)
    touch_lines(WS, sT1, 224, sc1=True)
fetch_setup()
a("s_cmp_lt_u32 %s, 4" % sWAVE)
a("s_cbranch_scc1 Lfetch")
if "w18" in OPT["A"]:
    w1_block(8)
a("s_branch Lp2")

a.label("Lmfma")
a("s_or_b32 %s, s2, %s" % (sT0, sWAVE))
a("s_cmp_lg_u32 %s, 0" % sT0)
a("s_cbranch_scc1 Lnoep")
a("s_memrealtime s[94:95]")
a("s_waitcnt lgkmcnt(0)")
a("s_lshl_b32 %s, s94, 4" % sT1)
a("s_or_b32 %s, %s, 8" % (sT1, sT1))
a("s_mul_i32 %s, s94, 0x9e3779b1" % sT2)
a("s_add_u32 %s, %s, s95" % (sT2, sT2))
a("v_mov_b32 %s, %s" % (v(vT), sT1))
a("v_mov_b32 %s, %s" % (v(vT + 1), sT2))
a("s_mov_b64 exec, 1")
a("buffer_store_dwordx2 %s, %s, %s, 0 offen sc1" % (v(vT, 2), vZ, DBG))
a("s_mov_b64 exec, -1")
a.label("Lnoep")
if OPT["tlb"]:
    a("s_cmp_lg_u32 %s, 3" % sWAVE)
    a("s_cbranch_scc1 Lnotlb")
    a("v_min_u32 %s, 18, %s" % (v(vT), vL))
    a("v_lshlrev_b32 %s, 20, %s" % (v(vT), v(vT)))
    a("buffer_load_dword v26, %s, %s, 0 offen" % (v(vT), WS))
    a("v_min_u32 %s, 1, %s" % (v(vT), vL))
    a("v_lshlrev_b32 %s, 20, %s" % (v(vT), v(vT)))
    for srd in (OUT, W1, W2):
        a("buffer_load_dword v26, %s, %s, 0 offen" % (v(vT), srd))
    a("buffer_load_dword v26, %s, %s, 0 offen" % (vZ, WO))
    a.label("Lnotlb")
common_setup()
stamp("t0")
stamp("rt_start")
ACC = 32
FB = 80
vXA = [148, 149, 150, 151]
vWA, vWA2 = "v152", "v153"
vSA, vCA = "v154", "v155"
vQo = ["v156", "v157"]
CS = 160
PK = 208
vNM, vRS = 232, 234
a("v_bfe_u32 %s, %s, 1, 3" % (v(vT), vL31))
a("v_xor_b32 %s, %s, %s" % (v(vT), v(vT), vH))
a("v_lshlrev_b32 %s, 7, %s" % (v(vT + 1), vL31))
a("v_add_u32 %s, %s, %s" % (v(vT + 1), sHW4K, v(vT + 1)))
a("v_add_u32 %s, %d, %s" % (v(vT + 1), L_XR, v(vT + 1)))
for s in range(4):
    a("v_xor_b32 %s, %d, %s" % (v(vT + 2), 2 * s, v(vT)))
    a("v_lshl_add_u32 %s, %s, 4, %s" % (v(vXA[s]), v(vT + 2), v(vT + 1)))
    assert lds_conflicts([(l & 31) * 128 + (((2 * s + (l >> 5)) ^ (((l & 31) >> 1) & 7)) * 16) for l in range(64)], "b128") == 0
tr_base_192(vWA, v(vT))
a("v_add_u32 %s, %d, %s" % (vWA2, 5 * 12288, vWA))
sum_s(sT0, [(sHW, 256)], L_ST)
a("v_lshl_add_u32 %s, %s, 2, %s" % (vSA, vL31, sT0))
a("v_lshlrev_b32 %s, 4, %s" % (vCA, vH))
a("v_add_u32 %s, %d, %s" % (vCA, L_CS, vCA))
a("v_mul_u32_u24 %s, 12, %s" % (v(vT), vH))
a("v_xor_b32 %s, %s, %s" % (v(vT), v(vT), vL))
a("v_lshlrev_b32 %s, 4, %s" % (vQo[0], v(vT)))
sum_s(sA, [(sTILE4, QT), (sJ, 12 * 512)], WS_QKV)
a("s_add_u32 %s, %s, 4096" % (sC, sA))
sum_s(sD, [(sTILE4, 128), (sJ, 8)], WS_F1)


def p1_reads(c, s):
    if OPT["dry"] & 2:
        return
    fb = FB + 16 * s
    a("ds_read_b128 %s, %s offset:%d" % (v(fb, 4), v(vXA[s]), (c % 4) * 16384))
    base, off = (vWA2, (c - 5) * 12288) if c >= 5 else (vWA, c * 12288)
    for p3 in range(3):
        for hh in range(2):
            a("ds_read_b64_tr_b16 %s, %s offset:%d" % (v(fb + 4 + 4 * p3 + 2 * hh, 2), base, off + p3 * 64 + s * 3072 + hh * 768))


def p1_mfma(c, s, fill=None):
    if OPT["dry"] & 2:
        return
    fb = FB + 16 * s
    first = (c == 0 and s == 0)
    for p3 in range(3):
        acc = v(ACC + 16 * p3, 16)
        a("v_mfma_f32_32x32x16_bf16 %s, %s, %s, %s" % (acc, v(fb + 4 + 4 * p3, 4), v(fb, 4), "0" if first else acc))
        if fill:
            for _ in range(6):
                if fill:
                    a(fill.pop(0))


for k in range(4):
    a("v_mov_b32 %s, -1" % v(PK + k))
def sentinel_init():
    for i in range(6 if OPT["sent"] else 0):
        a("buffer_store_dwordx4 %s, %s, %s, %s offen offset:%d sc1" % (v(PK, 4), vL16, WS, sA if i < 4 else sC, 1024 * (i % 4)))
    a("buffer_load_dwordx2 %s, %s, %s, 0 offen sc1" % (v(vFLG, 2), vZ, DBG))


if OPT["ic"] < 0:
    sentinel_init()
fetch_setup()
a("s_barrier")
stamp("m_b0")
p1_reads(0, 0)
p1_reads(0, 1)
for c in range(7):
    fill = []
    if c == 1:
        for jj in range(4):
            a("buffer_load_dwordx2 %s, %s, %s, %s offen offset:%d" % (v(vXRES + 2 * jj, 2), vXOFF, X, sXO, 16 * jj))
    if c == OPT["ic"]:
        sentinel_init()
    if c == 6 and OPT["sent"]:
        a("buffer_load_dwordx2 %s, v27, %s, 0 offen sc1" % (v(vIF, 2), WS))
    a("s_waitcnt lgkmcnt(7)")
    p1_mfma(c, 0)
    p1_reads(c, 2)
    a("s_waitcnt lgkmcnt(7)")
    p1_mfma(c, 1)
    p1_reads(c, 3)
    if c == 6:
        a("ds_read_b32 %s, %s" % (v(vNM), vSA))
        a("ds_read_b32 %s, %s offset:128" % (v(vRS), vSA))
        a("s_waitcnt lgkmcnt(9)")
        p1_mfma(c, 2)
        a("s_waitcnt lgkmcnt(2)")
        for i in range(12):
            a("ds_read_b128 %s, %s offset:%d" % (v(CS + 4 * i, 4), vCA, 32 * i))
        p1_mfma(c, 3)
    else:
        a("s_waitcnt lgkmcnt(7)")
        p1_mfma(c, 2)
        if c == OPT["fc"]:
            get_epoch_spin("m")
            a("v_mov_b32 %s, %d" % (v(vT + 2), L_EP))
            a("ds_write_b64 %s, %s" % (v(vT + 2), v(vFLG, 2)))
            a("v_or_b32 %s, %s, %s" % (v(vFLG), sXCC, v(vFLG)))
            if OPT["sent"]:
                flag_store(sD, " sc1")
        a("s_waitcnt lgkmcnt(0)")
        a("s_barrier")
        stamp("m_b%d" % (c + 1))
        p1_reads(c + 1, 0)
        p1_reads(c + 1, 1)
        p1_mfma(c, 3)
a("s_waitcnt lgkmcnt(12)")
a("v_mul_f32 %s, %s, %s" % (v(vNM), v(vNM), v(vRS)))
a("v_mov_b32 %s, %s" % (v(vRS + 1), v(vRS)))
a("v_mov_b32 %s, %s" % (v(vNM + 1), v(vNM)))
stamp("m_p1end")
for i in range(3):
    a("s_waitcnt lgkmcnt(%d)" % (8 - 4 * i))
    for k in range(8):
        r_ = CS + 16 * i + 2 * k
        a("v_pk_mul_f32 %s, %s, %s" % (v(r_, 2), v(r_, 2), v(vNM, 2)))
for i in range(3):
    for k in range(8):
        r_ = ACC + 16 * i + 2 * k
        a("v_pk_fma_f32 %s, %s, %s, %s" % (v(r_, 2), v(r_, 2), v(vRS, 2), v(CS + 16 * i + 2 * k, 2)))
    for k in range(8):
        a("v_cvt_pk_bf16_f32 %s, %s, %s" % (v(PK + 8 * i + k), v(ACC + 16 * i + 2 * k), v(ACC + 16 * i + 2 * k + 1)))
    for m in range(2):
        for k in range(2):
            a("v_permlane32_swap_b32 %s, %s" % (v(PK + 8 * i + 4 * m + k), v(PK + 8 * i + 4 * m + 2 + k)))
    for m in range(2):
        a("buffer_store_dwordx4 %s, %s, %s, %s offen offset:%d sc1" % (v(PK + 8 * i + 4 * m, 4), vQo[0], WS, sA if i < 2 else sC, (2048 * i if i < 2 else 0) + 1024 * m))
stamp("m_epi1")
stamp("rt_epi1")
if OPT["sent"]:
    a("s_barrier")
    a("s_waitcnt vmcnt(6)")
    a("v_and_b32 %s, -8, %s" % (v(vIF), v(vIF)))
    a("v_cmp_ne_u64 vcc, %s, %s" % (sEP, v(vIF, 2)))
    a("s_cbranch_vccz Lfetch_go")
else:
    a("s_waitcnt vmcnt(0)")
    flag_store(sD, " sc1")
    a("s_barrier")

a.label("Lfetch")
poll("v27", vT + 2, "f1")
a.label("Lfetch_go")
stamp("m_f1ok")
stamp("rt_f1ok")
a("v_add_u32 v32, %s, %s" % (sHW4K, vL16))
a("v_add_u32 v33, %s, %s" % (sFD, vL16))
a("s_mov_b32 %s, 0x4000" % sCNT)


def fetch_dma():
    for kind, sb in ((2, sFC), (1, sFB), (0, sFA)):
        if kind == 2:
            dma(vL16, WS, sb, sFD, L_Q, sc1=True)
            dma(vL16, WS, sb, sFD, L_Q + 1024, inst=1024, sc1=True)
        a("s_add_u32 %s, %s, %d" % (sT0, sb, 56 * 512))
        a("s_add_u32 %s, %s, %d" % (sT1, sb, 112 * 512))
        lb = L_KV + kind * 16384
        dma(vL16, WS, sT0, sHW4K, lb, sc1=True)
        dma(vL16, WS, sT0, sHW4K, lb + 1024, inst=1024, sc1=True)
        dma(vL16, WS, sT1, sHW4K, lb + 2048, sc1=True)
        dma(vL16, WS, sT1, sHW4K, lb + 3072, inst=1024, sc1=True)


fetch_dma()
p2_setup()
a.label("Lfetch_val")
if not OPT["sent"]:
    a("s_waitcnt vmcnt(0)")
    a("s_branch Lp2b")
VR = 36
order = [("v33", L_Q), ("v33", L_Q + 1024)] + [("v32", L_KV + kind * 16384 + 1024 * q) for kind in (2, 1, 0) for q in range(4)]
for n, (ad, off) in enumerate(order):
    if n in (0, 6, 10):
        a("s_waitcnt vmcnt(%d)" % {0: 8, 6: 4, 10: 0}[n])
    a("ds_read_b128 %s, %s offset:%d" % (v(VR + 4 * n, 4), ad, off))
a("v_mov_b32 v34, 0")
a("v_mov_b32 v35, 0")
for n in range(14):
    if n in (0, 6, 10):
        a("s_waitcnt lgkmcnt(%d)" % {0: 8, 6: 4, 10: 0}[n])
    a("v_max3_u32 v34, v34, %s, %s" % (v(VR + 4 * n), v(VR + 4 * n + 1)))
    a("v_max3_u32 v35, v35, %s, %s" % (v(VR + 4 * n + 2), v(VR + 4 * n + 3)))
a("v_max_u32 v34, v34, v35")
a("v_cmp_eq_u32 vcc, -1, v34")
a("s_sub_u32 %s, %s, 1" % (sCNT, sCNT))
a("s_cmp_eq_u32 %s, 0" % sCNT)
a("s_cbranch_scc1 Lfetch_done")
a("s_cbranch_vccz Lfetch_done")
fetch_dma()
a("s_branch Lfetch_val")
a.label("Lfetch_done")
if OPT["stamps"]:
    a("v_mov_b32 v30, %s" % sCNT)
    a("v_mov_b32 v31, 0")
    a("s_mov_b64 exec, 1")
    a("buffer_store_dwordx2 v[30:31], %s, %s, %s offen offset:%d" % (vZ, WS, sTSOFF, 30 * 8))
    a("s_mov_b64 exec, -1")
a("s_branch Lp2b")

a.label("Lp2")
p2_setup()
a.label("Lp2b")
stamp("kv_landed")
a("s_barrier")
stamp("b8")
stamp("rt_b8")
a(("s_cmp_ge_u32 %s, 4" if OPT["bm"] else "s_cmp_lt_u32 %s, 4") % sWAVE)
a("s_cbranch_scc1 Lp2go")
bg("B")
a.label("Lp2go")
a("buffer_load_dwordx2 %s, %s, %s, 0 offen sc1" % (v(vGF, 2), vGFA, WS))
a("ds_read_b128 %s, %s" % (v(QF, 4), vQA))
NKB = 6


def kread(i):
    a("ds_read_b128 %s, %s offset:%d" % (v(KB + 4 * (i % NKB), 4), v(vKA[i & 1]), (i >> 1) * 4096))


for i in range(NKB):
    kread(i)
for i in range(17):
    rem = min(NKB - 1, 16 - i)
    a("s_waitcnt lgkmcnt(%d)" % rem)
    if i == 0:
        for k in range(2):
            a("v_cndmask_b32 %s, %s, %s, %s" % (v(QF + k), v(QF + k), vZ, sFQ))
            a("v_cndmask_b32 %s, %s, %s, %s" % (v(QF + 2 + k), v(QF + 2 + k), vZ, sFO))
    cc = v(M0R, 4) if i == 0 else (v(M16R, 4) if i == 16 else "0")
    a("v_mfma_f32_16x16x32_bf16 %s, %s, %s, %s" % (v(SC + 4 * i, 4), v(KB + 4 * (i % NKB), 4), v(QF, 4), cc))
    if i + NKB < 17:
        kread(i + NKB)


def vread(n):
    p, dt = n >> 1, n & 1
    for b in range(2):
        par = b if p < 8 else 0
        a("ds_read_b64_tr_b16 %s, %s offset:%d" % (v(VB + 4 * (n % NKB) + 2 * b, 2), v(vVA[par]), 2048 + p * 4096 + dt * 1024))


for n in range(NKB):
    vread(n)
a("s_cmp_ge_u32 %s, 2" % sG)
a("s_cbranch_scc1 Lnoinv")
a("s_lshl_b32 %s, %s, 3" % (sT0, sG))
a("s_add_u32 %s, %s, %s" % (sT0, sT0, sWAVE))
a("s_sub_u32 %s, 16, %s" % (sT0, sT0))
for i in range(16):
    a("s_cmp_le_u32 %s, %d" % (sT0, i))
    a("s_cbranch_scc1 Lnoinv")
    for c in range(4):
        a("v_mov_b32 %s, %s" % (v(SC + 4 * i + c), vNEG))
a.label("Lnoinv")
vM, vM2 = v(vT), v(vT + 1)
a("v_max3_f32 %s, %s, %s, %s" % (vM, v(SC), v(SC + 1), v(SC + 2)))
a("v_max3_f32 %s, %s, %s, %s" % (vM2, v(SC + 3), v(SC + 4), v(SC + 5)))
i = 6
flip = 0
while i < 68:
    tgt = vM if flip == 0 else vM2
    a("v_max3_f32 %s, %s, %s, %s" % (tgt, tgt, v(SC + i), v(SC + i + 1)))
    i += 2
    flip ^= 1
a("v_max_f32 %s, %s, %s" % (vM, vM, vM2))
a("v_mov_b32 %s, %s" % (vM2, vM))
a("v_permlane32_swap_b32 %s, %s" % (vM, vM2))
a("v_max_f32 %s, %s, %s" % (vM, vM, vM2))
a("v_mov_b32 %s, %s" % (vM2, vM))
a("v_permlane16_swap_b32 %s, %s" % (vM, vM2))
a("v_max_f32 %s, %s, %s" % (vM, vM, vM2))
CSC = (28.0 ** -0.5) * math.log2(math.e)
a("s_mov_b32 %s, %s" % (sT0, f32(CSC)))
a("v_mul_f32 %s, %s, %s" % (vM, f32(-CSC), vM))
for p in range(9):
    ne = 8 if p < 8 else 4
    for i in range(ne):
        a("v_fma_f32 %s, %s, %s, %s" % (v(SC + 8 * p + i), v(SC + 8 * p + i), sT0, vM))
    for i in range(ne):
        a("v_exp_f32 %s, %s" % (v(SC + 8 * p + i), v(SC + 8 * p + i)))
    pf = PF + 4 * (p % 2) if p < 8 else PF + 8
    for i in range(ne // 2):
        a("v_cvt_pk_bf16_f32 %s, %s, %s" % (v(pf + i), v(SC + 8 * p + 2 * i), v(SC + 8 * p + 2 * i + 1)))
    a("v_mfma_f32_16x16x32_bf16 %s, %s, %s, %s" % (v(LS, 4), v(ONE4, 4), v(pf, 4), "0" if p == 0 else v(LS, 4)))
    for dt in range(2):
        n = 2 * p + dt
        rem = min(NKB - 1, 17 - n)
        a("s_waitcnt lgkmcnt(%d)" % (2 * rem))
        cc = "0" if p == 0 else v(OA + 4 * dt, 4)
        a("v_mfma_f32_16x16x32_bf16 %s, %s, %s, %s" % (v(OA + 4 * dt, 4), v(VB + 4 * (n % NKB), 4), v(pf, 4), cc))
        if n + NKB < 18:
            vread(n + NKB)
    if p == 6:
        a("s_waitcnt vmcnt(0)")
        a("v_and_b32 %s, -8, %s" % (v(vT + 4), v(vGF)))
        a("v_mov_b32 %s, %s" % (v(vT + 5), v(vGF + 1)))
        a("v_cmp_ne_u64 vcc, %s, %s" % (sEP, v(vT + 4, 2)))
        a("s_cbranch_vccz Lgf_ok")
        poll(vGFA, vT + 4, "gf")
        a("buffer_load_dwordx2 %s, %s, %s, 0 offen sc1" % (v(vGF, 2), vGFA, WS))
        a("s_waitcnt vmcnt(0)")
        a.label("Lgf_ok")
        a("v_cmp_ne_u32 vcc, %s, %s" % (v(vGF), v(vFLG)))
        a("s_cmp_eq_u64 vcc, 0")
        a("s_cselect_b32 %s, %d, 0" % (sFAST, 0 if OPT["force_slow"] else 1))
stamp("att_done")
if OPT["stamps"]:
    a("v_mov_b32 v30, %s" % sXCC)
    a("v_mov_b32 v31, %s" % sFAST)
    a("s_mov_b64 exec, 1")
    a("buffer_store_dwordx2 v[30:31], %s, %s, %s offen offset:%d" % (vZ, WS, sTSOFF, 31 * 8))
    a("s_mov_b64 exec, -1")
a("v_rcp_f32 %s, %s" % (v(vT + 2), v(LS)))
a("v_cndmask_b32 %s, %s, %s, %s" % (v(vT), v(vT + 2), vZ, sFQ))
a("v_cndmask_b32 %s, %s, %s, %s" % (v(vT + 1), v(vT + 2), vZ, sFO))
for i in range(4):
    a("v_mul_f32 %s, %s, %s" % (v(OA + i), v(OA + i), v(vT)))
    a("v_mul_f32 %s, %s, %s" % (v(OA + 4 + i), v(OA + 4 + i), v(vT + 1)))
OP = 136
for i in range(4):
    a("v_cvt_pk_bf16_f32 %s, %s, %s" % (v(OP + i), v(OA + 2 * i), v(OA + 2 * i + 1)))
publish(["buffer_store_dwordx4 %s, %s, %s, %s offen{sc}" % (v(OP, 4), vOA, WS, sE)], sF, data_sc1=bool(OPT["ohsc"]))
if OPT["ohsc"]:
    a("buffer_load_dword v26, %s, %s, %s offen sc1" % (vOA, WS, sE))
stamp("o_pub")
stamp("rt_opub")
a("s_cmp_ge_u32 %s, 4" % sWAVE)
a("s_cbranch_scc1 Lhelper2")

if OPT["prio"]:
    a("s_setprio %d" % OPT["prio"])
a("s_cmp_ge_u32 %s, 14" % sJ)
a("s_cbranch_scc1 Lp3_idle")
AK, AS = 32, 48
OF = 64
WB = 128
vWk, vWs = "v160", "v161"
vEXW, vEXR, vHA, vHSA, vF2A = "v162", "v163", "v164", "v165", "v166"


def tr_base_128(dkeep, dsend, hmul, base_s, base_imm):
    a("v_lshrrev_b32 %s, 2, %s" % (v(vT), vR))
    a("v_lshrrev_b32 %s, 1, %s" % (v(vT + 1), v(vT)))
    a("v_xor_b32 %s, %s, %s" % (v(vT + 1), sKH, v(vT + 1)))
    a("v_lshl_add_u32 %s, %s, %d, %s" % (v(vT), vH, {4: 2, 8: 3}[hmul], v(vT)))
    a("v_lshlrev_b32 %s, 7, %s" % (v(vT), v(vT)))
    a("v_bfe_u32 %s, %s, 4, 1" % (v(vT + 2), vL))
    a("v_lshl_add_u32 %s, %s, 5, %s" % (v(vT), v(vT + 2), v(vT)))
    a("v_and_b32 %s, 3, %s" % (v(vT + 2), vL))
    a("v_lshl_add_u32 %s, %s, 3, %s" % (v(vT), v(vT + 2), v(vT)))
    a("v_add_u32 %s, %s, %s" % (v(vT), base_s, v(vT)))
    if base_imm:
        a("v_add_u32 %s, %d, %s" % (v(vT), base_imm, v(vT)))
    a("v_lshl_add_u32 %s, %s, 6, %s" % (dkeep, v(vT + 1), v(vT)))
    a("v_xor_b32 %s, 64, %s" % (dsend, dkeep))


def ex_addrs():
    a("v_add_u32 %s, %s, %s" % (vEXW, sHW4K, vL16))
    a("v_xor_b32 %s, 0x2000, %s" % (vEXR, vEXW))
    a("v_add_u32 %s, %d, %s" % (vEXW, L_SCR, vEXW))
    a("v_add_u32 %s, %d, %s" % (vEXR, L_SCR, vEXR))


for hm in (4, 8):
    for nt in range(2):
        assert lds_conflicts([(hm * (l >> 5) + ((l & 15) >> 2)) * 128 + ((nt ^ (((l & 15) >> 3) & 1)) * 64) + ((l >> 4) & 1) * 32 + (l & 3) * 8 for l in range(64)], "tr") == 0
a("s_mul_i32 %s, %s, %d" % (sT0, sKH, 224 * 128))
tr_base_128(vWk, vWs, 4, sT0, L_WO)
ex_addrs()
sum_s(sT0, [(sG, 1024), (sMH2, 512), (sMH, 256), (sKH, 64)], WS_F2)
a("v_bfe_u32 %s, %s, 3, 1" % (v(vT), vL))
a("v_lshlrev_b32 %s, 7, %s" % (v(vT), v(vT)))
a("v_and_b32 %s, 7, %s" % (v(vT + 1), vL))
a("v_lshl_add_u32 %s, %s, 3, %s" % (v(vT), v(vT + 1), v(vT)))
a("v_add_u32 %s, %s, %s" % (vF2A, sT0, v(vT)))
sum_s(sT4, [(sTILE, 32768), (sKH, 16384)], WS_O)
sum_s(sA, [(sTILE, 28 * 1024), (sNB, 2048), (sKH, 1024)], WS_H)
sum_s(sB, [(sTILE, 4096), (sNB, 512), (sKH, 256)], WS_HS)
sum_s(sC, [(sTILE, 128), (sNB, 16), (sKH, 8)], WS_F3)
a("v_bfe_u32 %s, %s, 4, 1" % (v(vT), vL))
a("v_mul_u32_u24 %s, %d, %s" % (v(vT), 14 * 1024, v(vT)))
a("v_lshl_add_u32 %s, %s, 8, %s" % (v(vT), vH, v(vT)))
a("v_lshl_add_u32 %s, %s, 4, %s" % (vHA, vR, v(vT)))
a("v_lshlrev_b32 %s, 3, %s" % (vHSA, vL31))
XF = 168
for i in range(8):
    a("v_lshlrev_b32 %s, 16, %s" % (v(XF + 2 * i), v(vXRES + i)))
    a("v_and_b32 %s, 0xffff0000, %s" % (v(XF + 2 * i + 1), v(vXRES + i)))
a("v_mov_b32 v167, 0x3f803f80")
a("s_barrier")
stamp("b9")


def p3_wread(s):
    head, ab = s >> 1, s & 1
    wb = WB + 8 * (s % 4)
    r0 = (28 * head - 4 * (head & 1) + 8 * ab) * 128
    for k, base in enumerate((vWk, vWs)):
        a("ds_read_b64_tr_b16 %s, %s offset:%d" % (v(wb + 4 * k, 2), base, r0))
        a("ds_read_b64_tr_b16 %s, %s offset:%d" % (v(wb + 4 * k + 2, 2), base, r0 + 16 * 128))


def p3_load(s):
    if s and s % 4 == 0:
        a("s_add_u32 %s, %s, 4096" % (sT4, sT4))
    a("buffer_load_dwordx4 %s, %s, %s, %s offen offset:%d sc1" % (v(OF + 4 * s, 4), vL16, WS, sT4, (s % 4) * 1024))


for s in range(3):
    p3_wread(s)
poll(vF2A, vT + 2, "f2")
stamp("f2ok")
stamp("rt_f2ok")
UP = OPT["up3"]
for s in range(UP):
    p3_load(s)
for s in range(16):
    a("s_waitcnt vmcnt(%d) lgkmcnt(%d)" % (min(UP - 1, 15 - s), min(8, 4 * (15 - s))))
    if s + 3 < 16:
        p3_wread(s + 3)
    wb = WB + 8 * (s % 4)
    a("v_mfma_f32_32x32x16_bf16 %s, %s, %s, %s" % (v(AS, 16), v(wb + 4, 4), v(OF + 4 * s, 4), "0" if s == 0 else v(AS, 16)))
    if s + UP < 16:
        p3_load(s + UP)
    if OPT["b9b"] and s + UP == 15:
        a("s_barrier")
    a("v_mfma_f32_32x32x16_bf16 %s, %s, %s, %s" % (v(AK, 16), v(wb, 4), v(OF + 4 * s, 4), "0" if s == 0 else v(AK, 16)))
stamp("p3_mfma")


def exchange():
    for i in range(4):
        a("ds_write_b128 %s, %s offset:%d" % (vEXW, v(AS + 4 * i, 4), 1024 * i))
    a("s_waitcnt lgkmcnt(0)")
    a("s_barrier")
    for i in range(4):
        a("ds_read_b128 %s, %s offset:%d" % (v(AS + 4 * i, 4), vEXR, 1024 * i))


def residual_add(out):
    for i in range(4):
        a("s_waitcnt lgkmcnt(%d)" % (3 - i))
        for k in range(2):
            r_ = 4 * i + 2 * k
            a("v_pk_add_f32 %s, %s, %s" % (v(AK + r_, 2), v(AK + r_, 2), v(AS + r_, 2)))
        for k in range(2):
            r_ = 4 * i + 2 * k
            a("v_cvt_pk_bf16_f32 %s, %s, %s" % (v(AS + r_), v(AK + r_), v(AK + r_ + 1)))
        for k in range(2):
            r_ = 4 * i + 2 * k
            a("v_lshlrev_b32 %s, 16, %s" % (v(AK + r_), v(AS + r_)))
            a("v_and_b32 %s, 0xffff0000, %s" % (v(AK + r_ + 1), v(AS + r_)))
        for k in range(2):
            r_ = 4 * i + 2 * k
            a("v_pk_add_f32 %s, %s, %s" % (v(AK + r_, 2), v(AK + r_, 2), v(XF + r_, 2)))
        for k in range(2):
            r_ = 4 * i + 2 * k
            a("v_cvt_pk_bf16_f32 %s, %s, %s" % (v(out + 2 * i + k), v(AK + r_), v(AK + r_ + 1)))


exchange()
residual_add(vXRES)
stamp("p3_res")
a("v_mov_b32 %s, 0" % v(AS))
a("v_mov_b32 %s, 0" % v(AS + 1))
st3 = ["buffer_store_dwordx4 %s, %s, %s, %s offen{sc}" % (v(vXRES, 4), vHA, WS, sA),
       "buffer_store_dwordx4 %s, %s, %s, %s offen offset:512{sc}" % (v(vXRES + 4, 4), vHA, WS, sA)]
for i in range(8):
    st3.append("v_dot2c_f32_bf16 %s, %s, v167" % (v(AS), v(vXRES + i)))
    st3.append("v_dot2c_f32_bf16 %s, %s, %s" % (v(AS + 1), v(vXRES + i), v(vXRES + i)))
st3 += ["v_mov_b32 %s, %s" % (v(AS + 2), v(AS)), "v_mov_b32 %s, %s" % (v(AS + 3), v(AS + 1)),
        "v_permlane32_swap_b32 %s, %s" % (v(AS), v(AS + 2)), "v_permlane32_swap_b32 %s, %s" % (v(AS + 1), v(AS + 3)),
        "v_pk_add_f32 %s, %s, %s" % (v(AS, 2), v(AS, 2), v(AS + 2, 2)),
        "buffer_store_dwordx2 %s, %s, %s, %s offen{sc}" % (v(AS, 2), vHSA, WS, sB)]
publish(st3, sC, data_sc1=bool(OPT["ohsc"]))
if OPT["ohsc"]:
    a("buffer_load_dword v26, %s, %s, %s offen sc1" % (vHA, WS, sA))
    a("buffer_load_dword v26, %s, %s, %s offen offset:512 sc1" % (vHA, WS, sA))
    a("buffer_load_dword v26, %s, %s, %s offen sc1" % (vHSA, WS, sB))
stamp("h_pub")
stamp("rt_hpub")
a("s_branch Lp3_done")
a.label("Lp3_idle")
a("s_barrier")
if OPT["b9b"]:
    a("s_barrier")
a("s_barrier")
a.label("Lp3_done")

HF = 32
A4 = 144
W4 = 200
SPR = 232
NM4, RS4 = [246, 248], [250, 252]
vW4a, vW4b, vW4c, vSPA = "v254", "v255", "v27", "v28"
a("v_lshrrev_b32 %s, 1, %s" % (v(vT), vQ4))
a("v_lshlrev_b32 %s, 4, %s" % (v(vT), v(vT)))
a("v_and_b32 %s, 1, %s" % (v(vT + 1), vQ4))
a("v_lshl_add_u32 %s, %s, 2, %s" % (v(vT), v(vT + 1), v(vT)))
a("v_lshrrev_b32 %s, 2, %s" % (v(vT + 1), vR))
a("v_add_u32 %s, %s, %s" % (v(vT), v(vT), v(vT + 1)))
a("v_mul_u32_u24 %s, 224, %s" % (v(vT), v(vT)))
a("v_and_b32 %s, 3, %s" % (v(vT + 1), vL))
a("v_lshl_add_u32 %s, %s, 3, %s" % (vW4a, v(vT + 1), v(vT)))
a("v_add_u32 %s, %d, %s" % (vW4b, 8 * 7168, vW4a))
a("v_add_u32 %s, %d, %s" % (vW4c, L_W1U, vW4a))
assert lds_conflicts([(16 * (l >> 5) + 4 * ((l >> 4) & 1) + ((l & 15) >> 2)) * 224 + (l & 3) * 8 for l in range(64)], "tr") == 0
sum_s(sT1, [(sTILE4, 128)], WS_F3)
a("v_min_u32 %s, 13, %s" % (v(vT), vR))
a("v_lshlrev_b32 %s, 3, %s" % (v(vT), v(vT)))
a("v_add_u32 %s, %s, %s" % (v(vT), sT1, v(vT)))
sum_s(sT4, [(sTILE4, 28 * 1024)], WS_H)
a("s_add_u32 %s, %s, %d" % (sE, sT4, 14 * 1024))
sum_s(sT3, [(sTILE4, 4096)], WS_HS)
a("v_mul_u32_u24 %s, %d, %s" % (vSPA, 7 * 256, vH))
a("v_lshl_add_u32 %s, %s, 3, %s" % (vSPA, vL31, vSPA))
sum_s(sA, [(sTILE4, 112 * 1024), (sJ, 7168)], WS_H1)
a("s_add_u32 %s, %s, 4096" % (sB, sA))
sum_s(sC, [(sTILE4, 128), (sJ, 8)], WS_F4)
a("s_barrier")
stamp("b11")
NW4 = 8
AHEAD = 7


def p4_wread(q):
    ks, nt = divmod(q, 7)
    if ks < 8:
        base, off = vW4a, ks * 7168
    elif ks < 12:
        base, off = vW4b, (ks - 8) * 7168
    else:
        base, off = vW4c, (ks - 12) * 7168
    wb = W4 + 4 * (q % NW4)
    a("ds_read_b64_tr_b16 %s, %s offset:%d" % (v(wb, 2), base, off + nt * 32))
    a("ds_read_b64_tr_b16 %s, %s offset:%d" % (v(wb + 2, 2), base, off + nt * 32 + 8 * 224))


def p4_load(ks, mt):
    if mt == 0 and ks and ks % 4 == 0:
        a("s_add_u32 %s, %s, 4096" % (sT4, sT4))
        a("s_add_u32 %s, %s, 4096" % (sE, sE))
    a("buffer_load_dwordx4 %s, %s, %s, %s offen offset:%d sc1" % (v(HF + 4 * (mt * 14 + ks), 4), vL16, WS, (sT4, sE)[mt], (ks % 4) * 1024))


for q in range(AHEAD):
    p4_wread(q)
poll(v(vT), vT + 2, "f3")
stamp("f3ok")
stamp("rt_f3ok")
UP = OPT["up4"]
for ks in range(UP):
    p4_load(ks, 0)
    p4_load(ks, 1)
    if ks == 1:
        for i in range(7):
            a("buffer_load_dwordx2 %s, %s, %s, %s offen offset:%d sc1" % (v(SPR + 2 * i, 2), vSPA, WS, sT3, 256 * i))
assert UP >= 3
for ks in range(14):
    if ks == 3:
        for i in range(1, 7):
            a("v_pk_add_f32 %s, %s, %s" % (v(SPR, 2), v(SPR, 2), v(SPR + 2 * i, 2)))
        xhalf_sum(v(SPR), v(SPR + 2))
        xhalf_sum(v(SPR + 1), v(SPR + 2))
        ln_finish(v(SPR), v(SPR + 1), v(NM4[0]), v(RS4[0]), v(SPR + 2))
        a("v_mul_f32 %s, %s, %s" % (v(NM4[0]), v(NM4[0]), v(RS4[0])))
        a("v_mov_b32 %s, %s" % (v(NM4[1]), v(NM4[0])))
        a("v_mov_b32 %s, %s" % (v(RS4[1]), v(RS4[0])))
        a("v_permlane16_swap_b32 %s, %s" % (v(NM4[0]), v(NM4[1])))
        a("v_permlane16_swap_b32 %s, %s" % (v(RS4[0]), v(RS4[1])))
        for r_ in NM4 + RS4:
            a("v_mov_b32 %s, %s" % (v(r_ + 1), v(r_)))
    if ks in (1, 7):
        stamp("p4_k%d" % ks)
    for nt in range(7):
        q = ks * 7 + nt
        if q == 7 * OPT["kb"] + 2:
            a("s_barrier")
        if q == 7 * OPT["kb"] + 9:
            a("s_barrier")
        lg = min(2 * (AHEAD - 1), 2 * (97 - q))
        if OPT["w2"] and nt in (0, 2, 4):
            lg = max(0, min(2 * (AHEAD - 2), 2 * (97 - q - 1)))
        if nt == 0:
            later = 2 * (min(13, ks + UP - 1) - ks) + (7 if ks <= 1 else 0)
            a("s_waitcnt vmcnt(%d) lgkmcnt(%d)" % (later, lg))
        elif not OPT["w2"] or nt in (2, 4, 6):
            a("s_waitcnt lgkmcnt(%d)" % lg)
        if q + AHEAD < 98:
            p4_wread(q + AHEAD)
        wb = W4 + 4 * (q % NW4)
        for mt in range(2):
            acc = v(A4 + 4 * (mt * 7 + nt), 4)
            a("v_mfma_f32_16x16x32_bf16 %s, %s, %s, %s" % (acc, v(wb, 4), v(HF + 4 * (mt * 14 + ks), 4), "0" if ks == 0 else acc))
        if nt < 2 and ks + UP < 14:
            p4_load(ks + UP, nt)
stamp("p4_mfma")
CS4 = 200
a("v_lshlrev_b32 %s, 4, %s" % (v(vT), vQ4))
a("v_add_u32 %s, %d, %s" % (v(vT), L_CS1, v(vT)))
for nt in range(7):
    a("ds_read_b128 %s, %s offset:%d" % (v(CS4 + 4 * nt, 4), v(vT), 64 * nt))
a("v_lshlrev_b32 %s, 9, %s" % (v(vT), vQ4))
a("v_lshl_add_u32 %s, %s, 4, %s" % (v(vT), vR, v(vT)))
a("v_lshrrev_b32 %s, 1, %s" % (v(vT + 1), vQ4))
a("v_lshlrev_b32 %s, 9, %s" % (v(vT + 1), v(vT + 1)))
a("v_lshl_add_u32 %s, %s, 4, %s" % (v(vT + 1), vR, v(vT + 1)))
a("v_and_b32 %s, 1, %s" % (v(vT + 3), vQ4))
a("v_lshl_add_u32 %s, %s, 3, %s" % (v(vT + 1), v(vT + 3), v(vT + 1)))
H1P = 32
TT = 64
st = ["s_waitcnt lgkmcnt(0)"]
for mt in range(2):
    for p in range(4):
        nts = (2 * p, 2 * p + 1) if p < 3 else (6,)
        for nt in nts:
            for c in range(2):
                st.append("v_pk_mul_f32 %s, %s, %s" % (v(TT + 4 * (nt & 1) + 2 * c, 2), v(CS4 + 4 * nt + 2 * c, 2), v(NM4[mt], 2)))
        for nt in nts:
            acc = A4 + 4 * (mt * 7 + nt)
            for c in range(2):
                st.append("v_pk_fma_f32 %s, %s, %s, %s" % (v(acc + 2 * c, 2), v(acc + 2 * c, 2), v(RS4[mt], 2), v(TT + 4 * (nt & 1) + 2 * c, 2)))
        for nt in nts:
            acc = A4 + 4 * (mt * 7 + nt)
            hp = H1P + 16 * mt + 2 * nt
            for c in range(2):
                st.append("v_cvt_pk_bf16_f32 %s, %s, %s" % (v(hp + c), v(acc + 2 * c), v(acc + 2 * c + 1)))
        for nt in nts:
            hp = H1P + 16 * mt + 2 * nt
            for c in range(2):
                st.append("v_pk_max_i16 %s, %s, %s" % (v(hp + c), v(hp + c), vZ))
        if p < 3:
            so, off = (sA, p * 2048 + mt * 256) if p < 2 else (sB, mt * 256)
            st.append("buffer_store_dwordx4 %s, %s, %s, %s offen offset:%d{sc}" % (v(H1P + 16 * mt + 4 * p, 4), v(vT), WS, so, off))
        else:
            st.append("buffer_store_dwordx2 %s, %s, %s, %s offen offset:%d{sc}" % (v(H1P + 16 * mt + 12, 2), v(vT + 1), WS, sB, 2048 + mt * 256))
publish(st, sC, data_sc1=bool(OPT["h1sc"]))
if OPT["st4"]:
    a("v_min_u32 %s, 55, %s" % (v(vT), vL))
    a("v_lshlrev_b32 %s, 7, %s" % (v(vT), v(vT)))
    a("buffer_load_dword v26, %s, %s, %s offen sc1" % (v(vT), WS, sA))
stamp("h1_pub")
stamp("rt_h1pub")
a("s_cmp_ge_u32 %s, 14" % sJ)
a("s_cbranch_scc1 Lend")

RF = 64
NRF = 16
WB5 = 128
AD5 = 208
a("s_mul_i32 %s, %s, %d" % (sT0, sKH, UNIT))
for pat, hm in enumerate((4, 8)):
    tr_base_128(v(AD5 + 6 * pat), v(AD5 + 6 * pat + 1), hm, sT0, 0)
    for b, off in ((1, 4 * UNIT), (2, L_WO)):
        for k in range(2):
            a("v_add_u32 %s, %d, %s" % (v(AD5 + 6 * pat + 2 * b + k), off, v(AD5 + 6 * pat + k)))
UMAP = {0: (2, 0), 1: (2, 2 * UNIT), 2: (0, 0), 3: (0, 2 * UNIT), 4: (1, 0), 5: (2, 0), 6: (2, 2 * UNIT), 7: (0, 0)}


def p5_wread(i):
    n, u = divmod(i, 7)
    b, off = UMAP[n]
    wb = WB5 + 8 * (i % 4)
    if u < 6:
        pat, r0, d2 = 0, 32 * (u >> 1) + 8 * (u & 1), 16
    else:
        pat, r0, d2 = 1, 96, 4
    for k in range(2):
        base = v(AD5 + 6 * pat + 2 * b + k)
        a("ds_read_b64_tr_b16 %s, %s offset:%d" % (v(wb + 4 * k, 2), base, off + r0 * 128))
        a("ds_read_b64_tr_b16 %s, %s offset:%d" % (v(wb + 4 * k + 2, 2), base, off + (r0 + d2) * 128))


ex_addrs()
for i in range(8):
    a("v_lshlrev_b32 %s, 16, %s" % (v(XF + 2 * i), v(vXRES + i)))
    a("v_and_b32 %s, 0xffff0000, %s" % (v(XF + 2 * i + 1), v(vXRES + i)))
sum_s(sT0, [(sTILE, 128), (sKH, 64)], WS_F4)
a("v_and_b32 %s, 7, %s" % (v(vT), vL))
a("v_lshlrev_b32 %s, 3, %s" % (v(vT), v(vT)))
a("v_add_u32 %s, %s, %s" % (v(vT), sT0, v(vT)))
sum_s(sT4, [(sTILE, 112 * 1024), (sKH, 56 * 1024)], WS_H1)
a("s_barrier")
stamp("b12")
for i in range(3):
    p5_wread(i)
poll(v(vT), vT + 2, "f4")
stamp("f4ok")
stamp("rt_f4ok")


def p5_load(i):
    n, u = divmod(i, 7)
    if u == 0:
        a("s_add_u32 %s, %s, %d" % (sT0, sNB, n))
        a("s_and_b32 %s, %s, 7" % (sT0, sT0))
        a("s_mul_i32 %s, %s, 7168" % (sT0, sT0))
        a("s_add_u32 %s, %s, %s" % (sT3, sT4, sT0))
    if u == 4:
        a("s_add_u32 %s, %s, 4096" % (sT3, sT3))
    a("buffer_load_dwordx4 %s, %s, %s, %s offen offset:%d sc1" % (v(RF + 4 * (i % NRF), 4), vL16, WS, sT3, (u % 4) * 1024))


UP = OPT["up5"]
assert UP < NRF
for i in range(UP):
    p5_load(i)
BARS = {14, 21, 35}
nread = 3
for i in range(56):
    if i in BARS:
        a("s_barrier")
        stamp("p5_b%d" % i)
    while nread < 56 and nread <= i + 2 and not any(i < b <= nread for b in BARS):
        p5_wread(nread)
        nread += 1
    lg = 4 * (nread - 1 - i)
    vm = min(UP - 1, 55 - i)
    a("s_waitcnt vmcnt(%d) lgkmcnt(%d)" % (vm, lg))
    if nread < 56 and nread <= i + 3 and not any(i < b <= nread for b in BARS):
        p5_wread(nread)
        nread += 1
    wb = WB5 + 8 * (i % 4)
    rf = v(RF + 4 * (i % NRF), 4)
    a("v_mfma_f32_32x32x16_bf16 %s, %s, %s, %s" % (v(AS, 16), v(wb + 4, 4), rf, "0" if i == 0 else v(AS, 16)))
    if i + UP < 56:
        p5_load(i + UP)
    a("v_mfma_f32_32x32x16_bf16 %s, %s, %s, %s" % (v(AK, 16), v(wb, 4), rf, "0" if i == 0 else v(AK, 16)))
stamp("p5_mfma")
exchange()
OUTP = 64
residual_add(OUTP)
for jj in range(4):
    a("buffer_store_dwordx2 %s, %s, %s, %s offen offset:%d" % (v(OUTP + 2 * jj, 2), vXOFF, OUT, sXO, 16 * jj))
stamp("end")
stamp("rt_end")
a("s_endpgm")

a.label("Lhelper2")
a("s_barrier")
bg("C")
if OPT["b9b"]:
    a("s_barrier")
bg("C2")
stamp("h_w1b")
if OPT["pt_h1"] == 1:
    sum_s(sT0, [(sG, 448 * 1024), (sJ, 28 * 1024), (sHW, 7168)], WS_H1)
    touch_lines(WS, sT0, 56, sc1=True)
C1 = 32
C1B = 40
cA, cB, cONE = "v68", "v69", "v70"
RS0 = 72
a("v_lshrrev_b32 %s, 1, %s" % (v(vT), vQ4))
a("v_lshlrev_b32 %s, 4, %s" % (v(vT), v(vT)))
a("v_and_b32 %s, 1, %s" % (v(vT + 1), vQ4))
a("v_lshl_add_u32 %s, %s, 2, %s" % (v(vT), v(vT + 1), v(vT)))
a("v_lshrrev_b32 %s, 2, %s" % (v(vT + 1), vR))
a("v_add_u32 %s, %s, %s" % (v(vT), v(vT), v(vT + 1)))
a("v_mul_u32_u24 %s, 224, %s" % (v(vT), v(vT)))
a("v_and_b32 %s, 3, %s" % (v(vT + 1), vL))
a("v_lshl_add_u32 %s, %s, 3, %s" % (cA, v(vT + 1), v(vT)))
a("s_mul_i32 %s, %s, 7168" % (sT0, sHW))
a("v_add_u32 %s, %s, %s" % (cA, sT0, cA))
a("v_add_u32 %s, %d, %s" % (cB, L_W1U, cA))
a("v_mov_b32 %s, 0x3f803f80" % cONE)
for nt in range(7):
    a("v_mov_b32 %s, 0" % v(C1 + nt))


def cs1_block(base, off):
    for nt in range(7):
        a("ds_read_b64_tr_b16 %s, %s offset:%d" % (v(C1B + 4 * nt, 2), base, off + nt * 32))
        a("ds_read_b64_tr_b16 %s, %s offset:%d" % (v(C1B + 4 * nt + 2, 2), base, off + nt * 32 + 8 * 224))
    a("s_waitcnt lgkmcnt(0)")
    for i in range(4):
        for nt in range(7):
            a("v_dot2c_f32_bf16 %s, %s, %s" % (v(C1 + nt), v(C1B + 4 * nt + i), cONE))


cs1_block(cA, 8 * 7168)
a("s_barrier")
a("s_waitcnt vmcnt(0)")
stamp("h_w1_landed")
cs1_block(cA, 0)
cs1_block(cA, 4 * 7168)
a("s_barrier")


def unit_index(dst, n_s, n_imm):
    if n_s:
        a("s_add_u32 %s, %s, %s" % (dst, sNB, n_s))
        if n_imm:
            a("s_add_u32 %s, %s, %d" % (dst, dst, n_imm))
    else:
        a("s_add_u32 %s, %s, %d" % (dst, sNB, n_imm))
    a("s_and_b32 %s, %s, 7" % (dst, dst))
    a("s_lshl_b32 %s, %s, 3" % (sT5, sMH))
    a("s_add_u32 %s, %s, %s" % (dst, dst, sT5))


def w2_rows(n, to_reg=None, lds_s=None, lds_imm=0):
    for i in range(n):
        if to_reg is None:
            dma(vWO, W2, sT3, lds_s, lds_imm + i * 1024)
        elif not OPT["nobg"]:
            a("buffer_load_dwordx4 %s, %s, %s, %s offen" % (v(to_reg + 4 * i, 4), vWO, W2, sT3))
        if i < n - 1:
            a("s_add_u32 %s, %s, %d" % (sT3, sT3, 8 * 896))


def stage(nfull, nhalf, reg):
    unit_index(sT0, sKH, nfull)
    a("s_mul_i32 %s, %s, %d" % (sT3, sT0, 112 * 896))
    w2_rows(14, to_reg=reg)
    unit_index(sT0, None, nhalf)
    sum_s(sT3, [(sT0, 112 * 896), (sKH, 7 * 8 * 896)])
    w2_rows(7, to_reg=reg + 56)


def dump(reg, n, addr, off):
    for i in range(n):
        a("ds_write_b128 %s, %s offset:%d" % (addr, v(reg + 4 * i, 4), off + 1024 * i))


lab = a.newlabel("Lnou")
a("s_cmp_ge_u32 %s, 2" % sHW)
a("s_cbranch_scc1 %s" % lab)
w1_block(12)
a("s_waitcnt vmcnt(0)")
cs1_block(cB, 0)
a.label(lab)
bg("D")
for nt in range(7):
    xhalf_sum(v(C1 + nt), v(vT))
    xrow_sum(v(C1 + nt), v(vT))
sum_s(sT0, [(sHW, 448)], L_CSP)
a("v_lshl_add_u32 %s, %s, 2, %s" % (v(vT), vR, sT0))
for nt in range(7):
    a("ds_write_b32 %s, %s offset:%d" % (v(vT), v(C1 + nt), 64 * nt))
a("s_waitcnt lgkmcnt(0)")
a("s_barrier")
lab = a.newlabel("Lnocs1")
a("s_cmp_lg_u32 %s, 4" % sWAVE)
a("s_cbranch_scc1 %s" % lab)
a("v_min_u32 %s, 55, %s" % (v(vT), vL))
a("v_lshlrev_b32 %s, 3, %s" % (v(vT), v(vT)))
a("v_add_u32 %s, %d, %s" % (v(vT + 1), L_CSP, v(vT)))
for k in range(4):
    a("ds_read_b64 %s, %s offset:%d" % (v(40 + 2 * k, 2), v(vT + 1), 448 * k))
a("s_waitcnt lgkmcnt(0)")
for c in range(2):
    a("v_add_f32 %s, %s, %s" % (v(40 + c), v(40 + c), v(42 + c)))
    a("v_add_f32 %s, %s, %s" % (v(44 + c), v(44 + c), v(46 + c)))
    a("v_add_f32 %s, %s, %s" % (v(40 + c), v(40 + c), v(44 + c)))
a("v_add_u32 %s, %d, %s" % (v(vT + 1), L_CS1, v(vT)))
a("ds_write_b64 %s, %s" % (v(vT + 1), v(40, 2)))
a("s_waitcnt lgkmcnt(0)")
a.label(lab)
a("s_barrier")
bg("D2")
a("s_cmp_ge_u32 %s, 14" % sJ)
a("s_cbranch_scc1 Lend")
unit_index(sT0, sKH, 0)
a("s_mul_i32 %s, %s, %d" % (sT3, sT0, 112 * 896))
a("s_mul_i32 %s, %s, %d" % (sT1, sHW, UNIT))
w2_rows(14, lds_s=sT1, lds_imm=L_WO)
stage(2, 4, RS0)
if OPT["r2early"]:
    stage(5, 7, RS0 + 84)
a("v_add_u32 v40, %s, %s" % (sT1, vL16))
a("v_add_u32 v41, %d, v40" % L_WO)
sum_s(sT1, [(sMH, UNIT), (sKH, 7168)])
a("v_add_u32 v42, %s, %s" % (sT1, vL16))
stamp("h_w2_issued")
NR = 0 if OPT["nobg"] else 21
a("s_waitcnt vmcnt(%d)" % (2 * NR if OPT["r2early"] else NR))
stamp("h_w2a_landed")
a("s_barrier")
a("s_waitcnt vmcnt(%d)" % (NR if OPT["r2early"] else 0))
dump(RS0, 14, "v40", 0)
dump(RS0 + 56, 7, "v42", 4 * UNIT)
if not OPT["r2early"]:
    stage(5, 7, RS0 + 84)
a("s_waitcnt lgkmcnt(0)")
stamp("h_w2b_landed")
a("s_barrier")
a("s_waitcnt vmcnt(0)")
dump(RS0 + 84, 14, "v41", 0)
a("s_barrier")
dump(RS0 + 84 + 56, 7, "v42", 0)
a("s_waitcnt lgkmcnt(0)")
a("s_barrier")
a("s_barrier")
a.label("Lend")
a("s_endpgm")
a.raw("Lcode_end:")
a.raw('.section .rodata,"a"')
a.raw(".p2align 6")
a.raw(".amdhsa_kernel %s" % KNAME)
a.raw("  .amdhsa_next_free_vgpr 256")
a.raw("  .amdhsa_next_free_sgpr 102")
a.raw("  .amdhsa_accum_offset 256")
a.raw("  .amdhsa_group_segment_fixed_size 0")
a.raw("  .amdhsa_kernarg_size 72")
a.raw("  .amdhsa_user_sgpr_count 2")
a.raw("  .amdhsa_user_sgpr_kernarg_segment_ptr 1")
a.raw("  .amdhsa_system_sgpr_workgroup_id_x 1")
a.raw(".end_amdhsa_kernel")
open(sys.argv[1], "w").write(a.text())
json.dump(STAMPS, open(sys.argv[1] + ".stamps.json", "w"))
print("instructions:", a.count)
```

```python
import sys, math, struct, re, json
from asmlib import Asm, lds_conflicts

KNAME = "sequential_preLN__sliding_block__dense_activation_relu__prompt_kernel"
OPT = dict(stamps="", force_slow=0, nobg=0, t_w1=1, t_w2=1, pt_h1=0, up3=8, up4=8, up5=8, dry=0, psleep=0, gw=0, rotj=0, init2=1, pt_c=3, h1sc=1, bgA=1, ic=2, fc=4, P3="", A="wo", B="w18+tw1", C="w10+w14", C2="", D="", b9b=0, warm=0, kb=5, r2early=1, D2="", st4=0, ohsc=0, svc="", bm=0, prio=0, w2=1, diag=0, nt=0, sent=1, dbg=0, tlb=0, cq="D", hpt=0, bars=1)
for a_ in sys.argv[2:]:
    k_, v_ = a_.split("=")
    OPT[k_] = v_ if isinstance(OPT[k_], str) else int(v_)


def f32(x):
    return "0x%08x" % struct.unpack("<I", struct.pack("<f", x))[0]


QT = 336 * 256
WS_QKV = 0
WS_O = 6 << 20
WS_H = 8 << 20
WS_H1 = 10 << 20
WS_F1 = 17 << 20
WS_F2 = WS_F1 + 0x10000
WS_F3 = WS_F1 + 0x20000
WS_F4 = WS_F1 + 0x30000
WS_HS = WS_F1 + 0x40000
WS_ST = WS_F1 + 0x80000
WS_TS = 18 << 20
WS_SIZE = 32 << 20

L_XR = 86016
L_KV = 0
L_Q = 12 * 4096
L_WO = 86016
L_W1U = 144384
L_SCR = 144384
L_CSP = 158720
L_MISC = 160768
L_CS = L_MISC
L_ST = L_MISC + 384
L_EP = L_ST + 1024
L_CS1 = L_EP + 64
LDS_BYTES = 163840
UNIT = 14336

X, WQKV, WO, W1, W2, OUT, DBG, WS = ["s[%d:%d]" % (4 + 4 * i, 7 + 4 * i) for i in range(8)]
sG, sJ, sWAVE, sR0, sXCC, sFAST = "s36", "s37", "s38", "s39", "s40", "s41"
sEP = "s[42:43]"
sEPL, sEPH = "s42", "s43"
sROT, sHW, sMH2, sNB, sKH, sMH = "s44", "s45", "s46", "s47", "s48", "s49"
sHI = "s[50:51]"
sLT48 = "s[52:53]"
sQ3 = "s[54:55]"
sHW1K, sHW4K = "s56", "s57"
sCNT = "s58"
sSLOT = "s59"
sT0, sT1, sT2, sT3, sT4, sT5 = "s60", "s61", "s62", "s63", "s64", "s65"
sTS = "s[66:67]"
sTSOFF = "s68"
sXO = "s69"
sCX, sCW = "s70", "s71"
sTILE, sTILE4 = "s72", "s73"
sRU = "s88"
sA, sB, sC, sD, sE, sF = "s74", "s75", "s76", "s77", "s78", "s79"

vL, vL31, vH, vR, vQ4, vL16, vTMP = "v1", "v2", "v3", "v4", "v5", "v6", "v7"
vXRES = 8
vFLG = 16
vT = 18
vZ = "v24"
vXOFF = "v25"
HP = 240


def v(i, n=1):
    return "v%d" % i if n == 1 else "v[%d:%d]" % (i, i + n - 1)


a = Asm()
STAMPS = {}


DBGW = {"t0": 2, "rt_start": 3, "m_b0": 4, "m_p1end": 5, "b8": 6, "o_pub": 7, "f2ok": 8, "h_pub": 9, "f3ok": 10, "h1_pub": 11, "f4ok": 12, "end": 13, "rt_end": 14}


def stamp(name):
    if OPT["dbg"] and name in DBGW:
        lab = a.newlabel("Ldbg")
        a("s_lshl_b32 s93, s2, 3")
        a("s_add_u32 s93, s93, %s" % sWAVE)
        a("s_cmp_lg_u32 s93, %d" % (OPT["dbg"] * 8))
        a("s_cbranch_scc1 %s" % lab)
        a(("s_memrealtime %s" if name.startswith("rt_") else "s_memtime %s") % sTS)
        a("s_waitcnt lgkmcnt(0)")
        a("v_mov_b32 v30, s66")
        a("v_mov_b32 v29, 0")
        a("s_mov_b64 exec, 1")
        a("buffer_store_dword v30, v29, %s, 0 offen offset:%d" % (DBG, DBGW[name] * 4))
        a("s_mov_b64 exec, -1")
        a.label(lab)
        return
    if not OPT["stamps"] or not (name == "t0" or re.fullmatch(OPT["stamps"], name)):
        return
    idx = STAMPS.setdefault(name, len(STAMPS))
    assert idx < 30
    a(("s_memrealtime %s" if name.startswith("rt_") else "s_memtime %s") % sTS)
    a("s_waitcnt lgkmcnt(0)")
    a("v_mov_b32 v30, s66")
    a("v_mov_b32 v31, s67")
    a("v_mov_b32 v29, 0")
    a("s_mov_b64 exec, 1")
    a("buffer_store_dwordx2 v[30:31], v29, %s, %s offen offset:%d" % (WS, sTSOFF, idx * 8))
    a("s_mov_b64 exec, -1")


def dma(voff, srd, soff, lds_s, lds_imm, inst=0, sc1=False):
    if OPT["nobg"] and srd in (WO, W1, W2):
        return
    m = lds_imm - inst
    if lds_s is None:
        a("s_mov_b32 m0, %d" % m)
    else:
        a("s_add_u32 m0, %s, %d" % (lds_s, m))
    nt = (srd == X and OPT["nt"] & 1) or (srd == WQKV and OPT["nt"] & 2) or (srd in (WO, W1) and OPT["nt"] & 16)
    a("buffer_load_dwordx4 %s, %s, %s offen%s%s%s lds" % (voff, srd, soff, (" offset:%d" % inst) if inst else "", " sc1" if sc1 else "", " nt" if nt else ""))


def sum_s(dst, terms, const=0):
    first = True
    for sreg, mult in terms:
        tgt = dst if first else sT5
        if mult == 1:
            if first:
                a("s_mov_b32 %s, %s" % (dst, sreg))
            else:
                a("s_add_u32 %s, %s, %s" % (dst, dst, sreg))
            first = False
            continue
        if mult & (mult - 1) == 0:
            a("s_lshl_b32 %s, %s, %d" % (tgt, sreg, mult.bit_length() - 1))
        else:
            a("s_mul_i32 %s, %s, %d" % (tgt, sreg, mult))
        if not first:
            a("s_add_u32 %s, %s, %s" % (dst, dst, sT5))
        first = False
    if const:
        a("s_add_u32 %s, %s, %d" % (dst, dst, const))


def poll(vaddr, vd, name):
    lp, dn = a.newlabel("Lpoll_" + name), a.newlabel("Lpolld_" + name)
    a("s_mov_b32 %s, 0x20000" % sCNT)
    a.label(lp)
    a("buffer_load_dwordx2 %s, %s, %s, 0 offen sc1" % (v(vd, 2), vaddr, WS))
    a("s_sub_u32 %s, %s, 1" % (sCNT, sCNT))
    a("s_waitcnt vmcnt(0)")
    a("v_and_b32 %s, -8, %s" % (v(vd), v(vd)))
    a("v_cmp_ne_u64 vcc, %s, %s" % (sEP, v(vd, 2)))
    a("s_cmp_eq_u32 %s, 0" % sCNT)
    a("s_cbranch_scc1 %s" % dn)
    if OPT["psleep"]:
        a("s_cbranch_vccz %s" % dn)
        a("s_sleep %d" % OPT["psleep"])
        a("s_branch %s" % lp)
    else:
        a("s_cbranch_vccnz %s" % lp)
    a.label(dn)


def flag_store(soff, sc):
    a("s_mov_b64 exec, 1")
    a("buffer_store_dwordx2 %s, %s, %s, %s offen%s" % (v(vFLG, 2), vZ, WS, soff, sc))
    a("s_mov_b64 exec, -1")


def publish(stores, flag_soff, data_sc1=False):
    if data_sc1:
        for s_ in stores:
            a(s_.format(sc=" sc1"))
        stores = []

    def emit(sc):
        for s_ in stores:
            a(s_.format(sc=sc))
        a("s_waitcnt vmcnt(0)")
        flag_store(flag_soff, sc)
    ls, le = a.newlabel("Lslow"), a.newlabel("Lpub")
    a("s_cmp_eq_u32 %s, 0" % sFAST)
    a("s_cbranch_scc1 %s" % ls)
    emit("")
    a("s_branch %s" % le)
    a.label(ls)
    emit(" sc1")
    a.label(le)


def bf16r(dst, src):
    a("v_cvt_pk_bf16_f32 %s, %s, %s" % (dst, src, src))
    a("v_and_b32 %s, 0xffff0000, %s" % (dst, dst))


def ln_finish(sx, sxx, negmean, rstd, t0):
    a("v_mul_f32 %s, %s, %s" % (sx, f32(1.0 / 448), sx))
    a("v_mul_f32 %s, %s, %s" % (sxx, f32(1.0 / 448), sxx))
    a("v_fma_f32 %s, -%s, %s, %s" % (sxx, sx, sx, sxx))
    a("v_max_f32 %s, 0, %s" % (sxx, sxx))
    bf16r(sxx, sxx)
    a("v_add_f32 %s, %s, %s" % (sxx, f32(1e-5), sxx))
    bf16r(sxx, sxx)
    a("v_sqrt_f32 %s, %s" % (sxx, sxx))
    bf16r(sxx, sxx)
    a("v_rcp_f32 %s, %s" % (rstd, sxx))
    bf16r(t0, sx)
    a("v_sub_f32 %s, 0, %s" % (negmean, t0))


def xhalf_sum(x, t):
    a("v_mov_b32 %s, %s" % (t, x))
    a("v_permlane32_swap_b32 %s, %s" % (x, t))
    a("v_add_f32 %s, %s, %s" % (x, x, t))


def xrow_sum(x, t):
    a("v_mov_b32 %s, %s" % (t, x))
    a("v_permlane16_swap_b32 %s, %s" % (x, t))
    a("v_add_f32 %s, %s, %s" % (x, x, t))


def get_epoch_spin(name):
    lp, dn = "Lep_%s" % name, "Lepd_%s" % name
    a("s_mov_b32 %s, 0x20000" % sCNT)
    a.label(lp)
    a("s_waitcnt vmcnt(0)")
    a("v_readfirstlane_b32 %s, %s" % (sEPL, v(vFLG)))
    a("v_readfirstlane_b32 %s, %s" % (sEPH, v(vFLG + 1)))
    a("s_cmp_lg_u32 %s, 0" % sEPL)
    a("s_cbranch_scc1 %s" % dn)
    a("buffer_load_dwordx2 %s, %s, %s, 0 offen sc1" % (v(vFLG, 2), vZ, DBG))
    a("s_sub_u32 %s, %s, 1" % (sCNT, sCNT))
    a("s_cmp_lg_u32 %s, 0" % sCNT)
    a("s_cbranch_scc1 %s" % lp)
    a.label(dn)


hdr = open("sequential_preLN__sliding_block__dense_activation_relu__prompt.s.ref").read().split("\n")
for ln in hdr:
    if ln.startswith("; @launch"):
        a.raw("; @launch grid=(256,1,1) block=(512,1,1) lds=%d" % LDS_BYTES)
        break
    a.raw(ln)
a.raw('.amdgcn_target "amdgcn-amd-amdhsa--gfx950"')
a.raw(".text")
a.raw(".globl %s" % KNAME)
a.raw(".p2align 8")
a.raw(".type %s,@function" % KNAME)
a.raw("%s:" % KNAME)

if OPT["diag"]:
    a("s_memtime s[96:97]")
a("s_load_dwordx16 s[72:87], s[0:1], 0")
a("s_load_dwordx2 s[88:89], s[0:1], 64")
a("s_getpc_b64 s[90:91]")
a.raw("Lpc:")
a("v_and_b32 %s, 63, v0" % vL)
a("v_lshrrev_b32 %s, 6, v0" % vTMP)
a("s_lshr_b32 %s, s2, 3" % sSLOT)
a("v_readfirstlane_b32 %s, %s" % (sWAVE, vTMP))
a("v_lshlrev_b32 %s, 7, %s" % (v(vT), vL))
a("s_cmp_ge_u32 s2, 256")
a("s_cbranch_scc1 Lend")
a("s_add_u32 %s, %s, %s" % (sT0, sSLOT, sWAVE))
a("s_and_b32 %s, %s, 7" % (sT0, sT0))
a("s_lshl_b32 %s, %s, 13" % (sT0, sT0))
a("v_add_u32 %s, %s, %s" % (v(vT), sT0, v(vT)))
a("v_min_u32 %s, Lcode_end-Lpc-4, %s" % (v(vT), v(vT)))
a("v_mov_b32 %s, s91" % v(vT + 1))
a("v_add_co_u32 %s, vcc, s90, %s" % (v(vT), v(vT)))
a("v_addc_co_u32 %s, vcc, 0, %s, vcc" % (v(vT + 1), v(vT + 1)))
a("s_cmp_ge_u32 %s, 2" % sWAVE)
a("s_cbranch_scc1 Lnocp")
a("global_load_dword v26, %s, off" % v(vT, 2))
a.label("Lnocp")
a("v_and_b32 %s, 31, v0" % vL31)
a("v_bfe_u32 %s, v0, 5, 1" % vH)
a("v_and_b32 %s, 15, v0" % vR)
a("v_bfe_u32 %s, v0, 4, 2" % vQ4)
a("v_lshlrev_b32 %s, 4, %s" % (vL16, vL))
a("v_mov_b32 %s, 0" % vZ)
a("s_and_b32 %s, s2, 7" % sT0)
a("s_lshr_b32 %s, %s, 4" % (sT2, sSLOT))
a("s_lshl_b32 %s, %s, 1" % (sG, sT0))
a("s_add_u32 %s, %s, %s" % (sG, sG, sT2))
a("s_and_b32 %s, %s, 15" % (sJ, sSLOT))
a("s_lshl_b32 %s, %s, 7" % (sR0, sG))
a("s_and_b32 %s, %s, 3" % (sHW, sWAVE))
a("s_lshl_b32 %s, %s, 10" % (sHW1K, sHW))
a("s_lshl_b32 %s, %s, 12" % (sHW4K, sHW))
if OPT["rotj"]:
    a("s_mul_i32 %s, %s, 3" % (sT3, sT2))
    a("s_add_u32 %s, %s, %s" % (sROT, sJ, sT3))
    for _ in range(2):
        a("s_sub_u32 %s, %s, 7" % (sT3, sROT))
        a("s_cmp_ge_u32 %s, 7" % sROT)
        a("s_cselect_b32 %s, %s, %s" % (sROT, sT3, sROT))
else:
    a("s_lshl_b32 %s, %s, 2" % (sROT, sT2))
vX = [32, 33, 34, 35]
vW = [36, 37, 38]
a("v_lshrrev_b32 %s, 3, %s" % (v(vT), vL))
a("s_lshl_b32 %s, %s, 5" % (sT0, sHW))
a("s_add_u32 %s, %s, %s" % (sT0, sT0, sR0))
a("v_add_u32 %s, %s, %s" % (v(vT), sT0, v(vT)))
a("v_mul_u32_u24 %s, 896, %s" % (v(vT), v(vT)))
a("v_and_b32 %s, 7, %s" % (v(vT + 1), vL))
a("v_xor_b32 %s, %s, %s" % (v(vT + 1), v(vT + 1), vQ4))
a("v_xor_b32 %s, 4, %s" % (v(vT + 2), v(vT + 1)))
for ii in range(4):
    a("v_lshl_add_u32 %s, %s, 4, %s" % (v(vX[ii]), v(vT + 1 + (ii & 1)), v(vT)))
    if ii:
        a("v_add_u32 %s, %d, %s" % (v(vX[ii]), ii * 8 * 896, v(vX[ii])))
a("s_mul_i32 %s, %s, %d" % (sT0, sHW, 16 * 2688))
a("s_mul_i32 %s, %s, 192" % (sT1, sJ))
a("s_add_u32 %s, %s, %s" % (sT0, sT0, sT1))
M12 = (1 << 16) // 12 + 1
for i in range(192):
    assert (i * M12) >> 16 == i // 12
for k in range(3):
    a("v_add_u32 %s, %d, %s" % (v(vT), 64 * k, vL))
    a("v_mul_u32_u24 %s, %d, %s" % (v(vT + 1), M12, v(vT)))
    a("v_lshrrev_b32 %s, 16, %s" % (v(vT + 1), v(vT + 1)))
    a("v_mul_u32_u24 %s, %d, %s" % (v(vT + 1), 2688 - 192, v(vT + 1)))
    a("v_lshl_add_u32 %s, %s, 4, %s" % (v(vW[k]), v(vT), v(vT + 1)))
    a("v_add_u32 %s, %s, %s" % (v(vW[k]), sT0, v(vW[k])))
if OPT["warm"]:
    a("s_mul_i32 %s, %s, 14" % (sT0, sT2))
    a("s_add_u32 %s, %s, %s" % (sT0, sT0, sJ))
    a("s_lshl_b32 %s, %s, 3" % (sT0, sT0))
    a("s_add_u32 %s, %s, %s" % (sT0, sT0, sWAVE))
    if OPT["warm"] in (1, 4):
        a("v_min_u32 v39, 41, %s" % vL)
        a("v_mul_u32_u24 v39, 224, v39")
        a("v_add_u32 v39, %s, v39" % sT0)
        a("v_lshlrev_b32 v39, 7, v39")
    else:
        a("s_mul_i32 %s, %s, 42" % (sT0, sT0))
        a("v_min_u32 v39, 41, %s" % vL)
        a("v_add_u32 v39, %s, v39" % sT0)
        a("v_lshlrev_b32 v39, 7, v39")
    sum_s(sT0, [(sJ, 8), (sWAVE, 1)])
    sum_s(sT1, [(sT0, 1024), (sR0, 896)])
    a("v_and_b32 v40, 7, %s" % vL)
    a("v_lshlrev_b32 v40, 7, v40")
    a("v_add_u32 v40, %s, v40" % sT1)
    a("s_mov_b32 %s, 0" % sROT)
a("s_mov_b32 %s, %s" % (sCX, sROT))
a("s_mov_b32 %s, %s" % (sCW, sROT))
a("s_mul_i32 s92, %s, 3072" % sHW)
sizes = [1835008, 1204224, 401408, 1605632, 1605632, 1835008, 256, WS_SIZE]
srcs = [72, 74, 76, 80, 82, 84, 86, 88]
for i in range(8):
    a("s_mov_b32 s%d, %d" % (4 + 4 * i + 2, sizes[i]))
    a("s_mov_b32 s%d, 0x00020000" % (4 + 4 * i + 3))
a("s_waitcnt lgkmcnt(0)")
for i in range(8):
    a("s_mov_b64 s[%d:%d], s[%d:%d]" % (4 + 4 * i, 5 + 4 * i, srcs[i], srcs[i] + 1))
a("s_cmp_ge_u32 %s, 14" % sJ)
a("s_cbranch_scc1 Lservice")
if OPT["warm"]:
    if OPT["warm"] >= 3:
        a("buffer_load_dword v26, v40, %s, 0 offen" % X)
    a("buffer_load_dword v26, v39, %s, 0 offen" % WQKV)
a("s_cmp_lt_u32 %s, 4" % sWAVE)
a("s_cbranch_scc1 Lmfma")


def common_setup():
    a("s_lshr_b32 %s, %s, 1" % (sKH, sHW))
    a("s_and_b32 %s, %s, 1" % (sMH, sHW))
    a("s_cmp_ge_u32 %s, 7" % sJ)
    a("s_cselect_b32 %s, 1, 0" % sMH2)
    a("s_mul_i32 %s, %s, 7" % (sT3, sMH2))
    a("s_sub_u32 %s, %s, %s" % (sNB, sJ, sT3))
    a("s_min_u32 %s, %s, 6" % (sNB, sNB))
    a("s_getreg_b32 %s, hwreg(HW_REG_XCC_ID)" % sXCC)
    a("s_and_b32 %s, %s, 7" % (sXCC, sXCC))
    a("s_mov_b32 s50, 0")
    a("s_mov_b32 s51, -1")
    a("s_mov_b32 s52, -1")
    a("s_mov_b32 s53, 0xffff")
    a("s_mov_b32 s54, 0")
    a("s_mov_b32 s55, 0xffff0000")
    a("s_mov_b32 %s, 0" % sFAST)
    a("s_mov_b32 %s, 0" % sEPL)
    a("s_mov_b32 %s, 0" % sEPH)
    if OPT["stamps"]:
        sum_s(sTSOFF, [("s2", 2048), (sWAVE, 256)], WS_TS)
    sum_s(sTILE, [(sG, 4), (sMH2, 2), (sMH, 1)])
    sum_s(sXO, [(sTILE, 32 * 896), (sNB, 128), (sKH, 64)])
    sum_s(sTILE4, [(sG, 4), (sHW, 1)])
    a("s_and_b32 %s, %s, 1" % (sT0, sG))
    sum_s(sRU, [(sT0, 4), (sMH2, 2), (sNB, 1)])
    a("v_mul_u32_u24 %s, 896, %s" % (vXOFF, vL31))
    a("v_lshl_add_u32 %s, %s, 3, %s" % (vXOFF, vH, vXOFF))
    a("v_lshlrev_b32 %s, 7, %s" % (v(HP + 8), vL))
    a("v_lshrrev_b32 %s, 3, %s" % (v(vT), vL))
    a("v_mul_u32_u24 %s, 896, %s" % (v(vT), v(vT)))
    a("v_bfe_u32 %s, %s, 4, 1" % (v(vT + 1), vL))
    a("v_lshlrev_b32 %s, 2, %s" % (v(vT + 1), v(vT + 1)))
    a("v_and_b32 %s, 7, %s" % (v(vT + 2), vL))
    a("v_xor_b32 %s, %s, %s" % (v(vT + 1), v(vT + 1), v(vT + 2)))
    a("v_lshl_add_u32 %s, %s, 4, %s" % (v(HP), v(vT + 1), v(vT)))
    a("s_lshl_b32 %s, %s, 7" % (sT0, sNB))
    a("v_add_u32 %s, %s, %s" % (v(HP), sT0, v(HP)))
    a("s_mul_i32 %s, %s, 224" % (sT0, sJ))
    for k in range(7):
        a("v_add_u32 %s, %d, %s" % (v(vT), 64 * k, vL))
        a("v_mul_u32_u24 %s, %d, %s" % (v(vT + 1), (1 << 16) // 14 + 1, v(vT)))
        a("v_lshrrev_b32 %s, 16, %s" % (v(vT + 1), v(vT + 1)))
        a("v_mul_u32_u24 %s, %d, %s" % (v(vT + 1), 3584 - 224, v(vT + 1)))
        a("v_lshl_add_u32 %s, %s, 4, %s" % (v(HP + 1 + k), v(vT), v(vT + 1)))
        a("v_add_u32 %s, %s, %s" % (v(HP + 1 + k), sT0, v(HP + 1 + k)))


for i in range(448):
    assert (i * ((1 << 16) // 14 + 1)) >> 16 == i // 14
vWO = v(HP)
vW1 = [HP + 1 + k for k in range(7)]
vTCH = v(HP + 8)


def tr_base_192(dst, t0):
    a("v_lshrrev_b32 %s, 2, %s" % (t0, vR))
    a("v_lshl_add_u32 %s, %s, 3, %s" % (t0, vH, t0))
    a("v_mul_u32_u24 %s, 192, %s" % (dst, t0))
    a("v_bfe_u32 %s, %s, 4, 1" % (t0, vL))
    a("v_lshl_add_u32 %s, %s, 5, %s" % (dst, t0, dst))
    a("v_and_b32 %s, 3, %s" % (t0, vL))
    a("v_lshl_add_u32 %s, %s, 3, %s" % (dst, t0, dst))


assert lds_conflicts([(8 * (l >> 5) + ((l & 15) >> 2)) * 192 + ((l >> 4) & 1) * 32 + (l & 3) * 8 for l in range(64)], "tr") == 0


def w1_block(base):
    a("s_add_u32 %s, %s, %d" % (sT0, sHW, base))
    a("s_mul_i32 %s, %s, %d" % (sT1, sT0, 32 * 3584))
    a("s_mul_i32 %s, %s, 7168" % (sT2, sHW))
    ldsb = base * 7168 if base < 12 else L_W1U + (base - 12) * 7168
    for k in range(7):
        dma(v(vW1[k]), W1, sT1, sT2, ldsb + k * 1024)


def touch_lines(srd, s_base, n, sc1=False):
    cnt = 0
    done = 0
    while done < n:
        k = min(64, n - done)
        if k < 64:
            a("v_min_u32 %s, %d, %s" % (v(vT), (k - 1) * 128, vTCH))
            vo = v(vT)
        else:
            vo = vTCH
        nt = (srd == WS and OPT["nt"] & 8) or (srd != WS and OPT["nt"] & 4)
        a("buffer_load_dword v26, %s, %s, %s offen%s%s" % (vo, srd, s_base, " sc1" if sc1 else "", " nt" if nt else ""))
        cnt += 1
        done += k
        if done < n:
            a("s_add_u32 %s, %s, %d" % (s_base, s_base, 64 * 128))
    return cnt


def touch_range(srd, base, total):
    if OPT["nobg"]:
        return 0
    per = total // 128 // 128
    assert per * 128 * 128 == total, (total, per)
    sum_s(sT0, [(sSLOT, 4 * per * 128), (sHW, per * 128)], base)
    return touch_lines(srd, sT0, per)


def wo_dma():
    a("s_mul_i32 %s, %s, %d" % (sT0, sHW, 8 * 896))
    for k in range(15):
        if k == 14:
            a("s_mov_b32 %s, %d" % (sT0, 56 * 8 * 896))
            dma(vWO, WO, sT0, None, L_WO + 56 * 1024)
        else:
            dma(vWO, WO, sT0, sHW1K, L_WO + k * 4096)
            a("s_add_u32 %s, %s, %d" % (sT0, sT0, 32 * 896))


def bg(slot):
    n = 0
    for it in [x for x in OPT[slot].split("+") if x]:
        if it == "wo":
            wo_dma(); n += 15
        elif it == "w18":
            w1_block(8); n += 7
        elif it == "w10":
            w1_block(0); n += 7
        elif it == "w14":
            w1_block(4); n += 7
        elif it == "tw1":
            n += touch_range(W1, 0, 256 * 3584)
        elif it == "tw1u":
            n += touch_range(W1, 384 * 3584, 64 * 3584)
        elif it == "tw1a":
            n += touch_range(W1, 0, 1605632)
        elif it == "two":
            n += touch_range(WO, 0, 393216)
        elif it == "tw2":
            n += touch_range(W2, 0, 1605632)
        elif it == "tw2a":
            n += touch_range(W2, 0, 802816)
        elif it == "tw2b":
            n += touch_range(W2, 802816, 802816)
        elif it == "tw2r":
            n += touch_range(W2, 393216, 1605632 - 393216 - 0 * 16384) if False else touch_range(W2, 393216, 1212416)
        elif it == "w2a":
            pass
        else:
            raise ValueError(it)
    return n


def vpad_prefill():
    a("v_mov_b32 %s, 0x3f80" % v(vT + 2))
    a("v_mov_b32 %s, 0" % v(vT + 3))
    a("s_mul_i32 %s, %s, %d" % (sT0, sHW, 3 * 4096))
    a("v_lshlrev_b32 %s, 3, %s" % (v(vT), vL31))
    a("v_lshl_add_u32 %s, %s, 12, %s" % (v(vT), vH, v(vT)))
    a("v_add_u32 %s, %s, %s" % (v(vT), sT0, v(vT)))
    a("ds_write_b64 %s, %s offset:%d" % (v(vT), v(vT + 2, 2), L_KV + 2048 + 1792))
    a("ds_write_b64 %s, %s offset:%d" % (v(vT), v(vT + 2, 2), L_KV + 4096 + 2048 + 1792))


sFA, sFB, sFC, sFD = "s84", "s85", "s86", "s87"
vIF = 236


def fetch_setup():
    a("v_lshrrev_b32 %s, 3, %s" % (v(vT), vL))
    a("v_min_u32 %s, 2, %s" % (v(vT), v(vT)))
    a("v_bfe_u32 %s, %s, 1, 2" % (v(vT + 1), vL))
    a("v_min_u32 %s, 2, %s" % (v(vT + 1), v(vT + 1)))
    a("v_cmp_gt_u32 vcc, 2, %s" % v(vT))
    a("v_max_u32 %s, 1, %s" % (v(vT + 2), v(vT + 1)))
    a("v_cndmask_b32 %s, %s, %s, vcc" % (v(vT + 1), v(vT + 1), v(vT + 2)))
    a("v_mul_u32_u24 %s, 448, %s" % (v(vT + 1), v(vT + 1)))
    a("v_and_b32 %s, 1, %s" % (v(vT + 2), vL))
    a("v_mul_u32_u24 %s, 31, %s" % (v(vT + 2), v(vT + 2)))
    a("s_mul_i32 %s, %s, 7" % (sT0, sJ))
    a("s_lshr_b32 %s, %s, 1" % (sE, sT0))
    a("s_lshl_b32 %s, %s, 3" % (sT0, sE))
    a("v_add3_u32 %s, %s, %s, %s" % (v(vT + 1), v(vT + 1), v(vT + 2), sT0))
    M96 = (1 << 18) // 96 + 1
    for i in range(1348):
        assert (i * M96) >> 18 == i // 96
    a("v_mul_u32_u24 %s, %d, %s" % (v(vT + 1), M96, v(vT + 1)))
    a("v_lshrrev_b32 %s, 18, %s" % (v(vT + 1), v(vT + 1)))
    a("v_min_u32 %s, 13, %s" % (v(vT + 1), v(vT + 1)))
    a("v_add_u32 %s, %s, %s" % (v(vT + 2), sG, v(vT)))
    a("v_cmp_gt_u32 vcc, 2, %s" % v(vT + 2))
    a("v_subrev_u32 %s, 2, %s" % (v(vT + 2), v(vT + 2)))
    a("v_mov_b32 %s, %s" % (v(vT + 3), sG))
    a("v_cndmask_b32 %s, %s, %s, vcc" % (v(vT + 2), v(vT + 2), v(vT + 3)))
    a("v_lshlrev_b32 %s, 9, %s" % (v(vT + 2), v(vT + 2)))
    a("v_lshl_add_u32 %s, %s, 3, %s" % (v(vT + 2), v(vT + 1), v(vT + 2)))
    sum_s(sT0, [(sHW, 128)], WS_F1)
    a("v_add_u32 v27, %s, %s" % (sT0, v(vT + 2)))
    sum_s(sFC, [(sTILE4, QT), (sE, 512)], WS_QKV)
    a("s_sub_u32 %s, %s, %d" % (sFB, sFC, 4 * QT))
    a("s_sub_u32 %s, %s, %d" % (sFA, sFC, 8 * QT))
    a("s_cmp_lt_u32 %s, 1" % sG)
    a("s_cselect_b32 %s, 0x40000000, %s" % (sFB, sFB))
    a("s_cmp_lt_u32 %s, 2" % sG)
    a("s_cselect_b32 %s, 0x40000000, %s" % (sFA, sFA))
    a("s_lshl_b32 %s, %s, 11" % (sFD, sHW))


SC, KB, QF, M0R, M16R, PF, VB, OA = 32, 100, 124, 128, 132, 136, 148, 172
LS, ONE4 = 196, 200
vKA = [180, 181]
vVA = [184, 185]
vQA = "v186"
vNEG, vGFA, vGF, vOA = "v188", "v189", 190, "v192"
sFQ, sFO = "s[80:81]", "s[82:83]"


def p2_setup():
    a("s_mul_i32 %s, %s, 7" % (sT4, sJ))
    a("s_lshr_b32 %s, %s, 1" % (sT4, sT4))
    a("v_add_u32 %s, %s, %s" % (v(vT + 3), sT4, vQ4))
    a("v_and_b32 %s, 1, %s" % (v(vT + 3), v(vT + 3)))
    a("v_mul_u32_u24 %s, 12, %s" % (v(vT + 3), v(vT + 3)))
    a("v_bfe_u32 %s, %s, 1, 1" % (v(vT + 4), vR))
    a("v_add_u32 %s, %s, %s" % (v(vT + 5), sT4, v(vT + 4)))
    a("v_and_b32 %s, 1, %s" % (v(vT + 5), v(vT + 5)))
    a("v_mul_u32_u24 %s, 12, %s" % (v(vT + 5), v(vT + 5)))
    for par in range(2):
        a("s_add_u32 %s, %s, %d" % (sT0, sWAVE, par))
        a("s_lshr_b32 %s, %s, 1" % (sT1, sT0))
        a("s_lshl_b32 %s, %s, 12" % (sT1, sT1))
        a("s_and_b32 %s, %s, 1" % (sT0, sT0))
        a("s_lshl_b32 %s, %s, 4" % (sT0, sT0))
        a("v_add_u32 %s, %s, %s" % (v(vT), sT0, vR))
        a("v_xor_b32 %s, %s, %s" % (v(vT), v(vT), v(vT + 3)))
        a("v_lshlrev_b32 %s, 4, %s" % (v(vT), v(vT)))
        a("v_lshl_add_u32 %s, %s, 9, %s" % (v(vT), vQ4, v(vT)))
        a("v_add_u32 %s, %s, %s" % (v(vKA[par]), sT1, v(vT)))
        if par == 0:
            a("s_lshr_b32 %s, %s, 1" % (sT2, sT1))
            a("s_add_u32 %s, %s, %d" % (sT2, sT2, L_Q))
            a("v_add_u32 %s, %s, %s" % (vQA, sT2, v(vT)))
        a("v_lshrrev_b32 %s, 2, %s" % (v(vT), vR))
        a("v_lshl_add_u32 %s, %s, 2, %s" % (v(vT), vQ4, v(vT)))
        a("v_add_u32 %s, %s, %s" % (v(vT), sT0, v(vT)))
        a("v_xor_b32 %s, %s, %s" % (v(vT), v(vT), v(vT + 5)))
        a("v_lshlrev_b32 %s, 4, %s" % (v(vT), v(vT)))
        a("v_lshl_add_u32 %s, %s, 9, %s" % (v(vT), v(vT + 4), v(vT)))
        a("v_and_b32 %s, 1, %s" % (v(vT + 1), vR))
        a("v_lshl_add_u32 %s, %s, 3, %s" % (v(vT), v(vT + 1), v(vT)))
        a("v_add_u32 %s, %s, %s" % (v(vVA[par]), sT1, v(vT)))
    for o_ in range(2):
        for half in range(2):
            assert lds_conflicts([(l >> 4) * 512 + (((16 * half + (l & 15)) ^ (12 * ((o_ + (l >> 4)) & 1))) * 16) for l in range(64)], "b128") == 0
            assert lds_conflicts([((l >> 1) & 1) * 512 + (((16 * half + 4 * (l >> 4) + ((l & 15) >> 2)) ^ (12 * ((o_ + ((l >> 1) & 1)) & 1))) * 16) + (l & 1) * 8 for l in range(64)], "tr") == 0
    a("s_and_b32 %s, %s, 1" % (sT0, sJ))
    a("s_cmp_eq_u32 %s, 0" % sT0)
    a("s_cselect_b32 s80, 0, 0xffff")
    a("s_mov_b32 s81, 0")
    a("s_mov_b32 s82, 0")
    a("s_cselect_b32 s83, 0xffff0000, 0")
    for k in range(4):
        a("v_mov_b32 %s, 0x3f803f80" % v(ONE4 + k))
    a("v_mov_b32 %s, 0xf149f2ca" % vNEG)
    a("v_lshlrev_b32 %s, 2, %s" % (v(vT), vQ4))
    a("v_sub_u32 %s, %s, %s" % (v(vT), v(vT), vR))
    for c in range(4):
        a("v_cmp_lt_i32 vcc, %d, %s" % (-c, v(vT)))
        a("v_cndmask_b32 %s, %s, %s, vcc" % (v(M0R + c), vNEG, vZ))
        a("v_cndmask_b32 %s, %s, %s, vcc" % (v(M16R + c), vZ, vNEG))
    sum_s(sT0, [(sG, 512)], WS_F1)
    a("v_lshlrev_b32 %s, 3, %s" % (vGFA, vR))
    a("v_add_u32 %s, %s, %s" % (vGFA, sT0, vGFA))
    a("s_lshr_b32 %s, %s, 1" % (sT1, sWAVE))
    a("s_and_b32 %s, %s, 1" % (sT2, sWAVE))
    sum_s(sE, [(sG, 131072), (sT1, 32768), (sJ, 2048), (sT2, 256)], WS_O)
    sum_s(sF, [(sG, 1024), (sWAVE, 128), (sJ, 8)], WS_F2)
    a("v_lshlrev_b32 %s, 9, %s" % (vOA, vQ4))
    a("v_lshl_add_u32 %s, %s, 4, %s" % (vOA, vR, vOA))
    a("v_mov_b32 %s, 0" % v(PF + 8 + 2))
    a("v_mov_b32 %s, 0" % v(PF + 8 + 3))




def adv(s):
    a("s_add_u32 %s, %s, 1" % (s, s))
    a("s_cmp_eq_u32 %s, 7" % s)
    a("s_cselect_b32 %s, 0, %s" % (s, s))


def issue_w(c):
    a("s_mul_i32 %s, %s, %d" % (sT1, sCW, 64 * 2688))
    for k in range(3):
        dma(v(vW[k]), WQKV, sT1, "s92", c * 12288 + k * 1024)
    adv(sCW)


def issue_x(c):
    a("s_lshl_b32 %s, %s, 7" % (sT0, sCX))
    for ii in range(4):
        dma(v(vX[ii]), X, sT0, sHW4K, L_XR + (c % 4) * 16384 + ii * 1024)
    adv(sCX)


GW = [{0: [0, 1], 1: [2, 3], 2: [4], 3: [5], 4: [6], 5: [], 6: []},
      {0: [0], 1: [1], 2: [2, 3], 3: [4, 5], 4: [6], 5: [], 6: []},
      {0: [0], 1: [1, 2], 2: [3, 4], 3: [5], 4: [6], 5: [], 6: []}][OPT["gw"]]


def issue_group(c):
    ws = list(GW[c])
    while ws and (ws[0] <= c or (OPT["gw"] == 0 and c <= 1)):
        issue_w(ws.pop(0))
    issue_x(c)
    for w_ in ws:
        issue_w(w_)
    return 4 + 3 * len(GW[c])


if OPT["warm"]:
    common_setup()
    a("s_waitcnt vmcnt(0)")
if OPT["diag"]:
    a("s_memtime s[98:99]")
    issue_w(0)
    a("s_waitcnt vmcnt(0)")
    a("s_memtime s[100:101]")
    a("s_mov_b32 %s, %s" % (sCW, sROT))
groups = [issue_group(0), issue_group(1)]
if not OPT["warm"]:
    common_setup()
if OPT["diag"]:
    a("s_waitcnt lgkmcnt(0)")
    for nm, r_ in (("d_entry", 96), ("d_karg", 98), ("d_first", 100)):
        idx = STAMPS.setdefault("t0", 0)
        idx = STAMPS.setdefault(nm, len(STAMPS))
        a("v_mov_b32 v30, s%d" % r_)
        a("v_mov_b32 v31, s%d" % (r_ + 1))
        a("s_mov_b64 exec, 1")
        a("buffer_store_dwordx2 v[30:31], %s, %s, %s offen offset:%d" % (vZ, WS, sTSOFF, idx * 8))
        a("s_mov_b64 exec, -1")
    groups[-1] += 3
stamp("t0")
stamp("rt_start")
hCS = [48, 49, 50, 51, 52, 53]
hWA, hWA2 = "v54", "v55"
HBW = 60
hST = 76
for r_ in hCS:
    a("v_mov_b32 %s, 0" % v(r_))
tr_base_192(hWA, v(vT))
a("v_add_u32 %s, s92, %s" % (hWA, hWA))
a("v_add_u32 %s, %d, %s" % (hWA2, 5 * 12288, hWA))
a("v_lshlrev_b32 v56, 4, %s" % vL31)
a("v_mov_b32 v57, 0x3f803f80")
sum_s(sA, [(sTILE4, 512)], WS_ST)


def colsum_w(c):
    if OPT["dry"] & 1:
        return
    base, off = (hWA2, (c - 5) * 12288) if c >= 5 else (hWA, c * 12288)
    for p3 in range(3):
        for hh in range(2):
            a("ds_read_b64_tr_b16 %s, %s offset:%d" % (v(HBW + 4 * p3 + 2 * hh, 2), base, off + p3 * 64 + hh * 768))
    a("s_waitcnt lgkmcnt(0)")
    for i in range(4):
        for p3 in range(3):
            a("v_dot2c_f32_bf16 %s, %s, v57" % (v(hCS[2 * p3]), v(HBW + 4 * p3 + i)))


for c in range(7):
    after = sum(groups[c + 1:])
    if c == 6:
        a("v_mov_b32 %s, %d" % (v(vT), L_EP))
        a("ds_read_b64 %s, %s" % (v(vFLG, 2), v(vT)))
        a("s_waitcnt lgkmcnt(0)")
        a("v_readfirstlane_b32 %s, %s" % (sEPL, v(vFLG)))
        a("v_readfirstlane_b32 %s, %s" % (sEPH, v(vFLG + 1)))
        a("v_or_b32 %s, %s, %s" % (v(vFLG), sXCC, v(vFLG)))
        a("s_mov_b32 %s, 0x20000" % sCNT)
        a("s_waitcnt vmcnt(%d)" % sum(groups[8:]))
        a.label("Lst_loop")
        a("v_cmp_ne_u32 vcc, %s, %s" % (sEPL, v(hST + 1)))
        a("v_cmp_ne_u32 s[94:95], %s, %s" % (sEPH, v(hST + 3)))
        a("s_or_b64 vcc, vcc, s[94:95]")
        a("s_cbranch_scc0 Lst_ok")
        a("buffer_load_dwordx4 %s, v56, %s, %s offen sc1" % (v(hST, 4), WS, sA))
        a("s_sub_u32 %s, %s, 1" % (sCNT, sCNT))
        a("s_waitcnt vmcnt(0)")
        a("s_cmp_lg_u32 %s, 0" % sCNT)
        a("s_cbranch_scc1 Lst_loop")
        a.label("Lst_ok")
        sum_s(sT0, [(sHW, 256)], L_ST)
        a("v_lshl_add_u32 %s, %s, 2, %s" % (v(vT), vL31, sT0))
        a("ds_write_b32 %s, %s" % (v(vT), v(hST)))
        a("ds_write_b32 %s, %s offset:128" % (v(vT), v(hST + 2)))
        a("s_waitcnt lgkmcnt(0)")
    else:
        a("s_waitcnt vmcnt(%d)" % after)
    a("s_barrier")
    stamp("h_b%d" % c)
    if c == 0:
        groups.append(issue_group(2))
    if c + 3 <= 6:
        groups.append(issue_group(c + 3))
    if c == 3:
        a("buffer_load_dwordx4 %s, v56, %s, %s offen sc1" % (v(hST, 4), WS, sA))
        groups.append(1)
    if c == 3 and OPT["hpt"] and not OPT["ohsc"]:
        sum_s(sT0, [(sG, 114688), (sJ, 8192), (sHW, 2048)], WS_H)
        groups.append(touch_lines(WS, sT0, 16, sc1=True))
    if c == 3 and OPT["P3"]:
        groups.append(bg("P3"))
    if c == OPT["pt_c"] and OPT["pt_h1"] == 3:
        sum_s(sT0, [(sG, 448 * 1024), (sJ, 32 * 1024), (sHW, 8192)], WS_H1)
        groups.append(touch_lines(WS, sT0, 64, sc1=True))
    for w_ in GW[c]:
        colsum_w(w_)
    if c == 4:
        for p3 in range(3):
            a("v_add_f32 %s, %s, %s" % (v(hCS[2 * p3]), v(hCS[2 * p3]), v(hCS[2 * p3 + 1])))
            xhalf_sum(v(hCS[2 * p3]), v(vT))
        sum_s(sT0, [(sHW, 384)], L_CSP)
        a("v_lshl_add_u32 %s, %s, 2, %s" % (v(vT), vL31, sT0))
        for p3 in range(3):
            a("ds_write_b32 %s, %s offset:%d" % (v(vT), v(hCS[2 * p3]), 128 * p3))
        a("s_waitcnt lgkmcnt(0)")
    if c == 5:
        a("s_min_u32 %s, %s, 2" % (sT0, sHW))
        a("s_lshl_b32 %s, %s, 7" % (sT0, sT0))
        a("s_add_u32 %s, %s, %d" % (sT1, sT0, L_CSP))
        a("v_lshl_add_u32 %s, %s, 2, %s" % (v(vT + 4), vL31, sT1))
        a("s_add_u32 %s, %s, %d" % (sT1, sT0, L_CS))
        a("v_lshl_add_u32 %s, %s, 2, %s" % (v(vT + 5), vL31, sT1))
        for k in range(4):
            a("ds_read_b32 %s, %s offset:%d" % (v(HBW + k), v(vT + 4), 384 * k))
        a("s_waitcnt lgkmcnt(0)")
        a("v_add_f32 %s, %s, %s" % (v(HBW), v(HBW), v(HBW + 1)))
        a("v_add_f32 %s, %s, %s" % (v(HBW + 2), v(HBW + 2), v(HBW + 3)))
        a("v_add_f32 %s, %s, %s" % (v(HBW), v(HBW), v(HBW + 2)))
        a("ds_write_b32 %s, %s" % (v(vT + 5), v(HBW)))
a("s_barrier")
bg("A")
stamp("h_wo")
a("s_branch Lp2")

a.label("Lservice")
a("s_sub_u32 %s, %s, 14" % (sT0, sJ))
sum_s(sT1, [(sT0, 64), (sWAVE, 8), (sR0, 1)])
a("s_mul_i32 %s, %s, 896" % (sT2, sT1))
a("v_lshrrev_b32 %s, 3, %s" % (v(vT), vL))
a("v_mul_u32_u24 %s, 896, %s" % (v(40), v(vT)))
a("v_and_b32 %s, 7, %s" % (v(vT + 1), vL))
a("v_lshl_add_u32 %s, %s, 4, %s" % (v(40), v(vT + 1), v(40)))
SX = 44
for i in range(7):
    a("buffer_load_dwordx4 %s, v40, %s, %s offen offset:%d%s" % (v(SX + 4 * i, 4), X, sT2, 128 * i, " nt" if OPT["nt"] & 1 else ""))
a("buffer_load_dwordx2 %s, %s, %s, 0 offen sc1" % (v(vFLG, 2), vZ, DBG))
a("s_lshl_b32 %s, %s, 4" % (sA, sT1))
a("s_add_u32 %s, %s, %d" % (sA, sA, WS_ST))
a("v_lshlrev_b32 v41, 4, %s" % v(vT))
common_setup()
stamp("t0")
stamp("rt_start")
a("v_mov_b32 v42, 0")
a("v_mov_b32 v43, 0")
a("v_mov_b32 v39, 0x3f803f80")
a("s_waitcnt vmcnt(1)")
for i in range(28):
    a("v_dot2c_f32_bf16 v42, %s, v39" % v(SX + i))
    a("v_dot2c_f32_bf16 v43, %s, %s" % (v(SX + i), v(SX + i)))
for sw in (0x041F, 0x081F, 0x101F):
    a("ds_swizzle_b32 %s, v42 offset:0x%x" % (v(vT + 2), sw))
    a("ds_swizzle_b32 %s, v43 offset:0x%x" % (v(vT + 3), sw))
    a("s_waitcnt lgkmcnt(0)")
    a("v_add_f32 v42, v42, %s" % v(vT + 2))
    a("v_add_f32 v43, v43, %s" % v(vT + 3))
ln_finish("v42", "v43", v(SX), v(SX + 2), v(vT + 2))
get_epoch_spin("svc")
a("v_mov_b32 %s, %s" % (v(SX + 1), sEPL))
a("v_mov_b32 %s, %s" % (v(SX + 3), sEPH))
a("v_or_b32 %s, %s, %s" % (v(vFLG), sXCC, v(vFLG)))
a("buffer_store_dwordx4 %s, v41, %s, %s offen sc1" % (v(SX, 4), WS, sA))
sum_s(sT0, [(sG, 512), (sJ, 8)], WS_F1)
flag_store(sT0, " sc1")
stamp("svc_st")
a("s_waitcnt vmcnt(0)")
a("s_barrier")
a("s_sub_u32 %s, %s, 14" % (sT0, sJ))
sum_s(sT4, [(sT0, 8), (sWAVE, 1)])
if not OPT["ohsc"]:
    sum_s(sT1, [(sG, 131072), (sT4, 8192)], WS_O)
    touch_lines(WS, sT1, 64, sc1=True)
    if not OPT["hpt"]:
        sum_s(sT1, [(sG, 114688), (sT4, 7168)], WS_H)
        touch_lines(WS, sT1, 56, sc1=True)
    sum_s(sT1, [(sG, 16384), (sT4, 1024)], WS_HS)
    touch_lines(WS, sT1, 8, sc1=True)
sum_s(sT1, [(sG, 1024)], WS_F2)
touch_lines(WS, sT1, 8, sc1=True)
sum_s(sT1, [(sG, 512)], WS_F3)
touch_lines(WS, sT1, 4, sc1=True)
sum_s(sT1, [(sG, 512)], WS_F4)
touch_lines(WS, sT1, 4, sc1=True)
a("s_and_b32 %s, %s, 1" % (sT0, sG))
sum_s(sT3, [(sT0, 16), (sT4, 1)])
for it in [x for x in OPT["svc"].split("+") if x]:
    srd, base, total = {"wo": (WO, 0, 401408), "w2q": (W2, 0, 401408), "w2q2": (W2, 401408, 401408), "w1q": (W1, 0, 401408)}[it]
    per = total // 128 // 32
    sum_s(sT1, [(sT3, per * 128)], base)
    touch_lines(srd, sT1, per)
if OPT["pt_h1"] == 2:
    sum_s(sT1, [(sG, 448 * 1024), (sT4, 28 * 1024)], WS_H1)
    touch_lines(WS, sT1, 224, sc1=True)
fetch_setup()
a("s_cmp_lt_u32 %s, 4" % sWAVE)
a("s_cbranch_scc1 Lfetch")
if "w18" in OPT["A"]:
    w1_block(8)
a("s_branch Lp2")

a.label("Lmfma")
a("s_or_b32 %s, s2, %s" % (sT0, sWAVE))
a("s_cmp_lg_u32 %s, 0" % sT0)
a("s_cbranch_scc1 Lnoep")
a("s_memrealtime s[94:95]")
a("s_waitcnt lgkmcnt(0)")
a("s_lshl_b32 %s, s94, 4" % sT1)
a("s_or_b32 %s, %s, 8" % (sT1, sT1))
a("s_mul_i32 %s, s94, 0x9e3779b1" % sT2)
a("s_add_u32 %s, %s, s95" % (sT2, sT2))
a("v_mov_b32 %s, %s" % (v(vT), sT1))
a("v_mov_b32 %s, %s" % (v(vT + 1), sT2))
a("s_mov_b64 exec, 1")
a("buffer_store_dwordx2 %s, %s, %s, 0 offen sc1" % (v(vT, 2), vZ, DBG))
a("s_mov_b64 exec, -1")
a.label("Lnoep")
if OPT["tlb"]:
    a("s_cmp_lg_u32 %s, 3" % sWAVE)
    a("s_cbranch_scc1 Lnotlb")
    a("v_min_u32 %s, 18, %s" % (v(vT), vL))
    a("v_lshlrev_b32 %s, 20, %s" % (v(vT), v(vT)))
    a("buffer_load_dword v26, %s, %s, 0 offen" % (v(vT), WS))
    a("v_min_u32 %s, 1, %s" % (v(vT), vL))
    a("v_lshlrev_b32 %s, 20, %s" % (v(vT), v(vT)))
    for srd in (OUT, W1, W2):
        a("buffer_load_dword v26, %s, %s, 0 offen" % (v(vT), srd))
    a("buffer_load_dword v26, %s, %s, 0 offen" % (vZ, WO))
    a.label("Lnotlb")
common_setup()
stamp("t0")
stamp("rt_start")
ACC = 32
FB = 80
vXA = [148, 149, 150, 151]
vWA, vWA2 = "v152", "v153"
vSA, vCA = "v154", "v155"
vQo = ["v156", "v157"]
CS = 160
PK = 208
vNM, vRS = 232, 234
a("v_bfe_u32 %s, %s, 1, 3" % (v(vT), vL31))
a("v_xor_b32 %s, %s, %s" % (v(vT), v(vT), vH))
a("v_lshlrev_b32 %s, 7, %s" % (v(vT + 1), vL31))
a("v_add_u32 %s, %s, %s" % (v(vT + 1), sHW4K, v(vT + 1)))
a("v_add_u32 %s, %d, %s" % (v(vT + 1), L_XR, v(vT + 1)))
for s in range(4):
    a("v_xor_b32 %s, %d, %s" % (v(vT + 2), 2 * s, v(vT)))
    a("v_lshl_add_u32 %s, %s, 4, %s" % (v(vXA[s]), v(vT + 2), v(vT + 1)))
    assert lds_conflicts([(l & 31) * 128 + (((2 * s + (l >> 5)) ^ (((l & 31) >> 1) & 7)) * 16) for l in range(64)], "b128") == 0
tr_base_192(vWA, v(vT))
a("v_add_u32 %s, %d, %s" % (vWA2, 5 * 12288, vWA))
sum_s(sT0, [(sHW, 256)], L_ST)
a("v_lshl_add_u32 %s, %s, 2, %s" % (vSA, vL31, sT0))
a("v_lshlrev_b32 %s, 4, %s" % (vCA, vH))
a("v_add_u32 %s, %d, %s" % (vCA, L_CS, vCA))
a("v_mul_u32_u24 %s, 12, %s" % (v(vT), vH))
a("v_xor_b32 %s, %s, %s" % (v(vT), v(vT), vL))
a("v_lshlrev_b32 %s, 4, %s" % (vQo[0], v(vT)))
sum_s(sA, [(sTILE4, QT), (sJ, 12 * 512)], WS_QKV)
a("s_add_u32 %s, %s, 4096" % (sC, sA))
sum_s(sD, [(sTILE4, 128), (sJ, 8)], WS_F1)


def p1_reads(c, s):
    if OPT["dry"] & 2:
        return
    fb = FB + 16 * s
    a("ds_read_b128 %s, %s offset:%d" % (v(fb, 4), v(vXA[s]), (c % 4) * 16384))
    base, off = (vWA2, (c - 5) * 12288) if c >= 5 else (vWA, c * 12288)
    for p3 in range(3):
        for hh in range(2):
            a("ds_read_b64_tr_b16 %s, %s offset:%d" % (v(fb + 4 + 4 * p3 + 2 * hh, 2), base, off + p3 * 64 + s * 3072 + hh * 768))


def p1_mfma(c, s, fill=None):
    if OPT["dry"] & 2:
        return
    fb = FB + 16 * s
    first = (c == 0 and s == 0)
    for p3 in range(3):
        acc = v(ACC + 16 * p3, 16)
        a("v_mfma_f32_32x32x16_bf16 %s, %s, %s, %s" % (acc, v(fb + 4 + 4 * p3, 4), v(fb, 4), "0" if first else acc))
        if fill:
            for _ in range(6):
                if fill:
                    a(fill.pop(0))


for k in range(4):
    a("v_mov_b32 %s, -1" % v(PK + k))
def sentinel_init():
    for i in range(6 if OPT["sent"] else 0):
        a("buffer_store_dwordx4 %s, %s, %s, %s offen offset:%d sc1" % (v(PK, 4), vL16, WS, sA if i < 4 else sC, 1024 * (i % 4)))
    a("buffer_load_dwordx2 %s, %s, %s, 0 offen sc1" % (v(vFLG, 2), vZ, DBG))


if OPT["ic"] < 0:
    sentinel_init()
fetch_setup()
a("s_barrier")
stamp("m_b0")
p1_reads(0, 0)
p1_reads(0, 1)
for c in range(7):
    fill = []
    if c == 1:
        for jj in range(4):
            a("buffer_load_dwordx2 %s, %s, %s, %s offen offset:%d" % (v(vXRES + 2 * jj, 2), vXOFF, X, sXO, 16 * jj))
    if c == OPT["ic"]:
        sentinel_init()
    if c == 6 and OPT["sent"]:
        a("buffer_load_dwordx2 %s, v27, %s, 0 offen sc1" % (v(vIF, 2), WS))
    a("s_waitcnt lgkmcnt(7)")
    p1_mfma(c, 0)
    p1_reads(c, 2)
    a("s_waitcnt lgkmcnt(7)")
    p1_mfma(c, 1)
    p1_reads(c, 3)
    if c == 6:
        a("ds_read_b32 %s, %s" % (v(vNM), vSA))
        a("ds_read_b32 %s, %s offset:128" % (v(vRS), vSA))
        a("s_waitcnt lgkmcnt(9)")
        p1_mfma(c, 2)
        a("s_waitcnt lgkmcnt(2)")
        for i in range(12):
            a("ds_read_b128 %s, %s offset:%d" % (v(CS + 4 * i, 4), vCA, 32 * i))
        p1_mfma(c, 3)
    else:
        a("s_waitcnt lgkmcnt(7)")
        p1_mfma(c, 2)
        if c == OPT["fc"]:
            get_epoch_spin("m")
            a("v_mov_b32 %s, %d" % (v(vT + 2), L_EP))
            a("ds_write_b64 %s, %s" % (v(vT + 2), v(vFLG, 2)))
            a("v_or_b32 %s, %s, %s" % (v(vFLG), sXCC, v(vFLG)))
            if OPT["sent"]:
                flag_store(sD, " sc1")
        a("s_waitcnt lgkmcnt(0)")
        a("s_barrier")
        stamp("m_b%d" % (c + 1))
        p1_reads(c + 1, 0)
        p1_reads(c + 1, 1)
        p1_mfma(c, 3)
a("s_waitcnt lgkmcnt(12)")
a("v_mul_f32 %s, %s, %s" % (v(vNM), v(vNM), v(vRS)))
a("v_mov_b32 %s, %s" % (v(vRS + 1), v(vRS)))
a("v_mov_b32 %s, %s" % (v(vNM + 1), v(vNM)))
stamp("m_p1end")
for i in range(3):
    a("s_waitcnt lgkmcnt(%d)" % (8 - 4 * i))
    for k in range(8):
        r_ = CS + 16 * i + 2 * k
        a("v_pk_mul_f32 %s, %s, %s" % (v(r_, 2), v(r_, 2), v(vNM, 2)))
for i in range(3):
    for k in range(8):
        r_ = ACC + 16 * i + 2 * k
        a("v_pk_fma_f32 %s, %s, %s, %s" % (v(r_, 2), v(r_, 2), v(vRS, 2), v(CS + 16 * i + 2 * k, 2)))
    for k in range(8):
        a("v_cvt_pk_bf16_f32 %s, %s, %s" % (v(PK + 8 * i + k), v(ACC + 16 * i + 2 * k), v(ACC + 16 * i + 2 * k + 1)))
    for m in range(2):
        for k in range(2):
            a("v_permlane32_swap_b32 %s, %s" % (v(PK + 8 * i + 4 * m + k), v(PK + 8 * i + 4 * m + 2 + k)))
    for m in range(2):
        a("buffer_store_dwordx4 %s, %s, %s, %s offen offset:%d sc1" % (v(PK + 8 * i + 4 * m, 4), vQo[0], WS, sA if i < 2 else sC, (2048 * i if i < 2 else 0) + 1024 * m))
stamp("m_epi1")
stamp("rt_epi1")
if OPT["sent"]:
    a("s_barrier")
    a("s_waitcnt vmcnt(6)")
    a("v_and_b32 %s, -8, %s" % (v(vIF), v(vIF)))
    a("v_cmp_ne_u64 vcc, %s, %s" % (sEP, v(vIF, 2)))
    a("s_cbranch_vccz Lfetch_go")
else:
    a("s_waitcnt vmcnt(0)")
    flag_store(sD, " sc1")
    a("s_barrier")

a.label("Lfetch")
poll("v27", vT + 2, "f1")
a.label("Lfetch_go")
stamp("m_f1ok")
stamp("rt_f1ok")
a("v_add_u32 v32, %s, %s" % (sHW4K, vL16))
a("v_add_u32 v33, %s, %s" % (sFD, vL16))
a("s_mov_b32 %s, 0x4000" % sCNT)


def fetch_dma():
    for kind, sb in ((2, sFC), (1, sFB), (0, sFA)):
        if kind == 2:
            dma(vL16, WS, sb, sFD, L_Q, sc1=True)
            dma(vL16, WS, sb, sFD, L_Q + 1024, inst=1024, sc1=True)
        a("s_add_u32 %s, %s, %d" % (sT0, sb, 56 * 512))
        a("s_add_u32 %s, %s, %d" % (sT1, sb, 112 * 512))
        lb = L_KV + kind * 16384
        dma(vL16, WS, sT0, sHW4K, lb, sc1=True)
        dma(vL16, WS, sT0, sHW4K, lb + 1024, inst=1024, sc1=True)
        dma(vL16, WS, sT1, sHW4K, lb + 2048, sc1=True)
        dma(vL16, WS, sT1, sHW4K, lb + 3072, inst=1024, sc1=True)


fetch_dma()
p2_setup()
a.label("Lfetch_val")
if not OPT["sent"]:
    a("s_waitcnt vmcnt(0)")
    a("s_branch Lp2b")
VR = 36
order = [("v33", L_Q), ("v33", L_Q + 1024)] + [("v32", L_KV + kind * 16384 + 1024 * q) for kind in (2, 1, 0) for q in range(4)]
for n, (ad, off) in enumerate(order):
    if n in (0, 6, 10):
        a("s_waitcnt vmcnt(%d)" % {0: 8, 6: 4, 10: 0}[n])
    a("ds_read_b128 %s, %s offset:%d" % (v(VR + 4 * n, 4), ad, off))
a("v_mov_b32 v34, 0")
a("v_mov_b32 v35, 0")
for n in range(14):
    if n in (0, 6, 10):
        a("s_waitcnt lgkmcnt(%d)" % {0: 8, 6: 4, 10: 0}[n])
    a("v_max3_u32 v34, v34, %s, %s" % (v(VR + 4 * n), v(VR + 4 * n + 1)))
    a("v_max3_u32 v35, v35, %s, %s" % (v(VR + 4 * n + 2), v(VR + 4 * n + 3)))
a("v_max_u32 v34, v34, v35")
a("v_cmp_eq_u32 vcc, -1, v34")
a("s_sub_u32 %s, %s, 1" % (sCNT, sCNT))
a("s_cmp_eq_u32 %s, 0" % sCNT)
a("s_cbranch_scc1 Lfetch_done")
a("s_cbranch_vccz Lfetch_done")
fetch_dma()
a("s_branch Lfetch_val")
a.label("Lfetch_done")
if OPT["stamps"]:
    a("v_mov_b32 v30, %s" % sCNT)
    a("v_mov_b32 v31, 0")
    a("s_mov_b64 exec, 1")
    a("buffer_store_dwordx2 v[30:31], %s, %s, %s offen offset:%d" % (vZ, WS, sTSOFF, 30 * 8))
    a("s_mov_b64 exec, -1")
a("s_branch Lp2b")

a.label("Lp2")
p2_setup()
a.label("Lp2b")
stamp("kv_landed")
a("s_barrier")
stamp("b8")
stamp("rt_b8")
a(("s_cmp_ge_u32 %s, 4" if OPT["bm"] else "s_cmp_lt_u32 %s, 4") % sWAVE)
a("s_cbranch_scc1 Lp2go")
bg("B")
a.label("Lp2go")
a("buffer_load_dwordx2 %s, %s, %s, 0 offen sc1" % (v(vGF, 2), vGFA, WS))
a("ds_read_b128 %s, %s" % (v(QF, 4), vQA))
NKB = 6


def kread(i):
    a("ds_read_b128 %s, %s offset:%d" % (v(KB + 4 * (i % NKB), 4), v(vKA[i & 1]), (i >> 1) * 4096))


for i in range(NKB):
    kread(i)
for i in range(17):
    rem = min(NKB - 1, 16 - i)
    a("s_waitcnt lgkmcnt(%d)" % rem)
    if i == 0:
        for k in range(2):
            a("v_cndmask_b32 %s, %s, %s, %s" % (v(QF + k), v(QF + k), vZ, sFQ))
            a("v_cndmask_b32 %s, %s, %s, %s" % (v(QF + 2 + k), v(QF + 2 + k), vZ, sFO))
    cc = v(M0R, 4) if i == 0 else (v(M16R, 4) if i == 16 else "0")
    a("v_mfma_f32_16x16x32_bf16 %s, %s, %s, %s" % (v(SC + 4 * i, 4), v(KB + 4 * (i % NKB), 4), v(QF, 4), cc))
    if i + NKB < 17:
        kread(i + NKB)


def vread(n):
    p, dt = n >> 1, n & 1
    for b in range(2):
        par = b if p < 8 else 0
        a("ds_read_b64_tr_b16 %s, %s offset:%d" % (v(VB + 4 * (n % NKB) + 2 * b, 2), v(vVA[par]), 2048 + p * 4096 + dt * 1024))


for n in range(NKB):
    vread(n)
a("s_cmp_ge_u32 %s, 2" % sG)
a("s_cbranch_scc1 Lnoinv")
a("s_lshl_b32 %s, %s, 3" % (sT0, sG))
a("s_add_u32 %s, %s, %s" % (sT0, sT0, sWAVE))
a("s_sub_u32 %s, 16, %s" % (sT0, sT0))
for i in range(16):
    a("s_cmp_le_u32 %s, %d" % (sT0, i))
    a("s_cbranch_scc1 Lnoinv")
    for c in range(4):
        a("v_mov_b32 %s, %s" % (v(SC + 4 * i + c), vNEG))
a.label("Lnoinv")
vM, vM2 = v(vT), v(vT + 1)
a("v_max3_f32 %s, %s, %s, %s" % (vM, v(SC), v(SC + 1), v(SC + 2)))
a("v_max3_f32 %s, %s, %s, %s" % (vM2, v(SC + 3), v(SC + 4), v(SC + 5)))
i = 6
flip = 0
while i < 68:
    tgt = vM if flip == 0 else vM2
    a("v_max3_f32 %s, %s, %s, %s" % (tgt, tgt, v(SC + i), v(SC + i + 1)))
    i += 2
    flip ^= 1
a("v_max_f32 %s, %s, %s" % (vM, vM, vM2))
a("v_mov_b32 %s, %s" % (vM2, vM))
a("v_permlane32_swap_b32 %s, %s" % (vM, vM2))
a("v_max_f32 %s, %s, %s" % (vM, vM, vM2))
a("v_mov_b32 %s, %s" % (vM2, vM))
a("v_permlane16_swap_b32 %s, %s" % (vM, vM2))
a("v_max_f32 %s, %s, %s" % (vM, vM, vM2))
CSC = (28.0 ** -0.5) * math.log2(math.e)
a("s_mov_b32 %s, %s" % (sT0, f32(CSC)))
a("v_mul_f32 %s, %s, %s" % (vM, f32(-CSC), vM))
for p in range(9):
    ne = 8 if p < 8 else 4
    for i in range(ne):
        a("v_fma_f32 %s, %s, %s, %s" % (v(SC + 8 * p + i), v(SC + 8 * p + i), sT0, vM))
    for i in range(ne):
        a("v_exp_f32 %s, %s" % (v(SC + 8 * p + i), v(SC + 8 * p + i)))
    pf = PF + 4 * (p % 2) if p < 8 else PF + 8
    for i in range(ne // 2):
        a("v_cvt_pk_bf16_f32 %s, %s, %s" % (v(pf + i), v(SC + 8 * p + 2 * i), v(SC + 8 * p + 2 * i + 1)))
    a("v_mfma_f32_16x16x32_bf16 %s, %s, %s, %s" % (v(LS, 4), v(ONE4, 4), v(pf, 4), "0" if p == 0 else v(LS, 4)))
    for dt in range(2):
        n = 2 * p + dt
        rem = min(NKB - 1, 17 - n)
        a("s_waitcnt lgkmcnt(%d)" % (2 * rem))
        cc = "0" if p == 0 else v(OA + 4 * dt, 4)
        a("v_mfma_f32_16x16x32_bf16 %s, %s, %s, %s" % (v(OA + 4 * dt, 4), v(VB + 4 * (n % NKB), 4), v(pf, 4), cc))
        if n + NKB < 18:
            vread(n + NKB)
    if p == 6:
        a("s_waitcnt vmcnt(0)")
        a("v_and_b32 %s, -8, %s" % (v(vT + 4), v(vGF)))
        a("v_mov_b32 %s, %s" % (v(vT + 5), v(vGF + 1)))
        a("v_cmp_ne_u64 vcc, %s, %s" % (sEP, v(vT + 4, 2)))
        a("s_cbranch_vccz Lgf_ok")
        poll(vGFA, vT + 4, "gf")
        a("buffer_load_dwordx2 %s, %s, %s, 0 offen sc1" % (v(vGF, 2), vGFA, WS))
        a("s_waitcnt vmcnt(0)")
        a.label("Lgf_ok")
        a("v_cmp_ne_u32 vcc, %s, %s" % (v(vGF), v(vFLG)))
        a("s_cmp_eq_u64 vcc, 0")
        a("s_cselect_b32 %s, %d, 0" % (sFAST, 0 if OPT["force_slow"] else 1))
stamp("att_done")
if OPT["stamps"]:
    a("v_mov_b32 v30, %s" % sXCC)
    a("v_mov_b32 v31, %s" % sFAST)
    a("s_mov_b64 exec, 1")
    a("buffer_store_dwordx2 v[30:31], %s, %s, %s offen offset:%d" % (vZ, WS, sTSOFF, 31 * 8))
    a("s_mov_b64 exec, -1")
a("v_rcp_f32 %s, %s" % (v(vT + 2), v(LS)))
a("v_cndmask_b32 %s, %s, %s, %s" % (v(vT), v(vT + 2), vZ, sFQ))
a("v_cndmask_b32 %s, %s, %s, %s" % (v(vT + 1), v(vT + 2), vZ, sFO))
for i in range(4):
    a("v_mul_f32 %s, %s, %s" % (v(OA + i), v(OA + i), v(vT)))
    a("v_mul_f32 %s, %s, %s" % (v(OA + 4 + i), v(OA + 4 + i), v(vT + 1)))
OP = 136
for i in range(4):
    a("v_cvt_pk_bf16_f32 %s, %s, %s" % (v(OP + i), v(OA + 2 * i), v(OA + 2 * i + 1)))
publish(["buffer_store_dwordx4 %s, %s, %s, %s offen{sc}" % (v(OP, 4), vOA, WS, sE)], sF, data_sc1=bool(OPT["ohsc"]))
if OPT["ohsc"]:
    a("buffer_load_dword v26, %s, %s, %s offen sc1" % (vOA, WS, sE))
stamp("o_pub")
stamp("rt_opub")
a("s_cmp_ge_u32 %s, 4" % sWAVE)
a("s_cbranch_scc1 Lhelper2")

if OPT["prio"]:
    a("s_setprio %d" % OPT["prio"])
a("s_cmp_ge_u32 %s, 14" % sJ)
a("s_cbranch_scc1 Lp3_idle")
AK, AS = 32, 48
OF = 64
WB = 128
vWk, vWs = "v160", "v161"
vEXW, vEXR, vHA, vHSA, vF2A = "v162", "v163", "v164", "v165", "v166"


def tr_base_128(dkeep, dsend, hmul, base_s, base_imm):
    a("v_lshrrev_b32 %s, 2, %s" % (v(vT), vR))
    a("v_lshrrev_b32 %s, 1, %s" % (v(vT + 1), v(vT)))
    a("v_xor_b32 %s, %s, %s" % (v(vT + 1), sKH, v(vT + 1)))
    a("v_lshl_add_u32 %s, %s, %d, %s" % (v(vT), vH, {4: 2, 8: 3}[hmul], v(vT)))
    a("v_lshlrev_b32 %s, 7, %s" % (v(vT), v(vT)))
    a("v_bfe_u32 %s, %s, 4, 1" % (v(vT + 2), vL))
    a("v_lshl_add_u32 %s, %s, 5, %s" % (v(vT), v(vT + 2), v(vT)))
    a("v_and_b32 %s, 3, %s" % (v(vT + 2), vL))
    a("v_lshl_add_u32 %s, %s, 3, %s" % (v(vT), v(vT + 2), v(vT)))
    a("v_add_u32 %s, %s, %s" % (v(vT), base_s, v(vT)))
    if base_imm:
        a("v_add_u32 %s, %d, %s" % (v(vT), base_imm, v(vT)))
    a("v_lshl_add_u32 %s, %s, 6, %s" % (dkeep, v(vT + 1), v(vT)))
    a("v_xor_b32 %s, 64, %s" % (dsend, dkeep))


def ex_addrs():
    a("v_add_u32 %s, %s, %s" % (vEXW, sHW4K, vL16))
    a("v_xor_b32 %s, 0x2000, %s" % (vEXR, vEXW))
    a("v_add_u32 %s, %d, %s" % (vEXW, L_SCR, vEXW))
    a("v_add_u32 %s, %d, %s" % (vEXR, L_SCR, vEXR))


for hm in (4, 8):
    for nt in range(2):
        assert lds_conflicts([(hm * (l >> 5) + ((l & 15) >> 2)) * 128 + ((nt ^ (((l & 15) >> 3) & 1)) * 64) + ((l >> 4) & 1) * 32 + (l & 3) * 8 for l in range(64)], "tr") == 0
a("s_mul_i32 %s, %s, %d" % (sT0, sKH, 224 * 128))
tr_base_128(vWk, vWs, 4, sT0, L_WO)
ex_addrs()
sum_s(sT0, [(sG, 1024), (sMH2, 512), (sMH, 256), (sKH, 64)], WS_F2)
a("v_bfe_u32 %s, %s, 3, 1" % (v(vT), vL))
a("v_lshlrev_b32 %s, 7, %s" % (v(vT), v(vT)))
a("v_and_b32 %s, 7, %s" % (v(vT + 1), vL))
a("v_lshl_add_u32 %s, %s, 3, %s" % (v(vT), v(vT + 1), v(vT)))
a("v_add_u32 %s, %s, %s" % (vF2A, sT0, v(vT)))
sum_s(sT4, [(sTILE, 32768), (sKH, 16384)], WS_O)
sum_s(sA, [(sTILE, 28 * 1024), (sNB, 2048), (sKH, 1024)], WS_H)
sum_s(sB, [(sTILE, 4096), (sNB, 512), (sKH, 256)], WS_HS)
sum_s(sC, [(sTILE, 128), (sNB, 16), (sKH, 8)], WS_F3)
a("v_bfe_u32 %s, %s, 4, 1" % (v(vT), vL))
a("v_mul_u32_u24 %s, %d, %s" % (v(vT), 14 * 1024, v(vT)))
a("v_lshl_add_u32 %s, %s, 8, %s" % (v(vT), vH, v(vT)))
a("v_lshl_add_u32 %s, %s, 4, %s" % (vHA, vR, v(vT)))
a("v_lshlrev_b32 %s, 3, %s" % (vHSA, vL31))
XF = 168
for i in range(8):
    a("v_lshlrev_b32 %s, 16, %s" % (v(XF + 2 * i), v(vXRES + i)))
    a("v_and_b32 %s, 0xffff0000, %s" % (v(XF + 2 * i + 1), v(vXRES + i)))
a("v_mov_b32 v167, 0x3f803f80")
a("s_barrier")
stamp("b9")


def p3_wread(s):
    head, ab = s >> 1, s & 1
    wb = WB + 8 * (s % 4)
    r0 = (28 * head - 4 * (head & 1) + 8 * ab) * 128
    for k, base in enumerate((vWk, vWs)):
        a("ds_read_b64_tr_b16 %s, %s offset:%d" % (v(wb + 4 * k, 2), base, r0))
        a("ds_read_b64_tr_b16 %s, %s offset:%d" % (v(wb + 4 * k + 2, 2), base, r0 + 16 * 128))


def p3_load(s):
    if s and s % 4 == 0:
        a("s_add_u32 %s, %s, 4096" % (sT4, sT4))
    a("buffer_load_dwordx4 %s, %s, %s, %s offen offset:%d sc1" % (v(OF + 4 * s, 4), vL16, WS, sT4, (s % 4) * 1024))


for s in range(3):
    p3_wread(s)
poll(vF2A, vT + 2, "f2")
stamp("f2ok")
stamp("rt_f2ok")
UP = OPT["up3"]
for s in range(UP):
    p3_load(s)
for s in range(16):
    a("s_waitcnt vmcnt(%d) lgkmcnt(%d)" % (min(UP - 1, 15 - s), min(8, 4 * (15 - s))))
    if s + 3 < 16:
        p3_wread(s + 3)
    wb = WB + 8 * (s % 4)
    a("v_mfma_f32_32x32x16_bf16 %s, %s, %s, %s" % (v(AS, 16), v(wb + 4, 4), v(OF + 4 * s, 4), "0" if s == 0 else v(AS, 16)))
    if s + UP < 16:
        p3_load(s + UP)
    if OPT["b9b"] and s + UP == 15:
        a("s_barrier")
    a("v_mfma_f32_32x32x16_bf16 %s, %s, %s, %s" % (v(AK, 16), v(wb, 4), v(OF + 4 * s, 4), "0" if s == 0 else v(AK, 16)))
stamp("p3_mfma")


def exchange():
    for i in range(4):
        a("ds_write_b128 %s, %s offset:%d" % (vEXW, v(AS + 4 * i, 4), 1024 * i))
    a("s_waitcnt lgkmcnt(0)")
    a("s_barrier")
    for i in range(4):
        a("ds_read_b128 %s, %s offset:%d" % (v(AS + 4 * i, 4), vEXR, 1024 * i))


def residual_add(out):
    for i in range(4):
        a("s_waitcnt lgkmcnt(%d)" % (3 - i))
        for k in range(2):
            r_ = 4 * i + 2 * k
            a("v_pk_add_f32 %s, %s, %s" % (v(AK + r_, 2), v(AK + r_, 2), v(AS + r_, 2)))
        for k in range(2):
            r_ = 4 * i + 2 * k
            a("v_cvt_pk_bf16_f32 %s, %s, %s" % (v(AS + r_), v(AK + r_), v(AK + r_ + 1)))
        for k in range(2):
            r_ = 4 * i + 2 * k
            a("v_lshlrev_b32 %s, 16, %s" % (v(AK + r_), v(AS + r_)))
            a("v_and_b32 %s, 0xffff0000, %s" % (v(AK + r_ + 1), v(AS + r_)))
        for k in range(2):
            r_ = 4 * i + 2 * k
            a("v_pk_add_f32 %s, %s, %s" % (v(AK + r_, 2), v(AK + r_, 2), v(XF + r_, 2)))
        for k in range(2):
            r_ = 4 * i + 2 * k
            a("v_cvt_pk_bf16_f32 %s, %s, %s" % (v(out + 2 * i + k), v(AK + r_), v(AK + r_ + 1)))


exchange()
residual_add(vXRES)
stamp("p3_res")
a("v_mov_b32 %s, 0" % v(AS))
a("v_mov_b32 %s, 0" % v(AS + 1))
st3 = ["buffer_store_dwordx4 %s, %s, %s, %s offen{sc}" % (v(vXRES, 4), vHA, WS, sA),
       "buffer_store_dwordx4 %s, %s, %s, %s offen offset:512{sc}" % (v(vXRES + 4, 4), vHA, WS, sA)]
for i in range(8):
    st3.append("v_dot2c_f32_bf16 %s, %s, v167" % (v(AS), v(vXRES + i)))
    st3.append("v_dot2c_f32_bf16 %s, %s, %s" % (v(AS + 1), v(vXRES + i), v(vXRES + i)))
st3 += ["v_mov_b32 %s, %s" % (v(AS + 2), v(AS)), "v_mov_b32 %s, %s" % (v(AS + 3), v(AS + 1)),
        "v_permlane32_swap_b32 %s, %s" % (v(AS), v(AS + 2)), "v_permlane32_swap_b32 %s, %s" % (v(AS + 1), v(AS + 3)),
        "v_pk_add_f32 %s, %s, %s" % (v(AS, 2), v(AS, 2), v(AS + 2, 2)),
        "buffer_store_dwordx2 %s, %s, %s, %s offen{sc}" % (v(AS, 2), vHSA, WS, sB)]
publish(st3, sC, data_sc1=bool(OPT["ohsc"]))
if OPT["ohsc"]:
    a("buffer_load_dword v26, %s, %s, %s offen sc1" % (vHA, WS, sA))
    a("buffer_load_dword v26, %s, %s, %s offen offset:512 sc1" % (vHA, WS, sA))
    a("buffer_load_dword v26, %s, %s, %s offen sc1" % (vHSA, WS, sB))
stamp("h_pub")
stamp("rt_hpub")
a("s_branch Lp3_done")
a.label("Lp3_idle")
a("s_barrier")
if OPT["b9b"]:
    a("s_barrier")
a("s_barrier")
a.label("Lp3_done")

HF = 32
A4 = 144
W4 = 200
SPR = 232
NM4, RS4 = [246, 248], [250, 252]
vW4a, vW4b, vW4c, vSPA = "v254", "v255", "v27", "v28"
a("v_lshrrev_b32 %s, 1, %s" % (v(vT), vQ4))
a("v_lshlrev_b32 %s, 4, %s" % (v(vT), v(vT)))
a("v_and_b32 %s, 1, %s" % (v(vT + 1), vQ4))
a("v_lshl_add_u32 %s, %s, 2, %s" % (v(vT), v(vT + 1), v(vT)))
a("v_lshrrev_b32 %s, 2, %s" % (v(vT + 1), vR))
a("v_add_u32 %s, %s, %s" % (v(vT), v(vT), v(vT + 1)))
a("v_mul_u32_u24 %s, 224, %s" % (v(vT), v(vT)))
a("v_and_b32 %s, 3, %s" % (v(vT + 1), vL))
a("v_lshl_add_u32 %s, %s, 3, %s" % (vW4a, v(vT + 1), v(vT)))
a("v_add_u32 %s, %d, %s" % (vW4b, 8 * 7168, vW4a))
a("v_add_u32 %s, %d, %s" % (vW4c, L_W1U, vW4a))
assert lds_conflicts([(16 * (l >> 5) + 4 * ((l >> 4) & 1) + ((l & 15) >> 2)) * 224 + (l & 3) * 8 for l in range(64)], "tr") == 0
sum_s(sT1, [(sTILE4, 128)], WS_F3)
a("v_min_u32 %s, 13, %s" % (v(vT), vR))
a("v_lshlrev_b32 %s, 3, %s" % (v(vT), v(vT)))
a("v_add_u32 %s, %s, %s" % (v(vT), sT1, v(vT)))
sum_s(sT4, [(sTILE4, 28 * 1024)], WS_H)
a("s_add_u32 %s, %s, %d" % (sE, sT4, 14 * 1024))
sum_s(sT3, [(sTILE4, 4096)], WS_HS)
a("v_mul_u32_u24 %s, %d, %s" % (vSPA, 7 * 256, vH))
a("v_lshl_add_u32 %s, %s, 3, %s" % (vSPA, vL31, vSPA))
sum_s(sA, [(sTILE4, 112 * 1024), (sJ, 7168)], WS_H1)
a("s_add_u32 %s, %s, 4096" % (sB, sA))
sum_s(sC, [(sTILE4, 128), (sJ, 8)], WS_F4)
a("s_barrier")
stamp("b11")
NW4 = 8
AHEAD = 7


def p4_wread(q):
    ks, nt = divmod(q, 7)
    if ks < 8:
        base, off = vW4a, ks * 7168
    elif ks < 12:
        base, off = vW4b, (ks - 8) * 7168
    else:
        base, off = vW4c, (ks - 12) * 7168
    wb = W4 + 4 * (q % NW4)
    a("ds_read_b64_tr_b16 %s, %s offset:%d" % (v(wb, 2), base, off + nt * 32))
    a("ds_read_b64_tr_b16 %s, %s offset:%d" % (v(wb + 2, 2), base, off + nt * 32 + 8 * 224))


def p4_load(ks, mt):
    if mt == 0 and ks and ks % 4 == 0:
        a("s_add_u32 %s, %s, 4096" % (sT4, sT4))
        a("s_add_u32 %s, %s, 4096" % (sE, sE))
    a("buffer_load_dwordx4 %s, %s, %s, %s offen offset:%d sc1" % (v(HF + 4 * (mt * 14 + ks), 4), vL16, WS, (sT4, sE)[mt], (ks % 4) * 1024))


for q in range(AHEAD):
    p4_wread(q)
poll(v(vT), vT + 2, "f3")
stamp("f3ok")
stamp("rt_f3ok")
UP = OPT["up4"]
for ks in range(UP):
    p4_load(ks, 0)
    p4_load(ks, 1)
    if ks == 1:
        for i in range(7):
            a("buffer_load_dwordx2 %s, %s, %s, %s offen offset:%d sc1" % (v(SPR + 2 * i, 2), vSPA, WS, sT3, 256 * i))
assert UP >= 3
for ks in range(14):
    if ks == 3:
        for i in range(1, 7):
            a("v_pk_add_f32 %s, %s, %s" % (v(SPR, 2), v(SPR, 2), v(SPR + 2 * i, 2)))
        xhalf_sum(v(SPR), v(SPR + 2))
        xhalf_sum(v(SPR + 1), v(SPR + 2))
        ln_finish(v(SPR), v(SPR + 1), v(NM4[0]), v(RS4[0]), v(SPR + 2))
        a("v_mul_f32 %s, %s, %s" % (v(NM4[0]), v(NM4[0]), v(RS4[0])))
        a("v_mov_b32 %s, %s" % (v(NM4[1]), v(NM4[0])))
        a("v_mov_b32 %s, %s" % (v(RS4[1]), v(RS4[0])))
        a("v_permlane16_swap_b32 %s, %s" % (v(NM4[0]), v(NM4[1])))
        a("v_permlane16_swap_b32 %s, %s" % (v(RS4[0]), v(RS4[1])))
        for r_ in NM4 + RS4:
            a("v_mov_b32 %s, %s" % (v(r_ + 1), v(r_)))
    if ks in (1, 7):
        stamp("p4_k%d" % ks)
    for nt in range(7):
        q = ks * 7 + nt
        if q == 7 * OPT["kb"] + 2:
            a("s_barrier")
        if q == 7 * OPT["kb"] + 9:
            a("s_barrier")
        lg = min(2 * (AHEAD - 1), 2 * (97 - q))
        if OPT["w2"] and nt in (0, 2, 4):
            lg = max(0, min(2 * (AHEAD - 2), 2 * (97 - q - 1)))
        if nt == 0:
            later = 2 * (min(13, ks + UP - 1) - ks) + (7 if ks <= 1 else 0)
            a("s_waitcnt vmcnt(%d) lgkmcnt(%d)" % (later, lg))
        elif not OPT["w2"] or nt in (2, 4, 6):
            a("s_waitcnt lgkmcnt(%d)" % lg)
        if q + AHEAD < 98:
            p4_wread(q + AHEAD)
        wb = W4 + 4 * (q % NW4)
        for mt in range(2):
            acc = v(A4 + 4 * (mt * 7 + nt), 4)
            a("v_mfma_f32_16x16x32_bf16 %s, %s, %s, %s" % (acc, v(wb, 4), v(HF + 4 * (mt * 14 + ks), 4), "0" if ks == 0 else acc))
        if nt < 2 and ks + UP < 14:
            p4_load(ks + UP, nt)
stamp("p4_mfma")
CS4 = 200
a("v_lshlrev_b32 %s, 4, %s" % (v(vT), vQ4))
a("v_add_u32 %s, %d, %s" % (v(vT), L_CS1, v(vT)))
for nt in range(7):
    a("ds_read_b128 %s, %s offset:%d" % (v(CS4 + 4 * nt, 4), v(vT), 64 * nt))
a("v_lshlrev_b32 %s, 9, %s" % (v(vT), vQ4))
a("v_lshl_add_u32 %s, %s, 4, %s" % (v(vT), vR, v(vT)))
a("v_lshrrev_b32 %s, 1, %s" % (v(vT + 1), vQ4))
a("v_lshlrev_b32 %s, 9, %s" % (v(vT + 1), v(vT + 1)))
a("v_lshl_add_u32 %s, %s, 4, %s" % (v(vT + 1), vR, v(vT + 1)))
a("v_and_b32 %s, 1, %s" % (v(vT + 3), vQ4))
a("v_lshl_add_u32 %s, %s, 3, %s" % (v(vT + 1), v(vT + 3), v(vT + 1)))
H1P = 32
TT = 64
st = ["s_waitcnt lgkmcnt(0)"]
for mt in range(2):
    for p in range(4):
        nts = (2 * p, 2 * p + 1) if p < 3 else (6,)
        for nt in nts:
            for c in range(2):
                st.append("v_pk_mul_f32 %s, %s, %s" % (v(TT + 4 * (nt & 1) + 2 * c, 2), v(CS4 + 4 * nt + 2 * c, 2), v(NM4[mt], 2)))
        for nt in nts:
            acc = A4 + 4 * (mt * 7 + nt)
            for c in range(2):
                st.append("v_pk_fma_f32 %s, %s, %s, %s" % (v(acc + 2 * c, 2), v(acc + 2 * c, 2), v(RS4[mt], 2), v(TT + 4 * (nt & 1) + 2 * c, 2)))
        for nt in nts:
            acc = A4 + 4 * (mt * 7 + nt)
            hp = H1P + 16 * mt + 2 * nt
            for c in range(2):
                st.append("v_cvt_pk_bf16_f32 %s, %s, %s" % (v(hp + c), v(acc + 2 * c), v(acc + 2 * c + 1)))
        for nt in nts:
            hp = H1P + 16 * mt + 2 * nt
            for c in range(2):
                st.append("v_pk_max_i16 %s, %s, %s" % (v(hp + c), v(hp + c), vZ))
        if p < 3:
            so, off = (sA, p * 2048 + mt * 256) if p < 2 else (sB, mt * 256)
            st.append("buffer_store_dwordx4 %s, %s, %s, %s offen offset:%d{sc}" % (v(H1P + 16 * mt + 4 * p, 4), v(vT), WS, so, off))
        else:
            st.append("buffer_store_dwordx2 %s, %s, %s, %s offen offset:%d{sc}" % (v(H1P + 16 * mt + 12, 2), v(vT + 1), WS, sB, 2048 + mt * 256))
publish(st, sC, data_sc1=bool(OPT["h1sc"]))
if OPT["st4"]:
    a("v_min_u32 %s, 55, %s" % (v(vT), vL))
    a("v_lshlrev_b32 %s, 7, %s" % (v(vT), v(vT)))
    a("buffer_load_dword v26, %s, %s, %s offen sc1" % (v(vT), WS, sA))
stamp("h1_pub")
stamp("rt_h1pub")
a("s_cmp_ge_u32 %s, 14" % sJ)
a("s_cbranch_scc1 Lend")

RF = 64
NRF = 16
WB5 = 128
AD5 = 208
a("s_mul_i32 %s, %s, %d" % (sT0, sKH, UNIT))
for pat, hm in enumerate((4, 8)):
    tr_base_128(v(AD5 + 6 * pat), v(AD5 + 6 * pat + 1), hm, sT0, 0)
    for b, off in ((1, 4 * UNIT), (2, L_WO)):
        for k in range(2):
            a("v_add_u32 %s, %d, %s" % (v(AD5 + 6 * pat + 2 * b + k), off, v(AD5 + 6 * pat + k)))
UMAP = {0: (2, 0), 1: (2, 2 * UNIT), 2: (0, 0), 3: (0, 2 * UNIT), 4: (1, 0), 5: (2, 0), 6: (2, 2 * UNIT), 7: (0, 0)}


def p5_wread(i):
    n, u = divmod(i, 7)
    b, off = UMAP[n]
    wb = WB5 + 8 * (i % 4)
    if u < 6:
        pat, r0, d2 = 0, 32 * (u >> 1) + 8 * (u & 1), 16
    else:
        pat, r0, d2 = 1, 96, 4
    for k in range(2):
        base = v(AD5 + 6 * pat + 2 * b + k)
        a("ds_read_b64_tr_b16 %s, %s offset:%d" % (v(wb + 4 * k, 2), base, off + r0 * 128))
        a("ds_read_b64_tr_b16 %s, %s offset:%d" % (v(wb + 4 * k + 2, 2), base, off + (r0 + d2) * 128))


ex_addrs()
for i in range(8):
    a("v_lshlrev_b32 %s, 16, %s" % (v(XF + 2 * i), v(vXRES + i)))
    a("v_and_b32 %s, 0xffff0000, %s" % (v(XF + 2 * i + 1), v(vXRES + i)))
sum_s(sT0, [(sTILE, 128), (sKH, 64)], WS_F4)
a("v_and_b32 %s, 7, %s" % (v(vT), vL))
a("v_lshlrev_b32 %s, 3, %s" % (v(vT), v(vT)))
a("v_add_u32 %s, %s, %s" % (v(vT), sT0, v(vT)))
sum_s(sT4, [(sTILE, 112 * 1024), (sKH, 56 * 1024)], WS_H1)
a("s_barrier")
stamp("b12")
for i in range(3):
    p5_wread(i)
poll(v(vT), vT + 2, "f4")
stamp("f4ok")
stamp("rt_f4ok")


def p5_load(i):
    n, u = divmod(i, 7)
    if u == 0:
        a("s_add_u32 %s, %s, %d" % (sT0, sRU, n))
        a("s_and_b32 %s, %s, 7" % (sT0, sT0))
        a("s_mul_i32 %s, %s, 7168" % (sT0, sT0))
        a("s_add_u32 %s, %s, %s" % (sT3, sT4, sT0))
    if u == 4:
        a("s_add_u32 %s, %s, 4096" % (sT3, sT3))
    a("buffer_load_dwordx4 %s, %s, %s, %s offen offset:%d sc1" % (v(RF + 4 * (i % NRF), 4), vL16, WS, sT3, (u % 4) * 1024))


UP = OPT["up5"]
assert UP < NRF
for i in range(UP):
    p5_load(i)
BARS = {14, 28, 42} if OPT["bars"] else {14, 21, 35}
nread = 3
for i in range(56):
    if i in BARS:
        a("s_barrier")
        stamp("p5_b%d" % i)
    while nread < 56 and nread <= i + 2 and not any(i < b <= nread for b in BARS):
        p5_wread(nread)
        nread += 1
    lg = 4 * (nread - 1 - i)
    vm = min(UP - 1, 55 - i)
    a("s_waitcnt vmcnt(%d) lgkmcnt(%d)" % (vm, lg))
    if nread < 56 and nread <= i + 3 and not any(i < b <= nread for b in BARS):
        p5_wread(nread)
        nread += 1
    wb = WB5 + 8 * (i % 4)
    rf = v(RF + 4 * (i % NRF), 4)
    a("v_mfma_f32_32x32x16_bf16 %s, %s, %s, %s" % (v(AS, 16), v(wb + 4, 4), rf, "0" if i == 0 else v(AS, 16)))
    if i + UP < 56:
        p5_load(i + UP)
    a("v_mfma_f32_32x32x16_bf16 %s, %s, %s, %s" % (v(AK, 16), v(wb, 4), rf, "0" if i == 0 else v(AK, 16)))
stamp("p5_mfma")
exchange()
OUTP = 64
residual_add(OUTP)
for jj in range(4):
    a("buffer_store_dwordx2 %s, %s, %s, %s offen offset:%d" % (v(OUTP + 2 * jj, 2), vXOFF, OUT, sXO, 16 * jj))
stamp("end")
stamp("rt_end")
a("s_endpgm")

RS0 = 72


def unit_index(dst, n_s, n_imm):
    if n_s:
        a("s_add_u32 %s, %s, %s" % (dst, sRU, n_s))
        if n_imm:
            a("s_add_u32 %s, %s, %d" % (dst, dst, n_imm))
    else:
        a("s_add_u32 %s, %s, %d" % (dst, sRU, n_imm))
    a("s_and_b32 %s, %s, 7" % (dst, dst))
    a("s_lshl_b32 %s, %s, 3" % (sT5, sMH))
    a("s_add_u32 %s, %s, %s" % (dst, dst, sT5))


def w2_rows(n, to_reg=None, lds_s=None, lds_imm=0):
    for i in range(n):
        if to_reg is None:
            dma(vWO, W2, sT3, lds_s, lds_imm + i * 1024)
        elif not OPT["nobg"]:
            a("buffer_load_dwordx4 %s, %s, %s, %s offen" % (v(to_reg + 4 * i, 4), vWO, W2, sT3))
        if i < n - 1:
            a("s_add_u32 %s, %s, %d" % (sT3, sT3, 8 * 896))


def stage(nfull, nhalf, reg, parts=3):
    if parts & 1:
        unit_index(sT0, sKH, nfull)
        a("s_mul_i32 %s, %s, %d" % (sT3, sT0, 112 * 896))
        w2_rows(14, to_reg=reg)
    if not parts & 2:
        return
    unit_index(sT0, None, nhalf)
    sum_s(sT3, [(sT0, 112 * 896), (sKH, 7 * 8 * 896)])
    w2_rows(7, to_reg=reg + 56)


def dump(reg, n, addr, off):
    for i in range(n):
        a("ds_write_b128 %s, %s offset:%d" % (addr, v(reg + 4 * i, 4), off + 1024 * i))


def cold_quarter(slot):
    if OPT["cq"] == slot:
        lab = a.newlabel("Lnocq")
        a("s_cmp_ge_u32 %s, 14" % sJ)
        a("s_cbranch_scc1 %s" % lab)
        stage(2, 4, RS0, parts=1)
        a.label(lab)


a.label("Lhelper2")
a("s_barrier")
bg("C")
cold_quarter("C")
if OPT["b9b"]:
    a("s_barrier")
bg("C2")
cold_quarter("C2")
stamp("h_w1b")
if OPT["pt_h1"] == 1:
    sum_s(sT0, [(sG, 448 * 1024), (sJ, 28 * 1024), (sHW, 7168)], WS_H1)
    touch_lines(WS, sT0, 56, sc1=True)
C1 = 32
C1B = 40
cA, cB, cONE = "v68", "v69", "v70"
RS0 = 72
a("v_lshrrev_b32 %s, 1, %s" % (v(vT), vQ4))
a("v_lshlrev_b32 %s, 4, %s" % (v(vT), v(vT)))
a("v_and_b32 %s, 1, %s" % (v(vT + 1), vQ4))
a("v_lshl_add_u32 %s, %s, 2, %s" % (v(vT), v(vT + 1), v(vT)))
a("v_lshrrev_b32 %s, 2, %s" % (v(vT + 1), vR))
a("v_add_u32 %s, %s, %s" % (v(vT), v(vT), v(vT + 1)))
a("v_mul_u32_u24 %s, 224, %s" % (v(vT), v(vT)))
a("v_and_b32 %s, 3, %s" % (v(vT + 1), vL))
a("v_lshl_add_u32 %s, %s, 3, %s" % (cA, v(vT + 1), v(vT)))
a("s_mul_i32 %s, %s, 7168" % (sT0, sHW))
a("v_add_u32 %s, %s, %s" % (cA, sT0, cA))
a("v_add_u32 %s, %d, %s" % (cB, L_W1U, cA))
a("v_mov_b32 %s, 0x3f803f80" % cONE)
for nt in range(7):
    a("v_mov_b32 %s, 0" % v(C1 + nt))


def cs1_block(base, off):
    for nt in range(7):
        a("ds_read_b64_tr_b16 %s, %s offset:%d" % (v(C1B + 4 * nt, 2), base, off + nt * 32))
        a("ds_read_b64_tr_b16 %s, %s offset:%d" % (v(C1B + 4 * nt + 2, 2), base, off + nt * 32 + 8 * 224))
    a("s_waitcnt lgkmcnt(0)")
    for i in range(4):
        for nt in range(7):
            a("v_dot2c_f32_bf16 %s, %s, %s" % (v(C1 + nt), v(C1B + 4 * nt + i), cONE))


cs1_block(cA, 8 * 7168)
a("s_barrier")
a("s_waitcnt vmcnt(0)")
stamp("h_w1_landed")
cs1_block(cA, 0)
cs1_block(cA, 4 * 7168)
a("s_barrier")


lab = a.newlabel("Lnou")
a("s_cmp_ge_u32 %s, 2" % sHW)
a("s_cbranch_scc1 %s" % lab)
w1_block(12)
a("s_waitcnt vmcnt(0)")
cs1_block(cB, 0)
a.label(lab)
bg("D")
cold_quarter("D")
for nt in range(7):
    xhalf_sum(v(C1 + nt), v(vT))
    xrow_sum(v(C1 + nt), v(vT))
sum_s(sT0, [(sHW, 448)], L_CSP)
a("v_lshl_add_u32 %s, %s, 2, %s" % (v(vT), vR, sT0))
for nt in range(7):
    a("ds_write_b32 %s, %s offset:%d" % (v(vT), v(C1 + nt), 64 * nt))
a("s_waitcnt lgkmcnt(0)")
a("s_barrier")
lab = a.newlabel("Lnocs1")
a("s_cmp_lg_u32 %s, 4" % sWAVE)
a("s_cbranch_scc1 %s" % lab)
a("v_min_u32 %s, 55, %s" % (v(vT), vL))
a("v_lshlrev_b32 %s, 3, %s" % (v(vT), v(vT)))
a("v_add_u32 %s, %d, %s" % (v(vT + 1), L_CSP, v(vT)))
for k in range(4):
    a("ds_read_b64 %s, %s offset:%d" % (v(40 + 2 * k, 2), v(vT + 1), 448 * k))
a("s_waitcnt lgkmcnt(0)")
for c in range(2):
    a("v_add_f32 %s, %s, %s" % (v(40 + c), v(40 + c), v(42 + c)))
    a("v_add_f32 %s, %s, %s" % (v(44 + c), v(44 + c), v(46 + c)))
    a("v_add_f32 %s, %s, %s" % (v(40 + c), v(40 + c), v(44 + c)))
a("v_add_u32 %s, %d, %s" % (v(vT + 1), L_CS1, v(vT)))
a("ds_write_b64 %s, %s" % (v(vT + 1), v(40, 2)))
a("s_waitcnt lgkmcnt(0)")
a.label(lab)
a("s_barrier")
bg("D2")
a("s_cmp_ge_u32 %s, 14" % sJ)
a("s_cbranch_scc1 Lend")
unit_index(sT0, sKH, 0)
a("s_mul_i32 %s, %s, %d" % (sT3, sT0, 112 * 896))
a("s_mul_i32 %s, %s, %d" % (sT1, sHW, UNIT))
w2_rows(14, lds_s=sT1, lds_imm=L_WO)
stage(2, 4, RS0, parts=2 if OPT["cq"] else 3)
if OPT["r2early"]:
    stage(5, 7, RS0 + 84)
a("v_add_u32 v40, %s, %s" % (sT1, vL16))
a("v_add_u32 v41, %d, v40" % L_WO)
sum_s(sT1, [(sMH, UNIT), (sKH, 7168)])
a("v_add_u32 v42, %s, %s" % (sT1, vL16))
stamp("h_w2_issued")
NR = 0 if OPT["nobg"] else 21
NR1 = (NR // 3) if OPT["cq"] else NR
a("s_waitcnt vmcnt(%d)" % (NR1 + NR if OPT["r2early"] else NR1))
stamp("h_w2a_landed")
a("s_barrier")
a("s_waitcnt vmcnt(%d)" % (NR if OPT["r2early"] else 0))
dump(RS0, 14, "v40", 0)
dump(RS0 + 56, 7, "v42", 4 * UNIT)
if not OPT["r2early"]:
    stage(5, 7, RS0 + 84)
a("s_waitcnt lgkmcnt(0)")
stamp("h_w2b_landed")
a("s_barrier")
a("s_waitcnt vmcnt(0)")
dump(RS0 + 84, 14, "v41", 0)
a("s_waitcnt lgkmcnt(0)")
a("s_barrier")
dump(RS0 + 84 + 56, 7, "v42", 0)
a("s_waitcnt lgkmcnt(0)")
a("s_barrier")
a("s_barrier")
a.label("Lend")
a("s_endpgm")
a.raw("Lcode_end:")
a.raw('.section .rodata,"a"')
a.raw(".p2align 6")
a.raw(".amdhsa_kernel %s" % KNAME)
a.raw("  .amdhsa_next_free_vgpr 256")
a.raw("  .amdhsa_next_free_sgpr 102")
a.raw("  .amdhsa_accum_offset 256")
a.raw("  .amdhsa_group_segment_fixed_size 0")
a.raw("  .amdhsa_kernarg_size 72")
a.raw("  .amdhsa_user_sgpr_count 2")
a.raw("  .amdhsa_user_sgpr_kernarg_segment_ptr 1")
a.raw("  .amdhsa_system_sgpr_workgroup_id_x 1")
a.raw(".end_amdhsa_kernel")
open(sys.argv[1], "w").write(a.text())
json.dump(STAMPS, open(sys.argv[1] + ".stamps.json", "w"))
print("instructions:", a.count)
```

```python
import sys, math, struct, re, json
from asmlib import Asm, lds_conflicts

KNAME = "sequential_preLN__sliding_block__dense_activation_relu__prompt_kernel"
OPT = dict(stamps="", force_slow=0, nobg=0, t_w1=1, t_w2=1, pt_h1=0, up3=8, up4=8, up5=8, dry=0, psleep=0, gw=0, rotj=0, init2=1, pt_c=3, h1sc=1, bgA=1, ic=2, fc=4, P3="", A="wo", B="w18+tw1", C="w10+w14", C2="", D="", b9b=0, warm=0, kb=5, r2early=1, D2="", st4=0, ohsc=0, svc="", bm=0, prio=0, w2=1, diag=0, nt=0, sent=1, dbg=0, tlb=0, cq="D", hpt=0, bars=1, osc="", ow=0)
for a_ in sys.argv[2:]:
    k_, v_ = a_.split("=")
    OPT[k_] = v_ if isinstance(OPT[k_], str) else int(v_)


def f32(x):
    return "0x%08x" % struct.unpack("<I", struct.pack("<f", x))[0]


QT = 336 * 256
WS_QKV = 0
WS_O = 6 << 20
WS_H = 8 << 20
WS_H1 = 10 << 20
WS_F1 = 17 << 20
WS_F2 = WS_F1 + 0x10000
WS_F3 = WS_F1 + 0x20000
WS_F4 = WS_F1 + 0x30000
WS_HS = WS_F1 + 0x40000
WS_ST = WS_F1 + 0x80000
WS_TS = 18 << 20
WS_SIZE = 32 << 20

L_XR = 86016
L_KV = 0
L_Q = 12 * 4096
L_WO = 86016
L_W1U = 144384
L_SCR = 144384
L_CSP = 158720
L_MISC = 160768
L_CS = L_MISC
L_ST = L_MISC + 384
L_EP = L_ST + 1024
L_CS1 = L_EP + 64
LDS_BYTES = 163840
UNIT = 14336

X, WQKV, WO, W1, W2, OUT, DBG, WS = ["s[%d:%d]" % (4 + 4 * i, 7 + 4 * i) for i in range(8)]
sG, sJ, sWAVE, sR0, sXCC, sFAST = "s36", "s37", "s38", "s39", "s40", "s41"
sEP = "s[42:43]"
sEPL, sEPH = "s42", "s43"
sROT, sHW, sMH2, sNB, sKH, sMH = "s44", "s45", "s46", "s47", "s48", "s49"
sHI = "s[50:51]"
sLT48 = "s[52:53]"
sQ3 = "s[54:55]"
sHW1K, sHW4K = "s56", "s57"
sCNT = "s58"
sSLOT = "s59"
sT0, sT1, sT2, sT3, sT4, sT5 = "s60", "s61", "s62", "s63", "s64", "s65"
sTS = "s[66:67]"
sTSOFF = "s68"
sXO = "s69"
sCX, sCW = "s70", "s71"
sTILE, sTILE4 = "s72", "s73"
sRU = "s88"
sA, sB, sC, sD, sE, sF = "s74", "s75", "s76", "s77", "s78", "s79"

vL, vL31, vH, vR, vQ4, vL16, vTMP = "v1", "v2", "v3", "v4", "v5", "v6", "v7"
vXRES = 8
vFLG = 16
vT = 18
vZ = "v24"
vXOFF = "v25"
HP = 240


def v(i, n=1):
    return "v%d" % i if n == 1 else "v[%d:%d]" % (i, i + n - 1)


a = Asm()
STAMPS = {}


DBGW = {"t0": 2, "rt_start": 3, "m_b0": 4, "m_p1end": 5, "b8": 6, "o_pub": 7, "f2ok": 8, "h_pub": 9, "f3ok": 10, "h1_pub": 11, "f4ok": 12, "end": 13, "rt_end": 14}


def stamp(name):
    if OPT["dbg"] and name in DBGW:
        lab = a.newlabel("Ldbg")
        a("s_lshl_b32 s93, s2, 3")
        a("s_add_u32 s93, s93, %s" % sWAVE)
        a("s_cmp_lg_u32 s93, %d" % (OPT["dbg"] * 8))
        a("s_cbranch_scc1 %s" % lab)
        a(("s_memrealtime %s" if name.startswith("rt_") else "s_memtime %s") % sTS)
        a("s_waitcnt lgkmcnt(0)")
        a("v_mov_b32 v30, s66")
        a("v_mov_b32 v29, 0")
        a("s_mov_b64 exec, 1")
        a("buffer_store_dword v30, v29, %s, 0 offen offset:%d" % (DBG, DBGW[name] * 4))
        a("s_mov_b64 exec, -1")
        a.label(lab)
        return
    if not OPT["stamps"] or not (name == "t0" or re.fullmatch(OPT["stamps"], name)):
        return
    idx = STAMPS.setdefault(name, len(STAMPS))
    assert idx < 30
    a(("s_memrealtime %s" if name.startswith("rt_") else "s_memtime %s") % sTS)
    a("s_waitcnt lgkmcnt(0)")
    a("v_mov_b32 v30, s66")
    a("v_mov_b32 v31, s67")
    a("v_mov_b32 v29, 0")
    a("s_mov_b64 exec, 1")
    a("buffer_store_dwordx2 v[30:31], v29, %s, %s offen offset:%d" % (WS, sTSOFF, idx * 8))
    a("s_mov_b64 exec, -1")


def dma(voff, srd, soff, lds_s, lds_imm, inst=0, sc1=False):
    if OPT["nobg"] and srd in (WO, W1, W2):
        return
    m = lds_imm - inst
    if lds_s is None:
        a("s_mov_b32 m0, %d" % m)
    else:
        a("s_add_u32 m0, %s, %d" % (lds_s, m))
    nt = (srd == X and OPT["nt"] & 1) or (srd == WQKV and OPT["nt"] & 2) or (srd in (WO, W1) and OPT["nt"] & 16)
    a("buffer_load_dwordx4 %s, %s, %s offen%s%s%s lds" % (voff, srd, soff, (" offset:%d" % inst) if inst else "", " sc1" if sc1 else "", " nt" if nt else ""))


def sum_s(dst, terms, const=0):
    first = True
    for sreg, mult in terms:
        tgt = dst if first else sT5
        if mult == 1:
            if first:
                a("s_mov_b32 %s, %s" % (dst, sreg))
            else:
                a("s_add_u32 %s, %s, %s" % (dst, dst, sreg))
            first = False
            continue
        if mult & (mult - 1) == 0:
            a("s_lshl_b32 %s, %s, %d" % (tgt, sreg, mult.bit_length() - 1))
        else:
            a("s_mul_i32 %s, %s, %d" % (tgt, sreg, mult))
        if not first:
            a("s_add_u32 %s, %s, %s" % (dst, dst, sT5))
        first = False
    if const:
        a("s_add_u32 %s, %s, %d" % (dst, dst, const))


def poll(vaddr, vd, name):
    lp, dn = a.newlabel("Lpoll_" + name), a.newlabel("Lpolld_" + name)
    a("s_mov_b32 %s, 0x20000" % sCNT)
    a.label(lp)
    a("buffer_load_dwordx2 %s, %s, %s, 0 offen sc1" % (v(vd, 2), vaddr, WS))
    a("s_sub_u32 %s, %s, 1" % (sCNT, sCNT))
    a("s_waitcnt vmcnt(0)")
    a("v_and_b32 %s, -8, %s" % (v(vd), v(vd)))
    a("v_cmp_ne_u64 vcc, %s, %s" % (sEP, v(vd, 2)))
    a("s_cmp_eq_u32 %s, 0" % sCNT)
    a("s_cbranch_scc1 %s" % dn)
    if OPT["psleep"]:
        a("s_cbranch_vccz %s" % dn)
        a("s_sleep %d" % OPT["psleep"])
        a("s_branch %s" % lp)
    else:
        a("s_cbranch_vccnz %s" % lp)
    a.label(dn)


def flag_store(soff, sc):
    a("s_mov_b64 exec, 1")
    a("buffer_store_dwordx2 %s, %s, %s, %s offen%s" % (v(vFLG, 2), vZ, WS, soff, sc))
    a("s_mov_b64 exec, -1")


def publish(stores, flag_soff, data_sc1=False):
    if data_sc1:
        for s_ in stores:
            a(s_.format(sc=" sc1"))
        stores = []

    def emit(sc):
        for s_ in stores:
            a(s_.format(sc=sc))
        a("s_waitcnt vmcnt(0)")
        flag_store(flag_soff, sc)
    ls, le = a.newlabel("Lslow"), a.newlabel("Lpub")
    a("s_cmp_eq_u32 %s, 0" % sFAST)
    a("s_cbranch_scc1 %s" % ls)
    emit("")
    a("s_branch %s" % le)
    a.label(ls)
    emit(" sc1")
    a.label(le)


def bf16r(dst, src):
    a("v_cvt_pk_bf16_f32 %s, %s, %s" % (dst, src, src))
    a("v_and_b32 %s, 0xffff0000, %s" % (dst, dst))


def ln_finish(sx, sxx, negmean, rstd, t0):
    a("v_mul_f32 %s, %s, %s" % (sx, f32(1.0 / 448), sx))
    a("v_mul_f32 %s, %s, %s" % (sxx, f32(1.0 / 448), sxx))
    a("v_fma_f32 %s, -%s, %s, %s" % (sxx, sx, sx, sxx))
    a("v_max_f32 %s, 0, %s" % (sxx, sxx))
    bf16r(sxx, sxx)
    a("v_add_f32 %s, %s, %s" % (sxx, f32(1e-5), sxx))
    bf16r(sxx, sxx)
    a("v_sqrt_f32 %s, %s" % (sxx, sxx))
    bf16r(sxx, sxx)
    a("v_rcp_f32 %s, %s" % (rstd, sxx))
    bf16r(t0, sx)
    a("v_sub_f32 %s, 0, %s" % (negmean, t0))


def xhalf_sum(x, t):
    a("v_mov_b32 %s, %s" % (t, x))
    a("v_permlane32_swap_b32 %s, %s" % (x, t))
    a("v_add_f32 %s, %s, %s" % (x, x, t))


def xrow_sum(x, t):
    a("v_mov_b32 %s, %s" % (t, x))
    a("v_permlane16_swap_b32 %s, %s" % (x, t))
    a("v_add_f32 %s, %s, %s" % (x, x, t))


def get_epoch_spin(name):
    lp, dn = "Lep_%s" % name, "Lepd_%s" % name
    a("s_mov_b32 %s, 0x20000" % sCNT)
    a.label(lp)
    a("s_waitcnt vmcnt(0)")
    a("v_readfirstlane_b32 %s, %s" % (sEPL, v(vFLG)))
    a("v_readfirstlane_b32 %s, %s" % (sEPH, v(vFLG + 1)))
    a("s_cmp_lg_u32 %s, 0" % sEPL)
    a("s_cbranch_scc1 %s" % dn)
    a("buffer_load_dwordx2 %s, %s, %s, 0 offen sc1" % (v(vFLG, 2), vZ, DBG))
    a("s_sub_u32 %s, %s, 1" % (sCNT, sCNT))
    a("s_cmp_lg_u32 %s, 0" % sCNT)
    a("s_cbranch_scc1 %s" % lp)
    a.label(dn)


hdr = open("sequential_preLN__sliding_block__dense_activation_relu__prompt.s.ref").read().split("\n")
for ln in hdr:
    if ln.startswith("; @launch"):
        a.raw("; @launch grid=(256,1,1) block=(512,1,1) lds=%d" % LDS_BYTES)
        break
    a.raw(ln)
a.raw('.amdgcn_target "amdgcn-amd-amdhsa--gfx950"')
a.raw(".text")
a.raw(".globl %s" % KNAME)
a.raw(".p2align 8")
a.raw(".type %s,@function" % KNAME)
a.raw("%s:" % KNAME)

if OPT["diag"]:
    a("s_memtime s[96:97]")
a("s_load_dwordx16 s[72:87], s[0:1], 0")
a("s_load_dwordx2 s[88:89], s[0:1], 64")
a("s_getpc_b64 s[90:91]")
a.raw("Lpc:")
a("v_and_b32 %s, 63, v0" % vL)
a("v_lshrrev_b32 %s, 6, v0" % vTMP)
a("s_lshr_b32 %s, s2, 3" % sSLOT)
a("v_readfirstlane_b32 %s, %s" % (sWAVE, vTMP))
a("v_lshlrev_b32 %s, 7, %s" % (v(vT), vL))
a("s_cmp_ge_u32 s2, 256")
a("s_cbranch_scc1 Lend")
a("s_add_u32 %s, %s, %s" % (sT0, sSLOT, sWAVE))
a("s_and_b32 %s, %s, 7" % (sT0, sT0))
a("s_lshl_b32 %s, %s, 13" % (sT0, sT0))
a("v_add_u32 %s, %s, %s" % (v(vT), sT0, v(vT)))
a("v_min_u32 %s, Lcode_end-Lpc-4, %s" % (v(vT), v(vT)))
a("v_mov_b32 %s, s91" % v(vT + 1))
a("v_add_co_u32 %s, vcc, s90, %s" % (v(vT), v(vT)))
a("v_addc_co_u32 %s, vcc, 0, %s, vcc" % (v(vT + 1), v(vT + 1)))
a("s_cmp_ge_u32 %s, 2" % sWAVE)
a("s_cbranch_scc1 Lnocp")
a("global_load_dword v26, %s, off" % v(vT, 2))
a.label("Lnocp")
a("v_and_b32 %s, 31, v0" % vL31)
a("v_bfe_u32 %s, v0, 5, 1" % vH)
a("v_and_b32 %s, 15, v0" % vR)
a("v_bfe_u32 %s, v0, 4, 2" % vQ4)
a("v_lshlrev_b32 %s, 4, %s" % (vL16, vL))
a("v_mov_b32 %s, 0" % vZ)
a("s_and_b32 %s, s2, 7" % sT0)
a("s_lshr_b32 %s, %s, 4" % (sT2, sSLOT))
a("s_lshl_b32 %s, %s, 1" % (sG, sT0))
a("s_add_u32 %s, %s, %s" % (sG, sG, sT2))
a("s_and_b32 %s, %s, 15" % (sJ, sSLOT))
a("s_lshl_b32 %s, %s, 7" % (sR0, sG))
a("s_and_b32 %s, %s, 3" % (sHW, sWAVE))
a("s_lshl_b32 %s, %s, 10" % (sHW1K, sHW))
a("s_lshl_b32 %s, %s, 12" % (sHW4K, sHW))
if OPT["rotj"]:
    a("s_mul_i32 %s, %s, 3" % (sT3, sT2))
    a("s_add_u32 %s, %s, %s" % (sROT, sJ, sT3))
    for _ in range(2):
        a("s_sub_u32 %s, %s, 7" % (sT3, sROT))
        a("s_cmp_ge_u32 %s, 7" % sROT)
        a("s_cselect_b32 %s, %s, %s" % (sROT, sT3, sROT))
else:
    a("s_lshl_b32 %s, %s, 2" % (sROT, sT2))
vX = [32, 33, 34, 35]
vW = [36, 37, 38]
a("v_lshrrev_b32 %s, 3, %s" % (v(vT), vL))
a("s_lshl_b32 %s, %s, 5" % (sT0, sHW))
a("s_add_u32 %s, %s, %s" % (sT0, sT0, sR0))
a("v_add_u32 %s, %s, %s" % (v(vT), sT0, v(vT)))
a("v_mul_u32_u24 %s, 896, %s" % (v(vT), v(vT)))
a("v_and_b32 %s, 7, %s" % (v(vT + 1), vL))
a("v_xor_b32 %s, %s, %s" % (v(vT + 1), v(vT + 1), vQ4))
a("v_xor_b32 %s, 4, %s" % (v(vT + 2), v(vT + 1)))
for ii in range(4):
    a("v_lshl_add_u32 %s, %s, 4, %s" % (v(vX[ii]), v(vT + 1 + (ii & 1)), v(vT)))
    if ii:
        a("v_add_u32 %s, %d, %s" % (v(vX[ii]), ii * 8 * 896, v(vX[ii])))
a("s_mul_i32 %s, %s, %d" % (sT0, sHW, 16 * 2688))
a("s_mul_i32 %s, %s, 192" % (sT1, sJ))
a("s_add_u32 %s, %s, %s" % (sT0, sT0, sT1))
M12 = (1 << 16) // 12 + 1
for i in range(192):
    assert (i * M12) >> 16 == i // 12
for k in range(3):
    a("v_add_u32 %s, %d, %s" % (v(vT), 64 * k, vL))
    a("v_mul_u32_u24 %s, %d, %s" % (v(vT + 1), M12, v(vT)))
    a("v_lshrrev_b32 %s, 16, %s" % (v(vT + 1), v(vT + 1)))
    a("v_mul_u32_u24 %s, %d, %s" % (v(vT + 1), 2688 - 192, v(vT + 1)))
    a("v_lshl_add_u32 %s, %s, 4, %s" % (v(vW[k]), v(vT), v(vT + 1)))
    a("v_add_u32 %s, %s, %s" % (v(vW[k]), sT0, v(vW[k])))
if OPT["warm"]:
    a("s_mul_i32 %s, %s, 14" % (sT0, sT2))
    a("s_add_u32 %s, %s, %s" % (sT0, sT0, sJ))
    a("s_lshl_b32 %s, %s, 3" % (sT0, sT0))
    a("s_add_u32 %s, %s, %s" % (sT0, sT0, sWAVE))
    if OPT["warm"] in (1, 4):
        a("v_min_u32 v39, 41, %s" % vL)
        a("v_mul_u32_u24 v39, 224, v39")
        a("v_add_u32 v39, %s, v39" % sT0)
        a("v_lshlrev_b32 v39, 7, v39")
    else:
        a("s_mul_i32 %s, %s, 42" % (sT0, sT0))
        a("v_min_u32 v39, 41, %s" % vL)
        a("v_add_u32 v39, %s, v39" % sT0)
        a("v_lshlrev_b32 v39, 7, v39")
    sum_s(sT0, [(sJ, 8), (sWAVE, 1)])
    sum_s(sT1, [(sT0, 1024), (sR0, 896)])
    a("v_and_b32 v40, 7, %s" % vL)
    a("v_lshlrev_b32 v40, 7, v40")
    a("v_add_u32 v40, %s, v40" % sT1)
    a("s_mov_b32 %s, 0" % sROT)
a("s_mov_b32 %s, %s" % (sCX, sROT))
a("s_mov_b32 %s, %s" % (sCW, sROT))
a("s_mul_i32 s92, %s, 3072" % sHW)
sizes = [1835008, 1204224, 401408, 1605632, 1605632, 1835008, 256, WS_SIZE]
srcs = [72, 74, 76, 80, 82, 84, 86, 88]
for i in range(8):
    a("s_mov_b32 s%d, %d" % (4 + 4 * i + 2, sizes[i]))
    a("s_mov_b32 s%d, 0x00020000" % (4 + 4 * i + 3))
a("s_waitcnt lgkmcnt(0)")
for i in range(8):
    a("s_mov_b64 s[%d:%d], s[%d:%d]" % (4 + 4 * i, 5 + 4 * i, srcs[i], srcs[i] + 1))
a("s_cmp_ge_u32 %s, 14" % sJ)
a("s_cbranch_scc1 Lservice")
if OPT["warm"]:
    if OPT["warm"] >= 3:
        a("buffer_load_dword v26, v40, %s, 0 offen" % X)
    a("buffer_load_dword v26, v39, %s, 0 offen" % WQKV)
a("s_cmp_lt_u32 %s, 4" % sWAVE)
a("s_cbranch_scc1 Lmfma")


def common_setup():
    a("s_lshr_b32 %s, %s, 1" % (sKH, sHW))
    a("s_and_b32 %s, %s, 1" % (sMH, sHW))
    a("s_cmp_ge_u32 %s, 7" % sJ)
    a("s_cselect_b32 %s, 1, 0" % sMH2)
    a("s_mul_i32 %s, %s, 7" % (sT3, sMH2))
    a("s_sub_u32 %s, %s, %s" % (sNB, sJ, sT3))
    a("s_min_u32 %s, %s, 6" % (sNB, sNB))
    a("s_getreg_b32 %s, hwreg(HW_REG_XCC_ID)" % sXCC)
    a("s_and_b32 %s, %s, 7" % (sXCC, sXCC))
    a("s_mov_b32 s50, 0")
    a("s_mov_b32 s51, -1")
    a("s_mov_b32 s52, -1")
    a("s_mov_b32 s53, 0xffff")
    a("s_mov_b32 s54, 0")
    a("s_mov_b32 s55, 0xffff0000")
    a("s_mov_b32 %s, 0" % sFAST)
    a("s_mov_b32 %s, 0" % sEPL)
    a("s_mov_b32 %s, 0" % sEPH)
    if OPT["stamps"]:
        sum_s(sTSOFF, [("s2", 2048), (sWAVE, 256)], WS_TS)
    sum_s(sTILE, [(sG, 4), (sMH2, 2), (sMH, 1)])
    sum_s(sXO, [(sTILE, 32 * 896), (sNB, 128), (sKH, 64)])
    sum_s(sTILE4, [(sG, 4), (sHW, 1)])
    a("s_and_b32 %s, %s, 1" % (sT0, sG))
    sum_s(sRU, [(sT0, 4), (sMH2, 2), (sNB, 1)])
    a("v_mul_u32_u24 %s, 896, %s" % (vXOFF, vL31))
    a("v_lshl_add_u32 %s, %s, 3, %s" % (vXOFF, vH, vXOFF))
    a("v_lshlrev_b32 %s, 7, %s" % (v(HP + 8), vL))
    a("v_lshrrev_b32 %s, 3, %s" % (v(vT), vL))
    a("v_mul_u32_u24 %s, 896, %s" % (v(vT), v(vT)))
    a("v_bfe_u32 %s, %s, 4, 1" % (v(vT + 1), vL))
    a("v_lshlrev_b32 %s, 2, %s" % (v(vT + 1), v(vT + 1)))
    a("v_and_b32 %s, 7, %s" % (v(vT + 2), vL))
    a("v_xor_b32 %s, %s, %s" % (v(vT + 1), v(vT + 1), v(vT + 2)))
    a("v_lshl_add_u32 %s, %s, 4, %s" % (v(HP), v(vT + 1), v(vT)))
    a("s_lshl_b32 %s, %s, 7" % (sT0, sNB))
    a("v_add_u32 %s, %s, %s" % (v(HP), sT0, v(HP)))
    a("s_mul_i32 %s, %s, 224" % (sT0, sJ))
    for k in range(7):
        a("v_add_u32 %s, %d, %s" % (v(vT), 64 * k, vL))
        a("v_mul_u32_u24 %s, %d, %s" % (v(vT + 1), (1 << 16) // 14 + 1, v(vT)))
        a("v_lshrrev_b32 %s, 16, %s" % (v(vT + 1), v(vT + 1)))
        a("v_mul_u32_u24 %s, %d, %s" % (v(vT + 1), 3584 - 224, v(vT + 1)))
        a("v_lshl_add_u32 %s, %s, 4, %s" % (v(HP + 1 + k), v(vT), v(vT + 1)))
        a("v_add_u32 %s, %s, %s" % (v(HP + 1 + k), sT0, v(HP + 1 + k)))


for i in range(448):
    assert (i * ((1 << 16) // 14 + 1)) >> 16 == i // 14
vWO = v(HP)
vW1 = [HP + 1 + k for k in range(7)]
vTCH = v(HP + 8)


def tr_base_192(dst, t0):
    a("v_lshrrev_b32 %s, 2, %s" % (t0, vR))
    a("v_lshl_add_u32 %s, %s, 3, %s" % (t0, vH, t0))
    a("v_mul_u32_u24 %s, 192, %s" % (dst, t0))
    a("v_bfe_u32 %s, %s, 4, 1" % (t0, vL))
    a("v_lshl_add_u32 %s, %s, 5, %s" % (dst, t0, dst))
    a("v_and_b32 %s, 3, %s" % (t0, vL))
    a("v_lshl_add_u32 %s, %s, 3, %s" % (dst, t0, dst))


assert lds_conflicts([(8 * (l >> 5) + ((l & 15) >> 2)) * 192 + ((l >> 4) & 1) * 32 + (l & 3) * 8 for l in range(64)], "tr") == 0


def w1_block(base):
    a("s_add_u32 %s, %s, %d" % (sT0, sHW, base))
    a("s_mul_i32 %s, %s, %d" % (sT1, sT0, 32 * 3584))
    a("s_mul_i32 %s, %s, 7168" % (sT2, sHW))
    ldsb = base * 7168 if base < 12 else L_W1U + (base - 12) * 7168
    for k in range(7):
        dma(v(vW1[k]), W1, sT1, sT2, ldsb + k * 1024)


def touch_lines(srd, s_base, n, sc1=False):
    cnt = 0
    done = 0
    while done < n:
        k = min(64, n - done)
        if k < 64:
            a("v_min_u32 %s, %d, %s" % (v(vT), (k - 1) * 128, vTCH))
            vo = v(vT)
        else:
            vo = vTCH
        nt = (srd == WS and OPT["nt"] & 8) or (srd != WS and OPT["nt"] & 4)
        a("buffer_load_dword v26, %s, %s, %s offen%s%s" % (vo, srd, s_base, " sc1" if sc1 else "", " nt" if nt else ""))
        cnt += 1
        done += k
        if done < n:
            a("s_add_u32 %s, %s, %d" % (s_base, s_base, 64 * 128))
    return cnt


def touch_range(srd, base, total):
    if OPT["nobg"]:
        return 0
    per = total // 128 // 128
    assert per * 128 * 128 == total, (total, per)
    sum_s(sT0, [(sSLOT, 4 * per * 128), (sHW, per * 128)], base)
    return touch_lines(srd, sT0, per)


def wo_dma():
    a("s_mul_i32 %s, %s, %d" % (sT0, sHW, 8 * 896))
    for k in range(15):
        if k == 14:
            a("s_mov_b32 %s, %d" % (sT0, 56 * 8 * 896))
            dma(vWO, WO, sT0, None, L_WO + 56 * 1024)
        else:
            dma(vWO, WO, sT0, sHW1K, L_WO + k * 4096)
            a("s_add_u32 %s, %s, %d" % (sT0, sT0, 32 * 896))


def bg(slot):
    n = 0
    for it in [x for x in OPT[slot].split("+") if x]:
        if it == "wo":
            wo_dma(); n += 15
        elif it == "w18":
            w1_block(8); n += 7
        elif it == "w10":
            w1_block(0); n += 7
        elif it == "w14":
            w1_block(4); n += 7
        elif it == "tw1":
            n += touch_range(W1, 0, 256 * 3584)
        elif it == "tw1u":
            n += touch_range(W1, 384 * 3584, 64 * 3584)
        elif it == "tw1a":
            n += touch_range(W1, 0, 1605632)
        elif it == "two":
            n += touch_range(WO, 0, 393216)
        elif it == "tw2":
            n += touch_range(W2, 0, 1605632)
        elif it == "tw2a":
            n += touch_range(W2, 0, 802816)
        elif it == "tw2b":
            n += touch_range(W2, 802816, 802816)
        elif it == "tw2r":
            n += touch_range(W2, 393216, 1605632 - 393216 - 0 * 16384) if False else touch_range(W2, 393216, 1212416)
        elif it == "w2a":
            pass
        else:
            raise ValueError(it)
    return n


def vpad_prefill():
    a("v_mov_b32 %s, 0x3f80" % v(vT + 2))
    a("v_mov_b32 %s, 0" % v(vT + 3))
    a("s_mul_i32 %s, %s, %d" % (sT0, sHW, 3 * 4096))
    a("v_lshlrev_b32 %s, 3, %s" % (v(vT), vL31))
    a("v_lshl_add_u32 %s, %s, 12, %s" % (v(vT), vH, v(vT)))
    a("v_add_u32 %s, %s, %s" % (v(vT), sT0, v(vT)))
    a("ds_write_b64 %s, %s offset:%d" % (v(vT), v(vT + 2, 2), L_KV + 2048 + 1792))
    a("ds_write_b64 %s, %s offset:%d" % (v(vT), v(vT + 2, 2), L_KV + 4096 + 2048 + 1792))


sFA, sFB, sFC, sFD = "s84", "s85", "s86", "s87"
vIF = 236


def fetch_setup():
    a("v_lshrrev_b32 %s, 3, %s" % (v(vT), vL))
    a("v_min_u32 %s, 2, %s" % (v(vT), v(vT)))
    a("v_bfe_u32 %s, %s, 1, 2" % (v(vT + 1), vL))
    a("v_min_u32 %s, 2, %s" % (v(vT + 1), v(vT + 1)))
    a("v_cmp_gt_u32 vcc, 2, %s" % v(vT))
    a("v_max_u32 %s, 1, %s" % (v(vT + 2), v(vT + 1)))
    a("v_cndmask_b32 %s, %s, %s, vcc" % (v(vT + 1), v(vT + 1), v(vT + 2)))
    a("v_mul_u32_u24 %s, 448, %s" % (v(vT + 1), v(vT + 1)))
    a("v_and_b32 %s, 1, %s" % (v(vT + 2), vL))
    a("v_mul_u32_u24 %s, 31, %s" % (v(vT + 2), v(vT + 2)))
    a("s_mul_i32 %s, %s, 7" % (sT0, sJ))
    a("s_lshr_b32 %s, %s, 1" % (sE, sT0))
    a("s_lshl_b32 %s, %s, 3" % (sT0, sE))
    a("v_add3_u32 %s, %s, %s, %s" % (v(vT + 1), v(vT + 1), v(vT + 2), sT0))
    M96 = (1 << 18) // 96 + 1
    for i in range(1348):
        assert (i * M96) >> 18 == i // 96
    a("v_mul_u32_u24 %s, %d, %s" % (v(vT + 1), M96, v(vT + 1)))
    a("v_lshrrev_b32 %s, 18, %s" % (v(vT + 1), v(vT + 1)))
    a("v_min_u32 %s, 13, %s" % (v(vT + 1), v(vT + 1)))
    a("v_add_u32 %s, %s, %s" % (v(vT + 2), sG, v(vT)))
    a("v_cmp_gt_u32 vcc, 2, %s" % v(vT + 2))
    a("v_subrev_u32 %s, 2, %s" % (v(vT + 2), v(vT + 2)))
    a("v_mov_b32 %s, %s" % (v(vT + 3), sG))
    a("v_cndmask_b32 %s, %s, %s, vcc" % (v(vT + 2), v(vT + 2), v(vT + 3)))
    a("v_lshlrev_b32 %s, 9, %s" % (v(vT + 2), v(vT + 2)))
    a("v_lshl_add_u32 %s, %s, 3, %s" % (v(vT + 2), v(vT + 1), v(vT + 2)))
    sum_s(sT0, [(sHW, 128)], WS_F1)
    a("v_add_u32 v27, %s, %s" % (sT0, v(vT + 2)))
    sum_s(sFC, [(sTILE4, QT), (sE, 512)], WS_QKV)
    a("s_sub_u32 %s, %s, %d" % (sFB, sFC, 4 * QT))
    a("s_sub_u32 %s, %s, %d" % (sFA, sFC, 8 * QT))
    a("s_cmp_lt_u32 %s, 1" % sG)
    a("s_cselect_b32 %s, 0x40000000, %s" % (sFB, sFB))
    a("s_cmp_lt_u32 %s, 2" % sG)
    a("s_cselect_b32 %s, 0x40000000, %s" % (sFA, sFA))
    a("s_lshl_b32 %s, %s, 11" % (sFD, sHW))


SC, KB, QF, M0R, M16R, PF, VB, OA = 32, 100, 124, 128, 132, 136, 148, 172
LS, ONE4 = 196, 200
vKA = [180, 181]
vVA = [184, 185]
vQA = "v186"
vNEG, vGFA, vGF, vOA = "v188", "v189", 190, "v192"
sFQ, sFO = "s[80:81]", "s[82:83]"


def p2_setup():
    a("s_mul_i32 %s, %s, 7" % (sT4, sJ))
    a("s_lshr_b32 %s, %s, 1" % (sT4, sT4))
    a("v_add_u32 %s, %s, %s" % (v(vT + 3), sT4, vQ4))
    a("v_and_b32 %s, 1, %s" % (v(vT + 3), v(vT + 3)))
    a("v_mul_u32_u24 %s, 12, %s" % (v(vT + 3), v(vT + 3)))
    a("v_bfe_u32 %s, %s, 1, 1" % (v(vT + 4), vR))
    a("v_add_u32 %s, %s, %s" % (v(vT + 5), sT4, v(vT + 4)))
    a("v_and_b32 %s, 1, %s" % (v(vT + 5), v(vT + 5)))
    a("v_mul_u32_u24 %s, 12, %s" % (v(vT + 5), v(vT + 5)))
    for par in range(2):
        a("s_add_u32 %s, %s, %d" % (sT0, sWAVE, par))
        a("s_lshr_b32 %s, %s, 1" % (sT1, sT0))
        a("s_lshl_b32 %s, %s, 12" % (sT1, sT1))
        a("s_and_b32 %s, %s, 1" % (sT0, sT0))
        a("s_lshl_b32 %s, %s, 4" % (sT0, sT0))
        a("v_add_u32 %s, %s, %s" % (v(vT), sT0, vR))
        a("v_xor_b32 %s, %s, %s" % (v(vT), v(vT), v(vT + 3)))
        a("v_lshlrev_b32 %s, 4, %s" % (v(vT), v(vT)))
        a("v_lshl_add_u32 %s, %s, 9, %s" % (v(vT), vQ4, v(vT)))
        a("v_add_u32 %s, %s, %s" % (v(vKA[par]), sT1, v(vT)))
        if par == 0:
            a("s_lshr_b32 %s, %s, 1" % (sT2, sT1))
            a("s_add_u32 %s, %s, %d" % (sT2, sT2, L_Q))
            a("v_add_u32 %s, %s, %s" % (vQA, sT2, v(vT)))
        a("v_lshrrev_b32 %s, 2, %s" % (v(vT), vR))
        a("v_lshl_add_u32 %s, %s, 2, %s" % (v(vT), vQ4, v(vT)))
        a("v_add_u32 %s, %s, %s" % (v(vT), sT0, v(vT)))
        a("v_xor_b32 %s, %s, %s" % (v(vT), v(vT), v(vT + 5)))
        a("v_lshlrev_b32 %s, 4, %s" % (v(vT), v(vT)))
        a("v_lshl_add_u32 %s, %s, 9, %s" % (v(vT), v(vT + 4), v(vT)))
        a("v_and_b32 %s, 1, %s" % (v(vT + 1), vR))
        a("v_lshl_add_u32 %s, %s, 3, %s" % (v(vT), v(vT + 1), v(vT)))
        a("v_add_u32 %s, %s, %s" % (v(vVA[par]), sT1, v(vT)))
    for o_ in range(2):
        for half in range(2):
            assert lds_conflicts([(l >> 4) * 512 + (((16 * half + (l & 15)) ^ (12 * ((o_ + (l >> 4)) & 1))) * 16) for l in range(64)], "b128") == 0
            assert lds_conflicts([((l >> 1) & 1) * 512 + (((16 * half + 4 * (l >> 4) + ((l & 15) >> 2)) ^ (12 * ((o_ + ((l >> 1) & 1)) & 1))) * 16) + (l & 1) * 8 for l in range(64)], "tr") == 0
    a("s_and_b32 %s, %s, 1" % (sT0, sJ))
    a("s_cmp_eq_u32 %s, 0" % sT0)
    a("s_cselect_b32 s80, 0, 0xffff")
    a("s_mov_b32 s81, 0")
    a("s_mov_b32 s82, 0")
    a("s_cselect_b32 s83, 0xffff0000, 0")
    for k in range(4):
        a("v_mov_b32 %s, 0x3f803f80" % v(ONE4 + k))
    a("v_mov_b32 %s, 0xf149f2ca" % vNEG)
    a("v_lshlrev_b32 %s, 2, %s" % (v(vT), vQ4))
    a("v_sub_u32 %s, %s, %s" % (v(vT), v(vT), vR))
    for c in range(4):
        a("v_cmp_lt_i32 vcc, %d, %s" % (-c, v(vT)))
        a("v_cndmask_b32 %s, %s, %s, vcc" % (v(M0R + c), vNEG, vZ))
        a("v_cndmask_b32 %s, %s, %s, vcc" % (v(M16R + c), vZ, vNEG))
    sum_s(sT0, [(sG, 512)], WS_F1)
    a("v_lshlrev_b32 %s, 3, %s" % (vGFA, vR))
    a("v_add_u32 %s, %s, %s" % (vGFA, sT0, vGFA))
    a("s_lshr_b32 %s, %s, 1" % (sT1, sWAVE))
    a("s_and_b32 %s, %s, 1" % (sT2, sWAVE))
    sum_s(sE, [(sG, 131072), (sT1, 32768), (sJ, 2048), (sT2, 256)], WS_O)
    sum_s(sF, [(sG, 1024), (sWAVE, 128), (sJ, 8)], WS_F2)
    a("v_lshlrev_b32 %s, 9, %s" % (vOA, vQ4))
    a("v_lshl_add_u32 %s, %s, 4, %s" % (vOA, vR, vOA))
    a("v_mov_b32 %s, 0" % v(PF + 8 + 2))
    a("v_mov_b32 %s, 0" % v(PF + 8 + 3))




def adv(s):
    a("s_add_u32 %s, %s, 1" % (s, s))
    a("s_cmp_eq_u32 %s, 7" % s)
    a("s_cselect_b32 %s, 0, %s" % (s, s))


def issue_w(c):
    a("s_mul_i32 %s, %s, %d" % (sT1, sCW, 64 * 2688))
    for k in range(3):
        dma(v(vW[k]), WQKV, sT1, "s92", c * 12288 + k * 1024)
    adv(sCW)


def issue_x(c):
    a("s_lshl_b32 %s, %s, 7" % (sT0, sCX))
    for ii in range(4):
        dma(v(vX[ii]), X, sT0, sHW4K, L_XR + (c % 4) * 16384 + ii * 1024)
    adv(sCX)


GW = [{0: [0, 1], 1: [2, 3], 2: [4], 3: [5], 4: [6], 5: [], 6: []},
      {0: [0], 1: [1], 2: [2, 3], 3: [4, 5], 4: [6], 5: [], 6: []},
      {0: [0], 1: [1, 2], 2: [3, 4], 3: [5], 4: [6], 5: [], 6: []}][OPT["gw"]]


def issue_group(c):
    ws = list(GW[c])
    while ws and (ws[0] <= c or (OPT["gw"] == 0 and c <= 1)):
        issue_w(ws.pop(0))
    issue_x(c)
    for w_ in ws:
        issue_w(w_)
    return 4 + 3 * len(GW[c])


if OPT["warm"]:
    common_setup()
    a("s_waitcnt vmcnt(0)")
if OPT["diag"]:
    a("s_memtime s[98:99]")
    issue_w(0)
    a("s_waitcnt vmcnt(0)")
    a("s_memtime s[100:101]")
    a("s_mov_b32 %s, %s" % (sCW, sROT))
groups = [issue_group(0), issue_group(1)]
if not OPT["warm"]:
    common_setup()
if OPT["diag"]:
    a("s_waitcnt lgkmcnt(0)")
    for nm, r_ in (("d_entry", 96), ("d_karg", 98), ("d_first", 100)):
        idx = STAMPS.setdefault("t0", 0)
        idx = STAMPS.setdefault(nm, len(STAMPS))
        a("v_mov_b32 v30, s%d" % r_)
        a("v_mov_b32 v31, s%d" % (r_ + 1))
        a("s_mov_b64 exec, 1")
        a("buffer_store_dwordx2 v[30:31], %s, %s, %s offen offset:%d" % (vZ, WS, sTSOFF, idx * 8))
        a("s_mov_b64 exec, -1")
    groups[-1] += 3
stamp("t0")
stamp("rt_start")
hCS = [48, 49, 50, 51, 52, 53]
hWA, hWA2 = "v54", "v55"
HBW = 60
hST = 76
for r_ in hCS:
    a("v_mov_b32 %s, 0" % v(r_))
tr_base_192(hWA, v(vT))
a("v_add_u32 %s, s92, %s" % (hWA, hWA))
a("v_add_u32 %s, %d, %s" % (hWA2, 5 * 12288, hWA))
a("v_lshlrev_b32 v56, 4, %s" % vL31)
a("v_mov_b32 v57, 0x3f803f80")
sum_s(sA, [(sTILE4, 512)], WS_ST)


def colsum_w(c):
    if OPT["dry"] & 1:
        return
    base, off = (hWA2, (c - 5) * 12288) if c >= 5 else (hWA, c * 12288)
    for p3 in range(3):
        for hh in range(2):
            a("ds_read_b64_tr_b16 %s, %s offset:%d" % (v(HBW + 4 * p3 + 2 * hh, 2), base, off + p3 * 64 + hh * 768))
    a("s_waitcnt lgkmcnt(0)")
    for i in range(4):
        for p3 in range(3):
            a("v_dot2c_f32_bf16 %s, %s, v57" % (v(hCS[2 * p3]), v(HBW + 4 * p3 + i)))


for c in range(7):
    after = sum(groups[c + 1:])
    if c == 6:
        a("v_mov_b32 %s, %d" % (v(vT), L_EP))
        a("ds_read_b64 %s, %s" % (v(vFLG, 2), v(vT)))
        a("s_waitcnt lgkmcnt(0)")
        a("v_readfirstlane_b32 %s, %s" % (sEPL, v(vFLG)))
        a("v_readfirstlane_b32 %s, %s" % (sEPH, v(vFLG + 1)))
        a("v_or_b32 %s, %s, %s" % (v(vFLG), sXCC, v(vFLG)))
        a("s_mov_b32 %s, 0x20000" % sCNT)
        a("s_waitcnt vmcnt(%d)" % sum(groups[8:]))
        a.label("Lst_loop")
        a("v_cmp_ne_u32 vcc, %s, %s" % (sEPL, v(hST + 1)))
        a("v_cmp_ne_u32 s[94:95], %s, %s" % (sEPH, v(hST + 3)))
        a("s_or_b64 vcc, vcc, s[94:95]")
        a("s_cbranch_scc0 Lst_ok")
        a("buffer_load_dwordx4 %s, v56, %s, %s offen sc1" % (v(hST, 4), WS, sA))
        a("s_sub_u32 %s, %s, 1" % (sCNT, sCNT))
        a("s_waitcnt vmcnt(0)")
        a("s_cmp_lg_u32 %s, 0" % sCNT)
        a("s_cbranch_scc1 Lst_loop")
        a.label("Lst_ok")
        sum_s(sT0, [(sHW, 256)], L_ST)
        a("v_lshl_add_u32 %s, %s, 2, %s" % (v(vT), vL31, sT0))
        a("ds_write_b32 %s, %s" % (v(vT), v(hST)))
        a("ds_write_b32 %s, %s offset:128" % (v(vT), v(hST + 2)))
        a("s_waitcnt lgkmcnt(0)")
    else:
        a("s_waitcnt vmcnt(%d)" % after)
    a("s_barrier")
    stamp("h_b%d" % c)
    if c == 0:
        groups.append(issue_group(2))
    if c + 3 <= 6:
        groups.append(issue_group(c + 3))
    if c == 3:
        a("buffer_load_dwordx4 %s, v56, %s, %s offen sc1" % (v(hST, 4), WS, sA))
        groups.append(1)
    if c == 3 and OPT["hpt"] and not OPT["ohsc"]:
        sum_s(sT0, [(sG, 114688), (sJ, 8192), (sHW, 2048)], WS_H)
        groups.append(touch_lines(WS, sT0, 16, sc1=True))
    if c == 3 and OPT["P3"]:
        groups.append(bg("P3"))
    if c == OPT["pt_c"] and OPT["pt_h1"] == 3:
        sum_s(sT0, [(sG, 448 * 1024), (sJ, 32 * 1024), (sHW, 8192)], WS_H1)
        groups.append(touch_lines(WS, sT0, 64, sc1=True))
    for w_ in GW[c]:
        colsum_w(w_)
    if c == 4:
        for p3 in range(3):
            a("v_add_f32 %s, %s, %s" % (v(hCS[2 * p3]), v(hCS[2 * p3]), v(hCS[2 * p3 + 1])))
            xhalf_sum(v(hCS[2 * p3]), v(vT))
        sum_s(sT0, [(sHW, 384)], L_CSP)
        a("v_lshl_add_u32 %s, %s, 2, %s" % (v(vT), vL31, sT0))
        for p3 in range(3):
            a("ds_write_b32 %s, %s offset:%d" % (v(vT), v(hCS[2 * p3]), 128 * p3))
        a("s_waitcnt lgkmcnt(0)")
    if c == 5:
        a("s_min_u32 %s, %s, 2" % (sT0, sHW))
        a("s_lshl_b32 %s, %s, 7" % (sT0, sT0))
        a("s_add_u32 %s, %s, %d" % (sT1, sT0, L_CSP))
        a("v_lshl_add_u32 %s, %s, 2, %s" % (v(vT + 4), vL31, sT1))
        a("s_add_u32 %s, %s, %d" % (sT1, sT0, L_CS))
        a("v_lshl_add_u32 %s, %s, 2, %s" % (v(vT + 5), vL31, sT1))
        for k in range(4):
            a("ds_read_b32 %s, %s offset:%d" % (v(HBW + k), v(vT + 4), 384 * k))
        a("s_waitcnt lgkmcnt(0)")
        a("v_add_f32 %s, %s, %s" % (v(HBW), v(HBW), v(HBW + 1)))
        a("v_add_f32 %s, %s, %s" % (v(HBW + 2), v(HBW + 2), v(HBW + 3)))
        a("v_add_f32 %s, %s, %s" % (v(HBW), v(HBW), v(HBW + 2)))
        a("ds_write_b32 %s, %s" % (v(vT + 5), v(HBW)))
a("s_barrier")
bg("A")
stamp("h_wo")
a("s_branch Lp2")

a.label("Lservice")
a("s_sub_u32 %s, %s, 14" % (sT0, sJ))
sum_s(sT1, [(sT0, 64), (sWAVE, 8), (sR0, 1)])
a("s_mul_i32 %s, %s, 896" % (sT2, sT1))
a("v_lshrrev_b32 %s, 3, %s" % (v(vT), vL))
a("v_mul_u32_u24 %s, 896, %s" % (v(40), v(vT)))
a("v_and_b32 %s, 7, %s" % (v(vT + 1), vL))
a("v_lshl_add_u32 %s, %s, 4, %s" % (v(40), v(vT + 1), v(40)))
SX = 44
for i in range(7):
    a("buffer_load_dwordx4 %s, v40, %s, %s offen offset:%d%s" % (v(SX + 4 * i, 4), X, sT2, 128 * i, " nt" if OPT["nt"] & 1 else ""))
a("buffer_load_dwordx2 %s, %s, %s, 0 offen sc1" % (v(vFLG, 2), vZ, DBG))
a("s_lshl_b32 %s, %s, 4" % (sA, sT1))
a("s_add_u32 %s, %s, %d" % (sA, sA, WS_ST))
a("v_lshlrev_b32 v41, 4, %s" % v(vT))
common_setup()
stamp("t0")
stamp("rt_start")
a("v_mov_b32 v42, 0")
a("v_mov_b32 v43, 0")
a("v_mov_b32 v39, 0x3f803f80")
a("s_waitcnt vmcnt(1)")
for i in range(28):
    a("v_dot2c_f32_bf16 v42, %s, v39" % v(SX + i))
    a("v_dot2c_f32_bf16 v43, %s, %s" % (v(SX + i), v(SX + i)))
for sw in (0x041F, 0x081F, 0x101F):
    a("ds_swizzle_b32 %s, v42 offset:0x%x" % (v(vT + 2), sw))
    a("ds_swizzle_b32 %s, v43 offset:0x%x" % (v(vT + 3), sw))
    a("s_waitcnt lgkmcnt(0)")
    a("v_add_f32 v42, v42, %s" % v(vT + 2))
    a("v_add_f32 v43, v43, %s" % v(vT + 3))
ln_finish("v42", "v43", v(SX), v(SX + 2), v(vT + 2))
get_epoch_spin("svc")
a("v_mov_b32 %s, %s" % (v(SX + 1), sEPL))
a("v_mov_b32 %s, %s" % (v(SX + 3), sEPH))
a("v_or_b32 %s, %s, %s" % (v(vFLG), sXCC, v(vFLG)))
a("buffer_store_dwordx4 %s, v41, %s, %s offen sc1" % (v(SX, 4), WS, sA))
sum_s(sT0, [(sG, 512), (sJ, 8)], WS_F1)
flag_store(sT0, " sc1")
stamp("svc_st")
a("s_waitcnt vmcnt(0)")
a("s_barrier")
a("s_sub_u32 %s, %s, 14" % (sT0, sJ))
sum_s(sT4, [(sT0, 8), (sWAVE, 1)])
if not OPT["ohsc"]:
    sum_s(sT1, [(sG, 131072), (sT4, 8192)], WS_O)
    touch_lines(WS, sT1, 64, sc1=True)
    if not OPT["hpt"]:
        sum_s(sT1, [(sG, 114688), (sT4, 7168)], WS_H)
        touch_lines(WS, sT1, 56, sc1=True)
    sum_s(sT1, [(sG, 16384), (sT4, 1024)], WS_HS)
    touch_lines(WS, sT1, 8, sc1=True)
sum_s(sT1, [(sG, 1024)], WS_F2)
touch_lines(WS, sT1, 8, sc1=True)
sum_s(sT1, [(sG, 512)], WS_F3)
touch_lines(WS, sT1, 4, sc1=True)
sum_s(sT1, [(sG, 512)], WS_F4)
touch_lines(WS, sT1, 4, sc1=True)
a("s_and_b32 %s, %s, 1" % (sT0, sG))
sum_s(sT3, [(sT0, 16), (sT4, 1)])
for it in [x for x in OPT["svc"].split("+") if x]:
    srd, base, total = {"wo": (WO, 0, 401408), "w2q": (W2, 0, 401408), "w2q2": (W2, 401408, 401408), "w1q": (W1, 0, 401408)}[it]
    per = total // 128 // 32
    sum_s(sT1, [(sT3, per * 128)], base)
    touch_lines(srd, sT1, per)
if OPT["pt_h1"] == 2:
    sum_s(sT1, [(sG, 448 * 1024), (sT4, 28 * 1024)], WS_H1)
    touch_lines(WS, sT1, 224, sc1=True)
fetch_setup()
a("s_cmp_lt_u32 %s, 4" % sWAVE)
a("s_cbranch_scc1 Lfetch")
if "w18" in OPT["A"]:
    w1_block(8)
a("s_branch Lp2")

a.label("Lmfma")
a("s_or_b32 %s, s2, %s" % (sT0, sWAVE))
a("s_cmp_lg_u32 %s, 0" % sT0)
a("s_cbranch_scc1 Lnoep")
a("s_memrealtime s[94:95]")
a("s_waitcnt lgkmcnt(0)")
a("s_lshl_b32 %s, s94, 4" % sT1)
a("s_or_b32 %s, %s, 8" % (sT1, sT1))
a("s_mul_i32 %s, s94, 0x9e3779b1" % sT2)
a("s_add_u32 %s, %s, s95" % (sT2, sT2))
a("v_mov_b32 %s, %s" % (v(vT), sT1))
a("v_mov_b32 %s, %s" % (v(vT + 1), sT2))
a("s_mov_b64 exec, 1")
a("buffer_store_dwordx2 %s, %s, %s, 0 offen sc1" % (v(vT, 2), vZ, DBG))
a("s_mov_b64 exec, -1")
a.label("Lnoep")
if OPT["tlb"]:
    a("s_cmp_lg_u32 %s, 3" % sWAVE)
    a("s_cbranch_scc1 Lnotlb")
    a("v_min_u32 %s, 18, %s" % (v(vT), vL))
    a("v_lshlrev_b32 %s, 20, %s" % (v(vT), v(vT)))
    a("buffer_load_dword v26, %s, %s, 0 offen" % (v(vT), WS))
    a("v_min_u32 %s, 1, %s" % (v(vT), vL))
    a("v_lshlrev_b32 %s, 20, %s" % (v(vT), v(vT)))
    for srd in (OUT, W1, W2):
        a("buffer_load_dword v26, %s, %s, 0 offen" % (v(vT), srd))
    a("buffer_load_dword v26, %s, %s, 0 offen" % (vZ, WO))
    a.label("Lnotlb")
common_setup()
stamp("t0")
stamp("rt_start")
ACC = 32
FB = 80
vXA = [148, 149, 150, 151]
vWA, vWA2 = "v152", "v153"
vSA, vCA = "v154", "v155"
vQo = ["v156", "v157"]
CS = 160
PK = 208
vNM, vRS = 232, 234
a("v_bfe_u32 %s, %s, 1, 3" % (v(vT), vL31))
a("v_xor_b32 %s, %s, %s" % (v(vT), v(vT), vH))
a("v_lshlrev_b32 %s, 7, %s" % (v(vT + 1), vL31))
a("v_add_u32 %s, %s, %s" % (v(vT + 1), sHW4K, v(vT + 1)))
a("v_add_u32 %s, %d, %s" % (v(vT + 1), L_XR, v(vT + 1)))
for s in range(4):
    a("v_xor_b32 %s, %d, %s" % (v(vT + 2), 2 * s, v(vT)))
    a("v_lshl_add_u32 %s, %s, 4, %s" % (v(vXA[s]), v(vT + 2), v(vT + 1)))
    assert lds_conflicts([(l & 31) * 128 + (((2 * s + (l >> 5)) ^ (((l & 31) >> 1) & 7)) * 16) for l in range(64)], "b128") == 0
tr_base_192(vWA, v(vT))
a("v_add_u32 %s, %d, %s" % (vWA2, 5 * 12288, vWA))
sum_s(sT0, [(sHW, 256)], L_ST)
a("v_lshl_add_u32 %s, %s, 2, %s" % (vSA, vL31, sT0))
a("v_lshlrev_b32 %s, 4, %s" % (vCA, vH))
a("v_add_u32 %s, %d, %s" % (vCA, L_CS, vCA))
a("v_mul_u32_u24 %s, 12, %s" % (v(vT), vH))
a("v_xor_b32 %s, %s, %s" % (v(vT), v(vT), vL))
a("v_lshlrev_b32 %s, 4, %s" % (vQo[0], v(vT)))
sum_s(sA, [(sTILE4, QT), (sJ, 12 * 512)], WS_QKV)
a("s_add_u32 %s, %s, 4096" % (sC, sA))
sum_s(sD, [(sTILE4, 128), (sJ, 8)], WS_F1)


def p1_reads(c, s):
    if OPT["dry"] & 2:
        return
    fb = FB + 16 * s
    a("ds_read_b128 %s, %s offset:%d" % (v(fb, 4), v(vXA[s]), (c % 4) * 16384))
    base, off = (vWA2, (c - 5) * 12288) if c >= 5 else (vWA, c * 12288)
    for p3 in range(3):
        for hh in range(2):
            a("ds_read_b64_tr_b16 %s, %s offset:%d" % (v(fb + 4 + 4 * p3 + 2 * hh, 2), base, off + p3 * 64 + s * 3072 + hh * 768))


def p1_mfma(c, s, fill=None):
    if OPT["dry"] & 2:
        return
    fb = FB + 16 * s
    first = (c == 0 and s == 0)
    for p3 in range(3):
        acc = v(ACC + 16 * p3, 16)
        a("v_mfma_f32_32x32x16_bf16 %s, %s, %s, %s" % (acc, v(fb + 4 + 4 * p3, 4), v(fb, 4), "0" if first else acc))
        if fill:
            for _ in range(6):
                if fill:
                    a(fill.pop(0))


for k in range(4):
    a("v_mov_b32 %s, -1" % v(PK + k))
def sentinel_init():
    for i in range(6 if OPT["sent"] else 0):
        a("buffer_store_dwordx4 %s, %s, %s, %s offen offset:%d sc1" % (v(PK, 4), vL16, WS, sA if i < 4 else sC, 1024 * (i % 4)))
    a("buffer_load_dwordx2 %s, %s, %s, 0 offen sc1" % (v(vFLG, 2), vZ, DBG))


if OPT["ic"] < 0:
    sentinel_init()
fetch_setup()
a("s_barrier")
stamp("m_b0")
p1_reads(0, 0)
p1_reads(0, 1)
for c in range(7):
    fill = []
    if c == 1:
        for jj in range(4):
            a("buffer_load_dwordx2 %s, %s, %s, %s offen offset:%d" % (v(vXRES + 2 * jj, 2), vXOFF, X, sXO, 16 * jj))
    if c == OPT["ic"]:
        sentinel_init()
    if c == 6 and OPT["sent"]:
        a("buffer_load_dwordx2 %s, v27, %s, 0 offen sc1" % (v(vIF, 2), WS))
    a("s_waitcnt lgkmcnt(7)")
    p1_mfma(c, 0)
    p1_reads(c, 2)
    a("s_waitcnt lgkmcnt(7)")
    p1_mfma(c, 1)
    p1_reads(c, 3)
    if c == 6:
        a("ds_read_b32 %s, %s" % (v(vNM), vSA))
        a("ds_read_b32 %s, %s offset:128" % (v(vRS), vSA))
        a("s_waitcnt lgkmcnt(9)")
        p1_mfma(c, 2)
        a("s_waitcnt lgkmcnt(2)")
        for i in range(12):
            a("ds_read_b128 %s, %s offset:%d" % (v(CS + 4 * i, 4), vCA, 32 * i))
        p1_mfma(c, 3)
    else:
        a("s_waitcnt lgkmcnt(7)")
        p1_mfma(c, 2)
        if c == OPT["fc"]:
            get_epoch_spin("m")
            a("v_mov_b32 %s, %d" % (v(vT + 2), L_EP))
            a("ds_write_b64 %s, %s" % (v(vT + 2), v(vFLG, 2)))
            a("v_or_b32 %s, %s, %s" % (v(vFLG), sXCC, v(vFLG)))
            if OPT["sent"]:
                flag_store(sD, " sc1")
        a("s_waitcnt lgkmcnt(0)")
        a("s_barrier")
        stamp("m_b%d" % (c + 1))
        p1_reads(c + 1, 0)
        p1_reads(c + 1, 1)
        p1_mfma(c, 3)
a("s_waitcnt lgkmcnt(12)")
a("v_mul_f32 %s, %s, %s" % (v(vNM), v(vNM), v(vRS)))
a("v_mov_b32 %s, %s" % (v(vRS + 1), v(vRS)))
a("v_mov_b32 %s, %s" % (v(vNM + 1), v(vNM)))
stamp("m_p1end")
for i in range(3):
    a("s_waitcnt lgkmcnt(%d)" % (8 - 4 * i))
    for k in range(8):
        r_ = CS + 16 * i + 2 * k
        a("v_pk_mul_f32 %s, %s, %s" % (v(r_, 2), v(r_, 2), v(vNM, 2)))
for i in range(3):
    for k in range(8):
        r_ = ACC + 16 * i + 2 * k
        a("v_pk_fma_f32 %s, %s, %s, %s" % (v(r_, 2), v(r_, 2), v(vRS, 2), v(CS + 16 * i + 2 * k, 2)))
    for k in range(8):
        a("v_cvt_pk_bf16_f32 %s, %s, %s" % (v(PK + 8 * i + k), v(ACC + 16 * i + 2 * k), v(ACC + 16 * i + 2 * k + 1)))
    for m in range(2):
        for k in range(2):
            a("v_permlane32_swap_b32 %s, %s" % (v(PK + 8 * i + 4 * m + k), v(PK + 8 * i + 4 * m + 2 + k)))
    for m in range(2):
        a("buffer_store_dwordx4 %s, %s, %s, %s offen offset:%d sc1" % (v(PK + 8 * i + 4 * m, 4), vQo[0], WS, sA if i < 2 else sC, (2048 * i if i < 2 else 0) + 1024 * m))
stamp("m_epi1")
stamp("rt_epi1")
if OPT["sent"]:
    a("s_barrier")
    a("s_waitcnt vmcnt(6)")
    a("v_and_b32 %s, -8, %s" % (v(vIF), v(vIF)))
    a("v_cmp_ne_u64 vcc, %s, %s" % (sEP, v(vIF, 2)))
    a("s_cbranch_vccz Lfetch_go")
else:
    a("s_waitcnt vmcnt(0)")
    flag_store(sD, " sc1")
    a("s_barrier")

a.label("Lfetch")
poll("v27", vT + 2, "f1")
a.label("Lfetch_go")
stamp("m_f1ok")
stamp("rt_f1ok")
a("v_add_u32 v32, %s, %s" % (sHW4K, vL16))
a("v_add_u32 v33, %s, %s" % (sFD, vL16))
a("s_mov_b32 %s, 0x4000" % sCNT)


def fetch_dma():
    for kind, sb in ((2, sFC), (1, sFB), (0, sFA)):
        if kind == 2:
            dma(vL16, WS, sb, sFD, L_Q, sc1=True)
            dma(vL16, WS, sb, sFD, L_Q + 1024, inst=1024, sc1=True)
        a("s_add_u32 %s, %s, %d" % (sT0, sb, 56 * 512))
        a("s_add_u32 %s, %s, %d" % (sT1, sb, 112 * 512))
        lb = L_KV + kind * 16384
        dma(vL16, WS, sT0, sHW4K, lb, sc1=True)
        dma(vL16, WS, sT0, sHW4K, lb + 1024, inst=1024, sc1=True)
        dma(vL16, WS, sT1, sHW4K, lb + 2048, sc1=True)
        dma(vL16, WS, sT1, sHW4K, lb + 3072, inst=1024, sc1=True)


fetch_dma()
p2_setup()
a.label("Lfetch_val")
if not OPT["sent"]:
    a("s_waitcnt vmcnt(0)")
    a("s_branch Lp2b")
VR = 36
order = [("v33", L_Q), ("v33", L_Q + 1024)] + [("v32", L_KV + kind * 16384 + 1024 * q) for kind in (2, 1, 0) for q in range(4)]
for n, (ad, off) in enumerate(order):
    if n in (0, 6, 10):
        a("s_waitcnt vmcnt(%d)" % {0: 8, 6: 4, 10: 0}[n])
    a("ds_read_b128 %s, %s offset:%d" % (v(VR + 4 * n, 4), ad, off))
a("v_mov_b32 v34, 0")
a("v_mov_b32 v35, 0")
for n in range(14):
    if n in (0, 6, 10):
        a("s_waitcnt lgkmcnt(%d)" % {0: 8, 6: 4, 10: 0}[n])
    a("v_max3_u32 v34, v34, %s, %s" % (v(VR + 4 * n), v(VR + 4 * n + 1)))
    a("v_max3_u32 v35, v35, %s, %s" % (v(VR + 4 * n + 2), v(VR + 4 * n + 3)))
a("v_max_u32 v34, v34, v35")
a("v_cmp_eq_u32 vcc, -1, v34")
a("s_sub_u32 %s, %s, 1" % (sCNT, sCNT))
a("s_cmp_eq_u32 %s, 0" % sCNT)
a("s_cbranch_scc1 Lfetch_done")
a("s_cbranch_vccz Lfetch_done")
fetch_dma()
a("s_branch Lfetch_val")
a.label("Lfetch_done")
if OPT["stamps"]:
    a("v_mov_b32 v30, %s" % sCNT)
    a("v_mov_b32 v31, 0")
    a("s_mov_b64 exec, 1")
    a("buffer_store_dwordx2 v[30:31], %s, %s, %s offen offset:%d" % (vZ, WS, sTSOFF, 30 * 8))
    a("s_mov_b64 exec, -1")
a("s_branch Lp2b")

a.label("Lp2")
p2_setup()
a.label("Lp2b")
stamp("kv_landed")
a("s_barrier")
stamp("b8")
stamp("rt_b8")
a(("s_cmp_ge_u32 %s, 4" if OPT["bm"] else "s_cmp_lt_u32 %s, 4") % sWAVE)
a("s_cbranch_scc1 Lp2go")
bg("B")
a.label("Lp2go")
a("buffer_load_dwordx2 %s, %s, %s, 0 offen sc1" % (v(vGF, 2), vGFA, WS))
a("ds_read_b128 %s, %s" % (v(QF, 4), vQA))
NKB = 6


def kread(i):
    a("ds_read_b128 %s, %s offset:%d" % (v(KB + 4 * (i % NKB), 4), v(vKA[i & 1]), (i >> 1) * 4096))


for i in range(NKB):
    kread(i)
for i in range(17):
    rem = min(NKB - 1, 16 - i)
    a("s_waitcnt lgkmcnt(%d)" % rem)
    if i == 0:
        for k in range(2):
            a("v_cndmask_b32 %s, %s, %s, %s" % (v(QF + k), v(QF + k), vZ, sFQ))
            a("v_cndmask_b32 %s, %s, %s, %s" % (v(QF + 2 + k), v(QF + 2 + k), vZ, sFO))
    cc = v(M0R, 4) if i == 0 else (v(M16R, 4) if i == 16 else "0")
    a("v_mfma_f32_16x16x32_bf16 %s, %s, %s, %s" % (v(SC + 4 * i, 4), v(KB + 4 * (i % NKB), 4), v(QF, 4), cc))
    if i + NKB < 17:
        kread(i + NKB)


def vread(n):
    p, dt = n >> 1, n & 1
    for b in range(2):
        par = b if p < 8 else 0
        a("ds_read_b64_tr_b16 %s, %s offset:%d" % (v(VB + 4 * (n % NKB) + 2 * b, 2), v(vVA[par]), 2048 + p * 4096 + dt * 1024))


for n in range(NKB):
    vread(n)
a("s_cmp_ge_u32 %s, 2" % sG)
a("s_cbranch_scc1 Lnoinv")
a("s_lshl_b32 %s, %s, 3" % (sT0, sG))
a("s_add_u32 %s, %s, %s" % (sT0, sT0, sWAVE))
a("s_sub_u32 %s, 16, %s" % (sT0, sT0))
for i in range(16):
    a("s_cmp_le_u32 %s, %d" % (sT0, i))
    a("s_cbranch_scc1 Lnoinv")
    for c in range(4):
        a("v_mov_b32 %s, %s" % (v(SC + 4 * i + c), vNEG))
a.label("Lnoinv")
vM, vM2 = v(vT), v(vT + 1)
a("v_max3_f32 %s, %s, %s, %s" % (vM, v(SC), v(SC + 1), v(SC + 2)))
a("v_max3_f32 %s, %s, %s, %s" % (vM2, v(SC + 3), v(SC + 4), v(SC + 5)))
i = 6
flip = 0
while i < 68:
    tgt = vM if flip == 0 else vM2
    a("v_max3_f32 %s, %s, %s, %s" % (tgt, tgt, v(SC + i), v(SC + i + 1)))
    i += 2
    flip ^= 1
a("v_max_f32 %s, %s, %s" % (vM, vM, vM2))
a("v_mov_b32 %s, %s" % (vM2, vM))
a("v_permlane32_swap_b32 %s, %s" % (vM, vM2))
a("v_max_f32 %s, %s, %s" % (vM, vM, vM2))
a("v_mov_b32 %s, %s" % (vM2, vM))
a("v_permlane16_swap_b32 %s, %s" % (vM, vM2))
a("v_max_f32 %s, %s, %s" % (vM, vM, vM2))
CSC = (28.0 ** -0.5) * math.log2(math.e)
a("s_mov_b32 %s, %s" % (sT0, f32(CSC)))
a("v_mul_f32 %s, %s, %s" % (vM, f32(-CSC), vM))
for p in range(9):
    ne = 8 if p < 8 else 4
    for i in range(ne):
        a("v_fma_f32 %s, %s, %s, %s" % (v(SC + 8 * p + i), v(SC + 8 * p + i), sT0, vM))
    for i in range(ne):
        a("v_exp_f32 %s, %s" % (v(SC + 8 * p + i), v(SC + 8 * p + i)))
    pf = PF + 4 * (p % 2) if p < 8 else PF + 8
    for i in range(ne // 2):
        a("v_cvt_pk_bf16_f32 %s, %s, %s" % (v(pf + i), v(SC + 8 * p + 2 * i), v(SC + 8 * p + 2 * i + 1)))
    a("v_mfma_f32_16x16x32_bf16 %s, %s, %s, %s" % (v(LS, 4), v(ONE4, 4), v(pf, 4), "0" if p == 0 else v(LS, 4)))
    for dt in range(2):
        n = 2 * p + dt
        rem = min(NKB - 1, 17 - n)
        a("s_waitcnt lgkmcnt(%d)" % (2 * rem))
        cc = "0" if p == 0 else v(OA + 4 * dt, 4)
        a("v_mfma_f32_16x16x32_bf16 %s, %s, %s, %s" % (v(OA + 4 * dt, 4), v(VB + 4 * (n % NKB), 4), v(pf, 4), cc))
        if n + NKB < 18:
            vread(n + NKB)
    if p == 6:
        a("s_waitcnt vmcnt(0)")
        a("v_and_b32 %s, -8, %s" % (v(vT + 4), v(vGF)))
        a("v_mov_b32 %s, %s" % (v(vT + 5), v(vGF + 1)))
        a("v_cmp_ne_u64 vcc, %s, %s" % (sEP, v(vT + 4, 2)))
        a("s_cbranch_vccz Lgf_ok")
        poll(vGFA, vT + 4, "gf")
        a("buffer_load_dwordx2 %s, %s, %s, 0 offen sc1" % (v(vGF, 2), vGFA, WS))
        a("s_waitcnt vmcnt(0)")
        a.label("Lgf_ok")
        a("v_cmp_ne_u32 vcc, %s, %s" % (v(vGF), v(vFLG)))
        a("s_cmp_eq_u64 vcc, 0")
        a("s_cselect_b32 %s, %d, 0" % (sFAST, 0 if OPT["force_slow"] else 1))
stamp("att_done")
if OPT["stamps"]:
    a("v_mov_b32 v30, %s" % sXCC)
    a("v_mov_b32 v31, %s" % sFAST)
    a("s_mov_b64 exec, 1")
    a("buffer_store_dwordx2 v[30:31], %s, %s, %s offen offset:%d" % (vZ, WS, sTSOFF, 31 * 8))
    a("s_mov_b64 exec, -1")
a("v_rcp_f32 %s, %s" % (v(vT + 2), v(LS)))
a("v_cndmask_b32 %s, %s, %s, %s" % (v(vT), v(vT + 2), vZ, sFQ))
a("v_cndmask_b32 %s, %s, %s, %s" % (v(vT + 1), v(vT + 2), vZ, sFO))
for i in range(4):
    a("v_mul_f32 %s, %s, %s" % (v(OA + i), v(OA + i), v(vT)))
    a("v_mul_f32 %s, %s, %s" % (v(OA + 4 + i), v(OA + 4 + i), v(vT + 1)))
OP = 136
for i in range(4):
    a("v_cvt_pk_bf16_f32 %s, %s, %s" % (v(OP + i), v(OA + 2 * i), v(OA + 2 * i + 1)))
publish(["buffer_store_dwordx4 %s, %s, %s, %s offen{sc}" % (v(OP, 4), vOA, WS, sE)], sF, data_sc1=bool(OPT["ohsc"]))
if OPT["ohsc"]:
    a("buffer_load_dword v26, %s, %s, %s offen sc1" % (vOA, WS, sE))
stamp("o_pub")
stamp("rt_opub")
a("s_cmp_ge_u32 %s, 4" % sWAVE)
a("s_cbranch_scc1 Lhelper2")

if OPT["prio"]:
    a("s_setprio %d" % OPT["prio"])
a("s_cmp_ge_u32 %s, 14" % sJ)
a("s_cbranch_scc1 Lp3_idle")
AK, AS = 32, 48
OF = 64
WB = 128
vWk, vWs = "v160", "v161"
vEXW, vEXR, vHA, vHSA, vF2A = "v162", "v163", "v164", "v165", "v166"


def tr_base_128(dkeep, dsend, hmul, base_s, base_imm):
    a("v_lshrrev_b32 %s, 2, %s" % (v(vT), vR))
    a("v_lshrrev_b32 %s, 1, %s" % (v(vT + 1), v(vT)))
    a("v_xor_b32 %s, %s, %s" % (v(vT + 1), sKH, v(vT + 1)))
    a("v_lshl_add_u32 %s, %s, %d, %s" % (v(vT), vH, {4: 2, 8: 3}[hmul], v(vT)))
    a("v_lshlrev_b32 %s, 7, %s" % (v(vT), v(vT)))
    a("v_bfe_u32 %s, %s, 4, 1" % (v(vT + 2), vL))
    a("v_lshl_add_u32 %s, %s, 5, %s" % (v(vT), v(vT + 2), v(vT)))
    a("v_and_b32 %s, 3, %s" % (v(vT + 2), vL))
    a("v_lshl_add_u32 %s, %s, 3, %s" % (v(vT), v(vT + 2), v(vT)))
    a("v_add_u32 %s, %s, %s" % (v(vT), base_s, v(vT)))
    if base_imm:
        a("v_add_u32 %s, %d, %s" % (v(vT), base_imm, v(vT)))
    a("v_lshl_add_u32 %s, %s, 6, %s" % (dkeep, v(vT + 1), v(vT)))
    a("v_xor_b32 %s, 64, %s" % (dsend, dkeep))


def ex_addrs():
    a("v_add_u32 %s, %s, %s" % (vEXW, sHW4K, vL16))
    a("v_xor_b32 %s, 0x2000, %s" % (vEXR, vEXW))
    a("v_add_u32 %s, %d, %s" % (vEXW, L_SCR, vEXW))
    a("v_add_u32 %s, %d, %s" % (vEXR, L_SCR, vEXR))


for hm in (4, 8):
    for nt in range(2):
        assert lds_conflicts([(hm * (l >> 5) + ((l & 15) >> 2)) * 128 + ((nt ^ (((l & 15) >> 3) & 1)) * 64) + ((l >> 4) & 1) * 32 + (l & 3) * 8 for l in range(64)], "tr") == 0
a("s_mul_i32 %s, %s, %d" % (sT0, sKH, 224 * 128))
tr_base_128(vWk, vWs, 4, sT0, L_WO)
ex_addrs()
sum_s(sT0, [(sG, 1024), (sMH2, 512), (sMH, 256), (sKH, 64)], WS_F2)
a("v_bfe_u32 %s, %s, 3, 1" % (v(vT), vL))
a("v_lshlrev_b32 %s, 7, %s" % (v(vT), v(vT)))
a("v_and_b32 %s, 7, %s" % (v(vT + 1), vL))
a("v_lshl_add_u32 %s, %s, 3, %s" % (v(vT), v(vT + 1), v(vT)))
a("v_add_u32 %s, %s, %s" % (vF2A, sT0, v(vT)))
sum_s(sT4, [(sTILE, 32768), (sKH, 16384)], WS_O)
sum_s(sA, [(sTILE, 28 * 1024), (sNB, 2048), (sKH, 1024)], WS_H)
sum_s(sB, [(sTILE, 4096), (sNB, 512), (sKH, 256)], WS_HS)
sum_s(sC, [(sTILE, 128), (sNB, 16), (sKH, 8)], WS_F3)
a("v_bfe_u32 %s, %s, 4, 1" % (v(vT), vL))
a("v_mul_u32_u24 %s, %d, %s" % (v(vT), 14 * 1024, v(vT)))
a("v_lshl_add_u32 %s, %s, 8, %s" % (v(vT), vH, v(vT)))
a("v_lshl_add_u32 %s, %s, 4, %s" % (vHA, vR, v(vT)))
a("v_lshlrev_b32 %s, 3, %s" % (vHSA, vL31))
XF = 168
for i in range(8):
    a("v_lshlrev_b32 %s, 16, %s" % (v(XF + 2 * i), v(vXRES + i)))
    a("v_and_b32 %s, 0xffff0000, %s" % (v(XF + 2 * i + 1), v(vXRES + i)))
a("v_mov_b32 v167, 0x3f803f80")
a("s_barrier")
stamp("b9")


def p3_wread(s):
    head, ab = s >> 1, s & 1
    wb = WB + 8 * (s % 4)
    r0 = (28 * head - 4 * (head & 1) + 8 * ab) * 128
    for k, base in enumerate((vWk, vWs)):
        a("ds_read_b64_tr_b16 %s, %s offset:%d" % (v(wb + 4 * k, 2), base, r0))
        a("ds_read_b64_tr_b16 %s, %s offset:%d" % (v(wb + 4 * k + 2, 2), base, r0 + 16 * 128))


def p3_load(s):
    if s and s % 4 == 0:
        a("s_add_u32 %s, %s, 4096" % (sT4, sT4))
    a("buffer_load_dwordx4 %s, %s, %s, %s offen offset:%d sc1" % (v(OF + 4 * s, 4), vL16, WS, sT4, (s % 4) * 1024))


for s in range(3):
    p3_wread(s)
poll(vF2A, vT + 2, "f2")
stamp("f2ok")
stamp("rt_f2ok")
UP = OPT["up3"]
for s in range(UP):
    p3_load(s)
for s in range(16):
    a("s_waitcnt vmcnt(%d) lgkmcnt(%d)" % (min(UP - 1, 15 - s), min(8, 4 * (15 - s))))
    if s + 3 < 16:
        p3_wread(s + 3)
    wb = WB + 8 * (s % 4)
    a("v_mfma_f32_32x32x16_bf16 %s, %s, %s, %s" % (v(AS, 16), v(wb + 4, 4), v(OF + 4 * s, 4), "0" if s == 0 else v(AS, 16)))
    if s + UP < 16:
        p3_load(s + UP)
    if OPT["b9b"] and s + UP == 15:
        a("s_barrier")
    a("v_mfma_f32_32x32x16_bf16 %s, %s, %s, %s" % (v(AK, 16), v(wb, 4), v(OF + 4 * s, 4), "0" if s == 0 else v(AK, 16)))
stamp("p3_mfma")


def exchange():
    for i in range(4):
        a("ds_write_b128 %s, %s offset:%d" % (vEXW, v(AS + 4 * i, 4), 1024 * i))
    a("s_waitcnt lgkmcnt(0)")
    a("s_barrier")
    for i in range(4):
        a("ds_read_b128 %s, %s offset:%d" % (v(AS + 4 * i, 4), vEXR, 1024 * i))


def residual_add(out):
    for i in range(4):
        a("s_waitcnt lgkmcnt(%d)" % (3 - i))
        for k in range(2):
            r_ = 4 * i + 2 * k
            a("v_pk_add_f32 %s, %s, %s" % (v(AK + r_, 2), v(AK + r_, 2), v(AS + r_, 2)))
        for k in range(2):
            r_ = 4 * i + 2 * k
            a("v_cvt_pk_bf16_f32 %s, %s, %s" % (v(AS + r_), v(AK + r_), v(AK + r_ + 1)))
        for k in range(2):
            r_ = 4 * i + 2 * k
            a("v_lshlrev_b32 %s, 16, %s" % (v(AK + r_), v(AS + r_)))
            a("v_and_b32 %s, 0xffff0000, %s" % (v(AK + r_ + 1), v(AS + r_)))
        for k in range(2):
            r_ = 4 * i + 2 * k
            a("v_pk_add_f32 %s, %s, %s" % (v(AK + r_, 2), v(AK + r_, 2), v(XF + r_, 2)))
        for k in range(2):
            r_ = 4 * i + 2 * k
            a("v_cvt_pk_bf16_f32 %s, %s, %s" % (v(out + 2 * i + k), v(AK + r_), v(AK + r_ + 1)))


exchange()
residual_add(vXRES)
stamp("p3_res")
a("v_mov_b32 %s, 0" % v(AS))
a("v_mov_b32 %s, 0" % v(AS + 1))
st3 = ["buffer_store_dwordx4 %s, %s, %s, %s offen{sc}" % (v(vXRES, 4), vHA, WS, sA),
       "buffer_store_dwordx4 %s, %s, %s, %s offen offset:512{sc}" % (v(vXRES + 4, 4), vHA, WS, sA)]
for i in range(8):
    st3.append("v_dot2c_f32_bf16 %s, %s, v167" % (v(AS), v(vXRES + i)))
    st3.append("v_dot2c_f32_bf16 %s, %s, %s" % (v(AS + 1), v(vXRES + i), v(vXRES + i)))
st3 += ["v_mov_b32 %s, %s" % (v(AS + 2), v(AS)), "v_mov_b32 %s, %s" % (v(AS + 3), v(AS + 1)),
        "v_permlane32_swap_b32 %s, %s" % (v(AS), v(AS + 2)), "v_permlane32_swap_b32 %s, %s" % (v(AS + 1), v(AS + 3)),
        "v_pk_add_f32 %s, %s, %s" % (v(AS, 2), v(AS, 2), v(AS + 2, 2)),
        "buffer_store_dwordx2 %s, %s, %s, %s offen{sc}" % (v(AS, 2), vHSA, WS, sB)]
publish(st3, sC, data_sc1=bool(OPT["ohsc"]))
if OPT["ohsc"]:
    a("buffer_load_dword v26, %s, %s, %s offen sc1" % (vHA, WS, sA))
    a("buffer_load_dword v26, %s, %s, %s offen offset:512 sc1" % (vHA, WS, sA))
    a("buffer_load_dword v26, %s, %s, %s offen sc1" % (vHSA, WS, sB))
stamp("h_pub")
stamp("rt_hpub")
a("s_branch Lp3_done")
a.label("Lp3_idle")
a("s_barrier")
if OPT["b9b"]:
    a("s_barrier")
a("s_barrier")
a.label("Lp3_done")

HF = 32
A4 = 144
W4 = 200
SPR = 232
NM4, RS4 = [246, 248], [250, 252]
vW4a, vW4b, vW4c, vSPA = "v254", "v255", "v27", "v28"
a("v_lshrrev_b32 %s, 1, %s" % (v(vT), vQ4))
a("v_lshlrev_b32 %s, 4, %s" % (v(vT), v(vT)))
a("v_and_b32 %s, 1, %s" % (v(vT + 1), vQ4))
a("v_lshl_add_u32 %s, %s, 2, %s" % (v(vT), v(vT + 1), v(vT)))
a("v_lshrrev_b32 %s, 2, %s" % (v(vT + 1), vR))
a("v_add_u32 %s, %s, %s" % (v(vT), v(vT), v(vT + 1)))
a("v_mul_u32_u24 %s, 224, %s" % (v(vT), v(vT)))
a("v_and_b32 %s, 3, %s" % (v(vT + 1), vL))
a("v_lshl_add_u32 %s, %s, 3, %s" % (vW4a, v(vT + 1), v(vT)))
a("v_add_u32 %s, %d, %s" % (vW4b, 8 * 7168, vW4a))
a("v_add_u32 %s, %d, %s" % (vW4c, L_W1U, vW4a))
assert lds_conflicts([(16 * (l >> 5) + 4 * ((l >> 4) & 1) + ((l & 15) >> 2)) * 224 + (l & 3) * 8 for l in range(64)], "tr") == 0
sum_s(sT1, [(sTILE4, 128)], WS_F3)
a("v_min_u32 %s, 13, %s" % (v(vT), vR))
a("v_lshlrev_b32 %s, 3, %s" % (v(vT), v(vT)))
a("v_add_u32 %s, %s, %s" % (v(vT), sT1, v(vT)))
sum_s(sT4, [(sTILE4, 28 * 1024)], WS_H)
a("s_add_u32 %s, %s, %d" % (sE, sT4, 14 * 1024))
sum_s(sT3, [(sTILE4, 4096)], WS_HS)
a("v_mul_u32_u24 %s, %d, %s" % (vSPA, 7 * 256, vH))
a("v_lshl_add_u32 %s, %s, 3, %s" % (vSPA, vL31, vSPA))
sum_s(sA, [(sTILE4, 112 * 1024), (sJ, 7168)], WS_H1)
a("s_add_u32 %s, %s, 4096" % (sB, sA))
sum_s(sC, [(sTILE4, 128), (sJ, 8)], WS_F4)
a("s_barrier")
stamp("b11")
NW4 = 8
AHEAD = 7


def p4_wread(q):
    ks, nt = divmod(q, 7)
    if ks < 8:
        base, off = vW4a, ks * 7168
    elif ks < 12:
        base, off = vW4b, (ks - 8) * 7168
    else:
        base, off = vW4c, (ks - 12) * 7168
    wb = W4 + 4 * (q % NW4)
    a("ds_read_b64_tr_b16 %s, %s offset:%d" % (v(wb, 2), base, off + nt * 32))
    a("ds_read_b64_tr_b16 %s, %s offset:%d" % (v(wb + 2, 2), base, off + nt * 32 + 8 * 224))


def p4_load(ks, mt):
    if mt == 0 and ks and ks % 4 == 0:
        a("s_add_u32 %s, %s, 4096" % (sT4, sT4))
        a("s_add_u32 %s, %s, 4096" % (sE, sE))
    a("buffer_load_dwordx4 %s, %s, %s, %s offen offset:%d sc1" % (v(HF + 4 * (mt * 14 + ks), 4), vL16, WS, (sT4, sE)[mt], (ks % 4) * 1024))


for q in range(AHEAD):
    p4_wread(q)
poll(v(vT), vT + 2, "f3")
stamp("f3ok")
stamp("rt_f3ok")
UP = OPT["up4"]
for ks in range(UP):
    p4_load(ks, 0)
    p4_load(ks, 1)
    if ks == 1:
        for i in range(7):
            a("buffer_load_dwordx2 %s, %s, %s, %s offen offset:%d sc1" % (v(SPR + 2 * i, 2), vSPA, WS, sT3, 256 * i))
assert UP >= 3
for ks in range(14):
    if ks == 3:
        for i in range(1, 7):
            a("v_pk_add_f32 %s, %s, %s" % (v(SPR, 2), v(SPR, 2), v(SPR + 2 * i, 2)))
        xhalf_sum(v(SPR), v(SPR + 2))
        xhalf_sum(v(SPR + 1), v(SPR + 2))
        ln_finish(v(SPR), v(SPR + 1), v(NM4[0]), v(RS4[0]), v(SPR + 2))
        a("v_mul_f32 %s, %s, %s" % (v(NM4[0]), v(NM4[0]), v(RS4[0])))
        a("v_mov_b32 %s, %s" % (v(NM4[1]), v(NM4[0])))
        a("v_mov_b32 %s, %s" % (v(RS4[1]), v(RS4[0])))
        a("v_permlane16_swap_b32 %s, %s" % (v(NM4[0]), v(NM4[1])))
        a("v_permlane16_swap_b32 %s, %s" % (v(RS4[0]), v(RS4[1])))
        for r_ in NM4 + RS4:
            a("v_mov_b32 %s, %s" % (v(r_ + 1), v(r_)))
    if ks in (1, 7):
        stamp("p4_k%d" % ks)
    for nt in range(7):
        q = ks * 7 + nt
        if q == 7 * OPT["kb"] + 2:
            a("s_barrier")
        if q == 7 * OPT["kb"] + 9:
            a("s_barrier")
        lg = min(2 * (AHEAD - 1), 2 * (97 - q))
        if OPT["w2"] and nt in (0, 2, 4):
            lg = max(0, min(2 * (AHEAD - 2), 2 * (97 - q - 1)))
        if nt == 0:
            later = 2 * (min(13, ks + UP - 1) - ks) + (7 if ks <= 1 else 0)
            a("s_waitcnt vmcnt(%d) lgkmcnt(%d)" % (later, lg))
        elif not OPT["w2"] or nt in (2, 4, 6):
            a("s_waitcnt lgkmcnt(%d)" % lg)
        if q + AHEAD < 98:
            p4_wread(q + AHEAD)
        wb = W4 + 4 * (q % NW4)
        for mt in range(2):
            acc = v(A4 + 4 * (mt * 7 + nt), 4)
            a("v_mfma_f32_16x16x32_bf16 %s, %s, %s, %s" % (acc, v(wb, 4), v(HF + 4 * (mt * 14 + ks), 4), "0" if ks == 0 else acc))
        if nt < 2 and ks + UP < 14:
            p4_load(ks + UP, nt)
stamp("p4_mfma")
CS4 = 200
a("v_lshlrev_b32 %s, 4, %s" % (v(vT), vQ4))
a("v_add_u32 %s, %d, %s" % (v(vT), L_CS1, v(vT)))
for nt in range(7):
    a("ds_read_b128 %s, %s offset:%d" % (v(CS4 + 4 * nt, 4), v(vT), 64 * nt))
a("v_lshlrev_b32 %s, 9, %s" % (v(vT), vQ4))
a("v_lshl_add_u32 %s, %s, 4, %s" % (v(vT), vR, v(vT)))
a("v_lshrrev_b32 %s, 1, %s" % (v(vT + 1), vQ4))
a("v_lshlrev_b32 %s, 9, %s" % (v(vT + 1), v(vT + 1)))
a("v_lshl_add_u32 %s, %s, 4, %s" % (v(vT + 1), vR, v(vT + 1)))
a("v_and_b32 %s, 1, %s" % (v(vT + 3), vQ4))
a("v_lshl_add_u32 %s, %s, 3, %s" % (v(vT + 1), v(vT + 3), v(vT + 1)))
H1P = 32
TT = 64
st = ["s_waitcnt lgkmcnt(0)"]
for mt in range(2):
    for p in range(4):
        nts = (2 * p, 2 * p + 1) if p < 3 else (6,)
        for nt in nts:
            for c in range(2):
                st.append("v_pk_mul_f32 %s, %s, %s" % (v(TT + 4 * (nt & 1) + 2 * c, 2), v(CS4 + 4 * nt + 2 * c, 2), v(NM4[mt], 2)))
        for nt in nts:
            acc = A4 + 4 * (mt * 7 + nt)
            for c in range(2):
                st.append("v_pk_fma_f32 %s, %s, %s, %s" % (v(acc + 2 * c, 2), v(acc + 2 * c, 2), v(RS4[mt], 2), v(TT + 4 * (nt & 1) + 2 * c, 2)))
        for nt in nts:
            acc = A4 + 4 * (mt * 7 + nt)
            hp = H1P + 16 * mt + 2 * nt
            for c in range(2):
                st.append("v_cvt_pk_bf16_f32 %s, %s, %s" % (v(hp + c), v(acc + 2 * c), v(acc + 2 * c + 1)))
        for nt in nts:
            hp = H1P + 16 * mt + 2 * nt
            for c in range(2):
                st.append("v_pk_max_i16 %s, %s, %s" % (v(hp + c), v(hp + c), vZ))
        if p < 3:
            so, off = (sA, p * 2048 + mt * 256) if p < 2 else (sB, mt * 256)
            st.append("buffer_store_dwordx4 %s, %s, %s, %s offen offset:%d{sc}" % (v(H1P + 16 * mt + 4 * p, 4), v(vT), WS, so, off))
        else:
            st.append("buffer_store_dwordx2 %s, %s, %s, %s offen offset:%d{sc}" % (v(H1P + 16 * mt + 12, 2), v(vT + 1), WS, sB, 2048 + mt * 256))
publish(st, sC, data_sc1=bool(OPT["h1sc"]))
if OPT["st4"]:
    a("v_min_u32 %s, 55, %s" % (v(vT), vL))
    a("v_lshlrev_b32 %s, 7, %s" % (v(vT), v(vT)))
    a("buffer_load_dword v26, %s, %s, %s offen sc1" % (v(vT), WS, sA))
stamp("h1_pub")
stamp("rt_h1pub")
a("s_cmp_ge_u32 %s, 14" % sJ)
a("s_cbranch_scc1 Lend")

RF = 64
NRF = 16
WB5 = 128
AD5 = 208
a("s_mul_i32 %s, %s, %d" % (sT0, sKH, UNIT))
for pat, hm in enumerate((4, 8)):
    tr_base_128(v(AD5 + 6 * pat), v(AD5 + 6 * pat + 1), hm, sT0, 0)
    for b, off in ((1, 4 * UNIT), (2, L_WO)):
        for k in range(2):
            a("v_add_u32 %s, %d, %s" % (v(AD5 + 6 * pat + 2 * b + k), off, v(AD5 + 6 * pat + k)))
UMAP = {0: (2, 0), 1: (2, 2 * UNIT), 2: (0, 0), 3: (0, 2 * UNIT), 4: (1, 0), 5: (2, 0), 6: (2, 2 * UNIT), 7: (0, 0)}


def p5_wread(i):
    n, u = divmod(i, 7)
    b, off = UMAP[n]
    wb = WB5 + 8 * (i % 4)
    if u < 6:
        pat, r0, d2 = 0, 32 * (u >> 1) + 8 * (u & 1), 16
    else:
        pat, r0, d2 = 1, 96, 4
    for k in range(2):
        base = v(AD5 + 6 * pat + 2 * b + k)
        a("ds_read_b64_tr_b16 %s, %s offset:%d" % (v(wb + 4 * k, 2), base, off + r0 * 128))
        a("ds_read_b64_tr_b16 %s, %s offset:%d" % (v(wb + 4 * k + 2, 2), base, off + (r0 + d2) * 128))


ex_addrs()
for i in range(8):
    a("v_lshlrev_b32 %s, 16, %s" % (v(XF + 2 * i), v(vXRES + i)))
    a("v_and_b32 %s, 0xffff0000, %s" % (v(XF + 2 * i + 1), v(vXRES + i)))
sum_s(sT0, [(sTILE, 128), (sKH, 64)], WS_F4)
a("v_and_b32 %s, 7, %s" % (v(vT), vL))
a("v_lshlrev_b32 %s, 3, %s" % (v(vT), v(vT)))
a("v_add_u32 %s, %s, %s" % (v(vT), sT0, v(vT)))
sum_s(sT4, [(sTILE, 112 * 1024), (sKH, 56 * 1024)], WS_H1)
a("s_barrier")
stamp("b12")
for i in range(3):
    p5_wread(i)
poll(v(vT), vT + 2, "f4")
stamp("f4ok")
stamp("rt_f4ok")


def p5_load(i):
    n, u = divmod(i, 7)
    if u == 0:
        a("s_add_u32 %s, %s, %d" % (sT0, sRU, n))
        a("s_and_b32 %s, %s, 7" % (sT0, sT0))
        a("s_mul_i32 %s, %s, 7168" % (sT0, sT0))
        a("s_add_u32 %s, %s, %s" % (sT3, sT4, sT0))
    if u == 4:
        a("s_add_u32 %s, %s, 4096" % (sT3, sT3))
    a("buffer_load_dwordx4 %s, %s, %s, %s offen offset:%d sc1" % (v(RF + 4 * (i % NRF), 4), vL16, WS, sT3, (u % 4) * 1024))


UP = OPT["up5"]
assert UP < NRF
for i in range(UP):
    p5_load(i)
BARS = {14, 28, 42} if OPT["bars"] else {14, 21, 35}
nread = 3
for i in range(56):
    if i in BARS:
        a("s_barrier")
        stamp("p5_b%d" % i)
    while nread < 56 and nread <= i + 2 and not any(i < b <= nread for b in BARS):
        p5_wread(nread)
        nread += 1
    lg = 4 * (nread - 1 - i)
    vm = min(UP - 1, 55 - i)
    a("s_waitcnt vmcnt(%d) lgkmcnt(%d)" % (vm, lg))
    if nread < 56 and nread <= i + 3 and not any(i < b <= nread for b in BARS):
        p5_wread(nread)
        nread += 1
    wb = WB5 + 8 * (i % 4)
    rf = v(RF + 4 * (i % NRF), 4)
    a("v_mfma_f32_32x32x16_bf16 %s, %s, %s, %s" % (v(AS, 16), v(wb + 4, 4), rf, "0" if i == 0 else v(AS, 16)))
    if i + UP < 56:
        p5_load(i + UP)
    a("v_mfma_f32_32x32x16_bf16 %s, %s, %s, %s" % (v(AK, 16), v(wb, 4), rf, "0" if i == 0 else v(AK, 16)))
stamp("p5_mfma")
exchange()
OUTP = 64
residual_add(OUTP)
if OPT["ow"]:
    a("v_mul_u32_u24 %s, 896, %s" % (v(vT), vL31))
    a("v_lshl_add_u32 %s, %s, 4, %s" % (v(vT), vH, v(vT)))
    for m in range(2):
        for k in range(2):
            a("v_permlane32_swap_b32 %s, %s" % (v(OUTP + 4 * m + k), v(OUTP + 4 * m + 2 + k)))
    for m in range(2):
        a("buffer_store_dwordx4 %s, %s, %s, %s offen offset:%d%s" % (v(OUTP + 4 * m, 4), v(vT), OUT, sXO, 32 * m, (" " + OPT["osc"]) if OPT["osc"] else ""))
else:
    for jj in range(4):
        a("buffer_store_dwordx2 %s, %s, %s, %s offen offset:%d%s" % (v(OUTP + 2 * jj, 2), vXOFF, OUT, sXO, 16 * jj, (" " + OPT["osc"]) if OPT["osc"] else ""))
stamp("end")
stamp("rt_end")
a("s_endpgm")

RS0 = 72


def unit_index(dst, n_s, n_imm):
    if n_s:
        a("s_add_u32 %s, %s, %s" % (dst, sRU, n_s))
        if n_imm:
            a("s_add_u32 %s, %s, %d" % (dst, dst, n_imm))
    else:
        a("s_add_u32 %s, %s, %d" % (dst, sRU, n_imm))
    a("s_and_b32 %s, %s, 7" % (dst, dst))
    a("s_lshl_b32 %s, %s, 3" % (sT5, sMH))
    a("s_add_u32 %s, %s, %s" % (dst, dst, sT5))


def w2_rows(n, to_reg=None, lds_s=None, lds_imm=0):
    for i in range(n):
        if to_reg is None:
            dma(vWO, W2, sT3, lds_s, lds_imm + i * 1024)
        elif not OPT["nobg"]:
            a("buffer_load_dwordx4 %s, %s, %s, %s offen" % (v(to_reg + 4 * i, 4), vWO, W2, sT3))
        if i < n - 1:
            a("s_add_u32 %s, %s, %d" % (sT3, sT3, 8 * 896))


def stage(nfull, nhalf, reg, parts=3):
    if parts & 1:
        unit_index(sT0, sKH, nfull)
        a("s_mul_i32 %s, %s, %d" % (sT3, sT0, 112 * 896))
        w2_rows(14, to_reg=reg)
    if not parts & 2:
        return
    unit_index(sT0, None, nhalf)
    sum_s(sT3, [(sT0, 112 * 896), (sKH, 7 * 8 * 896)])
    w2_rows(7, to_reg=reg + 56)


def dump(reg, n, addr, off):
    for i in range(n):
        a("ds_write_b128 %s, %s offset:%d" % (addr, v(reg + 4 * i, 4), off + 1024 * i))


def cold_quarter(slot):
    if OPT["cq"] == slot:
        lab = a.newlabel("Lnocq")
        a("s_cmp_ge_u32 %s, 14" % sJ)
        a("s_cbranch_scc1 %s" % lab)
        stage(2, 4, RS0, parts=1)
        a.label(lab)


a.label("Lhelper2")
a("s_barrier")
bg("C")
cold_quarter("C")
if OPT["b9b"]:
    a("s_barrier")
bg("C2")
cold_quarter("C2")
stamp("h_w1b")
if OPT["pt_h1"] == 1:
    sum_s(sT0, [(sG, 448 * 1024), (sJ, 28 * 1024), (sHW, 7168)], WS_H1)
    touch_lines(WS, sT0, 56, sc1=True)
C1 = 32
C1B = 40
cA, cB, cONE = "v68", "v69", "v70"
RS0 = 72
a("v_lshrrev_b32 %s, 1, %s" % (v(vT), vQ4))
a("v_lshlrev_b32 %s, 4, %s" % (v(vT), v(vT)))
a("v_and_b32 %s, 1, %s" % (v(vT + 1), vQ4))
a("v_lshl_add_u32 %s, %s, 2, %s" % (v(vT), v(vT + 1), v(vT)))
a("v_lshrrev_b32 %s, 2, %s" % (v(vT + 1), vR))
a("v_add_u32 %s, %s, %s" % (v(vT), v(vT), v(vT + 1)))
a("v_mul_u32_u24 %s, 224, %s" % (v(vT), v(vT)))
a("v_and_b32 %s, 3, %s" % (v(vT + 1), vL))
a("v_lshl_add_u32 %s, %s, 3, %s" % (cA, v(vT + 1), v(vT)))
a("s_mul_i32 %s, %s, 7168" % (sT0, sHW))
a("v_add_u32 %s, %s, %s" % (cA, sT0, cA))
a("v_add_u32 %s, %d, %s" % (cB, L_W1U, cA))
a("v_mov_b32 %s, 0x3f803f80" % cONE)
for nt in range(7):
    a("v_mov_b32 %s, 0" % v(C1 + nt))


def cs1_block(base, off):
    for nt in range(7):
        a("ds_read_b64_tr_b16 %s, %s offset:%d" % (v(C1B + 4 * nt, 2), base, off + nt * 32))
        a("ds_read_b64_tr_b16 %s, %s offset:%d" % (v(C1B + 4 * nt + 2, 2), base, off + nt * 32 + 8 * 224))
    a("s_waitcnt lgkmcnt(0)")
    for i in range(4):
        for nt in range(7):
            a("v_dot2c_f32_bf16 %s, %s, %s" % (v(C1 + nt), v(C1B + 4 * nt + i), cONE))


cs1_block(cA, 8 * 7168)
a("s_barrier")
a("s_waitcnt vmcnt(0)")
stamp("h_w1_landed")
cs1_block(cA, 0)
cs1_block(cA, 4 * 7168)
a("s_barrier")


lab = a.newlabel("Lnou")
a("s_cmp_ge_u32 %s, 2" % sHW)
a("s_cbranch_scc1 %s" % lab)
w1_block(12)
a("s_waitcnt vmcnt(0)")
cs1_block(cB, 0)
a.label(lab)
bg("D")
cold_quarter("D")
for nt in range(7):
    xhalf_sum(v(C1 + nt), v(vT))
    xrow_sum(v(C1 + nt), v(vT))
sum_s(sT0, [(sHW, 448)], L_CSP)
a("v_lshl_add_u32 %s, %s, 2, %s" % (v(vT), vR, sT0))
for nt in range(7):
    a("ds_write_b32 %s, %s offset:%d" % (v(vT), v(C1 + nt), 64 * nt))
a("s_waitcnt lgkmcnt(0)")
a("s_barrier")
lab = a.newlabel("Lnocs1")
a("s_cmp_lg_u32 %s, 4" % sWAVE)
a("s_cbranch_scc1 %s" % lab)
a("v_min_u32 %s, 55, %s" % (v(vT), vL))
a("v_lshlrev_b32 %s, 3, %s" % (v(vT), v(vT)))
a("v_add_u32 %s, %d, %s" % (v(vT + 1), L_CSP, v(vT)))
for k in range(4):
    a("ds_read_b64 %s, %s offset:%d" % (v(40 + 2 * k, 2), v(vT + 1), 448 * k))
a("s_waitcnt lgkmcnt(0)")
for c in range(2):
    a("v_add_f32 %s, %s, %s" % (v(40 + c), v(40 + c), v(42 + c)))
    a("v_add_f32 %s, %s, %s" % (v(44 + c), v(44 + c), v(46 + c)))
    a("v_add_f32 %s, %s, %s" % (v(40 + c), v(40 + c), v(44 + c)))
a("v_add_u32 %s, %d, %s" % (v(vT + 1), L_CS1, v(vT)))
a("ds_write_b64 %s, %s" % (v(vT + 1), v(40, 2)))
a("s_waitcnt lgkmcnt(0)")
a.label(lab)
a("s_barrier")
bg("D2")
a("s_cmp_ge_u32 %s, 14" % sJ)
a("s_cbranch_scc1 Lend")
unit_index(sT0, sKH, 0)
a("s_mul_i32 %s, %s, %d" % (sT3, sT0, 112 * 896))
a("s_mul_i32 %s, %s, %d" % (sT1, sHW, UNIT))
w2_rows(14, lds_s=sT1, lds_imm=L_WO)
stage(2, 4, RS0, parts=2 if OPT["cq"] else 3)
if OPT["r2early"]:
    stage(5, 7, RS0 + 84)
a("v_add_u32 v40, %s, %s" % (sT1, vL16))
a("v_add_u32 v41, %d, v40" % L_WO)
sum_s(sT1, [(sMH, UNIT), (sKH, 7168)])
a("v_add_u32 v42, %s, %s" % (sT1, vL16))
stamp("h_w2_issued")
NR = 0 if OPT["nobg"] else 21
NR1 = (NR // 3) if OPT["cq"] else NR
a("s_waitcnt vmcnt(%d)" % (NR1 + NR if OPT["r2early"] else NR1))
stamp("h_w2a_landed")
a("s_barrier")
a("s_waitcnt vmcnt(%d)" % (NR if OPT["r2early"] else 0))
dump(RS0, 14, "v40", 0)
dump(RS0 + 56, 7, "v42", 4 * UNIT)
if not OPT["r2early"]:
    stage(5, 7, RS0 + 84)
a("s_waitcnt lgkmcnt(0)")
stamp("h_w2b_landed")
a("s_barrier")
a("s_waitcnt vmcnt(0)")
dump(RS0 + 84, 14, "v41", 0)
a("s_waitcnt lgkmcnt(0)")
a("s_barrier")
dump(RS0 + 84 + 56, 7, "v42", 0)
a("s_waitcnt lgkmcnt(0)")
a("s_barrier")
a("s_barrier")
a.label("Lend")
a("s_endpgm")
a.raw("Lcode_end:")
a.raw('.section .rodata,"a"')
a.raw(".p2align 6")
a.raw(".amdhsa_kernel %s" % KNAME)
a.raw("  .amdhsa_next_free_vgpr 256")
a.raw("  .amdhsa_next_free_sgpr 102")
a.raw("  .amdhsa_accum_offset 256")
a.raw("  .amdhsa_group_segment_fixed_size 0")
a.raw("  .amdhsa_kernarg_size 72")
a.raw("  .amdhsa_user_sgpr_count 2")
a.raw("  .amdhsa_user_sgpr_kernarg_segment_ptr 1")
a.raw("  .amdhsa_system_sgpr_workgroup_id_x 1")
a.raw(".end_amdhsa_kernel")
open(sys.argv[1], "w").write(a.text())
json.dump(STAMPS, open(sys.argv[1] + ".stamps.json", "w"))
print("instructions:", a.count)
```

```python
import sys, math, struct, re, json
from asmlib import Asm, lds_conflicts

KNAME = "sequential_preLN__sliding_block__dense_activation_relu__prompt_kernel"
OPT = dict(stamps="", force_slow=0, nobg=0, t_w1=1, t_w2=1, pt_h1=0, up3=8, up4=8, up5=8, dry=0, psleep=0, gw=0, rotj=0, init2=1, pt_c=3, h1sc=1, bgA=1, ic=2, fc=4, P3="", A="wo", B="w18+tw1", C="w10+w14", C2="", D="", b9b=0, warm=0, kb=5, r2early=1, D2="", st4=0, ohsc=0, svc="", bm=0, prio=0, w2=1, diag=0, nt=0, sent=1, dbg=0, tlb=0, cq="D", hpt=0, bars=1, osc="nt", ow=2)
for a_ in sys.argv[2:]:
    k_, v_ = a_.split("=")
    OPT[k_] = v_ if isinstance(OPT[k_], str) else int(v_)


def f32(x):
    return "0x%08x" % struct.unpack("<I", struct.pack("<f", x))[0]


QT = 336 * 256
WS_QKV = 0
WS_O = 6 << 20
WS_H = 8 << 20
WS_H1 = 10 << 20
WS_F1 = 17 << 20
WS_F2 = WS_F1 + 0x10000
WS_F3 = WS_F1 + 0x20000
WS_F4 = WS_F1 + 0x30000
WS_HS = WS_F1 + 0x40000
WS_ST = WS_F1 + 0x80000
WS_TS = 18 << 20
WS_SIZE = 32 << 20

L_XR = 86016
L_KV = 0
L_Q = 12 * 4096
L_WO = 86016
L_W1U = 144384
L_SCR = 144384
L_CSP = 158720
L_MISC = 160768
L_CS = L_MISC
L_ST = L_MISC + 384
L_EP = L_ST + 1024
L_CS1 = L_EP + 64
LDS_BYTES = 163840
UNIT = 14336

X, WQKV, WO, W1, W2, OUT, DBG, WS = ["s[%d:%d]" % (4 + 4 * i, 7 + 4 * i) for i in range(8)]
sG, sJ, sWAVE, sR0, sXCC, sFAST = "s36", "s37", "s38", "s39", "s40", "s41"
sEP = "s[42:43]"
sEPL, sEPH = "s42", "s43"
sROT, sHW, sMH2, sNB, sKH, sMH = "s44", "s45", "s46", "s47", "s48", "s49"
sHI = "s[50:51]"
sLT48 = "s[52:53]"
sQ3 = "s[54:55]"
sHW1K, sHW4K = "s56", "s57"
sCNT = "s58"
sSLOT = "s59"
sT0, sT1, sT2, sT3, sT4, sT5 = "s60", "s61", "s62", "s63", "s64", "s65"
sTS = "s[66:67]"
sTSOFF = "s68"
sXO = "s69"
sCX, sCW = "s70", "s71"
sTILE, sTILE4 = "s72", "s73"
sRU = "s88"
sA, sB, sC, sD, sE, sF = "s74", "s75", "s76", "s77", "s78", "s79"

vL, vL31, vH, vR, vQ4, vL16, vTMP = "v1", "v2", "v3", "v4", "v5", "v6", "v7"
vXRES = 8
vFLG = 16
vT = 18
vZ = "v24"
vXOFF = "v25"
HP = 240


def v(i, n=1):
    return "v%d" % i if n == 1 else "v[%d:%d]" % (i, i + n - 1)


a = Asm()
STAMPS = {}


DBGW = {"t0": 2, "rt_start": 3, "m_b0": 4, "m_p1end": 5, "b8": 6, "o_pub": 7, "f2ok": 8, "h_pub": 9, "f3ok": 10, "h1_pub": 11, "f4ok": 12, "end": 13, "rt_end": 14}


def stamp(name):
    if OPT["dbg"] and name in DBGW:
        lab = a.newlabel("Ldbg")
        a("s_lshl_b32 s93, s2, 3")
        a("s_add_u32 s93, s93, %s" % sWAVE)
        a("s_cmp_lg_u32 s93, %d" % (OPT["dbg"] * 8))
        a("s_cbranch_scc1 %s" % lab)
        a(("s_memrealtime %s" if name.startswith("rt_") else "s_memtime %s") % sTS)
        a("s_waitcnt lgkmcnt(0)")
        a("v_mov_b32 v30, s66")
        a("v_mov_b32 v29, 0")
        a("s_mov_b64 exec, 1")
        a("buffer_store_dword v30, v29, %s, 0 offen offset:%d" % (DBG, DBGW[name] * 4))
        a("s_mov_b64 exec, -1")
        a.label(lab)
        return
    if not OPT["stamps"] or not (name == "t0" or re.fullmatch(OPT["stamps"], name)):
        return
    idx = STAMPS.setdefault(name, len(STAMPS))
    assert idx < 30
    a(("s_memrealtime %s" if name.startswith("rt_") else "s_memtime %s") % sTS)
    a("s_waitcnt lgkmcnt(0)")
    a("v_mov_b32 v30, s66")
    a("v_mov_b32 v31, s67")
    a("v_mov_b32 v29, 0")
    a("s_mov_b64 exec, 1")
    a("buffer_store_dwordx2 v[30:31], v29, %s, %s offen offset:%d" % (WS, sTSOFF, idx * 8))
    a("s_mov_b64 exec, -1")


def dma(voff, srd, soff, lds_s, lds_imm, inst=0, sc1=False):
    if OPT["nobg"] and srd in (WO, W1, W2):
        return
    m = lds_imm - inst
    if lds_s is None:
        a("s_mov_b32 m0, %d" % m)
    else:
        a("s_add_u32 m0, %s, %d" % (lds_s, m))
    nt = (srd == X and OPT["nt"] & 1) or (srd == WQKV and OPT["nt"] & 2) or (srd in (WO, W1) and OPT["nt"] & 16)
    a("buffer_load_dwordx4 %s, %s, %s offen%s%s%s lds" % (voff, srd, soff, (" offset:%d" % inst) if inst else "", " sc1" if sc1 else "", " nt" if nt else ""))


def sum_s(dst, terms, const=0):
    first = True
    for sreg, mult in terms:
        tgt = dst if first else sT5
        if mult == 1:
            if first:
                a("s_mov_b32 %s, %s" % (dst, sreg))
            else:
                a("s_add_u32 %s, %s, %s" % (dst, dst, sreg))
            first = False
            continue
        if mult & (mult - 1) == 0:
            a("s_lshl_b32 %s, %s, %d" % (tgt, sreg, mult.bit_length() - 1))
        else:
            a("s_mul_i32 %s, %s, %d" % (tgt, sreg, mult))
        if not first:
            a("s_add_u32 %s, %s, %s" % (dst, dst, sT5))
        first = False
    if const:
        a("s_add_u32 %s, %s, %d" % (dst, dst, const))


def poll(vaddr, vd, name):
    lp, dn = a.newlabel("Lpoll_" + name), a.newlabel("Lpolld_" + name)
    a("s_mov_b32 %s, 0x20000" % sCNT)
    a.label(lp)
    a("buffer_load_dwordx2 %s, %s, %s, 0 offen sc1" % (v(vd, 2), vaddr, WS))
    a("s_sub_u32 %s, %s, 1" % (sCNT, sCNT))
    a("s_waitcnt vmcnt(0)")
    a("v_and_b32 %s, -8, %s" % (v(vd), v(vd)))
    a("v_cmp_ne_u64 vcc, %s, %s" % (sEP, v(vd, 2)))
    a("s_cmp_eq_u32 %s, 0" % sCNT)
    a("s_cbranch_scc1 %s" % dn)
    if OPT["psleep"]:
        a("s_cbranch_vccz %s" % dn)
        a("s_sleep %d" % OPT["psleep"])
        a("s_branch %s" % lp)
    else:
        a("s_cbranch_vccnz %s" % lp)
    a.label(dn)


def flag_store(soff, sc):
    a("s_mov_b64 exec, 1")
    a("buffer_store_dwordx2 %s, %s, %s, %s offen%s" % (v(vFLG, 2), vZ, WS, soff, sc))
    a("s_mov_b64 exec, -1")


def publish(stores, flag_soff, data_sc1=False):
    if data_sc1:
        for s_ in stores:
            a(s_.format(sc=" sc1"))
        stores = []

    def emit(sc):
        for s_ in stores:
            a(s_.format(sc=sc))
        a("s_waitcnt vmcnt(0)")
        flag_store(flag_soff, sc)
    ls, le = a.newlabel("Lslow"), a.newlabel("Lpub")
    a("s_cmp_eq_u32 %s, 0" % sFAST)
    a("s_cbranch_scc1 %s" % ls)
    emit("")
    a("s_branch %s" % le)
    a.label(ls)
    emit(" sc1")
    a.label(le)


def bf16r(dst, src):
    a("v_cvt_pk_bf16_f32 %s, %s, %s" % (dst, src, src))
    a("v_and_b32 %s, 0xffff0000, %s" % (dst, dst))


def ln_finish(sx, sxx, negmean, rstd, t0):
    a("v_mul_f32 %s, %s, %s" % (sx, f32(1.0 / 448), sx))
    a("v_mul_f32 %s, %s, %s" % (sxx, f32(1.0 / 448), sxx))
    a("v_fma_f32 %s, -%s, %s, %s" % (sxx, sx, sx, sxx))
    a("v_max_f32 %s, 0, %s" % (sxx, sxx))
    bf16r(sxx, sxx)
    a("v_add_f32 %s, %s, %s" % (sxx, f32(1e-5), sxx))
    bf16r(sxx, sxx)
    a("v_sqrt_f32 %s, %s" % (sxx, sxx))
    bf16r(sxx, sxx)
    a("v_rcp_f32 %s, %s" % (rstd, sxx))
    bf16r(t0, sx)
    a("v_sub_f32 %s, 0, %s" % (negmean, t0))


def xhalf_sum(x, t):
    a("v_mov_b32 %s, %s" % (t, x))
    a("v_permlane32_swap_b32 %s, %s" % (x, t))
    a("v_add_f32 %s, %s, %s" % (x, x, t))


def xrow_sum(x, t):
    a("v_mov_b32 %s, %s" % (t, x))
    a("v_permlane16_swap_b32 %s, %s" % (x, t))
    a("v_add_f32 %s, %s, %s" % (x, x, t))


def get_epoch_spin(name):
    lp, dn = "Lep_%s" % name, "Lepd_%s" % name
    a("s_mov_b32 %s, 0x20000" % sCNT)
    a.label(lp)
    a("s_waitcnt vmcnt(0)")
    a("v_readfirstlane_b32 %s, %s" % (sEPL, v(vFLG)))
    a("v_readfirstlane_b32 %s, %s" % (sEPH, v(vFLG + 1)))
    a("s_cmp_lg_u32 %s, 0" % sEPL)
    a("s_cbranch_scc1 %s" % dn)
    a("buffer_load_dwordx2 %s, %s, %s, 0 offen sc1" % (v(vFLG, 2), vZ, DBG))
    a("s_sub_u32 %s, %s, 1" % (sCNT, sCNT))
    a("s_cmp_lg_u32 %s, 0" % sCNT)
    a("s_cbranch_scc1 %s" % lp)
    a.label(dn)


hdr = open("sequential_preLN__sliding_block__dense_activation_relu__prompt.s.ref").read().split("\n")
for ln in hdr:
    if ln.startswith("; @launch"):
        a.raw("; @launch grid=(256,1,1) block=(512,1,1) lds=%d" % LDS_BYTES)
        break
    a.raw(ln)
a.raw('.amdgcn_target "amdgcn-amd-amdhsa--gfx950"')
a.raw(".text")
a.raw(".globl %s" % KNAME)
a.raw(".p2align 8")
a.raw(".type %s,@function" % KNAME)
a.raw("%s:" % KNAME)

if OPT["diag"]:
    a("s_memtime s[96:97]")
a("s_load_dwordx16 s[72:87], s[0:1], 0")
a("s_load_dwordx2 s[88:89], s[0:1], 64")
a("s_getpc_b64 s[90:91]")
a.raw("Lpc:")
a("v_and_b32 %s, 63, v0" % vL)
a("v_lshrrev_b32 %s, 6, v0" % vTMP)
a("s_lshr_b32 %s, s2, 3" % sSLOT)
a("v_readfirstlane_b32 %s, %s" % (sWAVE, vTMP))
a("v_lshlrev_b32 %s, 7, %s" % (v(vT), vL))
a("s_cmp_ge_u32 s2, 256")
a("s_cbranch_scc1 Lend")
a("s_add_u32 %s, %s, %s" % (sT0, sSLOT, sWAVE))
a("s_and_b32 %s, %s, 7" % (sT0, sT0))
a("s_lshl_b32 %s, %s, 13" % (sT0, sT0))
a("v_add_u32 %s, %s, %s" % (v(vT), sT0, v(vT)))
a("v_min_u32 %s, Lcode_end-Lpc-4, %s" % (v(vT), v(vT)))
a("v_mov_b32 %s, s91" % v(vT + 1))
a("v_add_co_u32 %s, vcc, s90, %s" % (v(vT), v(vT)))
a("v_addc_co_u32 %s, vcc, 0, %s, vcc" % (v(vT + 1), v(vT + 1)))
a("s_cmp_ge_u32 %s, 2" % sWAVE)
a("s_cbranch_scc1 Lnocp")
a("global_load_dword v26, %s, off" % v(vT, 2))
a.label("Lnocp")
a("v_and_b32 %s, 31, v0" % vL31)
a("v_bfe_u32 %s, v0, 5, 1" % vH)
a("v_and_b32 %s, 15, v0" % vR)
a("v_bfe_u32 %s, v0, 4, 2" % vQ4)
a("v_lshlrev_b32 %s, 4, %s" % (vL16, vL))
a("v_mov_b32 %s, 0" % vZ)
a("s_and_b32 %s, s2, 7" % sT0)
a("s_lshr_b32 %s, %s, 4" % (sT2, sSLOT))
a("s_lshl_b32 %s, %s, 1" % (sG, sT0))
a("s_add_u32 %s, %s, %s" % (sG, sG, sT2))
a("s_and_b32 %s, %s, 15" % (sJ, sSLOT))
a("s_lshl_b32 %s, %s, 7" % (sR0, sG))
a("s_and_b32 %s, %s, 3" % (sHW, sWAVE))
a("s_lshl_b32 %s, %s, 10" % (sHW1K, sHW))
a("s_lshl_b32 %s, %s, 12" % (sHW4K, sHW))
if OPT["rotj"]:
    a("s_mul_i32 %s, %s, 3" % (sT3, sT2))
    a("s_add_u32 %s, %s, %s" % (sROT, sJ, sT3))
    for _ in range(2):
        a("s_sub_u32 %s, %s, 7" % (sT3, sROT))
        a("s_cmp_ge_u32 %s, 7" % sROT)
        a("s_cselect_b32 %s, %s, %s" % (sROT, sT3, sROT))
else:
    a("s_lshl_b32 %s, %s, 2" % (sROT, sT2))
vX = [32, 33, 34, 35]
vW = [36, 37, 38]
a("v_lshrrev_b32 %s, 3, %s" % (v(vT), vL))
a("s_lshl_b32 %s, %s, 5" % (sT0, sHW))
a("s_add_u32 %s, %s, %s" % (sT0, sT0, sR0))
a("v_add_u32 %s, %s, %s" % (v(vT), sT0, v(vT)))
a("v_mul_u32_u24 %s, 896, %s" % (v(vT), v(vT)))
a("v_and_b32 %s, 7, %s" % (v(vT + 1), vL))
a("v_xor_b32 %s, %s, %s" % (v(vT + 1), v(vT + 1), vQ4))
a("v_xor_b32 %s, 4, %s" % (v(vT + 2), v(vT + 1)))
for ii in range(4):
    a("v_lshl_add_u32 %s, %s, 4, %s" % (v(vX[ii]), v(vT + 1 + (ii & 1)), v(vT)))
    if ii:
        a("v_add_u32 %s, %d, %s" % (v(vX[ii]), ii * 8 * 896, v(vX[ii])))
a("s_mul_i32 %s, %s, %d" % (sT0, sHW, 16 * 2688))
a("s_mul_i32 %s, %s, 192" % (sT1, sJ))
a("s_add_u32 %s, %s, %s" % (sT0, sT0, sT1))
M12 = (1 << 16) // 12 + 1
for i in range(192):
    assert (i * M12) >> 16 == i // 12
for k in range(3):
    a("v_add_u32 %s, %d, %s" % (v(vT), 64 * k, vL))
    a("v_mul_u32_u24 %s, %d, %s" % (v(vT + 1), M12, v(vT)))
    a("v_lshrrev_b32 %s, 16, %s" % (v(vT + 1), v(vT + 1)))
    a("v_mul_u32_u24 %s, %d, %s" % (v(vT + 1), 2688 - 192, v(vT + 1)))
    a("v_lshl_add_u32 %s, %s, 4, %s" % (v(vW[k]), v(vT), v(vT + 1)))
    a("v_add_u32 %s, %s, %s" % (v(vW[k]), sT0, v(vW[k])))
if OPT["warm"]:
    a("s_mul_i32 %s, %s, 14" % (sT0, sT2))
    a("s_add_u32 %s, %s, %s" % (sT0, sT0, sJ))
    a("s_lshl_b32 %s, %s, 3" % (sT0, sT0))
    a("s_add_u32 %s, %s, %s" % (sT0, sT0, sWAVE))
    if OPT["warm"] in (1, 4):
        a("v_min_u32 v39, 41, %s" % vL)
        a("v_mul_u32_u24 v39, 224, v39")
        a("v_add_u32 v39, %s, v39" % sT0)
        a("v_lshlrev_b32 v39, 7, v39")
    else:
        a("s_mul_i32 %s, %s, 42" % (sT0, sT0))
        a("v_min_u32 v39, 41, %s" % vL)
        a("v_add_u32 v39, %s, v39" % sT0)
        a("v_lshlrev_b32 v39, 7, v39")
    sum_s(sT0, [(sJ, 8), (sWAVE, 1)])
    sum_s(sT1, [(sT0, 1024), (sR0, 896)])
    a("v_and_b32 v40, 7, %s" % vL)
    a("v_lshlrev_b32 v40, 7, v40")
    a("v_add_u32 v40, %s, v40" % sT1)
    a("s_mov_b32 %s, 0" % sROT)
a("s_mov_b32 %s, %s" % (sCX, sROT))
a("s_mov_b32 %s, %s" % (sCW, sROT))
a("s_mul_i32 s92, %s, 3072" % sHW)
sizes = [1835008, 1204224, 401408, 1605632, 1605632, 1835008, 256, WS_SIZE]
srcs = [72, 74, 76, 80, 82, 84, 86, 88]
for i in range(8):
    a("s_mov_b32 s%d, %d" % (4 + 4 * i + 2, sizes[i]))
    a("s_mov_b32 s%d, 0x00020000" % (4 + 4 * i + 3))
a("s_waitcnt lgkmcnt(0)")
for i in range(8):
    a("s_mov_b64 s[%d:%d], s[%d:%d]" % (4 + 4 * i, 5 + 4 * i, srcs[i], srcs[i] + 1))
a("s_cmp_ge_u32 %s, 14" % sJ)
a("s_cbranch_scc1 Lservice")
if OPT["warm"]:
    if OPT["warm"] >= 3:
        a("buffer_load_dword v26, v40, %s, 0 offen" % X)
    a("buffer_load_dword v26, v39, %s, 0 offen" % WQKV)
a("s_cmp_lt_u32 %s, 4" % sWAVE)
a("s_cbranch_scc1 Lmfma")


def common_setup():
    a("s_lshr_b32 %s, %s, 1" % (sKH, sHW))
    a("s_and_b32 %s, %s, 1" % (sMH, sHW))
    a("s_cmp_ge_u32 %s, 7" % sJ)
    a("s_cselect_b32 %s, 1, 0" % sMH2)
    a("s_mul_i32 %s, %s, 7" % (sT3, sMH2))
    a("s_sub_u32 %s, %s, %s" % (sNB, sJ, sT3))
    a("s_min_u32 %s, %s, 6" % (sNB, sNB))
    a("s_getreg_b32 %s, hwreg(HW_REG_XCC_ID)" % sXCC)
    a("s_and_b32 %s, %s, 7" % (sXCC, sXCC))
    a("s_mov_b32 s50, 0")
    a("s_mov_b32 s51, -1")
    a("s_mov_b32 s52, -1")
    a("s_mov_b32 s53, 0xffff")
    a("s_mov_b32 s54, 0")
    a("s_mov_b32 s55, 0xffff0000")
    a("s_mov_b32 %s, 0" % sFAST)
    a("s_mov_b32 %s, 0" % sEPL)
    a("s_mov_b32 %s, 0" % sEPH)
    if OPT["stamps"]:
        sum_s(sTSOFF, [("s2", 2048), (sWAVE, 256)], WS_TS)
    sum_s(sTILE, [(sG, 4), (sMH2, 2), (sMH, 1)])
    sum_s(sXO, [(sTILE, 32 * 896), (sNB, 128), (sKH, 64)])
    sum_s(sTILE4, [(sG, 4), (sHW, 1)])
    a("s_and_b32 %s, %s, 1" % (sT0, sG))
    sum_s(sRU, [(sT0, 4), (sMH2, 2), (sNB, 1)])
    a("v_mul_u32_u24 %s, 896, %s" % (vXOFF, vL31))
    a("v_lshl_add_u32 %s, %s, 3, %s" % (vXOFF, vH, vXOFF))
    a("v_lshlrev_b32 %s, 7, %s" % (v(HP + 8), vL))
    a("v_lshrrev_b32 %s, 3, %s" % (v(vT), vL))
    a("v_mul_u32_u24 %s, 896, %s" % (v(vT), v(vT)))
    a("v_bfe_u32 %s, %s, 4, 1" % (v(vT + 1), vL))
    a("v_lshlrev_b32 %s, 2, %s" % (v(vT + 1), v(vT + 1)))
    a("v_and_b32 %s, 7, %s" % (v(vT + 2), vL))
    a("v_xor_b32 %s, %s, %s" % (v(vT + 1), v(vT + 1), v(vT + 2)))
    a("v_lshl_add_u32 %s, %s, 4, %s" % (v(HP), v(vT + 1), v(vT)))
    a("s_lshl_b32 %s, %s, 7" % (sT0, sNB))
    a("v_add_u32 %s, %s, %s" % (v(HP), sT0, v(HP)))
    a("s_mul_i32 %s, %s, 224" % (sT0, sJ))
    for k in range(7):
        a("v_add_u32 %s, %d, %s" % (v(vT), 64 * k, vL))
        a("v_mul_u32_u24 %s, %d, %s" % (v(vT + 1), (1 << 16) // 14 + 1, v(vT)))
        a("v_lshrrev_b32 %s, 16, %s" % (v(vT + 1), v(vT + 1)))
        a("v_mul_u32_u24 %s, %d, %s" % (v(vT + 1), 3584 - 224, v(vT + 1)))
        a("v_lshl_add_u32 %s, %s, 4, %s" % (v(HP + 1 + k), v(vT), v(vT + 1)))
        a("v_add_u32 %s, %s, %s" % (v(HP + 1 + k), sT0, v(HP + 1 + k)))


for i in range(448):
    assert (i * ((1 << 16) // 14 + 1)) >> 16 == i // 14
vWO = v(HP)
vW1 = [HP + 1 + k for k in range(7)]
vTCH = v(HP + 8)


def tr_base_192(dst, t0):
    a("v_lshrrev_b32 %s, 2, %s" % (t0, vR))
    a("v_lshl_add_u32 %s, %s, 3, %s" % (t0, vH, t0))
    a("v_mul_u32_u24 %s, 192, %s" % (dst, t0))
    a("v_bfe_u32 %s, %s, 4, 1" % (t0, vL))
    a("v_lshl_add_u32 %s, %s, 5, %s" % (dst, t0, dst))
    a("v_and_b32 %s, 3, %s" % (t0, vL))
    a("v_lshl_add_u32 %s, %s, 3, %s" % (dst, t0, dst))


assert lds_conflicts([(8 * (l >> 5) + ((l & 15) >> 2)) * 192 + ((l >> 4) & 1) * 32 + (l & 3) * 8 for l in range(64)], "tr") == 0


def w1_block(base):
    a("s_add_u32 %s, %s, %d" % (sT0, sHW, base))
    a("s_mul_i32 %s, %s, %d" % (sT1, sT0, 32 * 3584))
    a("s_mul_i32 %s, %s, 7168" % (sT2, sHW))
    ldsb = base * 7168 if base < 12 else L_W1U + (base - 12) * 7168
    for k in range(7):
        dma(v(vW1[k]), W1, sT1, sT2, ldsb + k * 1024)


def touch_lines(srd, s_base, n, sc1=False):
    cnt = 0
    done = 0
    while done < n:
        k = min(64, n - done)
        if k < 64:
            a("v_min_u32 %s, %d, %s" % (v(vT), (k - 1) * 128, vTCH))
            vo = v(vT)
        else:
            vo = vTCH
        nt = (srd == WS and OPT["nt"] & 8) or (srd != WS and OPT["nt"] & 4)
        a("buffer_load_dword v26, %s, %s, %s offen%s%s" % (vo, srd, s_base, " sc1" if sc1 else "", " nt" if nt else ""))
        cnt += 1
        done += k
        if done < n:
            a("s_add_u32 %s, %s, %d" % (s_base, s_base, 64 * 128))
    return cnt


def touch_range(srd, base, total):
    if OPT["nobg"]:
        return 0
    per = total // 128 // 128
    assert per * 128 * 128 == total, (total, per)
    sum_s(sT0, [(sSLOT, 4 * per * 128), (sHW, per * 128)], base)
    return touch_lines(srd, sT0, per)


def wo_dma():
    a("s_mul_i32 %s, %s, %d" % (sT0, sHW, 8 * 896))
    for k in range(15):
        if k == 14:
            a("s_mov_b32 %s, %d" % (sT0, 56 * 8 * 896))
            dma(vWO, WO, sT0, None, L_WO + 56 * 1024)
        else:
            dma(vWO, WO, sT0, sHW1K, L_WO + k * 4096)
            a("s_add_u32 %s, %s, %d" % (sT0, sT0, 32 * 896))


def bg(slot):
    n = 0
    for it in [x for x in OPT[slot].split("+") if x]:
        if it == "wo":
            wo_dma(); n += 15
        elif it == "w18":
            w1_block(8); n += 7
        elif it == "w10":
            w1_block(0); n += 7
        elif it == "w14":
            w1_block(4); n += 7
        elif it == "tw1":
            n += touch_range(W1, 0, 256 * 3584)
        elif it == "tw1u":
            n += touch_range(W1, 384 * 3584, 64 * 3584)
        elif it == "tw1a":
            n += touch_range(W1, 0, 1605632)
        elif it == "two":
            n += touch_range(WO, 0, 393216)
        elif it == "tw2":
            n += touch_range(W2, 0, 1605632)
        elif it == "tw2a":
            n += touch_range(W2, 0, 802816)
        elif it == "tw2b":
            n += touch_range(W2, 802816, 802816)
        elif it == "tw2r":
            n += touch_range(W2, 393216, 1605632 - 393216 - 0 * 16384) if False else touch_range(W2, 393216, 1212416)
        elif it == "w2a":
            pass
        else:
            raise ValueError(it)
    return n


def vpad_prefill():
    a("v_mov_b32 %s, 0x3f80" % v(vT + 2))
    a("v_mov_b32 %s, 0" % v(vT + 3))
    a("s_mul_i32 %s, %s, %d" % (sT0, sHW, 3 * 4096))
    a("v_lshlrev_b32 %s, 3, %s" % (v(vT), vL31))
    a("v_lshl_add_u32 %s, %s, 12, %s" % (v(vT), vH, v(vT)))
    a("v_add_u32 %s, %s, %s" % (v(vT), sT0, v(vT)))
    a("ds_write_b64 %s, %s offset:%d" % (v(vT), v(vT + 2, 2), L_KV + 2048 + 1792))
    a("ds_write_b64 %s, %s offset:%d" % (v(vT), v(vT + 2, 2), L_KV + 4096 + 2048 + 1792))


sFA, sFB, sFC, sFD = "s84", "s85", "s86", "s87"
vIF = 236


def fetch_setup():
    a("v_lshrrev_b32 %s, 3, %s" % (v(vT), vL))
    a("v_min_u32 %s, 2, %s" % (v(vT), v(vT)))
    a("v_bfe_u32 %s, %s, 1, 2" % (v(vT + 1), vL))
    a("v_min_u32 %s, 2, %s" % (v(vT + 1), v(vT + 1)))
    a("v_cmp_gt_u32 vcc, 2, %s" % v(vT))
    a("v_max_u32 %s, 1, %s" % (v(vT + 2), v(vT + 1)))
    a("v_cndmask_b32 %s, %s, %s, vcc" % (v(vT + 1), v(vT + 1), v(vT + 2)))
    a("v_mul_u32_u24 %s, 448, %s" % (v(vT + 1), v(vT + 1)))
    a("v_and_b32 %s, 1, %s" % (v(vT + 2), vL))
    a("v_mul_u32_u24 %s, 31, %s" % (v(vT + 2), v(vT + 2)))
    a("s_mul_i32 %s, %s, 7" % (sT0, sJ))
    a("s_lshr_b32 %s, %s, 1" % (sE, sT0))
    a("s_lshl_b32 %s, %s, 3" % (sT0, sE))
    a("v_add3_u32 %s, %s, %s, %s" % (v(vT + 1), v(vT + 1), v(vT + 2), sT0))
    M96 = (1 << 18) // 96 + 1
    for i in range(1348):
        assert (i * M96) >> 18 == i // 96
    a("v_mul_u32_u24 %s, %d, %s" % (v(vT + 1), M96, v(vT + 1)))
    a("v_lshrrev_b32 %s, 18, %s" % (v(vT + 1), v(vT + 1)))
    a("v_min_u32 %s, 13, %s" % (v(vT + 1), v(vT + 1)))
    a("v_add_u32 %s, %s, %s" % (v(vT + 2), sG, v(vT)))
    a("v_cmp_gt_u32 vcc, 2, %s" % v(vT + 2))
    a("v_subrev_u32 %s, 2, %s" % (v(vT + 2), v(vT + 2)))
    a("v_mov_b32 %s, %s" % (v(vT + 3), sG))
    a("v_cndmask_b32 %s, %s, %s, vcc" % (v(vT + 2), v(vT + 2), v(vT + 3)))
    a("v_lshlrev_b32 %s, 9, %s" % (v(vT + 2), v(vT + 2)))
    a("v_lshl_add_u32 %s, %s, 3, %s" % (v(vT + 2), v(vT + 1), v(vT + 2)))
    sum_s(sT0, [(sHW, 128)], WS_F1)
    a("v_add_u32 v27, %s, %s" % (sT0, v(vT + 2)))
    sum_s(sFC, [(sTILE4, QT), (sE, 512)], WS_QKV)
    a("s_sub_u32 %s, %s, %d" % (sFB, sFC, 4 * QT))
    a("s_sub_u32 %s, %s, %d" % (sFA, sFC, 8 * QT))
    a("s_cmp_lt_u32 %s, 1" % sG)
    a("s_cselect_b32 %s, 0x40000000, %s" % (sFB, sFB))
    a("s_cmp_lt_u32 %s, 2" % sG)
    a("s_cselect_b32 %s, 0x40000000, %s" % (sFA, sFA))
    a("s_lshl_b32 %s, %s, 11" % (sFD, sHW))


SC, KB, QF, M0R, M16R, PF, VB, OA = 32, 100, 124, 128, 132, 136, 148, 172
LS, ONE4 = 196, 200
vKA = [180, 181]
vVA = [184, 185]
vQA = "v186"
vNEG, vGFA, vGF, vOA = "v188", "v189", 190, "v192"
sFQ, sFO = "s[80:81]", "s[82:83]"


def p2_setup():
    a("s_mul_i32 %s, %s, 7" % (sT4, sJ))
    a("s_lshr_b32 %s, %s, 1" % (sT4, sT4))
    a("v_add_u32 %s, %s, %s" % (v(vT + 3), sT4, vQ4))
    a("v_and_b32 %s, 1, %s" % (v(vT + 3), v(vT + 3)))
    a("v_mul_u32_u24 %s, 12, %s" % (v(vT + 3), v(vT + 3)))
    a("v_bfe_u32 %s, %s, 1, 1" % (v(vT + 4), vR))
    a("v_add_u32 %s, %s, %s" % (v(vT + 5), sT4, v(vT + 4)))
    a("v_and_b32 %s, 1, %s" % (v(vT + 5), v(vT + 5)))
    a("v_mul_u32_u24 %s, 12, %s" % (v(vT + 5), v(vT + 5)))
    for par in range(2):
        a("s_add_u32 %s, %s, %d" % (sT0, sWAVE, par))
        a("s_lshr_b32 %s, %s, 1" % (sT1, sT0))
        a("s_lshl_b32 %s, %s, 12" % (sT1, sT1))
        a("s_and_b32 %s, %s, 1" % (sT0, sT0))
        a("s_lshl_b32 %s, %s, 4" % (sT0, sT0))
        a("v_add_u32 %s, %s, %s" % (v(vT), sT0, vR))
        a("v_xor_b32 %s, %s, %s" % (v(vT), v(vT), v(vT + 3)))
        a("v_lshlrev_b32 %s, 4, %s" % (v(vT), v(vT)))
        a("v_lshl_add_u32 %s, %s, 9, %s" % (v(vT), vQ4, v(vT)))
        a("v_add_u32 %s, %s, %s" % (v(vKA[par]), sT1, v(vT)))
        if par == 0:
            a("s_lshr_b32 %s, %s, 1" % (sT2, sT1))
            a("s_add_u32 %s, %s, %d" % (sT2, sT2, L_Q))
            a("v_add_u32 %s, %s, %s" % (vQA, sT2, v(vT)))
        a("v_lshrrev_b32 %s, 2, %s" % (v(vT), vR))
        a("v_lshl_add_u32 %s, %s, 2, %s" % (v(vT), vQ4, v(vT)))
        a("v_add_u32 %s, %s, %s" % (v(vT), sT0, v(vT)))
        a("v_xor_b32 %s, %s, %s" % (v(vT), v(vT), v(vT + 5)))
        a("v_lshlrev_b32 %s, 4, %s" % (v(vT), v(vT)))
        a("v_lshl_add_u32 %s, %s, 9, %s" % (v(vT), v(vT + 4), v(vT)))
        a("v_and_b32 %s, 1, %s" % (v(vT + 1), vR))
        a("v_lshl_add_u32 %s, %s, 3, %s" % (v(vT), v(vT + 1), v(vT)))
        a("v_add_u32 %s, %s, %s" % (v(vVA[par]), sT1, v(vT)))
    for o_ in range(2):
        for half in range(2):
            assert lds_conflicts([(l >> 4) * 512 + (((16 * half + (l & 15)) ^ (12 * ((o_ + (l >> 4)) & 1))) * 16) for l in range(64)], "b128") == 0
            assert lds_conflicts([((l >> 1) & 1) * 512 + (((16 * half + 4 * (l >> 4) + ((l & 15) >> 2)) ^ (12 * ((o_ + ((l >> 1) & 1)) & 1))) * 16) + (l & 1) * 8 for l in range(64)], "tr") == 0
    a("s_and_b32 %s, %s, 1" % (sT0, sJ))
    a("s_cmp_eq_u32 %s, 0" % sT0)
    a("s_cselect_b32 s80, 0, 0xffff")
    a("s_mov_b32 s81, 0")
    a("s_mov_b32 s82, 0")
    a("s_cselect_b32 s83, 0xffff0000, 0")
    for k in range(4):
        a("v_mov_b32 %s, 0x3f803f80" % v(ONE4 + k))
    a("v_mov_b32 %s, 0xf149f2ca" % vNEG)
    a("v_lshlrev_b32 %s, 2, %s" % (v(vT), vQ4))
    a("v_sub_u32 %s, %s, %s" % (v(vT), v(vT), vR))
    for c in range(4):
        a("v_cmp_lt_i32 vcc, %d, %s" % (-c, v(vT)))
        a("v_cndmask_b32 %s, %s, %s, vcc" % (v(M0R + c), vNEG, vZ))
        a("v_cndmask_b32 %s, %s, %s, vcc" % (v(M16R + c), vZ, vNEG))
    sum_s(sT0, [(sG, 512)], WS_F1)
    a("v_lshlrev_b32 %s, 3, %s" % (vGFA, vR))
    a("v_add_u32 %s, %s, %s" % (vGFA, sT0, vGFA))
    a("s_lshr_b32 %s, %s, 1" % (sT1, sWAVE))
    a("s_and_b32 %s, %s, 1" % (sT2, sWAVE))
    sum_s(sE, [(sG, 131072), (sT1, 32768), (sJ, 2048), (sT2, 256)], WS_O)
    sum_s(sF, [(sG, 1024), (sWAVE, 128), (sJ, 8)], WS_F2)
    a("v_lshlrev_b32 %s, 9, %s" % (vOA, vQ4))
    a("v_lshl_add_u32 %s, %s, 4, %s" % (vOA, vR, vOA))
    a("v_mov_b32 %s, 0" % v(PF + 8 + 2))
    a("v_mov_b32 %s, 0" % v(PF + 8 + 3))




def adv(s):
    a("s_add_u32 %s, %s, 1" % (s, s))
    a("s_cmp_eq_u32 %s, 7" % s)
    a("s_cselect_b32 %s, 0, %s" % (s, s))


def issue_w(c):
    a("s_mul_i32 %s, %s, %d" % (sT1, sCW, 64 * 2688))
    for k in range(3):
        dma(v(vW[k]), WQKV, sT1, "s92", c * 12288 + k * 1024)
    adv(sCW)


def issue_x(c):
    a("s_lshl_b32 %s, %s, 7" % (sT0, sCX))
    for ii in range(4):
        dma(v(vX[ii]), X, sT0, sHW4K, L_XR + (c % 4) * 16384 + ii * 1024)
    adv(sCX)


GW = [{0: [0, 1], 1: [2, 3], 2: [4], 3: [5], 4: [6], 5: [], 6: []},
      {0: [0], 1: [1], 2: [2, 3], 3: [4, 5], 4: [6], 5: [], 6: []},
      {0: [0], 1: [1, 2], 2: [3, 4], 3: [5], 4: [6], 5: [], 6: []}][OPT["gw"]]


def issue_group(c):
    ws = list(GW[c])
    while ws and (ws[0] <= c or (OPT["gw"] == 0 and c <= 1)):
        issue_w(ws.pop(0))
    issue_x(c)
    for w_ in ws:
        issue_w(w_)
    return 4 + 3 * len(GW[c])


if OPT["warm"]:
    common_setup()
    a("s_waitcnt vmcnt(0)")
if OPT["diag"]:
    a("s_memtime s[98:99]")
    issue_w(0)
    a("s_waitcnt vmcnt(0)")
    a("s_memtime s[100:101]")
    a("s_mov_b32 %s, %s" % (sCW, sROT))
groups = [issue_group(0), issue_group(1)]
if not OPT["warm"]:
    common_setup()
if OPT["diag"]:
    a("s_waitcnt lgkmcnt(0)")
    for nm, r_ in (("d_entry", 96), ("d_karg", 98), ("d_first", 100)):
        idx = STAMPS.setdefault("t0", 0)
        idx = STAMPS.setdefault(nm, len(STAMPS))
        a("v_mov_b32 v30, s%d" % r_)
        a("v_mov_b32 v31, s%d" % (r_ + 1))
        a("s_mov_b64 exec, 1")
        a("buffer_store_dwordx2 v[30:31], %s, %s, %s offen offset:%d" % (vZ, WS, sTSOFF, idx * 8))
        a("s_mov_b64 exec, -1")
    groups[-1] += 3
stamp("t0")
stamp("rt_start")
hCS = [48, 49, 50, 51, 52, 53]
hWA, hWA2 = "v54", "v55"
HBW = 60
hST = 76
for r_ in hCS:
    a("v_mov_b32 %s, 0" % v(r_))
tr_base_192(hWA, v(vT))
a("v_add_u32 %s, s92, %s" % (hWA, hWA))
a("v_add_u32 %s, %d, %s" % (hWA2, 5 * 12288, hWA))
a("v_lshlrev_b32 v56, 4, %s" % vL31)
a("v_mov_b32 v57, 0x3f803f80")
sum_s(sA, [(sTILE4, 512)], WS_ST)


def colsum_w(c):
    if OPT["dry"] & 1:
        return
    base, off = (hWA2, (c - 5) * 12288) if c >= 5 else (hWA, c * 12288)
    for p3 in range(3):
        for hh in range(2):
            a("ds_read_b64_tr_b16 %s, %s offset:%d" % (v(HBW + 4 * p3 + 2 * hh, 2), base, off + p3 * 64 + hh * 768))
    a("s_waitcnt lgkmcnt(0)")
    for i in range(4):
        for p3 in range(3):
            a("v_dot2c_f32_bf16 %s, %s, v57" % (v(hCS[2 * p3]), v(HBW + 4 * p3 + i)))


for c in range(7):
    after = sum(groups[c + 1:])
    if c == 6:
        a("v_mov_b32 %s, %d" % (v(vT), L_EP))
        a("ds_read_b64 %s, %s" % (v(vFLG, 2), v(vT)))
        a("s_waitcnt lgkmcnt(0)")
        a("v_readfirstlane_b32 %s, %s" % (sEPL, v(vFLG)))
        a("v_readfirstlane_b32 %s, %s" % (sEPH, v(vFLG + 1)))
        a("v_or_b32 %s, %s, %s" % (v(vFLG), sXCC, v(vFLG)))
        a("s_mov_b32 %s, 0x20000" % sCNT)
        a("s_waitcnt vmcnt(%d)" % sum(groups[8:]))
        a.label("Lst_loop")
        a("v_cmp_ne_u32 vcc, %s, %s" % (sEPL, v(hST + 1)))
        a("v_cmp_ne_u32 s[94:95], %s, %s" % (sEPH, v(hST + 3)))
        a("s_or_b64 vcc, vcc, s[94:95]")
        a("s_cbranch_scc0 Lst_ok")
        a("buffer_load_dwordx4 %s, v56, %s, %s offen sc1" % (v(hST, 4), WS, sA))
        a("s_sub_u32 %s, %s, 1" % (sCNT, sCNT))
        a("s_waitcnt vmcnt(0)")
        a("s_cmp_lg_u32 %s, 0" % sCNT)
        a("s_cbranch_scc1 Lst_loop")
        a.label("Lst_ok")
        sum_s(sT0, [(sHW, 256)], L_ST)
        a("v_lshl_add_u32 %s, %s, 2, %s" % (v(vT), vL31, sT0))
        a("ds_write_b32 %s, %s" % (v(vT), v(hST)))
        a("ds_write_b32 %s, %s offset:128" % (v(vT), v(hST + 2)))
        a("s_waitcnt lgkmcnt(0)")
    else:
        a("s_waitcnt vmcnt(%d)" % after)
    a("s_barrier")
    stamp("h_b%d" % c)
    if c == 0:
        groups.append(issue_group(2))
    if c + 3 <= 6:
        groups.append(issue_group(c + 3))
    if c == 3:
        a("buffer_load_dwordx4 %s, v56, %s, %s offen sc1" % (v(hST, 4), WS, sA))
        groups.append(1)
    if c == 3 and OPT["hpt"] and not OPT["ohsc"]:
        sum_s(sT0, [(sG, 114688), (sJ, 8192), (sHW, 2048)], WS_H)
        groups.append(touch_lines(WS, sT0, 16, sc1=True))
    if c == 3 and OPT["P3"]:
        groups.append(bg("P3"))
    if c == OPT["pt_c"] and OPT["pt_h1"] == 3:
        sum_s(sT0, [(sG, 448 * 1024), (sJ, 32 * 1024), (sHW, 8192)], WS_H1)
        groups.append(touch_lines(WS, sT0, 64, sc1=True))
    for w_ in GW[c]:
        colsum_w(w_)
    if c == 4:
        for p3 in range(3):
            a("v_add_f32 %s, %s, %s" % (v(hCS[2 * p3]), v(hCS[2 * p3]), v(hCS[2 * p3 + 1])))
            xhalf_sum(v(hCS[2 * p3]), v(vT))
        sum_s(sT0, [(sHW, 384)], L_CSP)
        a("v_lshl_add_u32 %s, %s, 2, %s" % (v(vT), vL31, sT0))
        for p3 in range(3):
            a("ds_write_b32 %s, %s offset:%d" % (v(vT), v(hCS[2 * p3]), 128 * p3))
        a("s_waitcnt lgkmcnt(0)")
    if c == 5:
        a("s_min_u32 %s, %s, 2" % (sT0, sHW))
        a("s_lshl_b32 %s, %s, 7" % (sT0, sT0))
        a("s_add_u32 %s, %s, %d" % (sT1, sT0, L_CSP))
        a("v_lshl_add_u32 %s, %s, 2, %s" % (v(vT + 4), vL31, sT1))
        a("s_add_u32 %s, %s, %d" % (sT1, sT0, L_CS))
        a("v_lshl_add_u32 %s, %s, 2, %s" % (v(vT + 5), vL31, sT1))
        for k in range(4):
            a("ds_read_b32 %s, %s offset:%d" % (v(HBW + k), v(vT + 4), 384 * k))
        a("s_waitcnt lgkmcnt(0)")
        a("v_add_f32 %s, %s, %s" % (v(HBW), v(HBW), v(HBW + 1)))
        a("v_add_f32 %s, %s, %s" % (v(HBW + 2), v(HBW + 2), v(HBW + 3)))
        a("v_add_f32 %s, %s, %s" % (v(HBW), v(HBW), v(HBW + 2)))
        a("ds_write_b32 %s, %s" % (v(vT + 5), v(HBW)))
a("s_barrier")
bg("A")
stamp("h_wo")
a("s_branch Lp2")

a.label("Lservice")
a("s_sub_u32 %s, %s, 14" % (sT0, sJ))
sum_s(sT1, [(sT0, 64), (sWAVE, 8), (sR0, 1)])
a("s_mul_i32 %s, %s, 896" % (sT2, sT1))
a("v_lshrrev_b32 %s, 3, %s" % (v(vT), vL))
a("v_mul_u32_u24 %s, 896, %s" % (v(40), v(vT)))
a("v_and_b32 %s, 7, %s" % (v(vT + 1), vL))
a("v_lshl_add_u32 %s, %s, 4, %s" % (v(40), v(vT + 1), v(40)))
SX = 44
for i in range(7):
    a("buffer_load_dwordx4 %s, v40, %s, %s offen offset:%d%s" % (v(SX + 4 * i, 4), X, sT2, 128 * i, " nt" if OPT["nt"] & 1 else ""))
a("buffer_load_dwordx2 %s, %s, %s, 0 offen sc1" % (v(vFLG, 2), vZ, DBG))
a("s_lshl_b32 %s, %s, 4" % (sA, sT1))
a("s_add_u32 %s, %s, %d" % (sA, sA, WS_ST))
a("v_lshlrev_b32 v41, 4, %s" % v(vT))
common_setup()
stamp("t0")
stamp("rt_start")
a("v_mov_b32 v42, 0")
a("v_mov_b32 v43, 0")
a("v_mov_b32 v39, 0x3f803f80")
a("s_waitcnt vmcnt(1)")
for i in range(28):
    a("v_dot2c_f32_bf16 v42, %s, v39" % v(SX + i))
    a("v_dot2c_f32_bf16 v43, %s, %s" % (v(SX + i), v(SX + i)))
for sw in (0x041F, 0x081F, 0x101F):
    a("ds_swizzle_b32 %s, v42 offset:0x%x" % (v(vT + 2), sw))
    a("ds_swizzle_b32 %s, v43 offset:0x%x" % (v(vT + 3), sw))
    a("s_waitcnt lgkmcnt(0)")
    a("v_add_f32 v42, v42, %s" % v(vT + 2))
    a("v_add_f32 v43, v43, %s" % v(vT + 3))
ln_finish("v42", "v43", v(SX), v(SX + 2), v(vT + 2))
get_epoch_spin("svc")
a("v_mov_b32 %s, %s" % (v(SX + 1), sEPL))
a("v_mov_b32 %s, %s" % (v(SX + 3), sEPH))
a("v_or_b32 %s, %s, %s" % (v(vFLG), sXCC, v(vFLG)))
a("buffer_store_dwordx4 %s, v41, %s, %s offen sc1" % (v(SX, 4), WS, sA))
sum_s(sT0, [(sG, 512), (sJ, 8)], WS_F1)
flag_store(sT0, " sc1")
stamp("svc_st")
a("s_waitcnt vmcnt(0)")
a("s_barrier")
a("s_sub_u32 %s, %s, 14" % (sT0, sJ))
sum_s(sT4, [(sT0, 8), (sWAVE, 1)])
if not OPT["ohsc"]:
    sum_s(sT1, [(sG, 131072), (sT4, 8192)], WS_O)
    touch_lines(WS, sT1, 64, sc1=True)
    if not OPT["hpt"]:
        sum_s(sT1, [(sG, 114688), (sT4, 7168)], WS_H)
        touch_lines(WS, sT1, 56, sc1=True)
    sum_s(sT1, [(sG, 16384), (sT4, 1024)], WS_HS)
    touch_lines(WS, sT1, 8, sc1=True)
sum_s(sT1, [(sG, 1024)], WS_F2)
touch_lines(WS, sT1, 8, sc1=True)
sum_s(sT1, [(sG, 512)], WS_F3)
touch_lines(WS, sT1, 4, sc1=True)
sum_s(sT1, [(sG, 512)], WS_F4)
touch_lines(WS, sT1, 4, sc1=True)
a("s_and_b32 %s, %s, 1" % (sT0, sG))
sum_s(sT3, [(sT0, 16), (sT4, 1)])
for it in [x for x in OPT["svc"].split("+") if x]:
    srd, base, total = {"wo": (WO, 0, 401408), "w2q": (W2, 0, 401408), "w2q2": (W2, 401408, 401408), "w1q": (W1, 0, 401408)}[it]
    per = total // 128 // 32
    sum_s(sT1, [(sT3, per * 128)], base)
    touch_lines(srd, sT1, per)
if OPT["pt_h1"] == 2:
    sum_s(sT1, [(sG, 448 * 1024), (sT4, 28 * 1024)], WS_H1)
    touch_lines(WS, sT1, 224, sc1=True)
fetch_setup()
a("s_cmp_lt_u32 %s, 4" % sWAVE)
a("s_cbranch_scc1 Lfetch")
if "w18" in OPT["A"]:
    w1_block(8)
a("s_branch Lp2")

a.label("Lmfma")
a("s_or_b32 %s, s2, %s" % (sT0, sWAVE))
a("s_cmp_lg_u32 %s, 0" % sT0)
a("s_cbranch_scc1 Lnoep")
a("s_memrealtime s[94:95]")
a("s_waitcnt lgkmcnt(0)")
a("s_lshl_b32 %s, s94, 4" % sT1)
a("s_or_b32 %s, %s, 8" % (sT1, sT1))
a("s_mul_i32 %s, s94, 0x9e3779b1" % sT2)
a("s_add_u32 %s, %s, s95" % (sT2, sT2))
a("v_mov_b32 %s, %s" % (v(vT), sT1))
a("v_mov_b32 %s, %s" % (v(vT + 1), sT2))
a("s_mov_b64 exec, 1")
a("buffer_store_dwordx2 %s, %s, %s, 0 offen sc1" % (v(vT, 2), vZ, DBG))
a("s_mov_b64 exec, -1")
a.label("Lnoep")
if OPT["tlb"]:
    a("s_cmp_lg_u32 %s, 3" % sWAVE)
    a("s_cbranch_scc1 Lnotlb")
    a("v_min_u32 %s, 18, %s" % (v(vT), vL))
    a("v_lshlrev_b32 %s, 20, %s" % (v(vT), v(vT)))
    a("buffer_load_dword v26, %s, %s, 0 offen" % (v(vT), WS))
    a("v_min_u32 %s, 1, %s" % (v(vT), vL))
    a("v_lshlrev_b32 %s, 20, %s" % (v(vT), v(vT)))
    for srd in (OUT, W1, W2):
        a("buffer_load_dword v26, %s, %s, 0 offen" % (v(vT), srd))
    a("buffer_load_dword v26, %s, %s, 0 offen" % (vZ, WO))
    a.label("Lnotlb")
common_setup()
stamp("t0")
stamp("rt_start")
ACC = 32
FB = 80
vXA = [148, 149, 150, 151]
vWA, vWA2 = "v152", "v153"
vSA, vCA = "v154", "v155"
vQo = ["v156", "v157"]
CS = 160
PK = 208
vNM, vRS = 232, 234
a("v_bfe_u32 %s, %s, 1, 3" % (v(vT), vL31))
a("v_xor_b32 %s, %s, %s" % (v(vT), v(vT), vH))
a("v_lshlrev_b32 %s, 7, %s" % (v(vT + 1), vL31))
a("v_add_u32 %s, %s, %s" % (v(vT + 1), sHW4K, v(vT + 1)))
a("v_add_u32 %s, %d, %s" % (v(vT + 1), L_XR, v(vT + 1)))
for s in range(4):
    a("v_xor_b32 %s, %d, %s" % (v(vT + 2), 2 * s, v(vT)))
    a("v_lshl_add_u32 %s, %s, 4, %s" % (v(vXA[s]), v(vT + 2), v(vT + 1)))
    assert lds_conflicts([(l & 31) * 128 + (((2 * s + (l >> 5)) ^ (((l & 31) >> 1) & 7)) * 16) for l in range(64)], "b128") == 0
tr_base_192(vWA, v(vT))
a("v_add_u32 %s, %d, %s" % (vWA2, 5 * 12288, vWA))
sum_s(sT0, [(sHW, 256)], L_ST)
a("v_lshl_add_u32 %s, %s, 2, %s" % (vSA, vL31, sT0))
a("v_lshlrev_b32 %s, 4, %s" % (vCA, vH))
a("v_add_u32 %s, %d, %s" % (vCA, L_CS, vCA))
a("v_mul_u32_u24 %s, 12, %s" % (v(vT), vH))
a("v_xor_b32 %s, %s, %s" % (v(vT), v(vT), vL))
a("v_lshlrev_b32 %s, 4, %s" % (vQo[0], v(vT)))
sum_s(sA, [(sTILE4, QT), (sJ, 12 * 512)], WS_QKV)
a("s_add_u32 %s, %s, 4096" % (sC, sA))
sum_s(sD, [(sTILE4, 128), (sJ, 8)], WS_F1)


def p1_reads(c, s):
    if OPT["dry"] & 2:
        return
    fb = FB + 16 * s
    a("ds_read_b128 %s, %s offset:%d" % (v(fb, 4), v(vXA[s]), (c % 4) * 16384))
    base, off = (vWA2, (c - 5) * 12288) if c >= 5 else (vWA, c * 12288)
    for p3 in range(3):
        for hh in range(2):
            a("ds_read_b64_tr_b16 %s, %s offset:%d" % (v(fb + 4 + 4 * p3 + 2 * hh, 2), base, off + p3 * 64 + s * 3072 + hh * 768))


def p1_mfma(c, s, fill=None):
    if OPT["dry"] & 2:
        return
    fb = FB + 16 * s
    first = (c == 0 and s == 0)
    for p3 in range(3):
        acc = v(ACC + 16 * p3, 16)
        a("v_mfma_f32_32x32x16_bf16 %s, %s, %s, %s" % (acc, v(fb + 4 + 4 * p3, 4), v(fb, 4), "0" if first else acc))
        if fill:
            for _ in range(6):
                if fill:
                    a(fill.pop(0))


for k in range(4):
    a("v_mov_b32 %s, -1" % v(PK + k))
def sentinel_init():
    for i in range(6 if OPT["sent"] else 0):
        a("buffer_store_dwordx4 %s, %s, %s, %s offen offset:%d sc1" % (v(PK, 4), vL16, WS, sA if i < 4 else sC, 1024 * (i % 4)))
    a("buffer_load_dwordx2 %s, %s, %s, 0 offen sc1" % (v(vFLG, 2), vZ, DBG))


if OPT["ic"] < 0:
    sentinel_init()
fetch_setup()
a("s_barrier")
stamp("m_b0")
p1_reads(0, 0)
p1_reads(0, 1)
for c in range(7):
    fill = []
    if c == 1:
        for jj in range(4):
            a("buffer_load_dwordx2 %s, %s, %s, %s offen offset:%d" % (v(vXRES + 2 * jj, 2), vXOFF, X, sXO, 16 * jj))
    if c == OPT["ic"]:
        sentinel_init()
    if c == 6 and OPT["sent"]:
        a("buffer_load_dwordx2 %s, v27, %s, 0 offen sc1" % (v(vIF, 2), WS))
    a("s_waitcnt lgkmcnt(7)")
    p1_mfma(c, 0)
    p1_reads(c, 2)
    a("s_waitcnt lgkmcnt(7)")
    p1_mfma(c, 1)
    p1_reads(c, 3)
    if c == 6:
        a("ds_read_b32 %s, %s" % (v(vNM), vSA))
        a("ds_read_b32 %s, %s offset:128" % (v(vRS), vSA))
        a("s_waitcnt lgkmcnt(9)")
        p1_mfma(c, 2)
        a("s_waitcnt lgkmcnt(2)")
        for i in range(12):
            a("ds_read_b128 %s, %s offset:%d" % (v(CS + 4 * i, 4), vCA, 32 * i))
        p1_mfma(c, 3)
    else:
        a("s_waitcnt lgkmcnt(7)")
        p1_mfma(c, 2)
        if c == OPT["fc"]:
            get_epoch_spin("m")
            a("v_mov_b32 %s, %d" % (v(vT + 2), L_EP))
            a("ds_write_b64 %s, %s" % (v(vT + 2), v(vFLG, 2)))
            a("v_or_b32 %s, %s, %s" % (v(vFLG), sXCC, v(vFLG)))
            if OPT["sent"]:
                flag_store(sD, " sc1")
        a("s_waitcnt lgkmcnt(0)")
        a("s_barrier")
        stamp("m_b%d" % (c + 1))
        p1_reads(c + 1, 0)
        p1_reads(c + 1, 1)
        p1_mfma(c, 3)
a("s_waitcnt lgkmcnt(12)")
a("v_mul_f32 %s, %s, %s" % (v(vNM), v(vNM), v(vRS)))
a("v_mov_b32 %s, %s" % (v(vRS + 1), v(vRS)))
a("v_mov_b32 %s, %s" % (v(vNM + 1), v(vNM)))
stamp("m_p1end")
for i in range(3):
    a("s_waitcnt lgkmcnt(%d)" % (8 - 4 * i))
    for k in range(8):
        r_ = CS + 16 * i + 2 * k
        a("v_pk_mul_f32 %s, %s, %s" % (v(r_, 2), v(r_, 2), v(vNM, 2)))
for i in range(3):
    for k in range(8):
        r_ = ACC + 16 * i + 2 * k
        a("v_pk_fma_f32 %s, %s, %s, %s" % (v(r_, 2), v(r_, 2), v(vRS, 2), v(CS + 16 * i + 2 * k, 2)))
    for k in range(8):
        a("v_cvt_pk_bf16_f32 %s, %s, %s" % (v(PK + 8 * i + k), v(ACC + 16 * i + 2 * k), v(ACC + 16 * i + 2 * k + 1)))
    for m in range(2):
        for k in range(2):
            a("v_permlane32_swap_b32 %s, %s" % (v(PK + 8 * i + 4 * m + k), v(PK + 8 * i + 4 * m + 2 + k)))
    for m in range(2):
        a("buffer_store_dwordx4 %s, %s, %s, %s offen offset:%d sc1" % (v(PK + 8 * i + 4 * m, 4), vQo[0], WS, sA if i < 2 else sC, (2048 * i if i < 2 else 0) + 1024 * m))
stamp("m_epi1")
stamp("rt_epi1")
if OPT["sent"]:
    a("s_barrier")
    a("s_waitcnt vmcnt(6)")
    a("v_and_b32 %s, -8, %s" % (v(vIF), v(vIF)))
    a("v_cmp_ne_u64 vcc, %s, %s" % (sEP, v(vIF, 2)))
    a("s_cbranch_vccz Lfetch_go")
else:
    a("s_waitcnt vmcnt(0)")
    flag_store(sD, " sc1")
    a("s_barrier")

a.label("Lfetch")
poll("v27", vT + 2, "f1")
a.label("Lfetch_go")
stamp("m_f1ok")
stamp("rt_f1ok")
a("v_add_u32 v32, %s, %s" % (sHW4K, vL16))
a("v_add_u32 v33, %s, %s" % (sFD, vL16))
a("s_mov_b32 %s, 0x4000" % sCNT)


def fetch_dma():
    for kind, sb in ((2, sFC), (1, sFB), (0, sFA)):
        if kind == 2:
            dma(vL16, WS, sb, sFD, L_Q, sc1=True)
            dma(vL16, WS, sb, sFD, L_Q + 1024, inst=1024, sc1=True)
        a("s_add_u32 %s, %s, %d" % (sT0, sb, 56 * 512))
        a("s_add_u32 %s, %s, %d" % (sT1, sb, 112 * 512))
        lb = L_KV + kind * 16384
        dma(vL16, WS, sT0, sHW4K, lb, sc1=True)
        dma(vL16, WS, sT0, sHW4K, lb + 1024, inst=1024, sc1=True)
        dma(vL16, WS, sT1, sHW4K, lb + 2048, sc1=True)
        dma(vL16, WS, sT1, sHW4K, lb + 3072, inst=1024, sc1=True)


fetch_dma()
p2_setup()
a.label("Lfetch_val")
if not OPT["sent"]:
    a("s_waitcnt vmcnt(0)")
    a("s_branch Lp2b")
VR = 36
order = [("v33", L_Q), ("v33", L_Q + 1024)] + [("v32", L_KV + kind * 16384 + 1024 * q) for kind in (2, 1, 0) for q in range(4)]
for n, (ad, off) in enumerate(order):
    if n in (0, 6, 10):
        a("s_waitcnt vmcnt(%d)" % {0: 8, 6: 4, 10: 0}[n])
    a("ds_read_b128 %s, %s offset:%d" % (v(VR + 4 * n, 4), ad, off))
a("v_mov_b32 v34, 0")
a("v_mov_b32 v35, 0")
for n in range(14):
    if n in (0, 6, 10):
        a("s_waitcnt lgkmcnt(%d)" % {0: 8, 6: 4, 10: 0}[n])
    a("v_max3_u32 v34, v34, %s, %s" % (v(VR + 4 * n), v(VR + 4 * n + 1)))
    a("v_max3_u32 v35, v35, %s, %s" % (v(VR + 4 * n + 2), v(VR + 4 * n + 3)))
a("v_max_u32 v34, v34, v35")
a("v_cmp_eq_u32 vcc, -1, v34")
a("s_sub_u32 %s, %s, 1" % (sCNT, sCNT))
a("s_cmp_eq_u32 %s, 0" % sCNT)
a("s_cbranch_scc1 Lfetch_done")
a("s_cbranch_vccz Lfetch_done")
fetch_dma()
a("s_branch Lfetch_val")
a.label("Lfetch_done")
if OPT["stamps"]:
    a("v_mov_b32 v30, %s" % sCNT)
    a("v_mov_b32 v31, 0")
    a("s_mov_b64 exec, 1")
    a("buffer_store_dwordx2 v[30:31], %s, %s, %s offen offset:%d" % (vZ, WS, sTSOFF, 30 * 8))
    a("s_mov_b64 exec, -1")
a("s_branch Lp2b")

a.label("Lp2")
p2_setup()
a.label("Lp2b")
stamp("kv_landed")
a("s_barrier")
stamp("b8")
stamp("rt_b8")
a(("s_cmp_ge_u32 %s, 4" if OPT["bm"] else "s_cmp_lt_u32 %s, 4") % sWAVE)
a("s_cbranch_scc1 Lp2go")
bg("B")
a.label("Lp2go")
a("buffer_load_dwordx2 %s, %s, %s, 0 offen sc1" % (v(vGF, 2), vGFA, WS))
a("ds_read_b128 %s, %s" % (v(QF, 4), vQA))
NKB = 6


def kread(i):
    a("ds_read_b128 %s, %s offset:%d" % (v(KB + 4 * (i % NKB), 4), v(vKA[i & 1]), (i >> 1) * 4096))


for i in range(NKB):
    kread(i)
for i in range(17):
    rem = min(NKB - 1, 16 - i)
    a("s_waitcnt lgkmcnt(%d)" % rem)
    if i == 0:
        for k in range(2):
            a("v_cndmask_b32 %s, %s, %s, %s" % (v(QF + k), v(QF + k), vZ, sFQ))
            a("v_cndmask_b32 %s, %s, %s, %s" % (v(QF + 2 + k), v(QF + 2 + k), vZ, sFO))
    cc = v(M0R, 4) if i == 0 else (v(M16R, 4) if i == 16 else "0")
    a("v_mfma_f32_16x16x32_bf16 %s, %s, %s, %s" % (v(SC + 4 * i, 4), v(KB + 4 * (i % NKB), 4), v(QF, 4), cc))
    if i + NKB < 17:
        kread(i + NKB)


def vread(n):
    p, dt = n >> 1, n & 1
    for b in range(2):
        par = b if p < 8 else 0
        a("ds_read_b64_tr_b16 %s, %s offset:%d" % (v(VB + 4 * (n % NKB) + 2 * b, 2), v(vVA[par]), 2048 + p * 4096 + dt * 1024))


for n in range(NKB):
    vread(n)
a("s_cmp_ge_u32 %s, 2" % sG)
a("s_cbranch_scc1 Lnoinv")
a("s_lshl_b32 %s, %s, 3" % (sT0, sG))
a("s_add_u32 %s, %s, %s" % (sT0, sT0, sWAVE))
a("s_sub_u32 %s, 16, %s" % (sT0, sT0))
for i in range(16):
    a("s_cmp_le_u32 %s, %d" % (sT0, i))
    a("s_cbranch_scc1 Lnoinv")
    for c in range(4):
        a("v_mov_b32 %s, %s" % (v(SC + 4 * i + c), vNEG))
a.label("Lnoinv")
vM, vM2 = v(vT), v(vT + 1)
a("v_max3_f32 %s, %s, %s, %s" % (vM, v(SC), v(SC + 1), v(SC + 2)))
a("v_max3_f32 %s, %s, %s, %s" % (vM2, v(SC + 3), v(SC + 4), v(SC + 5)))
i = 6
flip = 0
while i < 68:
    tgt = vM if flip == 0 else vM2
    a("v_max3_f32 %s, %s, %s, %s" % (tgt, tgt, v(SC + i), v(SC + i + 1)))
    i += 2
    flip ^= 1
a("v_max_f32 %s, %s, %s" % (vM, vM, vM2))
a("v_mov_b32 %s, %s" % (vM2, vM))
a("v_permlane32_swap_b32 %s, %s" % (vM, vM2))
a("v_max_f32 %s, %s, %s" % (vM, vM, vM2))
a("v_mov_b32 %s, %s" % (vM2, vM))
a("v_permlane16_swap_b32 %s, %s" % (vM, vM2))
a("v_max_f32 %s, %s, %s" % (vM, vM, vM2))
CSC = (28.0 ** -0.5) * math.log2(math.e)
a("s_mov_b32 %s, %s" % (sT0, f32(CSC)))
a("v_mul_f32 %s, %s, %s" % (vM, f32(-CSC), vM))
for p in range(9):
    ne = 8 if p < 8 else 4
    for i in range(ne):
        a("v_fma_f32 %s, %s, %s, %s" % (v(SC + 8 * p + i), v(SC + 8 * p + i), sT0, vM))
    for i in range(ne):
        a("v_exp_f32 %s, %s" % (v(SC + 8 * p + i), v(SC + 8 * p + i)))
    pf = PF + 4 * (p % 2) if p < 8 else PF + 8
    for i in range(ne // 2):
        a("v_cvt_pk_bf16_f32 %s, %s, %s" % (v(pf + i), v(SC + 8 * p + 2 * i), v(SC + 8 * p + 2 * i + 1)))
    a("v_mfma_f32_16x16x32_bf16 %s, %s, %s, %s" % (v(LS, 4), v(ONE4, 4), v(pf, 4), "0" if p == 0 else v(LS, 4)))
    for dt in range(2):
        n = 2 * p + dt
        rem = min(NKB - 1, 17 - n)
        a("s_waitcnt lgkmcnt(%d)" % (2 * rem))
        cc = "0" if p == 0 else v(OA + 4 * dt, 4)
        a("v_mfma_f32_16x16x32_bf16 %s, %s, %s, %s" % (v(OA + 4 * dt, 4), v(VB + 4 * (n % NKB), 4), v(pf, 4), cc))
        if n + NKB < 18:
            vread(n + NKB)
    if p == 6:
        a("s_waitcnt vmcnt(0)")
        a("v_and_b32 %s, -8, %s" % (v(vT + 4), v(vGF)))
        a("v_mov_b32 %s, %s" % (v(vT + 5), v(vGF + 1)))
        a("v_cmp_ne_u64 vcc, %s, %s" % (sEP, v(vT + 4, 2)))
        a("s_cbranch_vccz Lgf_ok")
        poll(vGFA, vT + 4, "gf")
        a("buffer_load_dwordx2 %s, %s, %s, 0 offen sc1" % (v(vGF, 2), vGFA, WS))
        a("s_waitcnt vmcnt(0)")
        a.label("Lgf_ok")
        a("v_cmp_ne_u32 vcc, %s, %s" % (v(vGF), v(vFLG)))
        a("s_cmp_eq_u64 vcc, 0")
        a("s_cselect_b32 %s, %d, 0" % (sFAST, 0 if OPT["force_slow"] else 1))
stamp("att_done")
if OPT["stamps"]:
    a("v_mov_b32 v30, %s" % sXCC)
    a("v_mov_b32 v31, %s" % sFAST)
    a("s_mov_b64 exec, 1")
    a("buffer_store_dwordx2 v[30:31], %s, %s, %s offen offset:%d" % (vZ, WS, sTSOFF, 31 * 8))
    a("s_mov_b64 exec, -1")
a("v_rcp_f32 %s, %s" % (v(vT + 2), v(LS)))
a("v_cndmask_b32 %s, %s, %s, %s" % (v(vT), v(vT + 2), vZ, sFQ))
a("v_cndmask_b32 %s, %s, %s, %s" % (v(vT + 1), v(vT + 2), vZ, sFO))
for i in range(4):
    a("v_mul_f32 %s, %s, %s" % (v(OA + i), v(OA + i), v(vT)))
    a("v_mul_f32 %s, %s, %s" % (v(OA + 4 + i), v(OA + 4 + i), v(vT + 1)))
OP = 136
for i in range(4):
    a("v_cvt_pk_bf16_f32 %s, %s, %s" % (v(OP + i), v(OA + 2 * i), v(OA + 2 * i + 1)))
publish(["buffer_store_dwordx4 %s, %s, %s, %s offen{sc}" % (v(OP, 4), vOA, WS, sE)], sF, data_sc1=bool(OPT["ohsc"]))
if OPT["ohsc"]:
    a("buffer_load_dword v26, %s, %s, %s offen sc1" % (vOA, WS, sE))
stamp("o_pub")
stamp("rt_opub")
a("s_cmp_ge_u32 %s, 4" % sWAVE)
a("s_cbranch_scc1 Lhelper2")

if OPT["prio"]:
    a("s_setprio %d" % OPT["prio"])
a("s_cmp_ge_u32 %s, 14" % sJ)
a("s_cbranch_scc1 Lp3_idle")
AK, AS = 32, 48
OF = 64
WB = 128
vWk, vWs = "v160", "v161"
vEXW, vEXR, vHA, vHSA, vF2A = "v162", "v163", "v164", "v165", "v166"


def tr_base_128(dkeep, dsend, hmul, base_s, base_imm):
    a("v_lshrrev_b32 %s, 2, %s" % (v(vT), vR))
    a("v_lshrrev_b32 %s, 1, %s" % (v(vT + 1), v(vT)))
    a("v_xor_b32 %s, %s, %s" % (v(vT + 1), sKH, v(vT + 1)))
    a("v_lshl_add_u32 %s, %s, %d, %s" % (v(vT), vH, {4: 2, 8: 3}[hmul], v(vT)))
    a("v_lshlrev_b32 %s, 7, %s" % (v(vT), v(vT)))
    a("v_bfe_u32 %s, %s, 4, 1" % (v(vT + 2), vL))
    a("v_lshl_add_u32 %s, %s, 5, %s" % (v(vT), v(vT + 2), v(vT)))
    a("v_and_b32 %s, 3, %s" % (v(vT + 2), vL))
    a("v_lshl_add_u32 %s, %s, 3, %s" % (v(vT), v(vT + 2), v(vT)))
    a("v_add_u32 %s, %s, %s" % (v(vT), base_s, v(vT)))
    if base_imm:
        a("v_add_u32 %s, %d, %s" % (v(vT), base_imm, v(vT)))
    a("v_lshl_add_u32 %s, %s, 6, %s" % (dkeep, v(vT + 1), v(vT)))
    a("v_xor_b32 %s, 64, %s" % (dsend, dkeep))


def ex_addrs():
    a("v_add_u32 %s, %s, %s" % (vEXW, sHW4K, vL16))
    a("v_xor_b32 %s, 0x2000, %s" % (vEXR, vEXW))
    a("v_add_u32 %s, %d, %s" % (vEXW, L_SCR, vEXW))
    a("v_add_u32 %s, %d, %s" % (vEXR, L_SCR, vEXR))


for hm in (4, 8):
    for nt in range(2):
        assert lds_conflicts([(hm * (l >> 5) + ((l & 15) >> 2)) * 128 + ((nt ^ (((l & 15) >> 3) & 1)) * 64) + ((l >> 4) & 1) * 32 + (l & 3) * 8 for l in range(64)], "tr") == 0
a("s_mul_i32 %s, %s, %d" % (sT0, sKH, 224 * 128))
tr_base_128(vWk, vWs, 4, sT0, L_WO)
ex_addrs()
sum_s(sT0, [(sG, 1024), (sMH2, 512), (sMH, 256), (sKH, 64)], WS_F2)
a("v_bfe_u32 %s, %s, 3, 1" % (v(vT), vL))
a("v_lshlrev_b32 %s, 7, %s" % (v(vT), v(vT)))
a("v_and_b32 %s, 7, %s" % (v(vT + 1), vL))
a("v_lshl_add_u32 %s, %s, 3, %s" % (v(vT), v(vT + 1), v(vT)))
a("v_add_u32 %s, %s, %s" % (vF2A, sT0, v(vT)))
sum_s(sT4, [(sTILE, 32768), (sKH, 16384)], WS_O)
sum_s(sA, [(sTILE, 28 * 1024), (sNB, 2048), (sKH, 1024)], WS_H)
sum_s(sB, [(sTILE, 4096), (sNB, 512), (sKH, 256)], WS_HS)
sum_s(sC, [(sTILE, 128), (sNB, 16), (sKH, 8)], WS_F3)
a("v_bfe_u32 %s, %s, 4, 1" % (v(vT), vL))
a("v_mul_u32_u24 %s, %d, %s" % (v(vT), 14 * 1024, v(vT)))
a("v_lshl_add_u32 %s, %s, 8, %s" % (v(vT), vH, v(vT)))
a("v_lshl_add_u32 %s, %s, 4, %s" % (vHA, vR, v(vT)))
a("v_lshlrev_b32 %s, 3, %s" % (vHSA, vL31))
XF = 168
for i in range(8):
    a("v_lshlrev_b32 %s, 16, %s" % (v(XF + 2 * i), v(vXRES + i)))
    a("v_and_b32 %s, 0xffff0000, %s" % (v(XF + 2 * i + 1), v(vXRES + i)))
a("v_mov_b32 v167, 0x3f803f80")
a("s_barrier")
stamp("b9")


def p3_wread(s):
    head, ab = s >> 1, s & 1
    wb = WB + 8 * (s % 4)
    r0 = (28 * head - 4 * (head & 1) + 8 * ab) * 128
    for k, base in enumerate((vWk, vWs)):
        a("ds_read_b64_tr_b16 %s, %s offset:%d" % (v(wb + 4 * k, 2), base, r0))
        a("ds_read_b64_tr_b16 %s, %s offset:%d" % (v(wb + 4 * k + 2, 2), base, r0 + 16 * 128))


def p3_load(s):
    if s and s % 4 == 0:
        a("s_add_u32 %s, %s, 4096" % (sT4, sT4))
    a("buffer_load_dwordx4 %s, %s, %s, %s offen offset:%d sc1" % (v(OF + 4 * s, 4), vL16, WS, sT4, (s % 4) * 1024))


for s in range(3):
    p3_wread(s)
poll(vF2A, vT + 2, "f2")
stamp("f2ok")
stamp("rt_f2ok")
UP = OPT["up3"]
for s in range(UP):
    p3_load(s)
for s in range(16):
    a("s_waitcnt vmcnt(%d) lgkmcnt(%d)" % (min(UP - 1, 15 - s), min(8, 4 * (15 - s))))
    if s + 3 < 16:
        p3_wread(s + 3)
    wb = WB + 8 * (s % 4)
    a("v_mfma_f32_32x32x16_bf16 %s, %s, %s, %s" % (v(AS, 16), v(wb + 4, 4), v(OF + 4 * s, 4), "0" if s == 0 else v(AS, 16)))
    if s + UP < 16:
        p3_load(s + UP)
    if OPT["b9b"] and s + UP == 15:
        a("s_barrier")
    a("v_mfma_f32_32x32x16_bf16 %s, %s, %s, %s" % (v(AK, 16), v(wb, 4), v(OF + 4 * s, 4), "0" if s == 0 else v(AK, 16)))
stamp("p3_mfma")


def exchange():
    for i in range(4):
        a("ds_write_b128 %s, %s offset:%d" % (vEXW, v(AS + 4 * i, 4), 1024 * i))
    a("s_waitcnt lgkmcnt(0)")
    a("s_barrier")
    for i in range(4):
        a("ds_read_b128 %s, %s offset:%d" % (v(AS + 4 * i, 4), vEXR, 1024 * i))


def residual_add(out):
    for i in range(4):
        a("s_waitcnt lgkmcnt(%d)" % (3 - i))
        for k in range(2):
            r_ = 4 * i + 2 * k
            a("v_pk_add_f32 %s, %s, %s" % (v(AK + r_, 2), v(AK + r_, 2), v(AS + r_, 2)))
        for k in range(2):
            r_ = 4 * i + 2 * k
            a("v_cvt_pk_bf16_f32 %s, %s, %s" % (v(AS + r_), v(AK + r_), v(AK + r_ + 1)))
        for k in range(2):
            r_ = 4 * i + 2 * k
            a("v_lshlrev_b32 %s, 16, %s" % (v(AK + r_), v(AS + r_)))
            a("v_and_b32 %s, 0xffff0000, %s" % (v(AK + r_ + 1), v(AS + r_)))
        for k in range(2):
            r_ = 4 * i + 2 * k
            a("v_pk_add_f32 %s, %s, %s" % (v(AK + r_, 2), v(AK + r_, 2), v(XF + r_, 2)))
        for k in range(2):
            r_ = 4 * i + 2 * k
            a("v_cvt_pk_bf16_f32 %s, %s, %s" % (v(out + 2 * i + k), v(AK + r_), v(AK + r_ + 1)))


exchange()
residual_add(vXRES)
stamp("p3_res")
a("v_mov_b32 %s, 0" % v(AS))
a("v_mov_b32 %s, 0" % v(AS + 1))
st3 = ["buffer_store_dwordx4 %s, %s, %s, %s offen{sc}" % (v(vXRES, 4), vHA, WS, sA),
       "buffer_store_dwordx4 %s, %s, %s, %s offen offset:512{sc}" % (v(vXRES + 4, 4), vHA, WS, sA)]
for i in range(8):
    st3.append("v_dot2c_f32_bf16 %s, %s, v167" % (v(AS), v(vXRES + i)))
    st3.append("v_dot2c_f32_bf16 %s, %s, %s" % (v(AS + 1), v(vXRES + i), v(vXRES + i)))
st3 += ["v_mov_b32 %s, %s" % (v(AS + 2), v(AS)), "v_mov_b32 %s, %s" % (v(AS + 3), v(AS + 1)),
        "v_permlane32_swap_b32 %s, %s" % (v(AS), v(AS + 2)), "v_permlane32_swap_b32 %s, %s" % (v(AS + 1), v(AS + 3)),
        "v_pk_add_f32 %s, %s, %s" % (v(AS, 2), v(AS, 2), v(AS + 2, 2)),
        "buffer_store_dwordx2 %s, %s, %s, %s offen{sc}" % (v(AS, 2), vHSA, WS, sB)]
publish(st3, sC, data_sc1=bool(OPT["ohsc"]))
if OPT["ohsc"]:
    a("buffer_load_dword v26, %s, %s, %s offen sc1" % (vHA, WS, sA))
    a("buffer_load_dword v26, %s, %s, %s offen offset:512 sc1" % (vHA, WS, sA))
    a("buffer_load_dword v26, %s, %s, %s offen sc1" % (vHSA, WS, sB))
stamp("h_pub")
stamp("rt_hpub")
a("s_branch Lp3_done")
a.label("Lp3_idle")
a("s_barrier")
if OPT["b9b"]:
    a("s_barrier")
a("s_barrier")
a.label("Lp3_done")

HF = 32
A4 = 144
W4 = 200
SPR = 232
NM4, RS4 = [246, 248], [250, 252]
vW4a, vW4b, vW4c, vSPA = "v254", "v255", "v27", "v28"
a("v_lshrrev_b32 %s, 1, %s" % (v(vT), vQ4))
a("v_lshlrev_b32 %s, 4, %s" % (v(vT), v(vT)))
a("v_and_b32 %s, 1, %s" % (v(vT + 1), vQ4))
a("v_lshl_add_u32 %s, %s, 2, %s" % (v(vT), v(vT + 1), v(vT)))
a("v_lshrrev_b32 %s, 2, %s" % (v(vT + 1), vR))
a("v_add_u32 %s, %s, %s" % (v(vT), v(vT), v(vT + 1)))
a("v_mul_u32_u24 %s, 224, %s" % (v(vT), v(vT)))
a("v_and_b32 %s, 3, %s" % (v(vT + 1), vL))
a("v_lshl_add_u32 %s, %s, 3, %s" % (vW4a, v(vT + 1), v(vT)))
a("v_add_u32 %s, %d, %s" % (vW4b, 8 * 7168, vW4a))
a("v_add_u32 %s, %d, %s" % (vW4c, L_W1U, vW4a))
assert lds_conflicts([(16 * (l >> 5) + 4 * ((l >> 4) & 1) + ((l & 15) >> 2)) * 224 + (l & 3) * 8 for l in range(64)], "tr") == 0
sum_s(sT1, [(sTILE4, 128)], WS_F3)
a("v_min_u32 %s, 13, %s" % (v(vT), vR))
a("v_lshlrev_b32 %s, 3, %s" % (v(vT), v(vT)))
a("v_add_u32 %s, %s, %s" % (v(vT), sT1, v(vT)))
sum_s(sT4, [(sTILE4, 28 * 1024)], WS_H)
a("s_add_u32 %s, %s, %d" % (sE, sT4, 14 * 1024))
sum_s(sT3, [(sTILE4, 4096)], WS_HS)
a("v_mul_u32_u24 %s, %d, %s" % (vSPA, 7 * 256, vH))
a("v_lshl_add_u32 %s, %s, 3, %s" % (vSPA, vL31, vSPA))
sum_s(sA, [(sTILE4, 112 * 1024), (sJ, 7168)], WS_H1)
a("s_add_u32 %s, %s, 4096" % (sB, sA))
sum_s(sC, [(sTILE4, 128), (sJ, 8)], WS_F4)
a("s_barrier")
stamp("b11")
NW4 = 8
AHEAD = 7


def p4_wread(q):
    ks, nt = divmod(q, 7)
    if ks < 8:
        base, off = vW4a, ks * 7168
    elif ks < 12:
        base, off = vW4b, (ks - 8) * 7168
    else:
        base, off = vW4c, (ks - 12) * 7168
    wb = W4 + 4 * (q % NW4)
    a("ds_read_b64_tr_b16 %s, %s offset:%d" % (v(wb, 2), base, off + nt * 32))
    a("ds_read_b64_tr_b16 %s, %s offset:%d" % (v(wb + 2, 2), base, off + nt * 32 + 8 * 224))


def p4_load(ks, mt):
    if mt == 0 and ks and ks % 4 == 0:
        a("s_add_u32 %s, %s, 4096" % (sT4, sT4))
        a("s_add_u32 %s, %s, 4096" % (sE, sE))
    a("buffer_load_dwordx4 %s, %s, %s, %s offen offset:%d sc1" % (v(HF + 4 * (mt * 14 + ks), 4), vL16, WS, (sT4, sE)[mt], (ks % 4) * 1024))


for q in range(AHEAD):
    p4_wread(q)
poll(v(vT), vT + 2, "f3")
stamp("f3ok")
stamp("rt_f3ok")
UP = OPT["up4"]
for ks in range(UP):
    p4_load(ks, 0)
    p4_load(ks, 1)
    if ks == 1:
        for i in range(7):
            a("buffer_load_dwordx2 %s, %s, %s, %s offen offset:%d sc1" % (v(SPR + 2 * i, 2), vSPA, WS, sT3, 256 * i))
assert UP >= 3
for ks in range(14):
    if ks == 3:
        for i in range(1, 7):
            a("v_pk_add_f32 %s, %s, %s" % (v(SPR, 2), v(SPR, 2), v(SPR + 2 * i, 2)))
        xhalf_sum(v(SPR), v(SPR + 2))
        xhalf_sum(v(SPR + 1), v(SPR + 2))
        ln_finish(v(SPR), v(SPR + 1), v(NM4[0]), v(RS4[0]), v(SPR + 2))
        a("v_mul_f32 %s, %s, %s" % (v(NM4[0]), v(NM4[0]), v(RS4[0])))
        a("v_mov_b32 %s, %s" % (v(NM4[1]), v(NM4[0])))
        a("v_mov_b32 %s, %s" % (v(RS4[1]), v(RS4[0])))
        a("v_permlane16_swap_b32 %s, %s" % (v(NM4[0]), v(NM4[1])))
        a("v_permlane16_swap_b32 %s, %s" % (v(RS4[0]), v(RS4[1])))
        for r_ in NM4 + RS4:
            a("v_mov_b32 %s, %s" % (v(r_ + 1), v(r_)))
    if ks in (1, 7):
        stamp("p4_k%d" % ks)
    for nt in range(7):
        q = ks * 7 + nt
        if q == 7 * OPT["kb"] + 2:
            a("s_barrier")
        if q == 7 * OPT["kb"] + 9:
            a("s_barrier")
        lg = min(2 * (AHEAD - 1), 2 * (97 - q))
        if OPT["w2"] and nt in (0, 2, 4):
            lg = max(0, min(2 * (AHEAD - 2), 2 * (97 - q - 1)))
        if nt == 0:
            later = 2 * (min(13, ks + UP - 1) - ks) + (7 if ks <= 1 else 0)
            a("s_waitcnt vmcnt(%d) lgkmcnt(%d)" % (later, lg))
        elif not OPT["w2"] or nt in (2, 4, 6):
            a("s_waitcnt lgkmcnt(%d)" % lg)
        if q + AHEAD < 98:
            p4_wread(q + AHEAD)
        wb = W4 + 4 * (q % NW4)
        for mt in range(2):
            acc = v(A4 + 4 * (mt * 7 + nt), 4)
            a("v_mfma_f32_16x16x32_bf16 %s, %s, %s, %s" % (acc, v(wb, 4), v(HF + 4 * (mt * 14 + ks), 4), "0" if ks == 0 else acc))
        if nt < 2 and ks + UP < 14:
            p4_load(ks + UP, nt)
stamp("p4_mfma")
CS4 = 200
a("v_lshlrev_b32 %s, 4, %s" % (v(vT), vQ4))
a("v_add_u32 %s, %d, %s" % (v(vT), L_CS1, v(vT)))
for nt in range(7):
    a("ds_read_b128 %s, %s offset:%d" % (v(CS4 + 4 * nt, 4), v(vT), 64 * nt))
a("v_lshlrev_b32 %s, 9, %s" % (v(vT), vQ4))
a("v_lshl_add_u32 %s, %s, 4, %s" % (v(vT), vR, v(vT)))
a("v_lshrrev_b32 %s, 1, %s" % (v(vT + 1), vQ4))
a("v_lshlrev_b32 %s, 9, %s" % (v(vT + 1), v(vT + 1)))
a("v_lshl_add_u32 %s, %s, 4, %s" % (v(vT + 1), vR, v(vT + 1)))
a("v_and_b32 %s, 1, %s" % (v(vT + 3), vQ4))
a("v_lshl_add_u32 %s, %s, 3, %s" % (v(vT + 1), v(vT + 3), v(vT + 1)))
H1P = 32
TT = 64
st = ["s_waitcnt lgkmcnt(0)"]
for mt in range(2):
    for p in range(4):
        nts = (2 * p, 2 * p + 1) if p < 3 else (6,)
        for nt in nts:
            for c in range(2):
                st.append("v_pk_mul_f32 %s, %s, %s" % (v(TT + 4 * (nt & 1) + 2 * c, 2), v(CS4 + 4 * nt + 2 * c, 2), v(NM4[mt], 2)))
        for nt in nts:
            acc = A4 + 4 * (mt * 7 + nt)
            for c in range(2):
                st.append("v_pk_fma_f32 %s, %s, %s, %s" % (v(acc + 2 * c, 2), v(acc + 2 * c, 2), v(RS4[mt], 2), v(TT + 4 * (nt & 1) + 2 * c, 2)))
        for nt in nts:
            acc = A4 + 4 * (mt * 7 + nt)
            hp = H1P + 16 * mt + 2 * nt
            for c in range(2):
                st.append("v_cvt_pk_bf16_f32 %s, %s, %s" % (v(hp + c), v(acc + 2 * c), v(acc + 2 * c + 1)))
        for nt in nts:
            hp = H1P + 16 * mt + 2 * nt
            for c in range(2):
                st.append("v_pk_max_i16 %s, %s, %s" % (v(hp + c), v(hp + c), vZ))
        if p < 3:
            so, off = (sA, p * 2048 + mt * 256) if p < 2 else (sB, mt * 256)
            st.append("buffer_store_dwordx4 %s, %s, %s, %s offen offset:%d{sc}" % (v(H1P + 16 * mt + 4 * p, 4), v(vT), WS, so, off))
        else:
            st.append("buffer_store_dwordx2 %s, %s, %s, %s offen offset:%d{sc}" % (v(H1P + 16 * mt + 12, 2), v(vT + 1), WS, sB, 2048 + mt * 256))
publish(st, sC, data_sc1=bool(OPT["h1sc"]))
if OPT["st4"]:
    a("v_min_u32 %s, 55, %s" % (v(vT), vL))
    a("v_lshlrev_b32 %s, 7, %s" % (v(vT), v(vT)))
    a("buffer_load_dword v26, %s, %s, %s offen sc1" % (v(vT), WS, sA))
stamp("h1_pub")
stamp("rt_h1pub")
a("s_cmp_ge_u32 %s, 14" % sJ)
a("s_cbranch_scc1 Lend")

RF = 64
NRF = 16
WB5 = 128
AD5 = 208
a("s_mul_i32 %s, %s, %d" % (sT0, sKH, UNIT))
for pat, hm in enumerate((4, 8)):
    tr_base_128(v(AD5 + 6 * pat), v(AD5 + 6 * pat + 1), hm, sT0, 0)
    for b, off in ((1, 4 * UNIT), (2, L_WO)):
        for k in range(2):
            a("v_add_u32 %s, %d, %s" % (v(AD5 + 6 * pat + 2 * b + k), off, v(AD5 + 6 * pat + k)))
UMAP = {0: (2, 0), 1: (2, 2 * UNIT), 2: (0, 0), 3: (0, 2 * UNIT), 4: (1, 0), 5: (2, 0), 6: (2, 2 * UNIT), 7: (0, 0)}


def p5_wread(i):
    n, u = divmod(i, 7)
    b, off = UMAP[n]
    wb = WB5 + 8 * (i % 4)
    if u < 6:
        pat, r0, d2 = 0, 32 * (u >> 1) + 8 * (u & 1), 16
    else:
        pat, r0, d2 = 1, 96, 4
    for k in range(2):
        base = v(AD5 + 6 * pat + 2 * b + k)
        a("ds_read_b64_tr_b16 %s, %s offset:%d" % (v(wb + 4 * k, 2), base, off + r0 * 128))
        a("ds_read_b64_tr_b16 %s, %s offset:%d" % (v(wb + 4 * k + 2, 2), base, off + (r0 + d2) * 128))


ex_addrs()
for i in range(8):
    a("v_lshlrev_b32 %s, 16, %s" % (v(XF + 2 * i), v(vXRES + i)))
    a("v_and_b32 %s, 0xffff0000, %s" % (v(XF + 2 * i + 1), v(vXRES + i)))
vFW, vFR, vFO = "v184", "v185", "v186"
if OPT["ow"] == 2:
    sum_s(sT0, [(sMH, 32 * 144), (sKH, 64)])
    a("v_mul_u32_u24 %s, 144, %s" % (vFW, vL31))
    a("v_lshl_add_u32 %s, %s, 4, %s" % (vFW, vH, vFW))
    a("v_add_u32 %s, %s, %s" % (vFW, sT0, vFW))
    a("v_lshrrev_b32 %s, 3, %s" % (v(vT), vL))
    a("v_and_b32 %s, 7, %s" % (v(vT + 1), vL))
    a("v_mul_u32_u24 %s, 144, %s" % (vFR, v(vT)))
    a("v_lshl_add_u32 %s, %s, 4, %s" % (vFR, v(vT + 1), vFR))
    a("s_mul_i32 %s, %s, %d" % (sT0, sHW, 16 * 144))
    a("v_add_u32 %s, %s, %s" % (vFR, sT0, vFR))
    a("v_mul_u32_u24 %s, 896, %s" % (vFO, v(vT)))
    a("v_lshl_add_u32 %s, %s, 4, %s" % (vFO, v(vT + 1), vFO))
    sum_s(sA, [(sG, 128 * 896), (sMH2, 64 * 896), (sHW, 16 * 896), (sNB, 128)])
    a("s_add_u32 %s, %s, %d" % (sB, sA, 8 * 896))
sum_s(sT0, [(sTILE, 128), (sKH, 64)], WS_F4)
a("v_and_b32 %s, 7, %s" % (v(vT), vL))
a("v_lshlrev_b32 %s, 3, %s" % (v(vT), v(vT)))
a("v_add_u32 %s, %s, %s" % (v(vT), sT0, v(vT)))
sum_s(sT4, [(sTILE, 112 * 1024), (sKH, 56 * 1024)], WS_H1)
a("s_barrier")
stamp("b12")
for i in range(3):
    p5_wread(i)
poll(v(vT), vT + 2, "f4")
stamp("f4ok")
stamp("rt_f4ok")


def p5_load(i):
    n, u = divmod(i, 7)
    if u == 0:
        a("s_add_u32 %s, %s, %d" % (sT0, sRU, n))
        a("s_and_b32 %s, %s, 7" % (sT0, sT0))
        a("s_mul_i32 %s, %s, 7168" % (sT0, sT0))
        a("s_add_u32 %s, %s, %s" % (sT3, sT4, sT0))
    if u == 4:
        a("s_add_u32 %s, %s, 4096" % (sT3, sT3))
    a("buffer_load_dwordx4 %s, %s, %s, %s offen offset:%d sc1" % (v(RF + 4 * (i % NRF), 4), vL16, WS, sT3, (u % 4) * 1024))


UP = OPT["up5"]
assert UP < NRF
for i in range(UP):
    p5_load(i)
BARS = {14, 28, 42} if OPT["bars"] else {14, 21, 35}
nread = 3
for i in range(56):
    if i in BARS:
        a("s_barrier")
        stamp("p5_b%d" % i)
    while nread < 56 and nread <= i + 2 and not any(i < b <= nread for b in BARS):
        p5_wread(nread)
        nread += 1
    lg = 4 * (nread - 1 - i)
    vm = min(UP - 1, 55 - i)
    a("s_waitcnt vmcnt(%d) lgkmcnt(%d)" % (vm, lg))
    if nread < 56 and nread <= i + 3 and not any(i < b <= nread for b in BARS):
        p5_wread(nread)
        nread += 1
    wb = WB5 + 8 * (i % 4)
    rf = v(RF + 4 * (i % NRF), 4)
    a("v_mfma_f32_32x32x16_bf16 %s, %s, %s, %s" % (v(AS, 16), v(wb + 4, 4), rf, "0" if i == 0 else v(AS, 16)))
    if i + UP < 56:
        p5_load(i + UP)
    a("v_mfma_f32_32x32x16_bf16 %s, %s, %s, %s" % (v(AK, 16), v(wb, 4), rf, "0" if i == 0 else v(AK, 16)))
stamp("p5_mfma")
exchange()
OUTP = 64
residual_add(OUTP)
if OPT["ow"] == 2:
    for m in range(2):
        for k in range(2):
            a("v_permlane32_swap_b32 %s, %s" % (v(OUTP + 4 * m + k), v(OUTP + 4 * m + 2 + k)))
    for m in range(2):
        a("ds_write_b128 %s, %s offset:%d" % (vFW, v(OUTP + 4 * m, 4), 32 * m))
    a("s_waitcnt lgkmcnt(0)")
    a("s_barrier")
    for m in range(2):
        a("ds_read_b128 %s, %s offset:%d" % (v(OUTP + 8 + 4 * m, 4), vFR, 8 * 144 * m))
    for m in range(2):
        a("s_waitcnt lgkmcnt(%d)" % (1 - m))
        a("buffer_store_dwordx4 %s, %s, %s, %s offen%s" % (v(OUTP + 8 + 4 * m, 4), vFO, OUT, (sA, sB)[m], (" " + OPT["osc"]) if OPT["osc"] else ""))
elif OPT["ow"]:
    a("v_mul_u32_u24 %s, 896, %s" % (v(vT), vL31))
    a("v_lshl_add_u32 %s, %s, 4, %s" % (v(vT), vH, v(vT)))
    for m in range(2):
        for k in range(2):
            a("v_permlane32_swap_b32 %s, %s" % (v(OUTP + 4 * m + k), v(OUTP + 4 * m + 2 + k)))
    for m in range(2):
        a("buffer_store_dwordx4 %s, %s, %s, %s offen offset:%d%s" % (v(OUTP + 4 * m, 4), v(vT), OUT, sXO, 32 * m, (" " + OPT["osc"]) if OPT["osc"] else ""))
else:
    for jj in range(4):
        a("buffer_store_dwordx2 %s, %s, %s, %s offen offset:%d%s" % (v(OUTP + 2 * jj, 2), vXOFF, OUT, sXO, 16 * jj, (" " + OPT["osc"]) if OPT["osc"] else ""))
stamp("end")
stamp("rt_end")
a("s_endpgm")

RS0 = 72


def unit_index(dst, n_s, n_imm):
    if n_s:
        a("s_add_u32 %s, %s, %s" % (dst, sRU, n_s))
        if n_imm:
            a("s_add_u32 %s, %s, %d" % (dst, dst, n_imm))
    else:
        a("s_add_u32 %s, %s, %d" % (dst, sRU, n_imm))
    a("s_and_b32 %s, %s, 7" % (dst, dst))
    a("s_lshl_b32 %s, %s, 3" % (sT5, sMH))
    a("s_add_u32 %s, %s, %s" % (dst, dst, sT5))


def w2_rows(n, to_reg=None, lds_s=None, lds_imm=0):
    for i in range(n):
        if to_reg is None:
            dma(vWO, W2, sT3, lds_s, lds_imm + i * 1024)
        elif not OPT["nobg"]:
            a("buffer_load_dwordx4 %s, %s, %s, %s offen" % (v(to_reg + 4 * i, 4), vWO, W2, sT3))
        if i < n - 1:
            a("s_add_u32 %s, %s, %d" % (sT3, sT3, 8 * 896))


def stage(nfull, nhalf, reg, parts=3):
    if parts & 1:
        unit_index(sT0, sKH, nfull)
        a("s_mul_i32 %s, %s, %d" % (sT3, sT0, 112 * 896))
        w2_rows(14, to_reg=reg)
    if not parts & 2:
        return
    unit_index(sT0, None, nhalf)
    sum_s(sT3, [(sT0, 112 * 896), (sKH, 7 * 8 * 896)])
    w2_rows(7, to_reg=reg + 56)


def dump(reg, n, addr, off):
    for i in range(n):
        a("ds_write_b128 %s, %s offset:%d" % (addr, v(reg + 4 * i, 4), off + 1024 * i))


def cold_quarter(slot):
    if OPT["cq"] == slot:
        lab = a.newlabel("Lnocq")
        a("s_cmp_ge_u32 %s, 14" % sJ)
        a("s_cbranch_scc1 %s" % lab)
        stage(2, 4, RS0, parts=1)
        a.label(lab)


a.label("Lhelper2")
a("s_barrier")
bg("C")
cold_quarter("C")
if OPT["b9b"]:
    a("s_barrier")
bg("C2")
cold_quarter("C2")
stamp("h_w1b")
if OPT["pt_h1"] == 1:
    sum_s(sT0, [(sG, 448 * 1024), (sJ, 28 * 1024), (sHW, 7168)], WS_H1)
    touch_lines(WS, sT0, 56, sc1=True)
C1 = 32
C1B = 40
cA, cB, cONE = "v68", "v69", "v70"
RS0 = 72
a("v_lshrrev_b32 %s, 1, %s" % (v(vT), vQ4))
a("v_lshlrev_b32 %s, 4, %s" % (v(vT), v(vT)))
a("v_and_b32 %s, 1, %s" % (v(vT + 1), vQ4))
a("v_lshl_add_u32 %s, %s, 2, %s" % (v(vT), v(vT + 1), v(vT)))
a("v_lshrrev_b32 %s, 2, %s" % (v(vT + 1), vR))
a("v_add_u32 %s, %s, %s" % (v(vT), v(vT), v(vT + 1)))
a("v_mul_u32_u24 %s, 224, %s" % (v(vT), v(vT)))
a("v_and_b32 %s, 3, %s" % (v(vT + 1), vL))
a("v_lshl_add_u32 %s, %s, 3, %s" % (cA, v(vT + 1), v(vT)))
a("s_mul_i32 %s, %s, 7168" % (sT0, sHW))
a("v_add_u32 %s, %s, %s" % (cA, sT0, cA))
a("v_add_u32 %s, %d, %s" % (cB, L_W1U, cA))
a("v_mov_b32 %s, 0x3f803f80" % cONE)
for nt in range(7):
    a("v_mov_b32 %s, 0" % v(C1 + nt))


def cs1_block(base, off):
    for nt in range(7):
        a("ds_read_b64_tr_b16 %s, %s offset:%d" % (v(C1B + 4 * nt, 2), base, off + nt * 32))
        a("ds_read_b64_tr_b16 %s, %s offset:%d" % (v(C1B + 4 * nt + 2, 2), base, off + nt * 32 + 8 * 224))
    a("s_waitcnt lgkmcnt(0)")
    for i in range(4):
        for nt in range(7):
            a("v_dot2c_f32_bf16 %s, %s, %s" % (v(C1 + nt), v(C1B + 4 * nt + i), cONE))


cs1_block(cA, 8 * 7168)
a("s_barrier")
a("s_waitcnt vmcnt(0)")
stamp("h_w1_landed")
cs1_block(cA, 0)
cs1_block(cA, 4 * 7168)
a("s_barrier")


lab = a.newlabel("Lnou")
a("s_cmp_ge_u32 %s, 2" % sHW)
a("s_cbranch_scc1 %s" % lab)
w1_block(12)
a("s_waitcnt vmcnt(0)")
cs1_block(cB, 0)
a.label(lab)
bg("D")
cold_quarter("D")
for nt in range(7):
    xhalf_sum(v(C1 + nt), v(vT))
    xrow_sum(v(C1 + nt), v(vT))
sum_s(sT0, [(sHW, 448)], L_CSP)
a("v_lshl_add_u32 %s, %s, 2, %s" % (v(vT), vR, sT0))
for nt in range(7):
    a("ds_write_b32 %s, %s offset:%d" % (v(vT), v(C1 + nt), 64 * nt))
a("s_waitcnt lgkmcnt(0)")
a("s_barrier")
lab = a.newlabel("Lnocs1")
a("s_cmp_lg_u32 %s, 4" % sWAVE)
a("s_cbranch_scc1 %s" % lab)
a("v_min_u32 %s, 55, %s" % (v(vT), vL))
a("v_lshlrev_b32 %s, 3, %s" % (v(vT), v(vT)))
a("v_add_u32 %s, %d, %s" % (v(vT + 1), L_CSP, v(vT)))
for k in range(4):
    a("ds_read_b64 %s, %s offset:%d" % (v(40 + 2 * k, 2), v(vT + 1), 448 * k))
a("s_waitcnt lgkmcnt(0)")
for c in range(2):
    a("v_add_f32 %s, %s, %s" % (v(40 + c), v(40 + c), v(42 + c)))
    a("v_add_f32 %s, %s, %s" % (v(44 + c), v(44 + c), v(46 + c)))
    a("v_add_f32 %s, %s, %s" % (v(40 + c), v(40 + c), v(44 + c)))
a("v_add_u32 %s, %d, %s" % (v(vT + 1), L_CS1, v(vT)))
a("ds_write_b64 %s, %s" % (v(vT + 1), v(40, 2)))
a("s_waitcnt lgkmcnt(0)")
a.label(lab)
a("s_barrier")
bg("D2")
a("s_cmp_ge_u32 %s, 14" % sJ)
a("s_cbranch_scc1 Lend")
unit_index(sT0, sKH, 0)
a("s_mul_i32 %s, %s, %d" % (sT3, sT0, 112 * 896))
a("s_mul_i32 %s, %s, %d" % (sT1, sHW, UNIT))
w2_rows(14, lds_s=sT1, lds_imm=L_WO)
stage(2, 4, RS0, parts=2 if OPT["cq"] else 3)
if OPT["r2early"]:
    stage(5, 7, RS0 + 84)
a("v_add_u32 v40, %s, %s" % (sT1, vL16))
a("v_add_u32 v41, %d, v40" % L_WO)
sum_s(sT1, [(sMH, UNIT), (sKH, 7168)])
a("v_add_u32 v42, %s, %s" % (sT1, vL16))
stamp("h_w2_issued")
NR = 0 if OPT["nobg"] else 21
NR1 = (NR // 3) if OPT["cq"] else NR
a("s_waitcnt vmcnt(%d)" % (NR1 + NR if OPT["r2early"] else NR1))
stamp("h_w2a_landed")
a("s_barrier")
a("s_waitcnt vmcnt(%d)" % (NR if OPT["r2early"] else 0))
dump(RS0, 14, "v40", 0)
dump(RS0 + 56, 7, "v42", 4 * UNIT)
if not OPT["r2early"]:
    stage(5, 7, RS0 + 84)
a("s_waitcnt lgkmcnt(0)")
stamp("h_w2b_landed")
a("s_barrier")
a("s_waitcnt vmcnt(0)")
dump(RS0 + 84, 14, "v41", 0)
a("s_waitcnt lgkmcnt(0)")
a("s_barrier")
dump(RS0 + 84 + 56, 7, "v42", 0)
a("s_waitcnt lgkmcnt(0)")
a("s_barrier")
a("s_barrier")
a.label("Lend")
a("s_endpgm")
a.raw("Lcode_end:")
a.raw('.section .rodata,"a"')
a.raw(".p2align 6")
a.raw(".amdhsa_kernel %s" % KNAME)
a.raw("  .amdhsa_next_free_vgpr 256")
a.raw("  .amdhsa_next_free_sgpr 102")
a.raw("  .amdhsa_accum_offset 256")
a.raw("  .amdhsa_group_segment_fixed_size 0")
a.raw("  .amdhsa_kernarg_size 72")
a.raw("  .amdhsa_user_sgpr_count 2")
a.raw("  .amdhsa_user_sgpr_kernarg_segment_ptr 1")
a.raw("  .amdhsa_system_sgpr_workgroup_id_x 1")
a.raw(".end_amdhsa_kernel")
open(sys.argv[1], "w").write(a.text())
json.dump(STAMPS, open(sys.argv[1] + ".stamps.json", "w"))
print("instructions:", a.count)
```

```python
import sys, math, struct, re, json
from asmlib import Asm, lds_conflicts

KNAME = "sequential_preLN__sliding_block__dense_activation_relu__prompt_kernel"
OPT = dict(stamps="", force_slow=0, nobg=0, t_w1=1, t_w2=1, pt_h1=0, up3=8, up4=8, up5=8, dry=0, psleep=0, gw=0, rotj=0, init2=1, pt_c=3, h1sc=1, bgA=1, ic=2, fc=4, P3="", A="wo", B="w18+tw1", C="w10+w14", C2="", D="", b9b=0, warm=0, kb=5, r2early=1, D2="", st4=0, ohsc=0, svc="", bm=0, prio=0, w2=1, diag=0, nt=0, sent=1, dbg=0, tlb=0, cq="D", hpt=0, bars=1, osc="nt", ow=2, xl=1, alias=0, shadow=1)
for a_ in sys.argv[2:]:
    k_, v_ = a_.split("=")
    OPT[k_] = v_ if isinstance(OPT[k_], str) else int(v_)


def f32(x):
    return "0x%08x" % struct.unpack("<I", struct.pack("<f", x))[0]


QT = 336 * 256
WS_QKV = 0
WS_O = 6 << 20
WS_H = 8 << 20
WS_H1 = 10 << 20
WS_F1 = 17 << 20
WS_F2 = WS_F1 + 0x10000
WS_F3 = WS_F1 + 0x20000
WS_F4 = WS_F1 + 0x30000
WS_HS = WS_F1 + 0x40000
WS_ST = WS_F1 + 0x80000
WS_FD = WS_F1 + 0x90000
WS_TS = 18 << 20
WS_SIZE = 32 << 20

L_XR = 86016
L_KV = 0
L_Q = 12 * 4096
L_WO = 86016
L_W1U = 144384
L_SCR = 144384
L_CSP = 158720
L_MISC = 160768
L_CS = L_MISC
L_ST = L_MISC + 384
L_EP = L_ST + 1024
L_CS1 = L_EP + 64
LDS_BYTES = 163840
UNIT = 14336

X, WQKV, WO, W1, W2, OUT, DBG, WS = ["s[%d:%d]" % (4 + 4 * i, 7 + 4 * i) for i in range(8)]
sG, sJ, sWAVE, sR0, sXCC, sFAST = "s36", "s37", "s38", "s39", "s40", "s41"
sEP = "s[42:43]"
sEPL, sEPH = "s42", "s43"
sROT, sHW, sMH2, sNB, sKH, sMH = "s44", "s45", "s46", "s47", "s48", "s49"
sHI = "s[50:51]"
sLT48 = "s[52:53]"
sQ3 = "s[54:55]"
sHW1K, sHW4K = "s56", "s57"
sCNT = "s58"
sSLOT = "s59"
sT0, sT1, sT2, sT3, sT4, sT5 = "s60", "s61", "s62", "s63", "s64", "s65"
sTS = "s[66:67]"
sTSOFF = "s68"
sXO = "s69"
sCX, sCW = "s70", "s71"
sTILE, sTILE4 = "s72", "s73"
sRU = "s88"
sA, sB, sC, sD, sE, sF = "s74", "s75", "s76", "s77", "s78", "s79"

vL, vL31, vH, vR, vQ4, vL16, vTMP = "v1", "v2", "v3", "v4", "v5", "v6", "v7"
vXRES = 8
vFLG = 16
vT = 18
vZ = "v24"
vXOFF = "v25"
HP = 240


def v(i, n=1):
    return "v%d" % i if n == 1 else "v[%d:%d]" % (i, i + n - 1)


a = Asm()
STAMPS = {}


DBGW = {"t0": 2, "rt_start": 3, "m_b0": 4, "m_p1end": 5, "b8": 6, "o_pub": 7, "f2ok": 8, "h_pub": 9, "f3ok": 10, "h1_pub": 11, "f4ok": 12, "end": 13, "rt_end": 14}


def stamp(name):
    if OPT["dbg"] and name in DBGW:
        lab = a.newlabel("Ldbg")
        a("s_lshl_b32 s93, s2, 3")
        a("s_add_u32 s93, s93, %s" % sWAVE)
        a("s_cmp_lg_u32 s93, %d" % (OPT["dbg"] * 8))
        a("s_cbranch_scc1 %s" % lab)
        a(("s_memrealtime %s" if name.startswith("rt_") else "s_memtime %s") % sTS)
        a("s_waitcnt lgkmcnt(0)")
        a("v_mov_b32 v30, s66")
        a("v_mov_b32 v29, 0")
        a("s_mov_b64 exec, 1")
        a("buffer_store_dword v30, v29, %s, 0 offen offset:%d" % (DBG, DBGW[name] * 4))
        a("s_mov_b64 exec, -1")
        a.label(lab)
        return
    if not OPT["stamps"] or not (name == "t0" or re.fullmatch(OPT["stamps"], name)):
        return
    idx = STAMPS.setdefault(name, len(STAMPS))
    assert idx < 30
    a(("s_memrealtime %s" if name.startswith("rt_") else "s_memtime %s") % sTS)
    a("s_waitcnt lgkmcnt(0)")
    a("v_mov_b32 v30, s66")
    a("v_mov_b32 v31, s67")
    a("v_mov_b32 v29, 0")
    a("s_mov_b64 exec, 1")
    a("buffer_store_dwordx2 v[30:31], v29, %s, %s offen offset:%d" % (WS, sTSOFF, idx * 8))
    a("s_mov_b64 exec, -1")


def dma(voff, srd, soff, lds_s, lds_imm, inst=0, sc1=False):
    if OPT["nobg"] and srd in (WO, W1, W2):
        return
    m = lds_imm - inst
    if lds_s is None:
        a("s_mov_b32 m0, %d" % m)
    else:
        a("s_add_u32 m0, %s, %d" % (lds_s, m))
    nt = (srd == X and OPT["nt"] & 1) or (srd == WQKV and OPT["nt"] & 2) or (srd in (WO, W1) and OPT["nt"] & 16)
    a("buffer_load_dwordx4 %s, %s, %s offen%s%s%s lds" % (voff, srd, soff, (" offset:%d" % inst) if inst else "", " sc1" if sc1 else "", " nt" if nt else ""))


def sum_s(dst, terms, const=0):
    first = True
    for sreg, mult in terms:
        tgt = dst if first else sT5
        if mult == 1:
            if first:
                a("s_mov_b32 %s, %s" % (dst, sreg))
            else:
                a("s_add_u32 %s, %s, %s" % (dst, dst, sreg))
            first = False
            continue
        if mult & (mult - 1) == 0:
            a("s_lshl_b32 %s, %s, %d" % (tgt, sreg, mult.bit_length() - 1))
        else:
            a("s_mul_i32 %s, %s, %d" % (tgt, sreg, mult))
        if not first:
            a("s_add_u32 %s, %s, %s" % (dst, dst, sT5))
        first = False
    if const:
        a("s_add_u32 %s, %s, %d" % (dst, dst, const))


def poll(vaddr, vd, name):
    lp, dn = a.newlabel("Lpoll_" + name), a.newlabel("Lpolld_" + name)
    a("s_mov_b32 %s, 0x20000" % sCNT)
    a.label(lp)
    a("buffer_load_dwordx2 %s, %s, %s, 0 offen sc1" % (v(vd, 2), vaddr, WS))
    a("s_sub_u32 %s, %s, 1" % (sCNT, sCNT))
    a("s_waitcnt vmcnt(0)")
    a("v_and_b32 %s, -8, %s" % (v(vd), v(vd)))
    a("v_cmp_ne_u64 vcc, %s, %s" % (sEP, v(vd, 2)))
    a("s_cmp_eq_u32 %s, 0" % sCNT)
    a("s_cbranch_scc1 %s" % dn)
    if OPT["psleep"]:
        a("s_cbranch_vccz %s" % dn)
        a("s_sleep %d" % OPT["psleep"])
        a("s_branch %s" % lp)
    else:
        a("s_cbranch_vccnz %s" % lp)
    a.label(dn)


def flag_store(soff, sc):
    a("s_mov_b64 exec, 1")
    a("buffer_store_dwordx2 %s, %s, %s, %s offen%s" % (v(vFLG, 2), vZ, WS, soff, sc))
    a("s_mov_b64 exec, -1")


def publish(stores, flag_soff, data_sc1=False, mid=None):
    def both(fn):
        ls, le = a.newlabel("Lslow"), a.newlabel("Lpub")
        a("s_cmp_eq_u32 %s, 0" % sFAST)
        a("s_cbranch_scc1 %s" % ls)
        fn("")
        a("s_branch %s" % le)
        a.label(ls)
        fn(" sc1")
        a.label(le)

    def st(sc):
        for s_ in stores:
            a(s_.format(sc=sc))

    def fl(sc):
        a("s_waitcnt vmcnt(0)")
        flag_store(flag_soff, sc)
    if data_sc1:
        st(" sc1")
        if mid:
            mid()
        both(fl)
    elif mid:
        both(st)
        mid()
        both(fl)
    else:
        both(lambda sc: (st(sc), fl(sc)))


def bf16r(dst, src):
    a("v_cvt_pk_bf16_f32 %s, %s, %s" % (dst, src, src))
    a("v_and_b32 %s, 0xffff0000, %s" % (dst, dst))


def ln_finish(sx, sxx, negmean, rstd, t0):
    a("v_mul_f32 %s, %s, %s" % (sx, f32(1.0 / 448), sx))
    a("v_mul_f32 %s, %s, %s" % (sxx, f32(1.0 / 448), sxx))
    a("v_fma_f32 %s, -%s, %s, %s" % (sxx, sx, sx, sxx))
    a("v_max_f32 %s, 0, %s" % (sxx, sxx))
    bf16r(sxx, sxx)
    a("v_add_f32 %s, %s, %s" % (sxx, f32(1e-5), sxx))
    bf16r(sxx, sxx)
    a("v_sqrt_f32 %s, %s" % (sxx, sxx))
    bf16r(sxx, sxx)
    a("v_rcp_f32 %s, %s" % (rstd, sxx))
    bf16r(t0, sx)
    a("v_sub_f32 %s, 0, %s" % (negmean, t0))


def xhalf_sum(x, t):
    a("v_mov_b32 %s, %s" % (t, x))
    a("v_permlane32_swap_b32 %s, %s" % (x, t))
    a("v_add_f32 %s, %s, %s" % (x, x, t))


def xrow_sum(x, t):
    a("v_mov_b32 %s, %s" % (t, x))
    a("v_permlane16_swap_b32 %s, %s" % (x, t))
    a("v_add_f32 %s, %s, %s" % (x, x, t))


def get_epoch_spin(name):
    lp, dn = "Lep_%s" % name, "Lepd_%s" % name
    a("s_mov_b32 %s, 0x20000" % sCNT)
    a.label(lp)
    a("s_waitcnt vmcnt(0)")
    a("v_readfirstlane_b32 %s, %s" % (sEPL, v(vFLG)))
    a("v_readfirstlane_b32 %s, %s" % (sEPH, v(vFLG + 1)))
    a("s_cmp_lg_u32 %s, 0" % sEPL)
    a("s_cbranch_scc1 %s" % dn)
    a("buffer_load_dwordx2 %s, %s, %s, 0 offen sc1" % (v(vFLG, 2), vZ, DBG))
    a("s_sub_u32 %s, %s, 1" % (sCNT, sCNT))
    a("s_cmp_lg_u32 %s, 0" % sCNT)
    a("s_cbranch_scc1 %s" % lp)
    a.label(dn)


hdr = open("sequential_preLN__sliding_block__dense_activation_relu__prompt.s.ref").read().split("\n")
for ln in hdr:
    if ln.startswith("; @launch"):
        a.raw("; @launch grid=(256,1,1) block=(512,1,1) lds=%d" % LDS_BYTES)
        break
    a.raw(ln)
a.raw('.amdgcn_target "amdgcn-amd-amdhsa--gfx950"')
a.raw(".text")
a.raw(".globl %s" % KNAME)
a.raw(".p2align 8")
a.raw(".type %s,@function" % KNAME)
a.raw("%s:" % KNAME)

if OPT["diag"]:
    a("s_memtime s[96:97]")
a("s_load_dwordx16 s[72:87], s[0:1], 0")
a("s_load_dwordx2 s[88:89], s[0:1], 64")
a("s_getpc_b64 s[90:91]")
a.raw("Lpc:")
a("v_and_b32 %s, 63, v0" % vL)
a("v_lshrrev_b32 %s, 6, v0" % vTMP)
a("s_lshr_b32 %s, s2, 3" % sSLOT)
a("v_readfirstlane_b32 %s, %s" % (sWAVE, vTMP))
a("v_lshlrev_b32 %s, 7, %s" % (v(vT), vL))
a("s_cmp_ge_u32 s2, 256")
a("s_cbranch_scc1 Lend")
a("s_add_u32 %s, %s, %s" % (sT0, sSLOT, sWAVE))
a("s_and_b32 %s, %s, 7" % (sT0, sT0))
a("s_lshl_b32 %s, %s, 13" % (sT0, sT0))
a("v_add_u32 %s, %s, %s" % (v(vT), sT0, v(vT)))
a("v_min_u32 %s, Lcode_end-Lpc-4, %s" % (v(vT), v(vT)))
a("v_mov_b32 %s, s91" % v(vT + 1))
a("v_add_co_u32 %s, vcc, s90, %s" % (v(vT), v(vT)))
a("v_addc_co_u32 %s, vcc, 0, %s, vcc" % (v(vT + 1), v(vT + 1)))
a("s_cmp_ge_u32 %s, 2" % sWAVE)
a("s_cbranch_scc1 Lnocp")
a("global_load_dword v26, %s, off" % v(vT, 2))
a.label("Lnocp")
a("v_and_b32 %s, 31, v0" % vL31)
a("v_bfe_u32 %s, v0, 5, 1" % vH)
a("v_and_b32 %s, 15, v0" % vR)
a("v_bfe_u32 %s, v0, 4, 2" % vQ4)
a("v_lshlrev_b32 %s, 4, %s" % (vL16, vL))
a("v_mov_b32 %s, 0" % vZ)
a("s_and_b32 %s, s2, 7" % sT0)
a("s_lshr_b32 %s, %s, 4" % (sT2, sSLOT))
a("s_lshl_b32 %s, %s, 1" % (sG, sT0))
a("s_add_u32 %s, %s, %s" % (sG, sG, sT2))
a("s_and_b32 %s, %s, 15" % (sJ, sSLOT))
a("s_lshl_b32 %s, %s, 7" % (sR0, sG))
a("s_and_b32 %s, %s, 3" % (sHW, sWAVE))
a("s_lshl_b32 %s, %s, 10" % (sHW1K, sHW))
a("s_lshl_b32 %s, %s, 12" % (sHW4K, sHW))
if OPT["rotj"]:
    a("s_mul_i32 %s, %s, 3" % (sT3, sT2))
    a("s_add_u32 %s, %s, %s" % (sROT, sJ, sT3))
    for _ in range(2):
        a("s_sub_u32 %s, %s, 7" % (sT3, sROT))
        a("s_cmp_ge_u32 %s, 7" % sROT)
        a("s_cselect_b32 %s, %s, %s" % (sROT, sT3, sROT))
else:
    a("s_lshl_b32 %s, %s, 2" % (sROT, sT2))
vX = [32, 33, 34, 35]
vW = [36, 37, 38]
a("v_lshrrev_b32 %s, 3, %s" % (v(vT), vL))
a("s_lshl_b32 %s, %s, 5" % (sT0, sHW))
a("s_add_u32 %s, %s, %s" % (sT0, sT0, sR0))
a("v_add_u32 %s, %s, %s" % (v(vT), sT0, v(vT)))
a("v_mul_u32_u24 %s, 896, %s" % (v(vT), v(vT)))
a("v_and_b32 %s, 7, %s" % (v(vT + 1), vL))
a("v_xor_b32 %s, %s, %s" % (v(vT + 1), v(vT + 1), vQ4))
a("v_xor_b32 %s, 4, %s" % (v(vT + 2), v(vT + 1)))
for ii in range(4):
    a("v_lshl_add_u32 %s, %s, 4, %s" % (v(vX[ii]), v(vT + 1 + (ii & 1)), v(vT)))
    if ii:
        a("v_add_u32 %s, %d, %s" % (v(vX[ii]), ii * 8 * 896, v(vX[ii])))
a("s_mul_i32 %s, %s, %d" % (sT0, sHW, 16 * 2688))
a("s_mul_i32 %s, %s, 192" % (sT1, sJ))
a("s_add_u32 %s, %s, %s" % (sT0, sT0, sT1))
M12 = (1 << 16) // 12 + 1
for i in range(192):
    assert (i * M12) >> 16 == i // 12
for k in range(3):
    a("v_add_u32 %s, %d, %s" % (v(vT), 64 * k, vL))
    a("v_mul_u32_u24 %s, %d, %s" % (v(vT + 1), M12, v(vT)))
    a("v_lshrrev_b32 %s, 16, %s" % (v(vT + 1), v(vT + 1)))
    a("v_mul_u32_u24 %s, %d, %s" % (v(vT + 1), 2688 - 192, v(vT + 1)))
    a("v_lshl_add_u32 %s, %s, 4, %s" % (v(vW[k]), v(vT), v(vT + 1)))
    a("v_add_u32 %s, %s, %s" % (v(vW[k]), sT0, v(vW[k])))
if OPT["warm"]:
    a("s_mul_i32 %s, %s, 14" % (sT0, sT2))
    a("s_add_u32 %s, %s, %s" % (sT0, sT0, sJ))
    a("s_lshl_b32 %s, %s, 3" % (sT0, sT0))
    a("s_add_u32 %s, %s, %s" % (sT0, sT0, sWAVE))
    if OPT["warm"] in (1, 4):
        a("v_min_u32 v39, 41, %s" % vL)
        a("v_mul_u32_u24 v39, 224, v39")
        a("v_add_u32 v39, %s, v39" % sT0)
        a("v_lshlrev_b32 v39, 7, v39")
    else:
        a("s_mul_i32 %s, %s, 42" % (sT0, sT0))
        a("v_min_u32 v39, 41, %s" % vL)
        a("v_add_u32 v39, %s, v39" % sT0)
        a("v_lshlrev_b32 v39, 7, v39")
    sum_s(sT0, [(sJ, 8), (sWAVE, 1)])
    sum_s(sT1, [(sT0, 1024), (sR0, 896)])
    a("v_and_b32 v40, 7, %s" % vL)
    a("v_lshlrev_b32 v40, 7, v40")
    a("v_add_u32 v40, %s, v40" % sT1)
    a("s_mov_b32 %s, 0" % sROT)
a("s_mov_b32 %s, %s" % (sCX, sROT))
a("s_mov_b32 %s, %s" % (sCW, sROT))
a("s_mul_i32 s92, %s, 3072" % sHW)
sizes = [1835008, 1204224, 401408, 1605632, 1605632, 1835008, 256, WS_SIZE]
srcs = [72, 74, 76, 80, 82, 84, 86, 88]
for i in range(8):
    a("s_mov_b32 s%d, %d" % (4 + 4 * i + 2, sizes[i]))
    a("s_mov_b32 s%d, 0x00020000" % (4 + 4 * i + 3))
a("s_waitcnt lgkmcnt(0)")
for i in range(8):
    a("s_mov_b64 s[%d:%d], s[%d:%d]" % (4 + 4 * i, 5 + 4 * i, srcs[i], srcs[i] + 1))
a("s_cmp_ge_u32 %s, 14" % sJ)
a("s_cbranch_scc1 Lservice")
if OPT["warm"]:
    if OPT["warm"] >= 3:
        a("buffer_load_dword v26, v40, %s, 0 offen" % X)
    a("buffer_load_dword v26, v39, %s, 0 offen" % WQKV)
a("s_cmp_lt_u32 %s, 4" % sWAVE)
a("s_cbranch_scc1 Lmfma")


def common_setup():
    a("s_lshr_b32 %s, %s, 1" % (sKH, sHW))
    a("s_and_b32 %s, %s, 1" % (sMH, sHW))
    a("s_cmp_ge_u32 %s, 7" % sJ)
    a("s_cselect_b32 %s, 1, 0" % sMH2)
    a("s_mul_i32 %s, %s, 7" % (sT3, sMH2))
    a("s_sub_u32 %s, %s, %s" % (sNB, sJ, sT3))
    a("s_min_u32 %s, %s, 6" % (sNB, sNB))
    a("s_getreg_b32 %s, hwreg(HW_REG_XCC_ID)" % sXCC)
    a("s_and_b32 %s, %s, 7" % (sXCC, sXCC))
    a("s_mov_b32 s50, 0")
    a("s_mov_b32 s51, -1")
    a("s_mov_b32 s52, -1")
    a("s_mov_b32 s53, 0xffff")
    a("s_mov_b32 s54, 0")
    a("s_mov_b32 s55, 0xffff0000")
    a("s_mov_b32 %s, 0" % sFAST)
    a("s_mov_b32 %s, 0" % sEPL)
    a("s_mov_b32 %s, 0" % sEPH)
    if OPT["stamps"]:
        sum_s(sTSOFF, [("s2", 2048), (sWAVE, 256)], WS_TS)
    sum_s(sTILE, [(sG, 4), (sMH2, 2), (sMH, 1)])
    sum_s(sXO, [(sTILE, 32 * 896), (sNB, 128), (sKH, 64)])
    sum_s(sTILE4, [(sG, 4), (sHW, 1)])
    a("s_and_b32 %s, %s, 1" % (sT0, sG))
    sum_s(sRU, [(sT0, 4), (sMH2, 2), (sNB, 1)])
    a("v_mul_u32_u24 %s, 896, %s" % (vXOFF, vL31))
    a("v_lshl_add_u32 %s, %s, 3, %s" % (vXOFF, vH, vXOFF))
    a("v_lshlrev_b32 %s, 7, %s" % (v(HP + 8), vL))
    a("v_lshrrev_b32 %s, 3, %s" % (v(vT), vL))
    a("v_mul_u32_u24 %s, 896, %s" % (v(vT), v(vT)))
    a("v_bfe_u32 %s, %s, 4, 1" % (v(vT + 1), vL))
    a("v_lshlrev_b32 %s, 2, %s" % (v(vT + 1), v(vT + 1)))
    a("v_and_b32 %s, 7, %s" % (v(vT + 2), vL))
    a("v_xor_b32 %s, %s, %s" % (v(vT + 1), v(vT + 1), v(vT + 2)))
    a("v_lshl_add_u32 %s, %s, 4, %s" % (v(HP), v(vT + 1), v(vT)))
    a("s_lshl_b32 %s, %s, 7" % (sT0, sNB))
    a("v_add_u32 %s, %s, %s" % (v(HP), sT0, v(HP)))
    a("s_mul_i32 %s, %s, 224" % (sT0, sJ))
    for k in range(7):
        a("v_add_u32 %s, %d, %s" % (v(vT), 64 * k, vL))
        a("v_mul_u32_u24 %s, %d, %s" % (v(vT + 1), (1 << 16) // 14 + 1, v(vT)))
        a("v_lshrrev_b32 %s, 16, %s" % (v(vT + 1), v(vT + 1)))
        a("v_mul_u32_u24 %s, %d, %s" % (v(vT + 1), 3584 - 224, v(vT + 1)))
        a("v_lshl_add_u32 %s, %s, 4, %s" % (v(HP + 1 + k), v(vT), v(vT + 1)))
        a("v_add_u32 %s, %s, %s" % (v(HP + 1 + k), sT0, v(HP + 1 + k)))


for i in range(448):
    assert (i * ((1 << 16) // 14 + 1)) >> 16 == i // 14
vWO = v(HP)
vW1 = [HP + 1 + k for k in range(7)]
vTCH = v(HP + 8)


def tr_base_192(dst, t0):
    a("v_lshrrev_b32 %s, 2, %s" % (t0, vR))
    a("v_lshl_add_u32 %s, %s, 3, %s" % (t0, vH, t0))
    a("v_mul_u32_u24 %s, 192, %s" % (dst, t0))
    a("v_bfe_u32 %s, %s, 4, 1" % (t0, vL))
    a("v_lshl_add_u32 %s, %s, 5, %s" % (dst, t0, dst))
    a("v_and_b32 %s, 3, %s" % (t0, vL))
    a("v_lshl_add_u32 %s, %s, 3, %s" % (dst, t0, dst))


assert lds_conflicts([(8 * (l >> 5) + ((l & 15) >> 2)) * 192 + ((l >> 4) & 1) * 32 + (l & 3) * 8 for l in range(64)], "tr") == 0


def w1_block(base):
    a("s_add_u32 %s, %s, %d" % (sT0, sHW, base))
    a("s_mul_i32 %s, %s, %d" % (sT1, sT0, 32 * 3584))
    a("s_mul_i32 %s, %s, 7168" % (sT2, sHW))
    ldsb = base * 7168 if base < 12 else L_W1U + (base - 12) * 7168
    for k in range(7):
        dma(v(vW1[k]), W1, sT1, sT2, ldsb + k * 1024)


def touch_lines(srd, s_base, n, sc1=False):
    cnt = 0
    done = 0
    while done < n:
        k = min(64, n - done)
        if k < 64:
            a("v_min_u32 %s, %d, %s" % (v(vT), (k - 1) * 128, vTCH))
            vo = v(vT)
        else:
            vo = vTCH
        nt = (srd == WS and OPT["nt"] & 8) or (srd != WS and OPT["nt"] & 4)
        a("buffer_load_dword v26, %s, %s, %s offen%s%s" % (vo, srd, s_base, " sc1" if sc1 else "", " nt" if nt else ""))
        cnt += 1
        done += k
        if done < n:
            a("s_add_u32 %s, %s, %d" % (s_base, s_base, 64 * 128))
    return cnt


def touch_range(srd, base, total):
    if OPT["nobg"]:
        return 0
    per = total // 128 // 128
    assert per * 128 * 128 == total, (total, per)
    sum_s(sT0, [(sSLOT, 4 * per * 128), (sHW, per * 128)], base)
    return touch_lines(srd, sT0, per)


def wo_dma():
    a("s_mul_i32 %s, %s, %d" % (sT0, sHW, 8 * 896))
    for k in range(15):
        if k == 14:
            a("s_mov_b32 %s, %d" % (sT0, 56 * 8 * 896))
            dma(vWO, WO, sT0, None, L_WO + 56 * 1024)
        else:
            dma(vWO, WO, sT0, sHW1K, L_WO + k * 4096)
            a("s_add_u32 %s, %s, %d" % (sT0, sT0, 32 * 896))


def bg(slot):
    n = 0
    for it in [x for x in OPT[slot].split("+") if x]:
        if it == "wo":
            wo_dma(); n += 15
        elif it == "w18":
            w1_block(8); n += 7
        elif it == "w10":
            w1_block(0); n += 7
        elif it == "w14":
            w1_block(4); n += 7
        elif it == "tw1":
            n += touch_range(W1, 0, 256 * 3584)
        elif it == "tw1u":
            n += touch_range(W1, 384 * 3584, 64 * 3584)
        elif it == "tw1a":
            n += touch_range(W1, 0, 1605632)
        elif it == "two":
            n += touch_range(WO, 0, 393216)
        elif it == "tw2":
            n += touch_range(W2, 0, 1605632)
        elif it == "tw2a":
            n += touch_range(W2, 0, 802816)
        elif it == "tw2b":
            n += touch_range(W2, 802816, 802816)
        elif it == "tw2r":
            n += touch_range(W2, 393216, 1605632 - 393216 - 0 * 16384) if False else touch_range(W2, 393216, 1212416)
        elif it == "w2a":
            pass
        else:
            raise ValueError(it)
    return n


def vpad_prefill():
    a("v_mov_b32 %s, 0x3f80" % v(vT + 2))
    a("v_mov_b32 %s, 0" % v(vT + 3))
    a("s_mul_i32 %s, %s, %d" % (sT0, sHW, 3 * 4096))
    a("v_lshlrev_b32 %s, 3, %s" % (v(vT), vL31))
    a("v_lshl_add_u32 %s, %s, 12, %s" % (v(vT), vH, v(vT)))
    a("v_add_u32 %s, %s, %s" % (v(vT), sT0, v(vT)))
    a("ds_write_b64 %s, %s offset:%d" % (v(vT), v(vT + 2, 2), L_KV + 2048 + 1792))
    a("ds_write_b64 %s, %s offset:%d" % (v(vT), v(vT + 2, 2), L_KV + 4096 + 2048 + 1792))


sFA, sFB, sFC, sFD = "s84", "s85", "s86", "s87"
vIF = 236


def fetch_setup():
    a("v_lshrrev_b32 %s, 3, %s" % (v(vT), vL))
    a("v_min_u32 %s, 2, %s" % (v(vT), v(vT)))
    a("v_bfe_u32 %s, %s, 1, 2" % (v(vT + 1), vL))
    a("v_min_u32 %s, 2, %s" % (v(vT + 1), v(vT + 1)))
    a("v_cmp_gt_u32 vcc, 2, %s" % v(vT))
    a("v_max_u32 %s, 1, %s" % (v(vT + 2), v(vT + 1)))
    a("v_cndmask_b32 %s, %s, %s, vcc" % (v(vT + 1), v(vT + 1), v(vT + 2)))
    a("v_mul_u32_u24 %s, 448, %s" % (v(vT + 1), v(vT + 1)))
    a("v_and_b32 %s, 1, %s" % (v(vT + 2), vL))
    a("v_mul_u32_u24 %s, 31, %s" % (v(vT + 2), v(vT + 2)))
    a("s_mul_i32 %s, %s, 7" % (sT0, sJ))
    a("s_lshr_b32 %s, %s, 1" % (sE, sT0))
    a("s_lshl_b32 %s, %s, 3" % (sT0, sE))
    a("v_add3_u32 %s, %s, %s, %s" % (v(vT + 1), v(vT + 1), v(vT + 2), sT0))
    M96 = (1 << 18) // 96 + 1
    for i in range(1348):
        assert (i * M96) >> 18 == i // 96
    a("v_mul_u32_u24 %s, %d, %s" % (v(vT + 1), M96, v(vT + 1)))
    a("v_lshrrev_b32 %s, 18, %s" % (v(vT + 1), v(vT + 1)))
    a("v_min_u32 %s, 13, %s" % (v(vT + 1), v(vT + 1)))
    a("v_add_u32 %s, %s, %s" % (v(vT + 2), sG, v(vT)))
    a("v_cmp_gt_u32 vcc, 2, %s" % v(vT + 2))
    a("v_subrev_u32 %s, 2, %s" % (v(vT + 2), v(vT + 2)))
    a("v_mov_b32 %s, %s" % (v(vT + 3), sG))
    a("v_cndmask_b32 %s, %s, %s, vcc" % (v(vT + 2), v(vT + 2), v(vT + 3)))
    a("v_lshlrev_b32 %s, 9, %s" % (v(vT + 2), v(vT + 2)))
    a("v_lshl_add_u32 %s, %s, 3, %s" % (v(vT + 2), v(vT + 1), v(vT + 2)))
    sum_s(sT0, [(sHW, 128)], WS_F1)
    a("v_add_u32 v27, %s, %s" % (sT0, v(vT + 2)))
    sum_s(sFC, [(sTILE4, QT), (sE, 512)], WS_QKV)
    a("s_sub_u32 %s, %s, %d" % (sFB, sFC, 4 * QT))
    a("s_sub_u32 %s, %s, %d" % (sFA, sFC, 8 * QT))
    a("s_cmp_lt_u32 %s, 1" % sG)
    a("s_cselect_b32 %s, 0x40000000, %s" % (sFB, sFB))
    a("s_cmp_lt_u32 %s, 2" % sG)
    a("s_cselect_b32 %s, 0x40000000, %s" % (sFA, sFA))
    a("s_lshl_b32 %s, %s, 11" % (sFD, sHW))


SC, KB, QF, M0R, M16R, PF, VB, OA = 32, 100, 124, 128, 132, 136, 148, 172
LS, ONE4 = 196, 200
vKA = [180, 181]
vVA = [184, 185]
vQA = "v186"
vNEG, vGFA, vGF, vOA = "v188", "v189", 190, "v192"
sFQ, sFO = "s[80:81]", "s[82:83]"


def p2_setup():
    a("s_mul_i32 %s, %s, 7" % (sT4, sJ))
    a("s_lshr_b32 %s, %s, 1" % (sT4, sT4))
    a("v_add_u32 %s, %s, %s" % (v(vT + 3), sT4, vQ4))
    a("v_and_b32 %s, 1, %s" % (v(vT + 3), v(vT + 3)))
    a("v_mul_u32_u24 %s, 12, %s" % (v(vT + 3), v(vT + 3)))
    a("v_bfe_u32 %s, %s, 1, 1" % (v(vT + 4), vR))
    a("v_add_u32 %s, %s, %s" % (v(vT + 5), sT4, v(vT + 4)))
    a("v_and_b32 %s, 1, %s" % (v(vT + 5), v(vT + 5)))
    a("v_mul_u32_u24 %s, 12, %s" % (v(vT + 5), v(vT + 5)))
    for par in range(2):
        a("s_add_u32 %s, %s, %d" % (sT0, sWAVE, par))
        a("s_lshr_b32 %s, %s, 1" % (sT1, sT0))
        a("s_lshl_b32 %s, %s, 12" % (sT1, sT1))
        a("s_and_b32 %s, %s, 1" % (sT0, sT0))
        a("s_lshl_b32 %s, %s, 4" % (sT0, sT0))
        a("v_add_u32 %s, %s, %s" % (v(vT), sT0, vR))
        a("v_xor_b32 %s, %s, %s" % (v(vT), v(vT), v(vT + 3)))
        a("v_lshlrev_b32 %s, 4, %s" % (v(vT), v(vT)))
        a("v_lshl_add_u32 %s, %s, 9, %s" % (v(vT), vQ4, v(vT)))
        a("v_add_u32 %s, %s, %s" % (v(vKA[par]), sT1, v(vT)))
        if par == 0:
            a("s_lshr_b32 %s, %s, 1" % (sT2, sT1))
            a("s_add_u32 %s, %s, %d" % (sT2, sT2, L_Q))
            a("v_add_u32 %s, %s, %s" % (vQA, sT2, v(vT)))
        a("v_lshrrev_b32 %s, 2, %s" % (v(vT), vR))
        a("v_lshl_add_u32 %s, %s, 2, %s" % (v(vT), vQ4, v(vT)))
        a("v_add_u32 %s, %s, %s" % (v(vT), sT0, v(vT)))
        a("v_xor_b32 %s, %s, %s" % (v(vT), v(vT), v(vT + 5)))
        a("v_lshlrev_b32 %s, 4, %s" % (v(vT), v(vT)))
        a("v_lshl_add_u32 %s, %s, 9, %s" % (v(vT), v(vT + 4), v(vT)))
        a("v_and_b32 %s, 1, %s" % (v(vT + 1), vR))
        a("v_lshl_add_u32 %s, %s, 3, %s" % (v(vT), v(vT + 1), v(vT)))
        a("v_add_u32 %s, %s, %s" % (v(vVA[par]), sT1, v(vT)))
    for o_ in range(2):
        for half in range(2):
            assert lds_conflicts([(l >> 4) * 512 + (((16 * half + (l & 15)) ^ (12 * ((o_ + (l >> 4)) & 1))) * 16) for l in range(64)], "b128") == 0
            assert lds_conflicts([((l >> 1) & 1) * 512 + (((16 * half + 4 * (l >> 4) + ((l & 15) >> 2)) ^ (12 * ((o_ + ((l >> 1) & 1)) & 1))) * 16) + (l & 1) * 8 for l in range(64)], "tr") == 0
    a("s_and_b32 %s, %s, 1" % (sT0, sJ))
    a("s_cmp_eq_u32 %s, 0" % sT0)
    a("s_cselect_b32 s80, 0, 0xffff")
    a("s_mov_b32 s81, 0")
    a("s_mov_b32 s82, 0")
    a("s_cselect_b32 s83, 0xffff0000, 0")
    for k in range(4):
        a("v_mov_b32 %s, 0x3f803f80" % v(ONE4 + k))
    a("v_mov_b32 %s, 0xf149f2ca" % vNEG)
    a("v_lshlrev_b32 %s, 2, %s" % (v(vT), vQ4))
    a("v_sub_u32 %s, %s, %s" % (v(vT), v(vT), vR))
    for c in range(4):
        a("v_cmp_lt_i32 vcc, %d, %s" % (-c, v(vT)))
        a("v_cndmask_b32 %s, %s, %s, vcc" % (v(M0R + c), vNEG, vZ))
        a("v_cndmask_b32 %s, %s, %s, vcc" % (v(M16R + c), vZ, vNEG))
    sum_s(sT0, [(sG, 512)], WS_F1)
    a("v_lshlrev_b32 %s, 3, %s" % (vGFA, vR))
    a("v_add_u32 %s, %s, %s" % (vGFA, sT0, vGFA))
    a("s_lshr_b32 %s, %s, 1" % (sT1, sWAVE))
    a("s_and_b32 %s, %s, 1" % (sT2, sWAVE))
    sum_s(sE, [(sG, 131072), (sT1, 32768), (sJ, 2048), (sT2, 256)], WS_O)
    sum_s(sF, [(sG, 1024), (sWAVE, 128), (sJ, 8)], WS_F2)
    a("v_lshlrev_b32 %s, 9, %s" % (vOA, vQ4))
    a("v_lshl_add_u32 %s, %s, 4, %s" % (vOA, vR, vOA))
    a("v_mov_b32 %s, 0" % v(PF + 8 + 2))
    a("v_mov_b32 %s, 0" % v(PF + 8 + 3))




def adv(s):
    a("s_add_u32 %s, %s, 1" % (s, s))
    a("s_cmp_eq_u32 %s, 7" % s)
    a("s_cselect_b32 %s, 0, %s" % (s, s))


def issue_w(c):
    a("s_mul_i32 %s, %s, %d" % (sT1, sCW, 64 * 2688))
    for k in range(3):
        dma(v(vW[k]), WQKV, sT1, "s92", c * 12288 + k * 1024)
    adv(sCW)


def issue_x(c):
    a("s_lshl_b32 %s, %s, 7" % (sT0, sCX))
    for ii in range(4):
        dma(v(vX[ii]), X, sT0, sHW4K, L_XR + (c % 4) * 16384 + ii * 1024)
    adv(sCX)


GW = [{0: [0, 1], 1: [2, 3], 2: [4], 3: [5], 4: [6], 5: [], 6: []},
      {0: [0], 1: [1], 2: [2, 3], 3: [4, 5], 4: [6], 5: [], 6: []},
      {0: [0], 1: [1, 2], 2: [3, 4], 3: [5], 4: [6], 5: [], 6: []}][OPT["gw"]]


def issue_group(c):
    ws = list(GW[c])
    while ws and (ws[0] <= c or (OPT["gw"] == 0 and c <= 1)):
        issue_w(ws.pop(0))
    issue_x(c)
    for w_ in ws:
        issue_w(w_)
    return 4 + 3 * len(GW[c])


if OPT["warm"]:
    common_setup()
    a("s_waitcnt vmcnt(0)")
if OPT["diag"]:
    a("s_memtime s[98:99]")
    issue_w(0)
    a("s_waitcnt vmcnt(0)")
    a("s_memtime s[100:101]")
    a("s_mov_b32 %s, %s" % (sCW, sROT))
groups = [issue_group(0), issue_group(1)]
if not OPT["warm"]:
    common_setup()
if OPT["diag"]:
    a("s_waitcnt lgkmcnt(0)")
    for nm, r_ in (("d_entry", 96), ("d_karg", 98), ("d_first", 100)):
        idx = STAMPS.setdefault("t0", 0)
        idx = STAMPS.setdefault(nm, len(STAMPS))
        a("v_mov_b32 v30, s%d" % r_)
        a("v_mov_b32 v31, s%d" % (r_ + 1))
        a("s_mov_b64 exec, 1")
        a("buffer_store_dwordx2 v[30:31], %s, %s, %s offen offset:%d" % (vZ, WS, sTSOFF, idx * 8))
        a("s_mov_b64 exec, -1")
    groups[-1] += 3
stamp("t0")
stamp("rt_start")
hCS = [48, 49, 50, 51, 52, 53]
hWA, hWA2 = "v54", "v55"
HBW = 60
hST = 76
for r_ in hCS:
    a("v_mov_b32 %s, 0" % v(r_))
tr_base_192(hWA, v(vT))
a("v_add_u32 %s, s92, %s" % (hWA, hWA))
a("v_add_u32 %s, %d, %s" % (hWA2, 5 * 12288, hWA))
a("v_lshlrev_b32 v56, 4, %s" % vL31)
a("v_mov_b32 v57, 0x3f803f80")
sum_s(sA, [(sTILE4, 512)], WS_ST)


def colsum_w(c):
    if OPT["dry"] & 1:
        return
    base, off = (hWA2, (c - 5) * 12288) if c >= 5 else (hWA, c * 12288)
    for p3 in range(3):
        for hh in range(2):
            a("ds_read_b64_tr_b16 %s, %s offset:%d" % (v(HBW + 4 * p3 + 2 * hh, 2), base, off + p3 * 64 + hh * 768))
    a("s_waitcnt lgkmcnt(0)")
    for i in range(4):
        for p3 in range(3):
            a("v_dot2c_f32_bf16 %s, %s, v57" % (v(hCS[2 * p3]), v(HBW + 4 * p3 + i)))


for c in range(7):
    after = sum(groups[c + 1:])
    if c == 6:
        a("v_mov_b32 %s, %d" % (v(vT), L_EP))
        a("ds_read_b64 %s, %s" % (v(vFLG, 2), v(vT)))
        a("s_waitcnt lgkmcnt(0)")
        a("v_readfirstlane_b32 %s, %s" % (sEPL, v(vFLG)))
        a("v_readfirstlane_b32 %s, %s" % (sEPH, v(vFLG + 1)))
        a("v_or_b32 %s, %s, %s" % (v(vFLG), sXCC, v(vFLG)))
        a("s_mov_b32 %s, 0x20000" % sCNT)
        a("s_waitcnt vmcnt(%d)" % sum(groups[8:]))
        a.label("Lst_loop")
        a("v_cmp_ne_u32 vcc, %s, %s" % (sEPL, v(hST + 1)))
        a("v_cmp_ne_u32 s[94:95], %s, %s" % (sEPH, v(hST + 3)))
        a("s_or_b64 vcc, vcc, s[94:95]")
        a("s_cbranch_scc0 Lst_ok")
        a("buffer_load_dwordx4 %s, v56, %s, %s offen sc1" % (v(hST, 4), WS, sA))
        a("s_sub_u32 %s, %s, 1" % (sCNT, sCNT))
        a("s_waitcnt vmcnt(0)")
        a("s_cmp_lg_u32 %s, 0" % sCNT)
        a("s_cbranch_scc1 Lst_loop")
        a.label("Lst_ok")
        sum_s(sT0, [(sHW, 256)], L_ST)
        a("v_lshl_add_u32 %s, %s, 2, %s" % (v(vT), vL31, sT0))
        a("ds_write_b32 %s, %s" % (v(vT), v(hST)))
        a("ds_write_b32 %s, %s offset:128" % (v(vT), v(hST + 2)))
        a("s_waitcnt lgkmcnt(0)")
    else:
        a("s_waitcnt vmcnt(%d)" % after)
    a("s_barrier")
    stamp("h_b%d" % c)
    if c == 0:
        groups.append(issue_group(2))
    if c + 3 <= 6:
        groups.append(issue_group(c + 3))
    if c == 3:
        a("buffer_load_dwordx4 %s, v56, %s, %s offen sc1" % (v(hST, 4), WS, sA))
        groups.append(1)
    if c == 3 and OPT["hpt"] and not OPT["ohsc"]:
        sum_s(sT0, [(sG, 114688), (sJ, 8192), (sHW, 2048)], WS_H)
        groups.append(touch_lines(WS, sT0, 16, sc1=True))
    if c == 3 and OPT["P3"]:
        groups.append(bg("P3"))
    if c == OPT["pt_c"] and OPT["pt_h1"] == 3:
        sum_s(sT0, [(sG, 448 * 1024), (sJ, 32 * 1024), (sHW, 8192)], WS_H1)
        groups.append(touch_lines(WS, sT0, 64, sc1=True))
    for w_ in GW[c]:
        colsum_w(w_)
    if c == 4:
        for p3 in range(3):
            a("v_add_f32 %s, %s, %s" % (v(hCS[2 * p3]), v(hCS[2 * p3]), v(hCS[2 * p3 + 1])))
            xhalf_sum(v(hCS[2 * p3]), v(vT))
        sum_s(sT0, [(sHW, 384)], L_CSP)
        a("v_lshl_add_u32 %s, %s, 2, %s" % (v(vT), vL31, sT0))
        for p3 in range(3):
            a("ds_write_b32 %s, %s offset:%d" % (v(vT), v(hCS[2 * p3]), 128 * p3))
        a("s_waitcnt lgkmcnt(0)")
    if c == 5:
        a("s_min_u32 %s, %s, 2" % (sT0, sHW))
        a("s_lshl_b32 %s, %s, 7" % (sT0, sT0))
        a("s_add_u32 %s, %s, %d" % (sT1, sT0, L_CSP))
        a("v_lshl_add_u32 %s, %s, 2, %s" % (v(vT + 4), vL31, sT1))
        a("s_add_u32 %s, %s, %d" % (sT1, sT0, L_CS))
        a("v_lshl_add_u32 %s, %s, 2, %s" % (v(vT + 5), vL31, sT1))
        for k in range(4):
            a("ds_read_b32 %s, %s offset:%d" % (v(HBW + k), v(vT + 4), 384 * k))
        a("s_waitcnt lgkmcnt(0)")
        a("v_add_f32 %s, %s, %s" % (v(HBW), v(HBW), v(HBW + 1)))
        a("v_add_f32 %s, %s, %s" % (v(HBW + 2), v(HBW + 2), v(HBW + 3)))
        a("v_add_f32 %s, %s, %s" % (v(HBW), v(HBW), v(HBW + 2)))
        a("ds_write_b32 %s, %s" % (v(vT + 5), v(HBW)))
a("s_barrier")
bg("A")
stamp("h_wo")
a("s_branch Lp2")

a.label("Lservice")
a("s_sub_u32 %s, %s, 14" % (sT0, sJ))
sum_s(sT1, [(sT0, 64), (sWAVE, 8), (sR0, 1)])
a("s_mul_i32 %s, %s, 896" % (sT2, sT1))
a("v_lshrrev_b32 %s, 3, %s" % (v(vT), vL))
a("v_mul_u32_u24 %s, 896, %s" % (v(40), v(vT)))
a("v_and_b32 %s, 7, %s" % (v(vT + 1), vL))
a("v_lshl_add_u32 %s, %s, 4, %s" % (v(40), v(vT + 1), v(40)))
SX = 44
for i in range(7):
    a("buffer_load_dwordx4 %s, v40, %s, %s offen offset:%d%s" % (v(SX + 4 * i, 4), X, sT2, 128 * i, " nt" if OPT["nt"] & 1 else ""))
a("buffer_load_dwordx2 %s, %s, %s, 0 offen sc1" % (v(vFLG, 2), vZ, DBG))
a("s_lshl_b32 %s, %s, 4" % (sA, sT1))
a("s_add_u32 %s, %s, %d" % (sA, sA, WS_ST))
a("v_lshlrev_b32 v41, 4, %s" % v(vT))
common_setup()
stamp("t0")
stamp("rt_start")
a("v_mov_b32 v42, 0")
a("v_mov_b32 v43, 0")
a("v_mov_b32 v39, 0x3f803f80")
a("s_waitcnt vmcnt(1)")
for i in range(28):
    a("v_dot2c_f32_bf16 v42, %s, v39" % v(SX + i))
    a("v_dot2c_f32_bf16 v43, %s, %s" % (v(SX + i), v(SX + i)))
for sw in (0x041F, 0x081F, 0x101F):
    a("ds_swizzle_b32 %s, v42 offset:0x%x" % (v(vT + 2), sw))
    a("ds_swizzle_b32 %s, v43 offset:0x%x" % (v(vT + 3), sw))
    a("s_waitcnt lgkmcnt(0)")
    a("v_add_f32 v42, v42, %s" % v(vT + 2))
    a("v_add_f32 v43, v43, %s" % v(vT + 3))
ln_finish("v42", "v43", v(SX), v(SX + 2), v(vT + 2))
get_epoch_spin("svc")
a("v_mov_b32 %s, %s" % (v(SX + 1), sEPL))
a("v_mov_b32 %s, %s" % (v(SX + 3), sEPH))
a("v_or_b32 %s, %s, %s" % (v(vFLG), sXCC, v(vFLG)))
a("buffer_store_dwordx4 %s, v41, %s, %s offen sc1" % (v(SX, 4), WS, sA))
sum_s(sT0, [(sG, 512), (sJ, 8)], WS_F1)
flag_store(sT0, " sc1")
stamp("svc_st")
a("s_waitcnt vmcnt(0)")
a("s_barrier")
a("s_sub_u32 %s, %s, 14" % (sT0, sJ))
sum_s(sT4, [(sT0, 8), (sWAVE, 1)])
if not OPT["ohsc"]:
    sum_s(sT1, [(sG, 131072), (sT4, 8192)], WS_O)
    touch_lines(WS, sT1, 64, sc1=True)
    if not OPT["hpt"]:
        sum_s(sT1, [(sG, 114688), (sT4, 7168)], WS_H)
        touch_lines(WS, sT1, 56, sc1=True)
    sum_s(sT1, [(sG, 16384), (sT4, 1024)], WS_HS)
    touch_lines(WS, sT1, 8, sc1=True)
sum_s(sT1, [(sG, 1024)], WS_F2)
touch_lines(WS, sT1, 8, sc1=True)
sum_s(sT1, [(sG, 512)], WS_F3)
touch_lines(WS, sT1, 4, sc1=True)
sum_s(sT1, [(sG, 512)], WS_F4)
touch_lines(WS, sT1, 4, sc1=True)
a("s_and_b32 %s, %s, 1" % (sT0, sG))
sum_s(sT3, [(sT0, 16), (sT4, 1)])
for it in [x for x in OPT["svc"].split("+") if x]:
    srd, base, total = {"wo": (WO, 0, 401408), "w2q": (W2, 0, 401408), "w2q2": (W2, 401408, 401408), "w1q": (W1, 0, 401408)}[it]
    per = total // 128 // 32
    sum_s(sT1, [(sT3, per * 128)], base)
    touch_lines(srd, sT1, per)
if OPT["pt_h1"] == 2:
    sum_s(sT1, [(sG, 448 * 1024), (sT4, 28 * 1024)], WS_H1)
    touch_lines(WS, sT1, 224, sc1=True)
fetch_setup()
a("s_cmp_lt_u32 %s, 4" % sWAVE)
a("s_cbranch_scc1 Lfetch")
if "w18" in OPT["A"]:
    w1_block(8)
a("s_branch Lp2")

a.label("Lmfma")
a("s_or_b32 %s, s2, %s" % (sT0, sWAVE))
a("s_cmp_lg_u32 %s, 0" % sT0)
a("s_cbranch_scc1 Lnoep")
a("s_memrealtime s[94:95]")
a("s_waitcnt lgkmcnt(0)")
a("s_lshl_b32 %s, s94, 4" % sT1)
a("s_or_b32 %s, %s, 8" % (sT1, sT1))
a("s_mul_i32 %s, s94, 0x9e3779b1" % sT2)
a("s_add_u32 %s, %s, s95" % (sT2, sT2))
a("v_mov_b32 %s, %s" % (v(vT), sT1))
a("v_mov_b32 %s, %s" % (v(vT + 1), sT2))
a("s_mov_b64 exec, 1")
a("buffer_store_dwordx2 %s, %s, %s, 0 offen sc1" % (v(vT, 2), vZ, DBG))
a("s_mov_b64 exec, -1")
a.label("Lnoep")
if OPT["tlb"]:
    a("s_cmp_lg_u32 %s, 3" % sWAVE)
    a("s_cbranch_scc1 Lnotlb")
    a("v_min_u32 %s, 18, %s" % (v(vT), vL))
    a("v_lshlrev_b32 %s, 20, %s" % (v(vT), v(vT)))
    a("buffer_load_dword v26, %s, %s, 0 offen" % (v(vT), WS))
    a("v_min_u32 %s, 1, %s" % (v(vT), vL))
    a("v_lshlrev_b32 %s, 20, %s" % (v(vT), v(vT)))
    for srd in (OUT, W1, W2):
        a("buffer_load_dword v26, %s, %s, 0 offen" % (v(vT), srd))
    a("buffer_load_dword v26, %s, %s, 0 offen" % (vZ, WO))
    a.label("Lnotlb")
common_setup()
stamp("t0")
stamp("rt_start")
ACC = 32
FB = 80
vXA = [148, 149, 150, 151]
vWA, vWA2 = "v152", "v153"
vSA, vCA = "v154", "v155"
vQo = ["v156", "v157"]
CS = 160
PK = 208
vNM, vRS = 232, 234
a("v_bfe_u32 %s, %s, 1, 3" % (v(vT), vL31))
a("v_xor_b32 %s, %s, %s" % (v(vT), v(vT), vH))
a("v_lshlrev_b32 %s, 7, %s" % (v(vT + 1), vL31))
a("v_add_u32 %s, %s, %s" % (v(vT + 1), sHW4K, v(vT + 1)))
a("v_add_u32 %s, %d, %s" % (v(vT + 1), L_XR, v(vT + 1)))
for s in range(4):
    a("v_xor_b32 %s, %d, %s" % (v(vT + 2), 2 * s, v(vT)))
    a("v_lshl_add_u32 %s, %s, 4, %s" % (v(vXA[s]), v(vT + 2), v(vT + 1)))
    assert lds_conflicts([(l & 31) * 128 + (((2 * s + (l >> 5)) ^ (((l & 31) >> 1) & 7)) * 16) for l in range(64)], "b128") == 0
tr_base_192(vWA, v(vT))
a("v_add_u32 %s, %d, %s" % (vWA2, 5 * 12288, vWA))
sum_s(sT0, [(sHW, 256)], L_ST)
a("v_lshl_add_u32 %s, %s, 2, %s" % (vSA, vL31, sT0))
a("v_lshlrev_b32 %s, 4, %s" % (vCA, vH))
a("v_add_u32 %s, %d, %s" % (vCA, L_CS, vCA))
a("v_mul_u32_u24 %s, 12, %s" % (v(vT), vH))
a("v_xor_b32 %s, %s, %s" % (v(vT), v(vT), vL))
a("v_lshlrev_b32 %s, 4, %s" % (vQo[0], v(vT)))
sum_s(sA, [(sTILE4, QT), (sJ, 12 * 512)], WS_QKV)
a("s_add_u32 %s, %s, 4096" % (sC, sA))
sum_s(sD, [(sTILE4, 128), (sJ, 8)], WS_F1)


vXRA = [238, 239, 158, 159]
sXIT = "s89"
if OPT["xl"]:
    sum_s(sT0, [(sMH2, 64 * 128), (sMH, 32 * 128)], L_XR)
    a("v_lshlrev_b32 %s, 7, %s" % (v(vT), vL31))
    a("v_lshl_add_u32 %s, %s, 3, %s" % (v(vT), vH, v(vT)))
    a("v_add_u32 %s, %s, %s" % (v(vT), sT0, v(vT)))
    a("v_bfe_u32 %s, %s, 1, 3" % (v(vT + 1), vL31))
    a("s_lshl_b32 %s, %s, 2" % (sT0, sKH))
    a("v_xor_b32 %s, %s, %s" % (v(vT + 1), sT0, v(vT + 1)))
    for jj in range(4):
        a("v_xor_b32 %s, %d, %s" % (v(vT + 2), jj, v(vT + 1)))
        a("v_lshl_add_u32 %s, %s, 4, %s" % (v(vXRA[jj]), v(vT + 2), v(vT)))
    a("s_add_u32 %s, %s, 7" % (sXIT, sNB))
    a("s_sub_u32 %s, %s, %s" % (sXIT, sXIT, sROT))
    a("s_sub_u32 %s, %s, 7" % (sT0, sXIT))
    a("s_cmp_ge_u32 %s, 7" % sXIT)
    a("s_cselect_b32 %s, %s, %s" % (sXIT, sT0, sXIT))


def xres_read(c):
    if not OPT["xl"]:
        return
    lab = a.newlabel("Lnoxr")
    a("s_cmp_lg_u32 %s, %d" % (sXIT, c))
    a("s_cbranch_scc1 %s" % lab)
    for jj in range(4):
        a("ds_read_b64 %s, %s offset:%d" % (v(vXRES + 2 * jj, 2), v(vXRA[jj]), (c % 4) * 16384))
    a.label(lab)


def p1_reads(c, s):
    if OPT["dry"] & 2:
        return
    fb = FB + 16 * s
    a("ds_read_b128 %s, %s offset:%d" % (v(fb, 4), v(vXA[s]), (c % 4) * 16384))
    base, off = (vWA2, (c - 5) * 12288) if c >= 5 else (vWA, c * 12288)
    for p3 in range(3):
        for hh in range(2):
            a("ds_read_b64_tr_b16 %s, %s offset:%d" % (v(fb + 4 + 4 * p3 + 2 * hh, 2), base, off + p3 * 64 + s * 3072 + hh * 768))


def p1_mfma(c, s, fill=None):
    if OPT["dry"] & 2:
        return
    fb = FB + 16 * s
    first = (c == 0 and s == 0)
    for p3 in range(3):
        acc = v(ACC + 16 * p3, 16)
        a("v_mfma_f32_32x32x16_bf16 %s, %s, %s, %s" % (acc, v(fb + 4 + 4 * p3, 4), v(fb, 4), "0" if first else acc))
        if fill:
            for _ in range(6):
                if fill:
                    a(fill.pop(0))


for k in range(4):
    a("v_mov_b32 %s, -1" % v(PK + k))
def sentinel_init():
    for i in range(6 if OPT["sent"] else 0):
        a("buffer_store_dwordx4 %s, %s, %s, %s offen offset:%d sc1" % (v(PK, 4), vL16, WS, sA if i < 4 else sC, 1024 * (i % 4)))
    a("buffer_load_dwordx2 %s, %s, %s, 0 offen sc1" % (v(vFLG, 2), vZ, DBG))


if OPT["ic"] < 0:
    sentinel_init()
fetch_setup()
a("s_barrier")
stamp("m_b0")
p1_reads(0, 0)
p1_reads(0, 1)
for c in range(7):
    fill = []
    if c == 1 and not OPT["xl"]:
        for jj in range(4):
            a("buffer_load_dwordx2 %s, %s, %s, %s offen offset:%d" % (v(vXRES + 2 * jj, 2), vXOFF, X, sXO, 16 * jj))
    if c == OPT["ic"]:
        sentinel_init()
    if c == 6 and OPT["sent"]:
        a("buffer_load_dwordx2 %s, v27, %s, 0 offen sc1" % (v(vIF, 2), WS))
    a("s_waitcnt lgkmcnt(7)")
    p1_mfma(c, 0)
    p1_reads(c, 2)
    a("s_waitcnt lgkmcnt(7)")
    p1_mfma(c, 1)
    p1_reads(c, 3)
    if c == 6:
        a("ds_read_b32 %s, %s" % (v(vNM), vSA))
        a("ds_read_b32 %s, %s offset:128" % (v(vRS), vSA))
        a("s_waitcnt lgkmcnt(9)")
        p1_mfma(c, 2)
        a("s_waitcnt lgkmcnt(2)")
        for i in range(12):
            a("ds_read_b128 %s, %s offset:%d" % (v(CS + 4 * i, 4), vCA, 32 * i))
        p1_mfma(c, 3)
    else:
        a("s_waitcnt lgkmcnt(7)")
        p1_mfma(c, 2)
        if c == OPT["fc"]:
            get_epoch_spin("m")
            a("v_mov_b32 %s, %d" % (v(vT + 2), L_EP))
            a("ds_write_b64 %s, %s" % (v(vT + 2), v(vFLG, 2)))
            a("v_or_b32 %s, %s, %s" % (v(vFLG), sXCC, v(vFLG)))
            if OPT["sent"]:
                flag_store(sD, " sc1")
        xres_read(c)
        a("s_waitcnt lgkmcnt(0)")
        a("s_barrier")
        stamp("m_b%d" % (c + 1))
        p1_reads(c + 1, 0)
        p1_reads(c + 1, 1)
        p1_mfma(c, 3)
a("s_waitcnt lgkmcnt(12)")
a("v_mul_f32 %s, %s, %s" % (v(vNM), v(vNM), v(vRS)))
a("v_mov_b32 %s, %s" % (v(vRS + 1), v(vRS)))
a("v_mov_b32 %s, %s" % (v(vNM + 1), v(vNM)))
stamp("m_p1end")
for i in range(3):
    a("s_waitcnt lgkmcnt(%d)" % (8 - 4 * i))
    for k in range(8):
        r_ = CS + 16 * i + 2 * k
        a("v_pk_mul_f32 %s, %s, %s" % (v(r_, 2), v(r_, 2), v(vNM, 2)))
for i in range(3):
    for k in range(8):
        r_ = ACC + 16 * i + 2 * k
        a("v_pk_fma_f32 %s, %s, %s, %s" % (v(r_, 2), v(r_, 2), v(vRS, 2), v(CS + 16 * i + 2 * k, 2)))
    for k in range(8):
        a("v_cvt_pk_bf16_f32 %s, %s, %s" % (v(PK + 8 * i + k), v(ACC + 16 * i + 2 * k), v(ACC + 16 * i + 2 * k + 1)))
    for m in range(2):
        for k in range(2):
            a("v_permlane32_swap_b32 %s, %s" % (v(PK + 8 * i + 4 * m + k), v(PK + 8 * i + 4 * m + 2 + k)))
    for m in range(2):
        a("buffer_store_dwordx4 %s, %s, %s, %s offen offset:%d sc1" % (v(PK + 8 * i + 4 * m, 4), vQo[0], WS, sA if i < 2 else sC, (2048 * i if i < 2 else 0) + 1024 * m))
xres_read(6)
a("s_waitcnt lgkmcnt(0)")
stamp("m_epi1")
stamp("rt_epi1")
if OPT["sent"]:
    a("s_barrier")
    a("s_waitcnt vmcnt(6)")
    a("v_and_b32 %s, -8, %s" % (v(vIF), v(vIF)))
    a("v_cmp_ne_u64 vcc, %s, %s" % (sEP, v(vIF, 2)))
    a("s_cbranch_vccz Lfetch_go")
else:
    a("s_waitcnt vmcnt(0)")
    flag_store(sD, " sc1")
    a("s_barrier")

a.label("Lfetch")
poll("v27", vT + 2, "f1")
a.label("Lfetch_go")
stamp("m_f1ok")
stamp("rt_f1ok")
a("v_add_u32 v32, %s, %s" % (sHW4K, vL16))
a("v_add_u32 v33, %s, %s" % (sFD, vL16))
a("s_mov_b32 %s, 0x4000" % sCNT)


def fetch_dma():
    for kind, sb in ((2, sFC), (1, sFB), (0, sFA)):
        if kind == 2:
            dma(vL16, WS, sb, sFD, L_Q, sc1=True)
            dma(vL16, WS, sb, sFD, L_Q + 1024, inst=1024, sc1=True)
        a("s_add_u32 %s, %s, %d" % (sT0, sb, 56 * 512))
        a("s_add_u32 %s, %s, %d" % (sT1, sb, 112 * 512))
        lb = L_KV + kind * 16384
        dma(vL16, WS, sT0, sHW4K, lb, sc1=True)
        dma(vL16, WS, sT0, sHW4K, lb + 1024, inst=1024, sc1=True)
        dma(vL16, WS, sT1, sHW4K, lb + 2048, sc1=True)
        dma(vL16, WS, sT1, sHW4K, lb + 3072, inst=1024, sc1=True)


fetch_dma()
p2_setup()
a.label("Lfetch_val")
if not OPT["sent"]:
    a("s_waitcnt vmcnt(0)")
    a("s_branch Lp2b")
VR = 36
order = [("v33", L_Q), ("v33", L_Q + 1024)] + [("v32", L_KV + kind * 16384 + 1024 * q) for kind in (2, 1, 0) for q in range(4)]
for n, (ad, off) in enumerate(order):
    if n in (0, 6, 10):
        a("s_waitcnt vmcnt(%d)" % {0: 8, 6: 4, 10: 0}[n])
    a("ds_read_b128 %s, %s offset:%d" % (v(VR + 4 * n, 4), ad, off))
a("v_mov_b32 v34, 0")
a("v_mov_b32 v35, 0")
for n in range(14):
    if n in (0, 6, 10):
        a("s_waitcnt lgkmcnt(%d)" % {0: 8, 6: 4, 10: 0}[n])
    a("v_max3_u32 v34, v34, %s, %s" % (v(VR + 4 * n), v(VR + 4 * n + 1)))
    a("v_max3_u32 v35, v35, %s, %s" % (v(VR + 4 * n + 2), v(VR + 4 * n + 3)))
a("v_max_u32 v34, v34, v35")
a("v_cmp_eq_u32 vcc, -1, v34")
a("s_sub_u32 %s, %s, 1" % (sCNT, sCNT))
a("s_cmp_eq_u32 %s, 0" % sCNT)
a("s_cbranch_scc1 Lfetch_done")
a("s_cbranch_vccz Lfetch_done")
fetch_dma()
a("s_branch Lfetch_val")
a.label("Lfetch_done")
if OPT["stamps"]:
    a("v_mov_b32 v30, %s" % sCNT)
    a("v_mov_b32 v31, 0")
    a("s_mov_b64 exec, 1")
    a("buffer_store_dwordx2 v[30:31], %s, %s, %s offen offset:%d" % (vZ, WS, sTSOFF, 30 * 8))
    a("s_mov_b64 exec, -1")
a("s_branch Lp2b")

a.label("Lp2")
p2_setup()
a.label("Lp2b")
stamp("kv_landed")
a("s_barrier")
stamp("b8")
stamp("rt_b8")
a(("s_cmp_ge_u32 %s, 4" if OPT["bm"] else "s_cmp_lt_u32 %s, 4") % sWAVE)
a("s_cbranch_scc1 Lp2go")
bg("B")
a.label("Lp2go")
if OPT["alias"]:
    a("s_cmp_lg_u32 %s, 0" % sWAVE)
    a("s_cbranch_scc1 Lnofd")
    sum_s(sT0, [(sG, 128), (sJ, 8)], WS_FD)
    flag_store(sT0, " sc1")
    a.label("Lnofd")
a("buffer_load_dwordx2 %s, %s, %s, 0 offen sc1" % (v(vGF, 2), vGFA, WS))
a("ds_read_b128 %s, %s" % (v(QF, 4), vQA))
NKB = 6


def kread(i):
    a("ds_read_b128 %s, %s offset:%d" % (v(KB + 4 * (i % NKB), 4), v(vKA[i & 1]), (i >> 1) * 4096))


for i in range(NKB):
    kread(i)
for i in range(17):
    rem = min(NKB - 1, 16 - i)
    a("s_waitcnt lgkmcnt(%d)" % rem)
    if i == 0:
        for k in range(2):
            a("v_cndmask_b32 %s, %s, %s, %s" % (v(QF + k), v(QF + k), vZ, sFQ))
            a("v_cndmask_b32 %s, %s, %s, %s" % (v(QF + 2 + k), v(QF + 2 + k), vZ, sFO))
    cc = v(M0R, 4) if i == 0 else (v(M16R, 4) if i == 16 else "0")
    a("v_mfma_f32_16x16x32_bf16 %s, %s, %s, %s" % (v(SC + 4 * i, 4), v(KB + 4 * (i % NKB), 4), v(QF, 4), cc))
    if i + NKB < 17:
        kread(i + NKB)


def vread(n):
    p, dt = n >> 1, n & 1
    for b in range(2):
        par = b if p < 8 else 0
        a("ds_read_b64_tr_b16 %s, %s offset:%d" % (v(VB + 4 * (n % NKB) + 2 * b, 2), v(vVA[par]), 2048 + p * 4096 + dt * 1024))


for n in range(NKB):
    vread(n)
a("s_cmp_ge_u32 %s, 2" % sG)
a("s_cbranch_scc1 Lnoinv")
a("s_lshl_b32 %s, %s, 3" % (sT0, sG))
a("s_add_u32 %s, %s, %s" % (sT0, sT0, sWAVE))
a("s_sub_u32 %s, 16, %s" % (sT0, sT0))
for i in range(16):
    a("s_cmp_le_u32 %s, %d" % (sT0, i))
    a("s_cbranch_scc1 Lnoinv")
    for c in range(4):
        a("v_mov_b32 %s, %s" % (v(SC + 4 * i + c), vNEG))
a.label("Lnoinv")
vM, vM2 = v(vT), v(vT + 1)
a("v_max3_f32 %s, %s, %s, %s" % (vM, v(SC), v(SC + 1), v(SC + 2)))
a("v_max3_f32 %s, %s, %s, %s" % (vM2, v(SC + 3), v(SC + 4), v(SC + 5)))
i = 6
flip = 0
while i < 68:
    tgt = vM if flip == 0 else vM2
    a("v_max3_f32 %s, %s, %s, %s" % (tgt, tgt, v(SC + i), v(SC + i + 1)))
    i += 2
    flip ^= 1
a("v_max_f32 %s, %s, %s" % (vM, vM, vM2))
a("v_mov_b32 %s, %s" % (vM2, vM))
a("v_permlane32_swap_b32 %s, %s" % (vM, vM2))
a("v_max_f32 %s, %s, %s" % (vM, vM, vM2))
a("v_mov_b32 %s, %s" % (vM2, vM))
a("v_permlane16_swap_b32 %s, %s" % (vM, vM2))
a("v_max_f32 %s, %s, %s" % (vM, vM, vM2))
CSC = (28.0 ** -0.5) * math.log2(math.e)
a("s_mov_b32 %s, %s" % (sT0, f32(CSC)))
a("v_mul_f32 %s, %s, %s" % (vM, f32(-CSC), vM))
for p in range(9):
    ne = 8 if p < 8 else 4
    for i in range(ne):
        a("v_fma_f32 %s, %s, %s, %s" % (v(SC + 8 * p + i), v(SC + 8 * p + i), sT0, vM))
    for i in range(ne):
        a("v_exp_f32 %s, %s" % (v(SC + 8 * p + i), v(SC + 8 * p + i)))
    pf = PF + 4 * (p % 2) if p < 8 else PF + 8
    for i in range(ne // 2):
        a("v_cvt_pk_bf16_f32 %s, %s, %s" % (v(pf + i), v(SC + 8 * p + 2 * i), v(SC + 8 * p + 2 * i + 1)))
    a("v_mfma_f32_16x16x32_bf16 %s, %s, %s, %s" % (v(LS, 4), v(ONE4, 4), v(pf, 4), "0" if p == 0 else v(LS, 4)))
    for dt in range(2):
        n = 2 * p + dt
        rem = min(NKB - 1, 17 - n)
        a("s_waitcnt lgkmcnt(%d)" % (2 * rem))
        cc = "0" if p == 0 else v(OA + 4 * dt, 4)
        a("v_mfma_f32_16x16x32_bf16 %s, %s, %s, %s" % (v(OA + 4 * dt, 4), v(VB + 4 * (n % NKB), 4), v(pf, 4), cc))
        if n + NKB < 18:
            vread(n + NKB)
    if p == 6:
        a("s_waitcnt vmcnt(0)")
        a("v_and_b32 %s, -8, %s" % (v(vT + 4), v(vGF)))
        a("v_mov_b32 %s, %s" % (v(vT + 5), v(vGF + 1)))
        a("v_cmp_ne_u64 vcc, %s, %s" % (sEP, v(vT + 4, 2)))
        a("s_cbranch_vccz Lgf_ok")
        poll(vGFA, vT + 4, "gf")
        a("buffer_load_dwordx2 %s, %s, %s, 0 offen sc1" % (v(vGF, 2), vGFA, WS))
        a("s_waitcnt vmcnt(0)")
        a.label("Lgf_ok")
        a("v_cmp_ne_u32 vcc, %s, %s" % (v(vGF), v(vFLG)))
        a("s_cmp_eq_u64 vcc, 0")
        a("s_cselect_b32 %s, %d, 0" % (sFAST, 0 if OPT["force_slow"] else 1))
stamp("att_done")
if OPT["stamps"]:
    a("v_mov_b32 v30, %s" % sXCC)
    a("v_mov_b32 v31, %s" % sFAST)
    a("s_mov_b64 exec, 1")
    a("buffer_store_dwordx2 v[30:31], %s, %s, %s offen offset:%d" % (vZ, WS, sTSOFF, 31 * 8))
    a("s_mov_b64 exec, -1")
a("v_rcp_f32 %s, %s" % (v(vT + 2), v(LS)))
a("v_cndmask_b32 %s, %s, %s, %s" % (v(vT), v(vT + 2), vZ, sFQ))
a("v_cndmask_b32 %s, %s, %s, %s" % (v(vT + 1), v(vT + 2), vZ, sFO))
for i in range(4):
    a("v_mul_f32 %s, %s, %s" % (v(OA + i), v(OA + i), v(vT)))
    a("v_mul_f32 %s, %s, %s" % (v(OA + 4 + i), v(OA + 4 + i), v(vT + 1)))
OP = 136
for i in range(4):
    a("v_cvt_pk_bf16_f32 %s, %s, %s" % (v(OP + i), v(OA + 2 * i), v(OA + 2 * i + 1)))
publish(["buffer_store_dwordx4 %s, %s, %s, %s offen{sc}" % (v(OP, 4), vOA, WS, sE)], sF, data_sc1=bool(OPT["ohsc"]))
if OPT["ohsc"]:
    a("buffer_load_dword v26, %s, %s, %s offen sc1" % (vOA, WS, sE))
stamp("o_pub")
stamp("rt_opub")
a("s_cmp_ge_u32 %s, 4" % sWAVE)
a("s_cbranch_scc1 Lhelper2")

HF = 32
A4 = 144
W4 = 200
SPR = 232
NM4, RS4 = [246, 248], [250, 252]
vW4a, vW4b, vW4c, vSPA = "v254", "v255", "v27", "v28"

def h1_bases(tile, d0, d1, d2):
    sum_s(d0, [(tile, QT)], WS_QKV + 28672)
    sum_s(d1, [(tile, 32768)], WS_O - 8 * 7168)
    sum_s(d2, [(tile, 28672)], WS_H - 12 * 7168)


def p4_setup():
    a("v_lshrrev_b32 %s, 1, %s" % (v(vT), vQ4))
    a("v_lshlrev_b32 %s, 4, %s" % (v(vT), v(vT)))
    a("v_and_b32 %s, 1, %s" % (v(vT + 1), vQ4))
    a("v_lshl_add_u32 %s, %s, 2, %s" % (v(vT), v(vT + 1), v(vT)))
    a("v_lshrrev_b32 %s, 2, %s" % (v(vT + 1), vR))
    a("v_add_u32 %s, %s, %s" % (v(vT), v(vT), v(vT + 1)))
    a("v_mul_u32_u24 %s, 224, %s" % (v(vT), v(vT)))
    a("v_and_b32 %s, 3, %s" % (v(vT + 1), vL))
    a("v_lshl_add_u32 %s, %s, 3, %s" % (vW4a, v(vT + 1), v(vT)))
    a("v_add_u32 %s, %d, %s" % (vW4b, 8 * 7168, vW4a))
    a("v_add_u32 %s, %d, %s" % (vW4c, L_W1U, vW4a))
    assert lds_conflicts([(16 * (l >> 5) + 4 * ((l >> 4) & 1) + ((l & 15) >> 2)) * 224 + (l & 3) * 8 for l in range(64)], "tr") == 0
    sum_s(sT1, [(sTILE4, 128)], WS_F3)
    a("v_min_u32 %s, 13, %s" % (v(vT), vR))
    a("v_lshlrev_b32 %s, 3, %s" % (v(vT), v(vT)))
    a("v_add_u32 %s, %s, %s" % (v(vT), sT1, v(vT)))
    if OPT["alias"]:
        sum_s(sT4, [(sTILE4, QT)], WS_QKV)
    else:
        sum_s(sT4, [(sTILE4, 28 * 1024)], WS_H)
    a("s_add_u32 %s, %s, %d" % (sE, sT4, 14 * 1024))
    sum_s(sT3, [(sTILE4, 4096)], WS_HS)
    a("v_mul_u32_u24 %s, %d, %s" % (vSPA, 7 * 256, vH))
    a("v_lshl_add_u32 %s, %s, 3, %s" % (vSPA, vL31, vSPA))
    if OPT["alias"]:
        h1_bases(sTILE4, sT0, sT1, sT2)
        a("s_cmp_lt_u32 %s, 12" % sJ)
        a("s_cselect_b32 %s, %s, %s" % (sA, sT1, sT2))
        a("s_cmp_lt_u32 %s, 8" % sJ)
        a("s_cselect_b32 %s, %s, %s" % (sA, sT0, sA))
        a("s_mul_i32 %s, %s, 7168" % (sT0, sJ))
        a("s_add_u32 %s, %s, %s" % (sA, sA, sT0))
        a("v_bfe_u32 %s, %s, 4, 1" % (v(vT + 4), vL))
        a("v_add_u32 %s, 1, %s" % (v(vT + 4), v(vT + 4)))
        a("v_add_u32 %s, %s, %s" % (v(vT + 4), sG, v(vT + 4)))
        a("v_min_u32 %s, 15, %s" % (v(vT + 4), v(vT + 4)))
        a("v_lshlrev_b32 %s, 7, %s" % (v(vT + 4), v(vT + 4)))
        a("v_lshl_add_u32 %s, %s, 3, %s" % (v(vT + 4), vR, v(vT + 4)))
        a("v_add_u32 %s, %d, %s" % (vTMP, WS_FD, v(vT + 4)))
    else:
        sum_s(sA, [(sTILE4, 112 * 1024), (sJ, 7168)], WS_H1)
    a("s_add_u32 %s, %s, 4096" % (sB, sA))
    sum_s(sF, [(sTILE4, 128), (sJ, 8)], WS_F4)


if OPT["prio"]:
    a("s_setprio %d" % OPT["prio"])
a("s_cmp_ge_u32 %s, 14" % sJ)
a("s_cbranch_scc1 Lp3_idle")
AK, AS = 32, 48
OF = 64
WB = 128
vWk, vWs = "v160", "v161"
vEXW, vEXR, vHA, vHSA, vF2A = "v162", "v163", "v164", "v165", "v166"


def tr_base_128(dkeep, dsend, hmul, base_s, base_imm):
    a("v_lshrrev_b32 %s, 2, %s" % (v(vT), vR))
    a("v_lshrrev_b32 %s, 1, %s" % (v(vT + 1), v(vT)))
    a("v_xor_b32 %s, %s, %s" % (v(vT + 1), sKH, v(vT + 1)))
    a("v_lshl_add_u32 %s, %s, %d, %s" % (v(vT), vH, {4: 2, 8: 3}[hmul], v(vT)))
    a("v_lshlrev_b32 %s, 7, %s" % (v(vT), v(vT)))
    a("v_bfe_u32 %s, %s, 4, 1" % (v(vT + 2), vL))
    a("v_lshl_add_u32 %s, %s, 5, %s" % (v(vT), v(vT + 2), v(vT)))
    a("v_and_b32 %s, 3, %s" % (v(vT + 2), vL))
    a("v_lshl_add_u32 %s, %s, 3, %s" % (v(vT), v(vT + 2), v(vT)))
    a("v_add_u32 %s, %s, %s" % (v(vT), base_s, v(vT)))
    if base_imm:
        a("v_add_u32 %s, %d, %s" % (v(vT), base_imm, v(vT)))
    a("v_lshl_add_u32 %s, %s, 6, %s" % (dkeep, v(vT + 1), v(vT)))
    a("v_xor_b32 %s, 64, %s" % (dsend, dkeep))


def ex_addrs():
    a("v_add_u32 %s, %s, %s" % (vEXW, sHW4K, vL16))
    a("v_xor_b32 %s, 0x2000, %s" % (vEXR, vEXW))
    a("v_add_u32 %s, %d, %s" % (vEXW, L_SCR, vEXW))
    a("v_add_u32 %s, %d, %s" % (vEXR, L_SCR, vEXR))


for hm in (4, 8):
    for nt in range(2):
        assert lds_conflicts([(hm * (l >> 5) + ((l & 15) >> 2)) * 128 + ((nt ^ (((l & 15) >> 3) & 1)) * 64) + ((l >> 4) & 1) * 32 + (l & 3) * 8 for l in range(64)], "tr") == 0
a("s_mul_i32 %s, %s, %d" % (sT0, sKH, 224 * 128))
tr_base_128(vWk, vWs, 4, sT0, L_WO)
ex_addrs()
sum_s(sT0, [(sG, 1024), (sMH2, 512), (sMH, 256), (sKH, 64)], WS_F2)
a("v_bfe_u32 %s, %s, 3, 1" % (v(vT), vL))
a("v_lshlrev_b32 %s, 7, %s" % (v(vT), v(vT)))
a("v_and_b32 %s, 7, %s" % (v(vT + 1), vL))
a("v_lshl_add_u32 %s, %s, 3, %s" % (v(vT), v(vT + 1), v(vT)))
a("v_add_u32 %s, %s, %s" % (vF2A, sT0, v(vT)))
sum_s(sT4, [(sTILE, 32768), (sKH, 16384)], WS_O)
if OPT["alias"]:
    sum_s(sA, [(sTILE, QT), (sNB, 2048), (sKH, 1024)], WS_QKV)
else:
    sum_s(sA, [(sTILE, 28 * 1024), (sNB, 2048), (sKH, 1024)], WS_H)
sum_s(sB, [(sTILE, 4096), (sNB, 512), (sKH, 256)], WS_HS)
sum_s(sC, [(sTILE, 128), (sNB, 16), (sKH, 8)], WS_F3)
a("v_bfe_u32 %s, %s, 4, 1" % (v(vT), vL))
a("v_mul_u32_u24 %s, %d, %s" % (v(vT), 14 * 1024, v(vT)))
a("v_lshl_add_u32 %s, %s, 8, %s" % (v(vT), vH, v(vT)))
a("v_lshl_add_u32 %s, %s, 4, %s" % (vHA, vR, v(vT)))
a("v_lshlrev_b32 %s, 3, %s" % (vHSA, vL31))
XF = 168
for i in range(8):
    a("v_lshlrev_b32 %s, 16, %s" % (v(XF + 2 * i), v(vXRES + i)))
    a("v_and_b32 %s, 0xffff0000, %s" % (v(XF + 2 * i + 1), v(vXRES + i)))
a("v_mov_b32 v167, 0x3f803f80")
a("s_barrier")
stamp("b9")


def p3_wread(s):
    head, ab = s >> 1, s & 1
    wb = WB + 8 * (s % 4)
    r0 = (28 * head - 4 * (head & 1) + 8 * ab) * 128
    for k, base in enumerate((vWk, vWs)):
        a("ds_read_b64_tr_b16 %s, %s offset:%d" % (v(wb + 4 * k, 2), base, r0))
        a("ds_read_b64_tr_b16 %s, %s offset:%d" % (v(wb + 4 * k + 2, 2), base, r0 + 16 * 128))


def p3_load(s):
    if s and s % 4 == 0:
        a("s_add_u32 %s, %s, 4096" % (sT4, sT4))
    a("buffer_load_dwordx4 %s, %s, %s, %s offen offset:%d sc1" % (v(OF + 4 * s, 4), vL16, WS, sT4, (s % 4) * 1024))


for s in range(3):
    p3_wread(s)
poll(vF2A, vT + 2, "f2")
stamp("f2ok")
stamp("rt_f2ok")
UP = OPT["up3"]
for s in range(UP):
    p3_load(s)
for s in range(16):
    a("s_waitcnt vmcnt(%d) lgkmcnt(%d)" % (min(UP - 1, 15 - s), min(8, 4 * (15 - s))))
    if s + 3 < 16:
        p3_wread(s + 3)
    wb = WB + 8 * (s % 4)
    a("v_mfma_f32_32x32x16_bf16 %s, %s, %s, %s" % (v(AS, 16), v(wb + 4, 4), v(OF + 4 * s, 4), "0" if s == 0 else v(AS, 16)))
    if s + UP < 16:
        p3_load(s + UP)
    if OPT["b9b"] and s + UP == 15:
        a("s_barrier")
    a("v_mfma_f32_32x32x16_bf16 %s, %s, %s, %s" % (v(AK, 16), v(wb, 4), v(OF + 4 * s, 4), "0" if s == 0 else v(AK, 16)))
stamp("p3_mfma")


def exchange():
    for i in range(4):
        a("ds_write_b128 %s, %s offset:%d" % (vEXW, v(AS + 4 * i, 4), 1024 * i))
    a("s_waitcnt lgkmcnt(0)")
    a("s_barrier")
    for i in range(4):
        a("ds_read_b128 %s, %s offset:%d" % (v(AS + 4 * i, 4), vEXR, 1024 * i))


def residual_add(out):
    for i in range(4):
        a("s_waitcnt lgkmcnt(%d)" % (3 - i))
        for k in range(2):
            r_ = 4 * i + 2 * k
            a("v_pk_add_f32 %s, %s, %s" % (v(AK + r_, 2), v(AK + r_, 2), v(AS + r_, 2)))
        for k in range(2):
            r_ = 4 * i + 2 * k
            a("v_cvt_pk_bf16_f32 %s, %s, %s" % (v(AS + r_), v(AK + r_), v(AK + r_ + 1)))
        for k in range(2):
            r_ = 4 * i + 2 * k
            a("v_lshlrev_b32 %s, 16, %s" % (v(AK + r_), v(AS + r_)))
            a("v_and_b32 %s, 0xffff0000, %s" % (v(AK + r_ + 1), v(AS + r_)))
        for k in range(2):
            r_ = 4 * i + 2 * k
            a("v_pk_add_f32 %s, %s, %s" % (v(AK + r_, 2), v(AK + r_, 2), v(XF + r_, 2)))
        for k in range(2):
            r_ = 4 * i + 2 * k
            a("v_cvt_pk_bf16_f32 %s, %s, %s" % (v(out + 2 * i + k), v(AK + r_), v(AK + r_ + 1)))


exchange()
residual_add(vXRES)
stamp("p3_res")
a("v_mov_b32 %s, 0" % v(AS))
a("v_mov_b32 %s, 0" % v(AS + 1))
st3 = ["buffer_store_dwordx4 %s, %s, %s, %s offen{sc}" % (v(vXRES, 4), vHA, WS, sA),
       "buffer_store_dwordx4 %s, %s, %s, %s offen offset:512{sc}" % (v(vXRES + 4, 4), vHA, WS, sA)]
for i in range(8):
    st3.append("v_dot2c_f32_bf16 %s, %s, v167" % (v(AS), v(vXRES + i)))
    st3.append("v_dot2c_f32_bf16 %s, %s, %s" % (v(AS + 1), v(vXRES + i), v(vXRES + i)))
st3 += ["v_mov_b32 %s, %s" % (v(AS + 2), v(AS)), "v_mov_b32 %s, %s" % (v(AS + 3), v(AS + 1)),
        "v_permlane32_swap_b32 %s, %s" % (v(AS), v(AS + 2)), "v_permlane32_swap_b32 %s, %s" % (v(AS + 1), v(AS + 3)),
        "v_pk_add_f32 %s, %s, %s" % (v(AS, 2), v(AS, 2), v(AS + 2, 2)),
        "buffer_store_dwordx2 %s, %s, %s, %s offen{sc}" % (v(AS, 2), vHSA, WS, sB)]
publish(st3, sC, data_sc1=bool(OPT["ohsc"]), mid=p4_setup if OPT["shadow"] else None)
if OPT["ohsc"]:
    a("buffer_load_dword v26, %s, %s, %s offen sc1" % (vHA, WS, sA))
    a("buffer_load_dword v26, %s, %s, %s offen offset:512 sc1" % (vHA, WS, sA))
    a("buffer_load_dword v26, %s, %s, %s offen sc1" % (vHSA, WS, sB))
stamp("h_pub")
stamp("rt_hpub")
a("s_branch Lp3_done")
a.label("Lp3_idle")
if OPT["shadow"]:
    p4_setup()
a("s_barrier")
if OPT["b9b"]:
    a("s_barrier")
a("s_barrier")
a.label("Lp3_done")

RF = 64
NRF = 16
WB5 = 128
AD5 = 208
UMAP = {0: (2, 0), 1: (2, 2 * UNIT), 2: (0, 0), 3: (0, 2 * UNIT), 4: (1, 0), 5: (2, 0), 6: (2, 2 * UNIT), 7: (0, 0)}
def p5_wread(i):
    n, u = divmod(i, 7)
    b, off = UMAP[n]
    wb = WB5 + 8 * (i % 4)
    if u < 6:
        pat, r0, d2 = 0, 32 * (u >> 1) + 8 * (u & 1), 16
    else:
        pat, r0, d2 = 1, 96, 4
    for k in range(2):
        base = v(AD5 + 6 * pat + 2 * b + k)
        a("ds_read_b64_tr_b16 %s, %s offset:%d" % (v(wb + 4 * k, 2), base, off + r0 * 128))
        a("ds_read_b64_tr_b16 %s, %s offset:%d" % (v(wb + 4 * k + 2, 2), base, off + (r0 + d2) * 128))

vFW, vFR, vFO = "v184", "v185", "v186"


def p5_setup():
    a("s_mul_i32 %s, %s, %d" % (sT0, sKH, UNIT))
    for pat, hm in enumerate((4, 8)):
        tr_base_128(v(AD5 + 6 * pat), v(AD5 + 6 * pat + 1), hm, sT0, 0)
        for b, off in ((1, 4 * UNIT), (2, L_WO)):
            for k in range(2):
                a("v_add_u32 %s, %d, %s" % (v(AD5 + 6 * pat + 2 * b + k), off, v(AD5 + 6 * pat + k)))
    ex_addrs()
    for i in range(8):
        a("v_lshlrev_b32 %s, 16, %s" % (v(XF + 2 * i), v(vXRES + i)))
        a("v_and_b32 %s, 0xffff0000, %s" % (v(XF + 2 * i + 1), v(vXRES + i)))
    if OPT["ow"] == 2:
        sum_s(sT0, [(sMH, 32 * 144), (sKH, 64)])
        a("v_mul_u32_u24 %s, 144, %s" % (vFW, vL31))
        a("v_lshl_add_u32 %s, %s, 4, %s" % (vFW, vH, vFW))
        a("v_add_u32 %s, %s, %s" % (vFW, sT0, vFW))
        a("v_lshrrev_b32 %s, 3, %s" % (v(vT), vL))
        a("v_and_b32 %s, 7, %s" % (v(vT + 1), vL))
        a("v_mul_u32_u24 %s, 144, %s" % (vFR, v(vT)))
        a("v_lshl_add_u32 %s, %s, 4, %s" % (vFR, v(vT + 1), vFR))
        a("s_mul_i32 %s, %s, %d" % (sT0, sHW, 16 * 144))
        a("v_add_u32 %s, %s, %s" % (vFR, sT0, vFR))
        a("v_mul_u32_u24 %s, 896, %s" % (vFO, v(vT)))
        a("v_lshl_add_u32 %s, %s, 4, %s" % (vFO, v(vT + 1), vFO))
        sum_s(sA, [(sG, 128 * 896), (sMH2, 64 * 896), (sHW, 16 * 896), (sNB, 128)])
        a("s_add_u32 %s, %s, %d" % (sB, sA, 8 * 896))
    sum_s(sT0, [(sTILE, 128), (sKH, 64)], WS_F4)
    a("v_and_b32 %s, 7, %s" % (v(vT), vL))
    a("v_lshlrev_b32 %s, 3, %s" % (v(vT), v(vT)))
    a("v_add_u32 %s, %s, %s" % (v(vT), sT0, v(vT)))
    if OPT["alias"]:
        h1_bases(sTILE, sC, sD, sE)
        a("s_add_u32 %s, %s, %d" % (sD, sD, 8 * 7168))
        a("s_add_u32 %s, %s, %d" % (sE, sE, 8 * 7168))
        a("s_cmp_eq_u32 %s, 0" % sKH)
        a("s_cselect_b32 %s, %s, %s" % (sD, sC, sD))
        a("s_cselect_b32 %s, %s, %s" % (sE, sC, sE))
    else:
        sum_s(sT4, [(sTILE, 112 * 1024), (sKH, 56 * 1024)], WS_H1)


if not OPT["shadow"]:
    p4_setup()
a("s_barrier")
stamp("b11")
NW4 = 8
AHEAD = 7


def p4_wread(q):
    ks, nt = divmod(q, 7)
    if ks < 8:
        base, off = vW4a, ks * 7168
    elif ks < 12:
        base, off = vW4b, (ks - 8) * 7168
    else:
        base, off = vW4c, (ks - 12) * 7168
    wb = W4 + 4 * (q % NW4)
    a("ds_read_b64_tr_b16 %s, %s offset:%d" % (v(wb, 2), base, off + nt * 32))
    a("ds_read_b64_tr_b16 %s, %s offset:%d" % (v(wb + 2, 2), base, off + nt * 32 + 8 * 224))


def p4_load(ks, mt):
    if mt == 0 and ks and ks % 4 == 0:
        a("s_add_u32 %s, %s, 4096" % (sT4, sT4))
        a("s_add_u32 %s, %s, 4096" % (sE, sE))
    a("buffer_load_dwordx4 %s, %s, %s, %s offen offset:%d sc1" % (v(HF + 4 * (mt * 14 + ks), 4), vL16, WS, (sT4, sE)[mt], (ks % 4) * 1024))


for q in range(AHEAD):
    p4_wread(q)
poll(v(vT), vT + 2, "f3")
stamp("f3ok")
stamp("rt_f3ok")
UP = OPT["up4"]
for ks in range(UP):
    p4_load(ks, 0)
    p4_load(ks, 1)
    if ks == 1:
        for i in range(7):
            a("buffer_load_dwordx2 %s, %s, %s, %s offen offset:%d sc1" % (v(SPR + 2 * i, 2), vSPA, WS, sT3, 256 * i))
assert UP >= 3
for ks in range(14):
    if ks == 3:
        for i in range(1, 7):
            a("v_pk_add_f32 %s, %s, %s" % (v(SPR, 2), v(SPR, 2), v(SPR + 2 * i, 2)))
        xhalf_sum(v(SPR), v(SPR + 2))
        xhalf_sum(v(SPR + 1), v(SPR + 2))
        ln_finish(v(SPR), v(SPR + 1), v(NM4[0]), v(RS4[0]), v(SPR + 2))
        a("v_mul_f32 %s, %s, %s" % (v(NM4[0]), v(NM4[0]), v(RS4[0])))
        a("v_mov_b32 %s, %s" % (v(NM4[1]), v(NM4[0])))
        a("v_mov_b32 %s, %s" % (v(RS4[1]), v(RS4[0])))
        a("v_permlane16_swap_b32 %s, %s" % (v(NM4[0]), v(NM4[1])))
        a("v_permlane16_swap_b32 %s, %s" % (v(RS4[0]), v(RS4[1])))
        for r_ in NM4 + RS4:
            a("v_mov_b32 %s, %s" % (v(r_ + 1), v(r_)))
    if ks in (1, 7):
        stamp("p4_k%d" % ks)
    if ks == 14 - UP + 1 and OPT["alias"]:
        a("buffer_load_dwordx2 %s, %s, %s, 0 offen sc1" % (v(SPR, 2), vTMP, WS))
    for nt in range(7):
        q = ks * 7 + nt
        if q == 7 * OPT["kb"] + 2:
            a("s_barrier")
        if q == 7 * OPT["kb"] + 9:
            a("s_barrier")
        lg = min(2 * (AHEAD - 1), 2 * (97 - q))
        if OPT["w2"] and nt in (0, 2, 4):
            lg = max(0, min(2 * (AHEAD - 2), 2 * (97 - q - 1)))
        if nt == 0:
            later = 2 * (min(13, ks + UP - 1) - ks) + (7 if ks <= 1 else 0) + (1 if (OPT["alias"] and ks >= 14 - UP + 1) else 0)
            a("s_waitcnt vmcnt(%d) lgkmcnt(%d)" % (later, lg))
        elif not OPT["w2"] or nt in (2, 4, 6):
            a("s_waitcnt lgkmcnt(%d)" % lg)
        if q + AHEAD < 98:
            p4_wread(q + AHEAD)
        wb = W4 + 4 * (q % NW4)
        for mt in range(2):
            acc = v(A4 + 4 * (mt * 7 + nt), 4)
            a("v_mfma_f32_16x16x32_bf16 %s, %s, %s, %s" % (acc, v(wb, 4), v(HF + 4 * (mt * 14 + ks), 4), "0" if ks == 0 else acc))
        if nt < 2 and ks + UP < 14:
            p4_load(ks + UP, nt)
stamp("p4_mfma")
CS4 = 200
a("v_lshlrev_b32 %s, 4, %s" % (v(vT), vQ4))
a("v_add_u32 %s, %d, %s" % (v(vT), L_CS1, v(vT)))
for nt in range(7):
    a("ds_read_b128 %s, %s offset:%d" % (v(CS4 + 4 * nt, 4), v(vT), 64 * nt))
a("v_lshlrev_b32 %s, 9, %s" % (v(vT), vQ4))
a("v_lshl_add_u32 %s, %s, 4, %s" % (v(vT), vR, v(vT)))
a("v_lshrrev_b32 %s, 1, %s" % (v(vT + 1), vQ4))
a("v_lshlrev_b32 %s, 9, %s" % (v(vT + 1), v(vT + 1)))
a("v_lshl_add_u32 %s, %s, 4, %s" % (v(vT + 1), vR, v(vT + 1)))
a("v_and_b32 %s, 1, %s" % (v(vT + 3), vQ4))
a("v_lshl_add_u32 %s, %s, 3, %s" % (v(vT + 1), v(vT + 3), v(vT + 1)))
if OPT["alias"]:
    a("s_waitcnt vmcnt(0)")
    a("v_and_b32 %s, -8, %s" % (v(SPR), v(SPR)))
    a("v_cmp_ne_u64 vcc, %s, %s" % (sEP, v(SPR, 2)))
    a("s_cbranch_vccz Lfd_ok")
    poll(vTMP, SPR, "fd")
    a.label("Lfd_ok")
H1P = 32
TT = 64
st = ["s_waitcnt lgkmcnt(0)"]
for mt in range(2):
    for p in range(4):
        nts = (2 * p, 2 * p + 1) if p < 3 else (6,)
        for nt in nts:
            for c in range(2):
                st.append("v_pk_mul_f32 %s, %s, %s" % (v(TT + 4 * (nt & 1) + 2 * c, 2), v(CS4 + 4 * nt + 2 * c, 2), v(NM4[mt], 2)))
        for nt in nts:
            acc = A4 + 4 * (mt * 7 + nt)
            for c in range(2):
                st.append("v_pk_fma_f32 %s, %s, %s, %s" % (v(acc + 2 * c, 2), v(acc + 2 * c, 2), v(RS4[mt], 2), v(TT + 4 * (nt & 1) + 2 * c, 2)))
        for nt in nts:
            acc = A4 + 4 * (mt * 7 + nt)
            hp = H1P + 16 * mt + 2 * nt
            for c in range(2):
                st.append("v_cvt_pk_bf16_f32 %s, %s, %s" % (v(hp + c), v(acc + 2 * c), v(acc + 2 * c + 1)))
        for nt in nts:
            hp = H1P + 16 * mt + 2 * nt
            for c in range(2):
                st.append("v_pk_max_i16 %s, %s, %s" % (v(hp + c), v(hp + c), vZ))
        if p < 3:
            so, off = (sA, p * 2048 + mt * 256) if p < 2 else (sB, mt * 256)
            st.append("buffer_store_dwordx4 %s, %s, %s, %s offen offset:%d{sc}" % (v(H1P + 16 * mt + 4 * p, 4), v(vT), WS, so, off))
        else:
            st.append("buffer_store_dwordx2 %s, %s, %s, %s offen offset:%d{sc}" % (v(H1P + 16 * mt + 12, 2), v(vT + 1), WS, sB, 2048 + mt * 256))
publish(st, sF, data_sc1=bool(OPT["h1sc"]) and OPT["alias"] != 1, mid=p5_setup if OPT["shadow"] else None)
if OPT["st4"]:
    a("v_min_u32 %s, 55, %s" % (v(vT), vL))
    a("v_lshlrev_b32 %s, 7, %s" % (v(vT), v(vT)))
    a("buffer_load_dword v26, %s, %s, %s offen sc1" % (v(vT), WS, sA))
stamp("h1_pub")
stamp("rt_h1pub")
a("s_cmp_ge_u32 %s, 14" % sJ)
a("s_cbranch_scc1 Lend")

if not OPT["shadow"]:
    p5_setup()
a("s_barrier")
stamp("b12")
for i in range(3):
    p5_wread(i)
poll(v(vT), vT + 2, "f4")
stamp("f4ok")
stamp("rt_f4ok")


def p5_load(i):
    n, u = divmod(i, 7)
    if u == 0:
        a("s_add_u32 %s, %s, %d" % (sT0, sRU, n))
        a("s_and_b32 %s, %s, 7" % (sT0, sT0))
        if OPT["alias"]:
            a("s_cmp_lt_u32 %s, 4" % sT0)
            a("s_cselect_b32 %s, %s, %s" % (sT4, sD, sE))
        a("s_mul_i32 %s, %s, 7168" % (sT0, sT0))
        a("s_add_u32 %s, %s, %s" % (sT3, sT4, sT0))
    if u == 4:
        a("s_add_u32 %s, %s, 4096" % (sT3, sT3))
    a("buffer_load_dwordx4 %s, %s, %s, %s offen offset:%d sc1" % (v(RF + 4 * (i % NRF), 4), vL16, WS, sT3, (u % 4) * 1024))


UP = OPT["up5"]
assert UP < NRF
for i in range(UP):
    p5_load(i)
BARS = {14, 28, 42} if OPT["bars"] else {14, 21, 35}
nread = 3
for i in range(56):
    if i in BARS:
        a("s_barrier")
        stamp("p5_b%d" % i)
    while nread < 56 and nread <= i + 2 and not any(i < b <= nread for b in BARS):
        p5_wread(nread)
        nread += 1
    lg = 4 * (nread - 1 - i)
    vm = min(UP - 1, 55 - i)
    a("s_waitcnt vmcnt(%d) lgkmcnt(%d)" % (vm, lg))
    if nread < 56 and nread <= i + 3 and not any(i < b <= nread for b in BARS):
        p5_wread(nread)
        nread += 1
    wb = WB5 + 8 * (i % 4)
    rf = v(RF + 4 * (i % NRF), 4)
    a("v_mfma_f32_32x32x16_bf16 %s, %s, %s, %s" % (v(AS, 16), v(wb + 4, 4), rf, "0" if i == 0 else v(AS, 16)))
    if i + UP < 56:
        p5_load(i + UP)
    a("v_mfma_f32_32x32x16_bf16 %s, %s, %s, %s" % (v(AK, 16), v(wb, 4), rf, "0" if i == 0 else v(AK, 16)))
stamp("p5_mfma")
exchange()
OUTP = 64
residual_add(OUTP)
if OPT["ow"] == 2:
    for m in range(2):
        for k in range(2):
            a("v_permlane32_swap_b32 %s, %s" % (v(OUTP + 4 * m + k), v(OUTP + 4 * m + 2 + k)))
    for m in range(2):
        a("ds_write_b128 %s, %s offset:%d" % (vFW, v(OUTP + 4 * m, 4), 32 * m))
    a("s_waitcnt lgkmcnt(0)")
    a("s_barrier")
    for m in range(2):
        a("ds_read_b128 %s, %s offset:%d" % (v(OUTP + 8 + 4 * m, 4), vFR, 8 * 144 * m))
    for m in range(2):
        a("s_waitcnt lgkmcnt(%d)" % (1 - m))
        a("buffer_store_dwordx4 %s, %s, %s, %s offen%s" % (v(OUTP + 8 + 4 * m, 4), vFO, OUT, (sA, sB)[m], (" " + OPT["osc"]) if OPT["osc"] else ""))
elif OPT["ow"]:
    a("v_mul_u32_u24 %s, 896, %s" % (v(vT), vL31))
    a("v_lshl_add_u32 %s, %s, 4, %s" % (v(vT), vH, v(vT)))
    for m in range(2):
        for k in range(2):
            a("v_permlane32_swap_b32 %s, %s" % (v(OUTP + 4 * m + k), v(OUTP + 4 * m + 2 + k)))
    for m in range(2):
        a("buffer_store_dwordx4 %s, %s, %s, %s offen offset:%d%s" % (v(OUTP + 4 * m, 4), v(vT), OUT, sXO, 32 * m, (" " + OPT["osc"]) if OPT["osc"] else ""))
else:
    for jj in range(4):
        a("buffer_store_dwordx2 %s, %s, %s, %s offen offset:%d%s" % (v(OUTP + 2 * jj, 2), vXOFF, OUT, sXO, 16 * jj, (" " + OPT["osc"]) if OPT["osc"] else ""))
stamp("end")
stamp("rt_end")
a("s_endpgm")

RS0 = 72


def unit_index(dst, n_s, n_imm):
    if n_s:
        a("s_add_u32 %s, %s, %s" % (dst, sRU, n_s))
        if n_imm:
            a("s_add_u32 %s, %s, %d" % (dst, dst, n_imm))
    else:
        a("s_add_u32 %s, %s, %d" % (dst, sRU, n_imm))
    a("s_and_b32 %s, %s, 7" % (dst, dst))
    a("s_lshl_b32 %s, %s, 3" % (sT5, sMH))
    a("s_add_u32 %s, %s, %s" % (dst, dst, sT5))


def w2_rows(n, to_reg=None, lds_s=None, lds_imm=0):
    for i in range(n):
        if to_reg is None:
            dma(vWO, W2, sT3, lds_s, lds_imm + i * 1024)
        elif not OPT["nobg"]:
            a("buffer_load_dwordx4 %s, %s, %s, %s offen" % (v(to_reg + 4 * i, 4), vWO, W2, sT3))
        if i < n - 1:
            a("s_add_u32 %s, %s, %d" % (sT3, sT3, 8 * 896))


def stage(nfull, nhalf, reg, parts=3):
    if parts & 1:
        unit_index(sT0, sKH, nfull)
        a("s_mul_i32 %s, %s, %d" % (sT3, sT0, 112 * 896))
        w2_rows(14, to_reg=reg)
    if not parts & 2:
        return
    unit_index(sT0, None, nhalf)
    sum_s(sT3, [(sT0, 112 * 896), (sKH, 7 * 8 * 896)])
    w2_rows(7, to_reg=reg + 56)


def dump(reg, n, addr, off):
    for i in range(n):
        a("ds_write_b128 %s, %s offset:%d" % (addr, v(reg + 4 * i, 4), off + 1024 * i))


def cold_quarter(slot):
    if OPT["cq"] == slot:
        lab = a.newlabel("Lnocq")
        a("s_cmp_ge_u32 %s, 14" % sJ)
        a("s_cbranch_scc1 %s" % lab)
        stage(2, 4, RS0, parts=1)
        a.label(lab)


a.label("Lhelper2")
a("s_barrier")
bg("C")
cold_quarter("C")
if OPT["b9b"]:
    a("s_barrier")
bg("C2")
cold_quarter("C2")
stamp("h_w1b")
if OPT["pt_h1"] == 1:
    sum_s(sT0, [(sG, 448 * 1024), (sJ, 28 * 1024), (sHW, 7168)], WS_H1)
    touch_lines(WS, sT0, 56, sc1=True)
C1 = 32
C1B = 40
cA, cB, cONE = "v68", "v69", "v70"
RS0 = 72
a("v_lshrrev_b32 %s, 1, %s" % (v(vT), vQ4))
a("v_lshlrev_b32 %s, 4, %s" % (v(vT), v(vT)))
a("v_and_b32 %s, 1, %s" % (v(vT + 1), vQ4))
a("v_lshl_add_u32 %s, %s, 2, %s" % (v(vT), v(vT + 1), v(vT)))
a("v_lshrrev_b32 %s, 2, %s" % (v(vT + 1), vR))
a("v_add_u32 %s, %s, %s" % (v(vT), v(vT), v(vT + 1)))
a("v_mul_u32_u24 %s, 224, %s" % (v(vT), v(vT)))
a("v_and_b32 %s, 3, %s" % (v(vT + 1), vL))
a("v_lshl_add_u32 %s, %s, 3, %s" % (cA, v(vT + 1), v(vT)))
a("s_mul_i32 %s, %s, 7168" % (sT0, sHW))
a("v_add_u32 %s, %s, %s" % (cA, sT0, cA))
a("v_add_u32 %s, %d, %s" % (cB, L_W1U, cA))
a("v_mov_b32 %s, 0x3f803f80" % cONE)
for nt in range(7):
    a("v_mov_b32 %s, 0" % v(C1 + nt))


def cs1_block(base, off):
    for nt in range(7):
        a("ds_read_b64_tr_b16 %s, %s offset:%d" % (v(C1B + 4 * nt, 2), base, off + nt * 32))
        a("ds_read_b64_tr_b16 %s, %s offset:%d" % (v(C1B + 4 * nt + 2, 2), base, off + nt * 32 + 8 * 224))
    a("s_waitcnt lgkmcnt(0)")
    for i in range(4):
        for nt in range(7):
            a("v_dot2c_f32_bf16 %s, %s, %s" % (v(C1 + nt), v(C1B + 4 * nt + i), cONE))


cs1_block(cA, 8 * 7168)
a("s_barrier")
a("s_waitcnt vmcnt(0)")
stamp("h_w1_landed")
cs1_block(cA, 0)
cs1_block(cA, 4 * 7168)
a("s_barrier")


lab = a.newlabel("Lnou")
a("s_cmp_ge_u32 %s, 2" % sHW)
a("s_cbranch_scc1 %s" % lab)
w1_block(12)
a("s_waitcnt vmcnt(0)")
cs1_block(cB, 0)
a.label(lab)
bg("D")
cold_quarter("D")
for nt in range(7):
    xhalf_sum(v(C1 + nt), v(vT))
    xrow_sum(v(C1 + nt), v(vT))
sum_s(sT0, [(sHW, 448)], L_CSP)
a("v_lshl_add_u32 %s, %s, 2, %s" % (v(vT), vR, sT0))
for nt in range(7):
    a("ds_write_b32 %s, %s offset:%d" % (v(vT), v(C1 + nt), 64 * nt))
a("s_waitcnt lgkmcnt(0)")
a("s_barrier")
lab = a.newlabel("Lnocs1")
a("s_cmp_lg_u32 %s, 4" % sWAVE)
a("s_cbranch_scc1 %s" % lab)
a("v_min_u32 %s, 55, %s" % (v(vT), vL))
a("v_lshlrev_b32 %s, 3, %s" % (v(vT), v(vT)))
a("v_add_u32 %s, %d, %s" % (v(vT + 1), L_CSP, v(vT)))
for k in range(4):
    a("ds_read_b64 %s, %s offset:%d" % (v(40 + 2 * k, 2), v(vT + 1), 448 * k))
a("s_waitcnt lgkmcnt(0)")
for c in range(2):
    a("v_add_f32 %s, %s, %s" % (v(40 + c), v(40 + c), v(42 + c)))
    a("v_add_f32 %s, %s, %s" % (v(44 + c), v(44 + c), v(46 + c)))
    a("v_add_f32 %s, %s, %s" % (v(40 + c), v(40 + c), v(44 + c)))
a("v_add_u32 %s, %d, %s" % (v(vT + 1), L_CS1, v(vT)))
a("ds_write_b64 %s, %s" % (v(vT + 1), v(40, 2)))
a("s_waitcnt lgkmcnt(0)")
a.label(lab)
a("s_barrier")
bg("D2")
a("s_cmp_ge_u32 %s, 14" % sJ)
a("s_cbranch_scc1 Lend")
unit_index(sT0, sKH, 0)
a("s_mul_i32 %s, %s, %d" % (sT3, sT0, 112 * 896))
a("s_mul_i32 %s, %s, %d" % (sT1, sHW, UNIT))
w2_rows(14, lds_s=sT1, lds_imm=L_WO)
stage(2, 4, RS0, parts=2 if OPT["cq"] else 3)
if OPT["r2early"]:
    stage(5, 7, RS0 + 84)
a("v_add_u32 v40, %s, %s" % (sT1, vL16))
a("v_add_u32 v41, %d, v40" % L_WO)
sum_s(sT1, [(sMH, UNIT), (sKH, 7168)])
a("v_add_u32 v42, %s, %s" % (sT1, vL16))
stamp("h_w2_issued")
NR = 0 if OPT["nobg"] else 21
NR1 = (NR // 3) if OPT["cq"] else NR
a("s_waitcnt vmcnt(%d)" % (NR1 + NR if OPT["r2early"] else NR1))
stamp("h_w2a_landed")
a("s_barrier")
a("s_waitcnt vmcnt(%d)" % (NR if OPT["r2early"] else 0))
dump(RS0, 14, "v40", 0)
dump(RS0 + 56, 7, "v42", 4 * UNIT)
if not OPT["r2early"]:
    stage(5, 7, RS0 + 84)
a("s_waitcnt lgkmcnt(0)")
stamp("h_w2b_landed")
a("s_barrier")
a("s_waitcnt vmcnt(0)")
dump(RS0 + 84, 14, "v41", 0)
a("s_waitcnt lgkmcnt(0)")
a("s_barrier")
dump(RS0 + 84 + 56, 7, "v42", 0)
a("s_waitcnt lgkmcnt(0)")
a("s_barrier")
a("s_barrier")
a.label("Lend")
a("s_endpgm")
a.raw("Lcode_end:")
a.raw('.section .rodata,"a"')
a.raw(".p2align 6")
a.raw(".amdhsa_kernel %s" % KNAME)
a.raw("  .amdhsa_next_free_vgpr 256")
a.raw("  .amdhsa_next_free_sgpr 102")
a.raw("  .amdhsa_accum_offset 256")
a.raw("  .amdhsa_group_segment_fixed_size 0")
a.raw("  .amdhsa_kernarg_size 72")
a.raw("  .amdhsa_user_sgpr_count 2")
a.raw("  .amdhsa_user_sgpr_kernarg_segment_ptr 1")
a.raw("  .amdhsa_system_sgpr_workgroup_id_x 1")
a.raw(".end_amdhsa_kernel")
open(sys.argv[1], "w").write(a.text())
json.dump(STAMPS, open(sys.argv[1] + ".stamps.json", "w"))
print("instructions:", a.count)
```

```python
import sys, math, struct, re, json
from asmlib import Asm, lds_conflicts

KNAME = "sequential_preLN__sliding_block__dense_activation_relu__prompt_kernel"
OPT = dict(stamps="", force_slow=0, nobg=0, t_w1=1, t_w2=1, pt_h1=0, up3=8, up4=8, up5=8, dry=0, psleep=0, gw=2, rotj=1, init2=1, pt_c=3, h1sc=1, bgA=1, ic=2, fc=4, P3="", A="wo", B="w18+tw1", C="w10+w14", C2="", D="", b9b=0, warm=0, kb=3, r2early=1, D2="", st4=0, ohsc=0, svc="wo", bm=0, prio=0, w2=1, diag=0, nt=0, sent=1, dbg=0, tlb=0, cq="D", hpt=0, bars=1, osc="nt", ow=2, xl=1, alias=3, shadow=1, esleep=4, epw=1, qp=0, abl=0, lazy=0, up4i=0, ap=0, wb=0, tp=1, kbq=12, ur=1)
for a_ in sys.argv[2:]:
    k_, v_ = a_.split("=")
    OPT[k_] = v_ if isinstance(OPT[k_], str) else int(v_)


AH = OPT["alias"] in (1, 2, 3)
A1 = OPT["alias"] in (1, 2)


def f32(x):
    return "0x%08x" % struct.unpack("<I", struct.pack("<f", x))[0]


QT = 336 * 256
WS_QKV = 0
WS_O = 6 << 20
WS_H = 8 << 20
WS_H1 = 10 << 20
WS_F1 = 17 << 20
WS_F2 = WS_F1 + 0x10000
WS_F3 = WS_F1 + 0x20000
WS_F4 = WS_F1 + 0x30000
WS_HS = WS_F1 + 0x40000
WS_ST = WS_F1 + 0x80000
WS_FD = WS_F1 + 0x90000
WS_TS = 18 << 20
WS_SIZE = 32 << 20

L_XR = 86016
L_KV = 0
L_Q = 12 * 4096
L_WO = 86016
L_W1U = 144384
L_SCR = 144384
L_CSP = 158720
L_MISC = 160768
L_CS = L_MISC
L_ST = L_MISC + 384
L_EP = L_ST + 1024
L_CS1 = L_EP + 64
LDS_BYTES = 163840
UNIT = 14336

X, WQKV, WO, W1, W2, OUT, DBG, WS = ["s[%d:%d]" % (4 + 4 * i, 7 + 4 * i) for i in range(8)]
sG, sJ, sWAVE, sR0, sXCC, sFAST = "s36", "s37", "s38", "s39", "s40", "s41"
sEP = "s[42:43]"
sEPL, sEPH = "s42", "s43"
sROT, sHW, sMH2, sNB, sKH, sMH = "s44", "s45", "s46", "s47", "s48", "s49"
sHI = "s[50:51]"
sLT48 = "s[52:53]"
sQ3 = "s[54:55]"
sHW1K, sHW4K = "s56", "s57"
sCNT = "s58"
sSLOT = "s59"
sT0, sT1, sT2, sT3, sT4, sT5 = "s60", "s61", "s62", "s63", "s64", "s65"
sTS = "s[66:67]"
sTSOFF = "s68"
sXO = "s69"
sCX, sCW = "s70", "s71"
sTILE, sTILE4 = "s72", "s73"
sRU = "s88"
sA, sB, sC, sD, sE, sF = "s74", "s75", "s76", "s77", "s78", "s79"

vL, vL31, vH, vR, vQ4, vL16, vTMP = "v1", "v2", "v3", "v4", "v5", "v6", "v7"
vXRES = 8
vFLG = 16
vT = 18
vZ = "v24"
vXOFF = "v25"
HP = 240


def v(i, n=1):
    return "v%d" % i if n == 1 else "v[%d:%d]" % (i, i + n - 1)


a = Asm()
STAMPS = {}


DBGW = {"t0": 2, "rt_start": 3, "m_b0": 4, "m_p1end": 5, "b8": 6, "o_pub": 7, "f2ok": 8, "h_pub": 9, "f3ok": 10, "h1_pub": 11, "f4ok": 12, "end": 13, "rt_end": 14}


def stamp(name):
    if OPT["dbg"] and name in DBGW:
        lab = a.newlabel("Ldbg")
        a("s_lshl_b32 s93, s2, 3")
        a("s_add_u32 s93, s93, %s" % sWAVE)
        a("s_cmp_lg_u32 s93, %d" % (OPT["dbg"] * 8))
        a("s_cbranch_scc1 %s" % lab)
        a(("s_memrealtime %s" if name.startswith("rt_") else "s_memtime %s") % sTS)
        a("s_waitcnt lgkmcnt(0)")
        a("v_mov_b32 v30, s66")
        a("v_mov_b32 v29, 0")
        a("s_mov_b64 exec, 1")
        a("buffer_store_dword v30, v29, %s, 0 offen offset:%d" % (DBG, DBGW[name] * 4))
        a("s_mov_b64 exec, -1")
        a.label(lab)
        return
    if not OPT["stamps"] or not (name == "t0" or re.fullmatch(OPT["stamps"], name)):
        return
    idx = STAMPS.setdefault(name, len(STAMPS))
    assert idx < 30
    a(("s_memrealtime %s" if name.startswith("rt_") else "s_memtime %s") % sTS)
    a("s_waitcnt lgkmcnt(0)")
    a("v_mov_b32 v30, s66")
    a("v_mov_b32 v31, s67")
    a("v_mov_b32 v29, 0")
    a("s_mov_b64 exec, 1")
    a("buffer_store_dwordx2 v[30:31], v29, %s, %s offen offset:%d" % (WS, sTSOFF, idx * 8))
    a("s_mov_b64 exec, -1")


def dma(voff, srd, soff, lds_s, lds_imm, inst=0, sc1=False):
    if OPT["nobg"] and srd in (WO, W1, W2):
        return
    m = lds_imm - inst
    if lds_s is None:
        a("s_mov_b32 m0, %d" % m)
    else:
        a("s_add_u32 m0, %s, %d" % (lds_s, m))
    nt = (srd == X and OPT["nt"] & 1) or (srd == WQKV and OPT["nt"] & 2) or (srd in (WO, W1) and OPT["nt"] & 16)
    a("buffer_load_dwordx4 %s, %s, %s offen%s%s%s lds" % (voff, srd, soff, (" offset:%d" % inst) if inst else "", " sc1" if sc1 else "", " nt" if nt else ""))


def sum_s(dst, terms, const=0):
    first = True
    for sreg, mult in terms:
        tgt = dst if first else sT5
        if mult == 1:
            if first:
                a("s_mov_b32 %s, %s" % (dst, sreg))
            else:
                a("s_add_u32 %s, %s, %s" % (dst, dst, sreg))
            first = False
            continue
        if mult & (mult - 1) == 0:
            a("s_lshl_b32 %s, %s, %d" % (tgt, sreg, mult.bit_length() - 1))
        else:
            a("s_mul_i32 %s, %s, %d" % (tgt, sreg, mult))
        if not first:
            a("s_add_u32 %s, %s, %s" % (dst, dst, sT5))
        first = False
    if const:
        a("s_add_u32 %s, %s, %d" % (dst, dst, const))


def poll(vaddr, vd, name):
    lp, dn = a.newlabel("Lpoll_" + name), a.newlabel("Lpolld_" + name)
    a("s_mov_b32 %s, 0x20000" % sCNT)
    a.label(lp)
    a("buffer_load_dwordx2 %s, %s, %s, 0 offen sc1" % (v(vd, 2), vaddr, WS))
    a("s_sub_u32 %s, %s, 1" % (sCNT, sCNT))
    a("s_waitcnt vmcnt(0)")
    a("v_and_b32 %s, -8, %s" % (v(vd), v(vd)))
    a("v_cmp_ne_u64 vcc, %s, %s" % (sEP, v(vd, 2)))
    a("s_cmp_eq_u32 %s, 0" % sCNT)
    a("s_cbranch_scc1 %s" % dn)
    if OPT["psleep"]:
        a("s_cbranch_vccz %s" % dn)
        a("s_sleep %d" % OPT["psleep"])
        a("s_branch %s" % lp)
    else:
        a("s_cbranch_vccnz %s" % lp)
    a.label(dn)


def flag_store(soff, sc):
    a("s_mov_b64 exec, 1")
    a("buffer_store_dwordx2 %s, %s, %s, %s offen%s" % (v(vFLG, 2), vZ, WS, soff, sc))
    a("s_mov_b64 exec, -1")


def publish(stores, flag_soff, data_sc1=False, mid=None):
    def both(fn):
        ls, le = a.newlabel("Lslow"), a.newlabel("Lpub")
        a("s_cmp_eq_u32 %s, 0" % sFAST)
        a("s_cbranch_scc1 %s" % ls)
        fn("")
        a("s_branch %s" % le)
        a.label(ls)
        fn(" sc1")
        a.label(le)

    def st(sc):
        for s_ in stores:
            a(s_.format(sc=sc))

    def fl(sc):
        a("s_waitcnt vmcnt(0)")
        flag_store(flag_soff, sc)
    if data_sc1:
        st(" sc1")
        if mid:
            mid()
        both(fl)
    elif mid:
        both(st)
        mid()
        both(fl)
    else:
        both(lambda sc: (st(sc), fl(sc)))


def bf16r(dst, src):
    a("v_cvt_pk_bf16_f32 %s, %s, %s" % (dst, src, src))
    a("v_and_b32 %s, 0xffff0000, %s" % (dst, dst))


def ln_finish(sx, sxx, negmean, rstd, t0):
    a("v_mul_f32 %s, %s, %s" % (sx, f32(1.0 / 448), sx))
    a("v_mul_f32 %s, %s, %s" % (sxx, f32(1.0 / 448), sxx))
    a("v_fma_f32 %s, -%s, %s, %s" % (sxx, sx, sx, sxx))
    a("v_max_f32 %s, 0, %s" % (sxx, sxx))
    bf16r(sxx, sxx)
    a("v_add_f32 %s, %s, %s" % (sxx, f32(1e-5), sxx))
    bf16r(sxx, sxx)
    a("v_sqrt_f32 %s, %s" % (sxx, sxx))
    bf16r(sxx, sxx)
    a("v_rcp_f32 %s, %s" % (rstd, sxx))
    bf16r(t0, sx)
    a("v_sub_f32 %s, 0, %s" % (negmean, t0))


def xhalf_sum(x, t):
    a("v_mov_b32 %s, %s" % (t, x))
    a("v_permlane32_swap_b32 %s, %s" % (x, t))
    a("v_add_f32 %s, %s, %s" % (x, x, t))


def xrow_sum(x, t):
    a("v_mov_b32 %s, %s" % (t, x))
    a("v_permlane16_swap_b32 %s, %s" % (x, t))
    a("v_add_f32 %s, %s, %s" % (x, x, t))


def get_epoch_spin(name):
    lp, dn = "Lep_%s" % name, "Lepd_%s" % name
    a("s_mov_b32 %s, 0x20000" % sCNT)
    a.label(lp)
    a("s_waitcnt vmcnt(0)")
    a("v_readfirstlane_b32 %s, %s" % (sEPL, v(vFLG)))
    a("v_readfirstlane_b32 %s, %s" % (sEPH, v(vFLG + 1)))
    a("s_cmp_lg_u32 %s, 0" % sEPL)
    a("s_cbranch_scc1 %s" % dn)
    if OPT["esleep"]:
        a("s_sleep %d" % OPT["esleep"])
    a("buffer_load_dwordx2 %s, %s, %s, 0 offen sc1" % (v(vFLG, 2), vZ, DBG))
    a("s_sub_u32 %s, %s, 1" % (sCNT, sCNT))
    a("s_cmp_lg_u32 %s, 0" % sCNT)
    a("s_cbranch_scc1 %s" % lp)
    a.label(dn)


hdr = open("sequential_preLN__sliding_block__dense_activation_relu__prompt.s.ref").read().split("\n")
for ln in hdr:
    if ln.startswith("; @launch"):
        a.raw("; @launch grid=(256,1,1) block=(512,1,1) lds=%d" % LDS_BYTES)
        break
    a.raw(ln)
a.raw('.amdgcn_target "amdgcn-amd-amdhsa--gfx950"')
a.raw(".text")
a.raw(".globl %s" % KNAME)
a.raw(".p2align 8")
a.raw(".type %s,@function" % KNAME)
a.raw("%s:" % KNAME)

if OPT["diag"] == 1:
    a("s_memtime s[96:97]")
a("s_load_dwordx16 s[72:87], s[0:1], 0")
a("s_load_dwordx2 s[88:89], s[0:1], 64")
a("s_getpc_b64 s[90:91]")
a.raw("Lpc:")
a("v_and_b32 %s, 63, v0" % vL)
a("v_lshrrev_b32 %s, 6, v0" % vTMP)
a("s_lshr_b32 %s, s2, 3" % sSLOT)
a("v_readfirstlane_b32 %s, %s" % (sWAVE, vTMP))
a("v_lshlrev_b32 %s, 7, %s" % (v(vT), vL))
a("s_cmp_ge_u32 s2, 256")
a("s_cbranch_scc1 Lend")
a("s_add_u32 %s, %s, %s" % (sT0, sSLOT, sWAVE))
a("s_and_b32 %s, %s, 7" % (sT0, sT0))
a("s_lshl_b32 %s, %s, 13" % (sT0, sT0))
a("v_add_u32 %s, %s, %s" % (v(vT), sT0, v(vT)))
a("v_min_u32 %s, Lcode_end-Lpc-4, %s" % (v(vT), v(vT)))
a("v_mov_b32 %s, s91" % v(vT + 1))
a("v_add_co_u32 %s, vcc, s90, %s" % (v(vT), v(vT)))
a("v_addc_co_u32 %s, vcc, 0, %s, vcc" % (v(vT + 1), v(vT + 1)))
a("s_cmp_ge_u32 %s, 2" % sWAVE)
a("s_cbranch_scc1 Lnocp")
a("global_load_dword v26, %s, off" % v(vT, 2))
a.label("Lnocp")
a("v_and_b32 %s, 31, v0" % vL31)
a("v_bfe_u32 %s, v0, 5, 1" % vH)
a("v_and_b32 %s, 15, v0" % vR)
a("v_bfe_u32 %s, v0, 4, 2" % vQ4)
a("v_lshlrev_b32 %s, 4, %s" % (vL16, vL))
a("v_mov_b32 %s, 0" % vZ)
a("s_and_b32 %s, s2, 7" % sT0)
a("s_lshr_b32 %s, %s, 4" % (sT2, sSLOT))
a("s_lshl_b32 %s, %s, 1" % (sG, sT0))
a("s_add_u32 %s, %s, %s" % (sG, sG, sT2))
a("s_and_b32 %s, %s, 15" % (sJ, sSLOT))
a("s_lshl_b32 %s, %s, 7" % (sR0, sG))
a("s_and_b32 %s, %s, 3" % (sHW, sWAVE))
a("s_lshl_b32 %s, %s, 10" % (sHW1K, sHW))
a("s_lshl_b32 %s, %s, 12" % (sHW4K, sHW))
if OPT["rotj"]:
    a("s_mul_i32 %s, %s, 3" % (sT3, sT2))
    a("s_add_u32 %s, %s, %s" % (sROT, sJ, sT3))
    for _ in range(2):
        a("s_sub_u32 %s, %s, 7" % (sT3, sROT))
        a("s_cmp_ge_u32 %s, 7" % sROT)
        a("s_cselect_b32 %s, %s, %s" % (sROT, sT3, sROT))
else:
    a("s_lshl_b32 %s, %s, 2" % (sROT, sT2))
vX = [32, 33, 34, 35]
vW = [36, 37, 38]
a("v_lshrrev_b32 %s, 3, %s" % (v(vT), vL))
a("s_lshl_b32 %s, %s, 5" % (sT0, sHW))
a("s_add_u32 %s, %s, %s" % (sT0, sT0, sR0))
a("v_add_u32 %s, %s, %s" % (v(vT), sT0, v(vT)))
a("v_mul_u32_u24 %s, 896, %s" % (v(vT), v(vT)))
a("v_and_b32 %s, 7, %s" % (v(vT + 1), vL))
a("v_xor_b32 %s, %s, %s" % (v(vT + 1), v(vT + 1), vQ4))
a("v_xor_b32 %s, 4, %s" % (v(vT + 2), v(vT + 1)))
for ii in range(4):
    a("v_lshl_add_u32 %s, %s, 4, %s" % (v(vX[ii]), v(vT + 1 + (ii & 1)), v(vT)))
    if ii:
        a("v_add_u32 %s, %d, %s" % (v(vX[ii]), ii * 8 * 896, v(vX[ii])))
a("s_mul_i32 %s, %s, %d" % (sT0, sHW, 16 * 2688))
a("s_mul_i32 %s, %s, 192" % (sT1, sJ))
a("s_add_u32 %s, %s, %s" % (sT0, sT0, sT1))
M12 = (1 << 16) // 12 + 1
for i in range(192):
    assert (i * M12) >> 16 == i // 12
for k in range(3):
    a("v_add_u32 %s, %d, %s" % (v(vT), 64 * k, vL))
    a("v_mul_u32_u24 %s, %d, %s" % (v(vT + 1), M12, v(vT)))
    a("v_lshrrev_b32 %s, 16, %s" % (v(vT + 1), v(vT + 1)))
    a("v_mul_u32_u24 %s, %d, %s" % (v(vT + 1), 2688 - 192, v(vT + 1)))
    a("v_lshl_add_u32 %s, %s, 4, %s" % (v(vW[k]), v(vT), v(vT + 1)))
    a("v_add_u32 %s, %s, %s" % (v(vW[k]), sT0, v(vW[k])))
if OPT["warm"]:
    a("s_mul_i32 %s, %s, 14" % (sT0, sT2))
    a("s_add_u32 %s, %s, %s" % (sT0, sT0, sJ))
    a("s_lshl_b32 %s, %s, 3" % (sT0, sT0))
    a("s_add_u32 %s, %s, %s" % (sT0, sT0, sWAVE))
    if OPT["warm"] in (1, 4):
        a("v_min_u32 v39, 41, %s" % vL)
        a("v_mul_u32_u24 v39, 224, v39")
        a("v_add_u32 v39, %s, v39" % sT0)
        a("v_lshlrev_b32 v39, 7, v39")
    else:
        a("s_mul_i32 %s, %s, 42" % (sT0, sT0))
        a("v_min_u32 v39, 41, %s" % vL)
        a("v_add_u32 v39, %s, v39" % sT0)
        a("v_lshlrev_b32 v39, 7, v39")
    sum_s(sT0, [(sJ, 8), (sWAVE, 1)])
    sum_s(sT1, [(sT0, 1024), (sR0, 896)])
    a("v_and_b32 v40, 7, %s" % vL)
    a("v_lshlrev_b32 v40, 7, v40")
    a("v_add_u32 v40, %s, v40" % sT1)
    a("s_mov_b32 %s, 0" % sROT)
a("s_mov_b32 %s, %s" % (sCX, sROT))
a("s_mov_b32 %s, %s" % (sCW, sROT))
a("s_mul_i32 s92, %s, 3072" % sHW)
sizes = [1835008, 1204224, 401408, 1605632, 1605632, 1835008, 256, WS_SIZE]
srcs = [72, 74, 76, 80, 82, 84, 86, 88]
for i in range(8):
    a("s_mov_b32 s%d, %d" % (4 + 4 * i + 2, sizes[i]))
    a("s_mov_b32 s%d, 0x00020000" % (4 + 4 * i + 3))
a("s_waitcnt lgkmcnt(0)")
for i in range(8):
    a("s_mov_b64 s[%d:%d], s[%d:%d]" % (4 + 4 * i, 5 + 4 * i, srcs[i], srcs[i] + 1))
if OPT["epw"]:
    a("s_or_b32 %s, s2, %s" % (sT0, sWAVE))
    a("s_cmp_lg_u32 %s, 0" % sT0)
    a("s_cbranch_scc1 Lnoep")
    a("s_memrealtime s[94:95]")
    a("s_waitcnt lgkmcnt(0)")
    a("s_lshl_b32 %s, s94, 4" % sT1)
    a("s_or_b32 %s, %s, 8" % (sT1, sT1))
    a("s_mul_i32 %s, s94, 0x9e3779b1" % sT2)
    a("s_add_u32 %s, %s, s95" % (sT2, sT2))
    a("v_mov_b32 %s, %s" % (v(vT), sT1))
    a("v_mov_b32 %s, %s" % (v(vT + 1), sT2))
    a("s_mov_b64 exec, 1")
    a("buffer_store_dwordx2 %s, %s, %s, 0 offen sc1" % (v(vT, 2), vZ, DBG))
    a("s_mov_b64 exec, -1")
    a.label("Lnoep")
a("s_cmp_ge_u32 %s, 14" % sJ)
a("s_cbranch_scc1 Lservice")
if OPT["warm"]:
    if OPT["warm"] >= 3:
        a("buffer_load_dword v26, v40, %s, 0 offen" % X)
    a("buffer_load_dword v26, v39, %s, 0 offen" % WQKV)
a("s_cmp_lt_u32 %s, 4" % sWAVE)
a("s_cbranch_scc1 Lmfma")


def common_setup():
    a("s_lshr_b32 %s, %s, 1" % (sKH, sHW))
    a("s_and_b32 %s, %s, 1" % (sMH, sHW))
    a("s_cmp_ge_u32 %s, 7" % sJ)
    a("s_cselect_b32 %s, 1, 0" % sMH2)
    a("s_mul_i32 %s, %s, 7" % (sT3, sMH2))
    a("s_sub_u32 %s, %s, %s" % (sNB, sJ, sT3))
    a("s_min_u32 %s, %s, 6" % (sNB, sNB))
    a("s_getreg_b32 %s, hwreg(HW_REG_XCC_ID)" % sXCC)
    a("s_and_b32 %s, %s, 7" % (sXCC, sXCC))
    a("s_mov_b32 s50, 0")
    a("s_mov_b32 s51, -1")
    a("s_mov_b32 s52, -1")
    a("s_mov_b32 s53, 0xffff")
    a("s_mov_b32 s54, 0")
    a("s_mov_b32 s55, 0xffff0000")
    a("s_mov_b32 %s, 0" % sFAST)
    a("s_mov_b32 %s, 0" % sEPL)
    a("s_mov_b32 %s, 0" % sEPH)
    if OPT["stamps"]:
        sum_s(sTSOFF, [("s2", 2048), (sWAVE, 256)], WS_TS)
    sum_s(sTILE, [(sG, 4), (sMH2, 2), (sMH, 1)])
    sum_s(sXO, [(sTILE, 32 * 896), (sNB, 128), (sKH, 64)])
    sum_s(sTILE4, [(sG, 4), (sHW, 1)])
    a("s_and_b32 %s, %s, 1" % (sT0, sG))
    sum_s(sRU, [(sT0, 4), (sMH2, 2), (sNB, 1)])
    a("v_mul_u32_u24 %s, 896, %s" % (vXOFF, vL31))
    a("v_lshl_add_u32 %s, %s, 3, %s" % (vXOFF, vH, vXOFF))
    a("v_lshlrev_b32 %s, 7, %s" % (v(HP + 8), vL))
    a("v_lshrrev_b32 %s, 3, %s" % (v(vT), vL))
    a("v_mul_u32_u24 %s, 896, %s" % (v(vT), v(vT)))
    a("v_bfe_u32 %s, %s, 4, 1" % (v(vT + 1), vL))
    a("v_lshlrev_b32 %s, 2, %s" % (v(vT + 1), v(vT + 1)))
    a("v_and_b32 %s, 7, %s" % (v(vT + 2), vL))
    a("v_xor_b32 %s, %s, %s" % (v(vT + 1), v(vT + 1), v(vT + 2)))
    a("v_lshl_add_u32 %s, %s, 4, %s" % (v(HP), v(vT + 1), v(vT)))
    a("s_lshl_b32 %s, %s, 7" % (sT0, sNB))
    a("v_add_u32 %s, %s, %s" % (v(HP), sT0, v(HP)))
    a("s_mul_i32 %s, %s, 224" % (sT0, sJ))
    for k in range(7):
        a("v_add_u32 %s, %d, %s" % (v(vT), 64 * k, vL))
        a("v_mul_u32_u24 %s, %d, %s" % (v(vT + 1), (1 << 16) // 14 + 1, v(vT)))
        a("v_lshrrev_b32 %s, 16, %s" % (v(vT + 1), v(vT + 1)))
        a("v_mul_u32_u24 %s, %d, %s" % (v(vT + 1), 3584 - 224, v(vT + 1)))
        a("v_lshl_add_u32 %s, %s, 4, %s" % (v(HP + 1 + k), v(vT), v(vT + 1)))
        a("v_add_u32 %s, %s, %s" % (v(HP + 1 + k), sT0, v(HP + 1 + k)))


for i in range(448):
    assert (i * ((1 << 16) // 14 + 1)) >> 16 == i // 14
vWO = v(HP)
vW1 = [HP + 1 + k for k in range(7)]
vTCH = v(HP + 8)


def tr_base_192(dst, t0):
    a("v_lshrrev_b32 %s, 2, %s" % (t0, vR))
    a("v_lshl_add_u32 %s, %s, 3, %s" % (t0, vH, t0))
    a("v_mul_u32_u24 %s, 192, %s" % (dst, t0))
    a("v_bfe_u32 %s, %s, 4, 1" % (t0, vL))
    a("v_lshl_add_u32 %s, %s, 5, %s" % (dst, t0, dst))
    a("v_and_b32 %s, 3, %s" % (t0, vL))
    a("v_lshl_add_u32 %s, %s, 3, %s" % (dst, t0, dst))


assert lds_conflicts([(8 * (l >> 5) + ((l & 15) >> 2)) * 192 + ((l >> 4) & 1) * 32 + (l & 3) * 8 for l in range(64)], "tr") == 0


def w1_block(base):
    if OPT["abl"] & 1 and base != 8:
        return
    a("s_add_u32 %s, %s, %d" % (sT0, sHW, base))
    a("s_mul_i32 %s, %s, %d" % (sT1, sT0, 32 * 3584))
    a("s_mul_i32 %s, %s, 7168" % (sT2, sHW))
    ldsb = base * 7168 if base < 12 else L_W1U + (base - 12) * 7168
    for k in range(7):
        dma(v(vW1[k]), W1, sT1, sT2, ldsb + k * 1024)


def touch_lines(srd, s_base, n, sc1=False):
    cnt = 0
    done = 0
    while done < n:
        k = min(64, n - done)
        if k < 64:
            a("v_min_u32 %s, %d, %s" % (v(vT), (k - 1) * 128, vTCH))
            vo = v(vT)
        else:
            vo = vTCH
        nt = (srd == WS and OPT["nt"] & 8) or (srd != WS and OPT["nt"] & 4)
        a("buffer_load_dword v26, %s, %s, %s offen%s%s" % (vo, srd, s_base, " sc1" if sc1 else "", " nt" if nt else ""))
        cnt += 1
        done += k
        if done < n:
            a("s_add_u32 %s, %s, %d" % (s_base, s_base, 64 * 128))
    return cnt


def touch_range(srd, base, total):
    if OPT["nobg"]:
        return 0
    per = total // 128 // 128
    assert per * 128 * 128 == total, (total, per)
    sum_s(sT0, [(sSLOT, 4 * per * 128), (sHW, per * 128)], base)
    return touch_lines(srd, sT0, per)


def wo_dma():
    a("s_mul_i32 %s, %s, %d" % (sT0, sHW, 8 * 896))
    for k in range(15):
        if k == 14:
            a("s_mov_b32 %s, %d" % (sT0, 56 * 8 * 896))
            dma(vWO, WO, sT0, None, L_WO + 56 * 1024)
        else:
            dma(vWO, WO, sT0, sHW1K, L_WO + k * 4096)
            a("s_add_u32 %s, %s, %d" % (sT0, sT0, 32 * 896))


def bg(slot):
    n = 0
    for it in [x for x in OPT[slot].split("+") if x]:
        if it == "wo":
            wo_dma(); n += 15
        elif it == "w18":
            w1_block(8); n += 7
        elif it == "w10":
            w1_block(0); n += 7
        elif it == "w14":
            w1_block(4); n += 7
        elif it == "tw1":
            n += touch_range(W1, 0, 256 * 3584)
        elif it == "tw1u":
            n += touch_range(W1, 384 * 3584, 64 * 3584)
        elif it == "tw1a":
            n += touch_range(W1, 0, 1605632)
        elif it == "two":
            n += touch_range(WO, 0, 393216)
        elif it == "tw2":
            n += touch_range(W2, 0, 1605632)
        elif it == "tw2a":
            n += touch_range(W2, 0, 802816)
        elif it == "tw2b":
            n += touch_range(W2, 802816, 802816)
        elif it == "tw2r":
            n += touch_range(W2, 393216, 1605632 - 393216 - 0 * 16384) if False else touch_range(W2, 393216, 1212416)
        elif it == "w2a":
            pass
        else:
            raise ValueError(it)
    return n


def vpad_prefill():
    a("v_mov_b32 %s, 0x3f80" % v(vT + 2))
    a("v_mov_b32 %s, 0" % v(vT + 3))
    a("s_mul_i32 %s, %s, %d" % (sT0, sHW, 3 * 4096))
    a("v_lshlrev_b32 %s, 3, %s" % (v(vT), vL31))
    a("v_lshl_add_u32 %s, %s, 12, %s" % (v(vT), vH, v(vT)))
    a("v_add_u32 %s, %s, %s" % (v(vT), sT0, v(vT)))
    a("ds_write_b64 %s, %s offset:%d" % (v(vT), v(vT + 2, 2), L_KV + 2048 + 1792))
    a("ds_write_b64 %s, %s offset:%d" % (v(vT), v(vT + 2, 2), L_KV + 4096 + 2048 + 1792))


sFA, sFB, sFC, sFD = "s84", "s85", "s86", "s87"
vIF = 236


def fetch_setup():
    a("v_lshrrev_b32 %s, 3, %s" % (v(vT), vL))
    a("v_min_u32 %s, 2, %s" % (v(vT), v(vT)))
    a("v_bfe_u32 %s, %s, 1, 2" % (v(vT + 1), vL))
    a("v_min_u32 %s, 2, %s" % (v(vT + 1), v(vT + 1)))
    a("v_cmp_gt_u32 vcc, 2, %s" % v(vT))
    a("v_max_u32 %s, 1, %s" % (v(vT + 2), v(vT + 1)))
    a("v_cndmask_b32 %s, %s, %s, vcc" % (v(vT + 1), v(vT + 1), v(vT + 2)))
    a("v_mul_u32_u24 %s, 448, %s" % (v(vT + 1), v(vT + 1)))
    a("v_and_b32 %s, 1, %s" % (v(vT + 2), vL))
    a("v_mul_u32_u24 %s, 31, %s" % (v(vT + 2), v(vT + 2)))
    a("s_mul_i32 %s, %s, 7" % (sT0, sJ))
    a("s_lshr_b32 %s, %s, 1" % (sE, sT0))
    a("s_lshl_b32 %s, %s, 3" % (sT0, sE))
    a("v_add3_u32 %s, %s, %s, %s" % (v(vT + 1), v(vT + 1), v(vT + 2), sT0))
    M96 = (1 << 18) // 96 + 1
    for i in range(1348):
        assert (i * M96) >> 18 == i // 96
    a("v_mul_u32_u24 %s, %d, %s" % (v(vT + 1), M96, v(vT + 1)))
    a("v_lshrrev_b32 %s, 18, %s" % (v(vT + 1), v(vT + 1)))
    a("v_min_u32 %s, 13, %s" % (v(vT + 1), v(vT + 1)))
    a("v_add_u32 %s, %s, %s" % (v(vT + 2), sG, v(vT)))
    a("v_cmp_gt_u32 vcc, 2, %s" % v(vT + 2))
    a("v_subrev_u32 %s, 2, %s" % (v(vT + 2), v(vT + 2)))
    a("v_mov_b32 %s, %s" % (v(vT + 3), sG))
    a("v_cndmask_b32 %s, %s, %s, vcc" % (v(vT + 2), v(vT + 2), v(vT + 3)))
    a("v_lshlrev_b32 %s, 9, %s" % (v(vT + 2), v(vT + 2)))
    a("v_lshl_add_u32 %s, %s, 3, %s" % (v(vT + 2), v(vT + 1), v(vT + 2)))
    sum_s(sT0, [(sHW, 128)], WS_F1)
    a("v_add_u32 v27, %s, %s" % (sT0, v(vT + 2)))
    sum_s(sFC, [(sTILE4, QT), (sE, 512)], WS_QKV)
    a("s_sub_u32 %s, %s, %d" % (sFB, sFC, 4 * QT))
    a("s_sub_u32 %s, %s, %d" % (sFA, sFC, 8 * QT))
    a("s_cmp_lt_u32 %s, 1" % sG)
    a("s_cselect_b32 %s, 0x40000000, %s" % (sFB, sFB))
    a("s_cmp_lt_u32 %s, 2" % sG)
    a("s_cselect_b32 %s, 0x40000000, %s" % (sFA, sFA))
    a("s_lshl_b32 %s, %s, 11" % (sFD, sHW))


SC, KB, QF, M0R, M16R, PF, VB, OA = 32, 100, 124, 128, 132, 136, 148, 172
LS, ONE4 = 196, 200
vKA = [180, 181]
vVA = [184, 185]
vQA = "v186"
vNEG, vGFA, vGF, vOA = "v188", "v189", 190, "v192"
sFQ, sFO = "s[80:81]", "s[82:83]"


def p2_setup():
    a("s_mul_i32 %s, %s, 7" % (sT4, sJ))
    a("s_lshr_b32 %s, %s, 1" % (sT4, sT4))
    a("v_add_u32 %s, %s, %s" % (v(vT + 3), sT4, vQ4))
    a("v_and_b32 %s, 1, %s" % (v(vT + 3), v(vT + 3)))
    a("v_mul_u32_u24 %s, 12, %s" % (v(vT + 3), v(vT + 3)))
    a("v_bfe_u32 %s, %s, 1, 1" % (v(vT + 4), vR))
    a("v_add_u32 %s, %s, %s" % (v(vT + 5), sT4, v(vT + 4)))
    a("v_and_b32 %s, 1, %s" % (v(vT + 5), v(vT + 5)))
    a("v_mul_u32_u24 %s, 12, %s" % (v(vT + 5), v(vT + 5)))
    for par in range(2):
        a("s_add_u32 %s, %s, %d" % (sT0, sWAVE, par))
        a("s_lshr_b32 %s, %s, 1" % (sT1, sT0))
        a("s_lshl_b32 %s, %s, 12" % (sT1, sT1))
        a("s_and_b32 %s, %s, 1" % (sT0, sT0))
        a("s_lshl_b32 %s, %s, 4" % (sT0, sT0))
        a("v_add_u32 %s, %s, %s" % (v(vT), sT0, vR))
        a("v_xor_b32 %s, %s, %s" % (v(vT), v(vT), v(vT + 3)))
        a("v_lshlrev_b32 %s, 4, %s" % (v(vT), v(vT)))
        a("v_lshl_add_u32 %s, %s, 9, %s" % (v(vT), vQ4, v(vT)))
        a("v_add_u32 %s, %s, %s" % (v(vKA[par]), sT1, v(vT)))
        if par == 0:
            a("s_lshr_b32 %s, %s, 1" % (sT2, sT1))
            a("s_add_u32 %s, %s, %d" % (sT2, sT2, L_Q))
            a("v_add_u32 %s, %s, %s" % (vQA, sT2, v(vT)))
        a("v_lshrrev_b32 %s, 2, %s" % (v(vT), vR))
        a("v_lshl_add_u32 %s, %s, 2, %s" % (v(vT), vQ4, v(vT)))
        a("v_add_u32 %s, %s, %s" % (v(vT), sT0, v(vT)))
        a("v_xor_b32 %s, %s, %s" % (v(vT), v(vT), v(vT + 5)))
        a("v_lshlrev_b32 %s, 4, %s" % (v(vT), v(vT)))
        a("v_lshl_add_u32 %s, %s, 9, %s" % (v(vT), v(vT + 4), v(vT)))
        a("v_and_b32 %s, 1, %s" % (v(vT + 1), vR))
        a("v_lshl_add_u32 %s, %s, 3, %s" % (v(vT), v(vT + 1), v(vT)))
        a("v_add_u32 %s, %s, %s" % (v(vVA[par]), sT1, v(vT)))
    for o_ in range(2):
        for half in range(2):
            assert lds_conflicts([(l >> 4) * 512 + (((16 * half + (l & 15)) ^ (12 * ((o_ + (l >> 4)) & 1))) * 16) for l in range(64)], "b128") == 0
            assert lds_conflicts([((l >> 1) & 1) * 512 + (((16 * half + 4 * (l >> 4) + ((l & 15) >> 2)) ^ (12 * ((o_ + ((l >> 1) & 1)) & 1))) * 16) + (l & 1) * 8 for l in range(64)], "tr") == 0
    a("s_and_b32 %s, %s, 1" % (sT0, sJ))
    a("s_cmp_eq_u32 %s, 0" % sT0)
    a("s_cselect_b32 s80, 0, 0xffff")
    a("s_mov_b32 s81, 0")
    a("s_mov_b32 s82, 0")
    a("s_cselect_b32 s83, 0xffff0000, 0")
    for k in range(4):
        a("v_mov_b32 %s, 0x3f803f80" % v(ONE4 + k))
    a("v_mov_b32 %s, 0xf149f2ca" % vNEG)
    a("v_lshlrev_b32 %s, 2, %s" % (v(vT), vQ4))
    a("v_sub_u32 %s, %s, %s" % (v(vT), v(vT), vR))
    for c in range(4):
        a("v_cmp_lt_i32 vcc, %d, %s" % (-c, v(vT)))
        a("v_cndmask_b32 %s, %s, %s, vcc" % (v(M0R + c), vNEG, vZ))
        a("v_cndmask_b32 %s, %s, %s, vcc" % (v(M16R + c), vZ, vNEG))
    sum_s(sT0, [(sG, 512)], WS_F1)
    a("v_lshlrev_b32 %s, 3, %s" % (vGFA, vR))
    a("v_add_u32 %s, %s, %s" % (vGFA, sT0, vGFA))
    a("s_lshr_b32 %s, %s, 1" % (sT1, sWAVE))
    a("s_and_b32 %s, %s, 1" % (sT2, sWAVE))
    sum_s(sE, [(sG, 131072), (sT1, 32768), (sJ, 2048), (sT2, 256)], WS_O)
    sum_s(sF, [(sG, 1024), (sWAVE, 128), (sJ, 8)], WS_F2)
    a("v_lshlrev_b32 %s, 9, %s" % (vOA, vQ4))
    a("v_lshl_add_u32 %s, %s, 4, %s" % (vOA, vR, vOA))
    a("v_mov_b32 %s, 0" % v(PF + 8 + 2))
    a("v_mov_b32 %s, 0" % v(PF + 8 + 3))




def adv(s):
    a("s_add_u32 %s, %s, 1" % (s, s))
    a("s_cmp_eq_u32 %s, 7" % s)
    a("s_cselect_b32 %s, 0, %s" % (s, s))


def issue_w(c):
    a("s_mul_i32 %s, %s, %d" % (sT1, sCW, 64 * 2688))
    for k in range(3):
        dma(v(vW[k]), WQKV, sT1, "s92", c * 12288 + k * 1024)
    adv(sCW)


def issue_x(c):
    a("s_lshl_b32 %s, %s, 7" % (sT0, sCX))
    for ii in range(4):
        dma(v(vX[ii]), X, sT0, sHW4K, L_XR + (c % 4) * 16384 + ii * 1024)
    adv(sCX)


GW = [{0: [0, 1], 1: [2, 3], 2: [4], 3: [5], 4: [6], 5: [], 6: []},
      {0: [0], 1: [1], 2: [2, 3], 3: [4, 5], 4: [6], 5: [], 6: []},
      {0: [0], 1: [1, 2], 2: [3, 4], 3: [5], 4: [6], 5: [], 6: []}][OPT["gw"]]


def issue_group(c):
    ws = list(GW[c])
    while ws and (ws[0] <= c or (OPT["gw"] == 0 and c <= 1)):
        issue_w(ws.pop(0))
    issue_x(c)
    for w_ in ws:
        issue_w(w_)
    return 4 + 3 * len(GW[c])


if OPT["warm"]:
    common_setup()
    a("s_waitcnt vmcnt(0)")
if OPT["diag"] == 1:
    a("s_memtime s[98:99]")
    issue_w(0)
    a("s_waitcnt vmcnt(0)")
    a("s_memtime s[100:101]")
    a("s_mov_b32 %s, %s" % (sCW, sROT))
groups = [issue_group(0), issue_group(1)]
if not OPT["warm"]:
    common_setup()
if OPT["diag"] == 1:
    a("s_waitcnt lgkmcnt(0)")
    for nm, r_ in (("d_entry", 96), ("d_karg", 98), ("d_first", 100)):
        idx = STAMPS.setdefault("t0", 0)
        idx = STAMPS.setdefault(nm, len(STAMPS))
        a("v_mov_b32 v30, s%d" % r_)
        a("v_mov_b32 v31, s%d" % (r_ + 1))
        a("s_mov_b64 exec, 1")
        a("buffer_store_dwordx2 v[30:31], %s, %s, %s offen offset:%d" % (vZ, WS, sTSOFF, idx * 8))
        a("s_mov_b64 exec, -1")
    groups[-1] += 3
stamp("t0")
stamp("rt_start")
hCS = [48, 49, 50, 51, 52, 53]
hWA, hWA2 = "v54", "v55"
HBW = 60
hST = 76
for r_ in hCS:
    a("v_mov_b32 %s, 0" % v(r_))
tr_base_192(hWA, v(vT))
a("v_add_u32 %s, s92, %s" % (hWA, hWA))
a("v_add_u32 %s, %d, %s" % (hWA2, 5 * 12288, hWA))
a("v_lshlrev_b32 v56, 4, %s" % vL31)
a("v_mov_b32 v57, 0x3f803f80")
sum_s(sA, [(sTILE4, 512)], WS_ST)


def colsum_w(c):
    if OPT["dry"] & 1:
        return
    base, off = (hWA2, (c - 5) * 12288) if c >= 5 else (hWA, c * 12288)
    for p3 in range(3):
        for hh in range(2):
            a("ds_read_b64_tr_b16 %s, %s offset:%d" % (v(HBW + 4 * p3 + 2 * hh, 2), base, off + p3 * 64 + hh * 768))
    a("s_waitcnt lgkmcnt(0)")
    for i in range(4):
        for p3 in range(3):
            a("v_dot2c_f32_bf16 %s, %s, v57" % (v(hCS[2 * p3]), v(HBW + 4 * p3 + i)))


for c in range(7):
    after = sum(groups[c + 1:])
    if c == 6:
        a("v_mov_b32 %s, %d" % (v(vT), L_EP))
        a("ds_read_b64 %s, %s" % (v(vFLG, 2), v(vT)))
        a("s_waitcnt lgkmcnt(0)")
        a("v_readfirstlane_b32 %s, %s" % (sEPL, v(vFLG)))
        a("v_readfirstlane_b32 %s, %s" % (sEPH, v(vFLG + 1)))
        a("v_or_b32 %s, %s, %s" % (v(vFLG), sXCC, v(vFLG)))
        a("s_mov_b32 %s, 0x20000" % sCNT)
        a("s_waitcnt vmcnt(%d)" % sum(groups[8:]))
        a.label("Lst_loop")
        a("v_cmp_ne_u32 vcc, %s, %s" % (sEPL, v(hST + 1)))
        a("v_cmp_ne_u32 s[94:95], %s, %s" % (sEPH, v(hST + 3)))
        a("s_or_b64 vcc, vcc, s[94:95]")
        a("s_cbranch_scc0 Lst_ok")
        a("buffer_load_dwordx4 %s, v56, %s, %s offen sc1" % (v(hST, 4), WS, sA))
        a("s_sub_u32 %s, %s, 1" % (sCNT, sCNT))
        a("s_waitcnt vmcnt(0)")
        a("s_cmp_lg_u32 %s, 0" % sCNT)
        a("s_cbranch_scc1 Lst_loop")
        a.label("Lst_ok")
        sum_s(sT0, [(sHW, 256)], L_ST)
        a("v_lshl_add_u32 %s, %s, 2, %s" % (v(vT), vL31, sT0))
        a("ds_write_b32 %s, %s" % (v(vT), v(hST)))
        a("ds_write_b32 %s, %s offset:128" % (v(vT), v(hST + 2)))
        a("s_waitcnt lgkmcnt(0)")
    else:
        a("s_waitcnt vmcnt(%d)" % after)
    a("s_barrier")
    stamp("h_b%d" % c)
    if c == 0:
        groups.append(issue_group(2))
    if c + 3 <= 6:
        groups.append(issue_group(c + 3))
    if c == 3:
        a("buffer_load_dwordx4 %s, v56, %s, %s offen sc1" % (v(hST, 4), WS, sA))
        groups.append(1)
    if c == 3 and OPT["hpt"] and not OPT["ohsc"]:
        sum_s(sT0, [(sG, 114688), (sJ, 8192), (sHW, 2048)], WS_H)
        groups.append(touch_lines(WS, sT0, 16, sc1=True))
    if c == 3 and OPT["P3"]:
        groups.append(bg("P3"))
    if c == OPT["pt_c"] and OPT["pt_h1"] == 3:
        sum_s(sT0, [(sG, 448 * 1024), (sJ, 32 * 1024), (sHW, 8192)], WS_H1)
        groups.append(touch_lines(WS, sT0, 64, sc1=True))
    for w_ in GW[c]:
        colsum_w(w_)
    if c == 4:
        for p3 in range(3):
            a("v_add_f32 %s, %s, %s" % (v(hCS[2 * p3]), v(hCS[2 * p3]), v(hCS[2 * p3 + 1])))
            xhalf_sum(v(hCS[2 * p3]), v(vT))
        sum_s(sT0, [(sHW, 384)], L_CSP)
        a("v_lshl_add_u32 %s, %s, 2, %s" % (v(vT), vL31, sT0))
        for p3 in range(3):
            a("ds_write_b32 %s, %s offset:%d" % (v(vT), v(hCS[2 * p3]), 128 * p3))
        a("s_waitcnt lgkmcnt(0)")
    if c == 5:
        a("s_min_u32 %s, %s, 2" % (sT0, sHW))
        a("s_lshl_b32 %s, %s, 7" % (sT0, sT0))
        a("s_add_u32 %s, %s, %d" % (sT1, sT0, L_CSP))
        a("v_lshl_add_u32 %s, %s, 2, %s" % (v(vT + 4), vL31, sT1))
        a("s_add_u32 %s, %s, %d" % (sT1, sT0, L_CS))
        a("v_lshl_add_u32 %s, %s, 2, %s" % (v(vT + 5), vL31, sT1))
        for k in range(4):
            a("ds_read_b32 %s, %s offset:%d" % (v(HBW + k), v(vT + 4), 384 * k))
        a("s_waitcnt lgkmcnt(0)")
        a("v_add_f32 %s, %s, %s" % (v(HBW), v(HBW), v(HBW + 1)))
        a("v_add_f32 %s, %s, %s" % (v(HBW + 2), v(HBW + 2), v(HBW + 3)))
        a("v_add_f32 %s, %s, %s" % (v(HBW), v(HBW), v(HBW + 2)))
        a("ds_write_b32 %s, %s" % (v(vT + 5), v(HBW)))
a("s_barrier")
bg("A")
stamp("h_wo")
a("s_branch Lp2")

a.label("Lservice")
a("s_sub_u32 %s, %s, 14" % (sT0, sJ))
sum_s(sT1, [(sT0, 64), (sWAVE, 8), (sR0, 1)])
a("s_mul_i32 %s, %s, 896" % (sT2, sT1))
a("v_lshrrev_b32 %s, 3, %s" % (v(vT), vL))
a("v_mul_u32_u24 %s, 896, %s" % (v(40), v(vT)))
a("v_and_b32 %s, 7, %s" % (v(vT + 1), vL))
a("v_lshl_add_u32 %s, %s, 4, %s" % (v(40), v(vT + 1), v(40)))
SX = 44
for i in range(7):
    a("buffer_load_dwordx4 %s, v40, %s, %s offen offset:%d%s" % (v(SX + 4 * i, 4), X, sT2, 128 * i, " nt" if OPT["nt"] & 1 else ""))
a("buffer_load_dwordx2 %s, %s, %s, 0 offen sc1" % (v(vFLG, 2), vZ, DBG))
a("s_lshl_b32 %s, %s, 4" % (sA, sT1))
a("s_add_u32 %s, %s, %d" % (sA, sA, WS_ST))
a("v_lshlrev_b32 v41, 4, %s" % v(vT))
common_setup()
stamp("t0")
stamp("rt_start")
a("v_mov_b32 v42, 0")
a("v_mov_b32 v43, 0")
a("v_mov_b32 v39, 0x3f803f80")
a("s_waitcnt vmcnt(1)")
for i in range(28):
    a("v_dot2c_f32_bf16 v42, %s, v39" % v(SX + i))
    a("v_dot2c_f32_bf16 v43, %s, %s" % (v(SX + i), v(SX + i)))
for sw in (0x041F, 0x081F, 0x101F):
    a("ds_swizzle_b32 %s, v42 offset:0x%x" % (v(vT + 2), sw))
    a("ds_swizzle_b32 %s, v43 offset:0x%x" % (v(vT + 3), sw))
    a("s_waitcnt lgkmcnt(0)")
    a("v_add_f32 v42, v42, %s" % v(vT + 2))
    a("v_add_f32 v43, v43, %s" % v(vT + 3))
ln_finish("v42", "v43", v(SX), v(SX + 2), v(vT + 2))
get_epoch_spin("svc")
a("v_mov_b32 %s, %s" % (v(SX + 1), sEPL))
a("v_mov_b32 %s, %s" % (v(SX + 3), sEPH))
a("v_or_b32 %s, %s, %s" % (v(vFLG), sXCC, v(vFLG)))
a("buffer_store_dwordx4 %s, v41, %s, %s offen sc1" % (v(SX, 4), WS, sA))
sum_s(sT0, [(sG, 512), (sJ, 8)], WS_F1)
flag_store(sT0, " sc1")
stamp("svc_st")
a("s_waitcnt vmcnt(0)")
a("s_barrier")
a("s_sub_u32 %s, %s, 14" % (sT0, sJ))
sum_s(sT4, [(sT0, 8), (sWAVE, 1)])
if not OPT["ohsc"]:
    sum_s(sT1, [(sG, 131072), (sT4, 8192)], WS_O)
    touch_lines(WS, sT1, 64, sc1=True)
    if not OPT["hpt"] and OPT["alias"] != 3:
        sum_s(sT1, [(sG, 114688), (sT4, 7168)], WS_H)
        touch_lines(WS, sT1, 56, sc1=True)
    sum_s(sT1, [(sG, 16384), (sT4, 1024)], WS_HS)
    touch_lines(WS, sT1, 8, sc1=True)
sum_s(sT1, [(sG, 1024)], WS_F2)
touch_lines(WS, sT1, 8, sc1=True)
sum_s(sT1, [(sG, 512)], WS_F3)
touch_lines(WS, sT1, 4, sc1=True)
sum_s(sT1, [(sG, 512)], WS_F4)
touch_lines(WS, sT1, 4, sc1=True)
a("s_and_b32 %s, %s, 1" % (sT0, sG))
sum_s(sT3, [(sT0, 16), (sT4, 1)])
for it in [x for x in OPT["svc"].split("+") if x]:
    srd, base, total = {"wo": (WO, 0, 401408), "w2q": (W2, 0, 401408), "w2q2": (W2, 401408, 401408), "w1q": (W1, 0, 401408)}[it]
    per = total // 128 // 32
    sum_s(sT1, [(sT3, per * 128)], base)
    touch_lines(srd, sT1, per)
if OPT["pt_h1"] == 2:
    sum_s(sT1, [(sG, 448 * 1024), (sT4, 28 * 1024)], WS_H1)
    touch_lines(WS, sT1, 224, sc1=True)
fetch_setup()
a("s_cmp_lt_u32 %s, 4" % sWAVE)
a("s_cbranch_scc1 Lfetch")
if "w18" in OPT["A"]:
    w1_block(8)
a("s_branch Lp2")

a.label("Lmfma")
if not OPT["epw"]:
    a("s_or_b32 %s, s2, %s" % (sT0, sWAVE))
    a("s_cmp_lg_u32 %s, 0" % sT0)
    a("s_cbranch_scc1 Lnoep")
    a("s_memrealtime s[94:95]")
    a("s_waitcnt lgkmcnt(0)")
    a("s_lshl_b32 %s, s94, 4" % sT1)
    a("s_or_b32 %s, %s, 8" % (sT1, sT1))
    a("s_mul_i32 %s, s94, 0x9e3779b1" % sT2)
    a("s_add_u32 %s, %s, s95" % (sT2, sT2))
    a("v_mov_b32 %s, %s" % (v(vT), sT1))
    a("v_mov_b32 %s, %s" % (v(vT + 1), sT2))
    a("s_mov_b64 exec, 1")
    a("buffer_store_dwordx2 %s, %s, %s, 0 offen sc1" % (v(vT, 2), vZ, DBG))
    a("s_mov_b64 exec, -1")
    a.label("Lnoep")
if OPT["tlb"]:
    a("s_cmp_lg_u32 %s, 3" % sWAVE)
    a("s_cbranch_scc1 Lnotlb")
    a("v_min_u32 %s, 18, %s" % (v(vT), vL))
    a("v_lshlrev_b32 %s, 20, %s" % (v(vT), v(vT)))
    a("buffer_load_dword v26, %s, %s, 0 offen" % (v(vT), WS))
    a("v_min_u32 %s, 1, %s" % (v(vT), vL))
    a("v_lshlrev_b32 %s, 20, %s" % (v(vT), v(vT)))
    for srd in (OUT, W1, W2):
        a("buffer_load_dword v26, %s, %s, 0 offen" % (v(vT), srd))
    a("buffer_load_dword v26, %s, %s, 0 offen" % (vZ, WO))
    a.label("Lnotlb")
common_setup()
stamp("t0")
stamp("rt_start")
ACC = 32
FB = 80
vXA = [148, 149, 150, 151]
vWA, vWA2 = "v152", "v153"
vSA, vCA = "v154", "v155"
vQo = ["v156", "v157"]
CS = 160
PK = 208
vNM, vRS = 232, 234
a("v_bfe_u32 %s, %s, 1, 3" % (v(vT), vL31))
a("v_xor_b32 %s, %s, %s" % (v(vT), v(vT), vH))
a("v_lshlrev_b32 %s, 7, %s" % (v(vT + 1), vL31))
a("v_add_u32 %s, %s, %s" % (v(vT + 1), sHW4K, v(vT + 1)))
a("v_add_u32 %s, %d, %s" % (v(vT + 1), L_XR, v(vT + 1)))
for s in range(4):
    a("v_xor_b32 %s, %d, %s" % (v(vT + 2), 2 * s, v(vT)))
    a("v_lshl_add_u32 %s, %s, 4, %s" % (v(vXA[s]), v(vT + 2), v(vT + 1)))
    assert lds_conflicts([(l & 31) * 128 + (((2 * s + (l >> 5)) ^ (((l & 31) >> 1) & 7)) * 16) for l in range(64)], "b128") == 0
tr_base_192(vWA, v(vT))
a("v_add_u32 %s, %d, %s" % (vWA2, 5 * 12288, vWA))
sum_s(sT0, [(sHW, 256)], L_ST)
a("v_lshl_add_u32 %s, %s, 2, %s" % (vSA, vL31, sT0))
a("v_lshlrev_b32 %s, 4, %s" % (vCA, vH))
a("v_add_u32 %s, %d, %s" % (vCA, L_CS, vCA))
a("v_mul_u32_u24 %s, 12, %s" % (v(vT), vH))
a("v_xor_b32 %s, %s, %s" % (v(vT), v(vT), vL))
a("v_lshlrev_b32 %s, 4, %s" % (vQo[0], v(vT)))
sum_s(sA, [(sTILE4, QT), (sJ, 12 * 512)], WS_QKV)
a("s_add_u32 %s, %s, 4096" % (sC, sA))
sum_s(sD, [(sTILE4, 128), (sJ, 8)], WS_F1)


vXRA = [238, 239, 158, 159]
sXIT = "s89"
if OPT["xl"]:
    sum_s(sT0, [(sMH2, 64 * 128), (sMH, 32 * 128)], L_XR)
    a("v_lshlrev_b32 %s, 7, %s" % (v(vT), vL31))
    a("v_lshl_add_u32 %s, %s, 3, %s" % (v(vT), vH, v(vT)))
    a("v_add_u32 %s, %s, %s" % (v(vT), sT0, v(vT)))
    a("v_bfe_u32 %s, %s, 1, 3" % (v(vT + 1), vL31))
    a("s_lshl_b32 %s, %s, 2" % (sT0, sKH))
    a("v_xor_b32 %s, %s, %s" % (v(vT + 1), sT0, v(vT + 1)))
    for jj in range(4):
        a("v_xor_b32 %s, %d, %s" % (v(vT + 2), jj, v(vT + 1)))
        a("v_lshl_add_u32 %s, %s, 4, %s" % (v(vXRA[jj]), v(vT + 2), v(vT)))
    a("s_add_u32 %s, %s, 7" % (sXIT, sNB))
    a("s_sub_u32 %s, %s, %s" % (sXIT, sXIT, sROT))
    a("s_sub_u32 %s, %s, 7" % (sT0, sXIT))
    a("s_cmp_ge_u32 %s, 7" % sXIT)
    a("s_cselect_b32 %s, %s, %s" % (sXIT, sT0, sXIT))


def xres_read(c):
    if not OPT["xl"]:
        return
    lab = a.newlabel("Lnoxr")
    a("s_cmp_lg_u32 %s, %d" % (sXIT, c))
    a("s_cbranch_scc1 %s" % lab)
    for jj in range(4):
        a("ds_read_b64 %s, %s offset:%d" % (v(vXRES + 2 * jj, 2), v(vXRA[jj]), (c % 4) * 16384))
    a.label(lab)


def p1_reads(c, s):
    if OPT["dry"] & 2:
        return
    fb = FB + 16 * s
    a("ds_read_b128 %s, %s offset:%d" % (v(fb, 4), v(vXA[s]), (c % 4) * 16384))
    base, off = (vWA2, (c - 5) * 12288) if c >= 5 else (vWA, c * 12288)
    for p3 in range(3):
        for hh in range(2):
            a("ds_read_b64_tr_b16 %s, %s offset:%d" % (v(fb + 4 + 4 * p3 + 2 * hh, 2), base, off + p3 * 64 + s * 3072 + hh * 768))


def p1_mfma(c, s, fill=None):
    if OPT["dry"] & 2:
        return
    fb = FB + 16 * s
    first = (c == 0 and s == 0)
    for p3 in range(3):
        acc = v(ACC + 16 * p3, 16)
        a("v_mfma_f32_32x32x16_bf16 %s, %s, %s, %s" % (acc, v(fb + 4 + 4 * p3, 4), v(fb, 4), "0" if first else acc))
        if fill:
            for _ in range(6):
                if fill:
                    a(fill.pop(0))


for k in range(4):
    a("v_mov_b32 %s, -1" % v(PK + k))
def sentinel_init():
    for i in range(6 if OPT["sent"] and not OPT["abl"] & 8 else 0):
        a("buffer_store_dwordx4 %s, %s, %s, %s offen offset:%d sc1" % (v(PK, 4), vL16, WS, sA if i < 4 else sC, 1024 * (i % 4)))
    a("buffer_load_dwordx2 %s, %s, %s, 0 offen sc1" % (v(vFLG, 2), vZ, DBG))


if OPT["ic"] < 0:
    sentinel_init()
fetch_setup()
a("s_barrier")
stamp("m_b0")
p1_reads(0, 0)
p1_reads(0, 1)
for c in range(7):
    fill = []
    if c == 1 and not OPT["xl"]:
        for jj in range(4):
            a("buffer_load_dwordx2 %s, %s, %s, %s offen offset:%d" % (v(vXRES + 2 * jj, 2), vXOFF, X, sXO, 16 * jj))
    if c == OPT["ic"]:
        sentinel_init()
    if c == 5 and OPT["qp"]:
        sum_s(sT0, [(sG, 512)], WS_F1)
        a("v_lshlrev_b32 %s, 3, %s" % (v(vT + 5), vR))
        a("buffer_load_dwordx2 v[144:145], %s, %s, %s offen sc1" % (v(vT + 5), WS, sT0))
    if c == 6 and OPT["sent"]:
        a("buffer_load_dwordx2 %s, v27, %s, 0 offen sc1" % (v(vIF, 2), WS))
    a("s_waitcnt lgkmcnt(7)")
    p1_mfma(c, 0)
    p1_reads(c, 2)
    a("s_waitcnt lgkmcnt(7)")
    p1_mfma(c, 1)
    p1_reads(c, 3)
    if c == 6:
        a("ds_read_b32 %s, %s" % (v(vNM), vSA))
        a("ds_read_b32 %s, %s offset:128" % (v(vRS), vSA))
        a("s_waitcnt lgkmcnt(9)")
        p1_mfma(c, 2)
        a("s_waitcnt lgkmcnt(2)")
        for i in range(12):
            a("ds_read_b128 %s, %s offset:%d" % (v(CS + 4 * i, 4), vCA, 32 * i))
        p1_mfma(c, 3)
    else:
        a("s_waitcnt lgkmcnt(7)")
        p1_mfma(c, 2)
        if c == OPT["fc"]:
            get_epoch_spin("m")
            a("v_mov_b32 %s, %d" % (v(vT + 2), L_EP))
            a("ds_write_b64 %s, %s" % (v(vT + 2), v(vFLG, 2)))
            a("v_or_b32 %s, %s, %s" % (v(vFLG), sXCC, v(vFLG)))
            if OPT["sent"]:
                flag_store(sD, " sc1")
        xres_read(c)
        a("s_waitcnt lgkmcnt(0)")
        a("s_barrier")
        stamp("m_b%d" % (c + 1))
        p1_reads(c + 1, 0)
        p1_reads(c + 1, 1)
        p1_mfma(c, 3)
a("s_waitcnt lgkmcnt(12)")
a("v_mul_f32 %s, %s, %s" % (v(vNM), v(vNM), v(vRS)))
a("v_mov_b32 %s, %s" % (v(vRS + 1), v(vRS)))
a("v_mov_b32 %s, %s" % (v(vNM + 1), v(vNM)))
if OPT["qp"]:
    a("s_waitcnt vmcnt(1)")
    a("v_cmp_ne_u64 vcc, v[144:145], %s" % v(vFLG, 2))
    a("s_mul_i32 %s, %s, 3" % (sT0, sJ))
    a("s_sub_i32 %s, 14, %s" % (sT0, sT0))
    a("s_max_i32 %s, %s, 0" % (sT0, sT0))
    a("s_cmp_eq_u64 vcc, 0")
    a("s_cselect_b32 %s, %s, 0" % (sE, sT0 if not OPT["force_slow"] else "0"))
stamp("m_p1end")
for i in range(3):
    a("s_waitcnt lgkmcnt(%d)" % (8 - 4 * i))
    for k in range(8):
        r_ = CS + 16 * i + 2 * k
        a("v_pk_mul_f32 %s, %s, %s" % (v(r_, 2), v(r_, 2), v(vNM, 2)))
for i in range(3):
    for k in range(8):
        r_ = ACC + 16 * i + 2 * k
        a("v_pk_fma_f32 %s, %s, %s, %s" % (v(r_, 2), v(r_, 2), v(vRS, 2), v(CS + 16 * i + 2 * k, 2)))
    for k in range(8):
        a("v_cvt_pk_bf16_f32 %s, %s, %s" % (v(PK + 8 * i + k), v(ACC + 16 * i + 2 * k), v(ACC + 16 * i + 2 * k + 1)))
    for m in range(2):
        for k in range(2):
            a("v_permlane32_swap_b32 %s, %s" % (v(PK + 8 * i + 4 * m + k), v(PK + 8 * i + 4 * m + 2 + k)))
    def qst(sc):
        for m in range(2):
            a("buffer_store_dwordx4 %s, %s, %s, %s offen offset:%d%s" % (v(PK + 8 * i + 4 * m, 4), vQo[0], WS, sA if i < 2 else sC, (2048 * i if i < 2 else 0) + 1024 * m, sc))
    if OPT["qp"]:
        l1, l2 = a.newlabel("Lqs"), a.newlabel("Lqe")
        a("s_cmp_gt_u32 %s, %d" % (sE, i))
        a("s_cbranch_scc0 %s" % l1)
        qst("")
        a("s_branch %s" % l2)
        a.label(l1)
        qst(" sc1")
        a.label(l2)
    else:
        qst(" sc1")
xres_read(6)
a("s_waitcnt lgkmcnt(0)")
stamp("m_epi1")
stamp("rt_epi1")
if OPT["sent"]:
    a("s_barrier")
    if OPT["lazy"]:
        a("s_branch Lfetch_go")
    else:
        a("s_waitcnt vmcnt(6)")
        a("v_and_b32 %s, -8, %s" % (v(vIF), v(vIF)))
        a("v_cmp_ne_u64 vcc, %s, %s" % (sEP, v(vIF, 2)))
        a("s_cbranch_vccz Lfetch_go")
else:
    a("s_waitcnt vmcnt(0)")
    flag_store(sD, " sc1")
    a("s_barrier")

a.label("Lfetch")
poll("v27", vT + 2, "f1")
if OPT["lazy"] and OPT["sent"]:
    a("v_mov_b32 %s, %s" % (v(vIF), sEPL))
    a("v_mov_b32 %s, %s" % (v(vIF + 1), sEPH))
a.label("Lfetch_go")
stamp("m_f1ok")
stamp("rt_f1ok")
a("v_add_u32 v32, %s, %s" % (sHW4K, vL16))
a("v_add_u32 v33, %s, %s" % (sFD, vL16))
a("s_mov_b32 %s, 0x4000" % sCNT)


def fetch_dma():
    for kind, sb in ((2, sFC), (1, sFB), (0, sFA)):
        if kind == 2:
            dma(vL16, WS, sb, sFD, L_Q, sc1=True)
            dma(vL16, WS, sb, sFD, L_Q + 1024, inst=1024, sc1=True)
        a("s_add_u32 %s, %s, %d" % (sT0, sb, 56 * 512))
        a("s_add_u32 %s, %s, %d" % (sT1, sb, 112 * 512))
        lb = L_KV + kind * 16384
        dma(vL16, WS, sT0, sHW4K, lb, sc1=True)
        dma(vL16, WS, sT0, sHW4K, lb + 1024, inst=1024, sc1=True)
        dma(vL16, WS, sT1, sHW4K, lb + 2048, sc1=True)
        dma(vL16, WS, sT1, sHW4K, lb + 3072, inst=1024, sc1=True)


fetch_dma()
if OPT["diag"] == 2:
    a("s_memtime s[94:95]")
p2_setup()
if OPT["diag"] == 2:
    a("s_waitcnt vmcnt(14)")
    a("s_memtime s[96:97]")
    a("s_waitcnt vmcnt(8)")
    a("s_memtime s[98:99]")
    a("s_waitcnt vmcnt(0)")
    a("s_memtime s[100:101]")
    a("s_waitcnt lgkmcnt(0)")
    for nm, r_ in (("d_issued", 94), ("d_stdrained", 96), ("d_own", 98), ("d_all", 100)):
        idx = STAMPS.setdefault(nm, len(STAMPS))
        a("v_mov_b32 v30, s%d" % r_)
        a("v_mov_b32 v31, s%d" % (r_ + 1))
        a("s_mov_b64 exec, 1")
        a("buffer_store_dwordx2 v[30:31], %s, %s, %s offen offset:%d" % (vZ, WS, sTSOFF, idx * 8))
        a("s_mov_b64 exec, -1")
    a("s_waitcnt vmcnt(0)")
if OPT["lazy"] and OPT["sent"]:
    a("s_waitcnt vmcnt(14)")
    a("v_and_b32 %s, -8, %s" % (v(vIF), v(vIF)))
    a("v_cmp_ne_u64 vcc, %s, %s" % (sEP, v(vIF, 2)))
    a("s_cbranch_vccz Lfetch_val")
    poll("v27", vT + 2, "f1b")
    a("s_mov_b32 %s, 0x4000" % sCNT)
    fetch_dma()
a.label("Lfetch_val")
if not OPT["sent"]:
    a("s_waitcnt vmcnt(0)")
    a("s_branch Lp2b")
VR = 36
order = [("v33", L_Q), ("v33", L_Q + 1024)] + [("v32", L_KV + kind * 16384 + 1024 * q) for kind in (2, 1, 0) for q in range(4)]
for n, (ad, off) in enumerate(order):
    if n in (0, 6, 10):
        a("s_waitcnt vmcnt(%d)" % {0: 8, 6: 4, 10: 0}[n])
    a("ds_read_b128 %s, %s offset:%d" % (v(VR + 4 * n, 4), ad, off))
a("v_mov_b32 v34, 0")
a("v_mov_b32 v35, 0")
for n in range(14):
    if n in (0, 6, 10):
        a("s_waitcnt lgkmcnt(%d)" % {0: 8, 6: 4, 10: 0}[n])
    a("v_max3_u32 v34, v34, %s, %s" % (v(VR + 4 * n), v(VR + 4 * n + 1)))
    a("v_max3_u32 v35, v35, %s, %s" % (v(VR + 4 * n + 2), v(VR + 4 * n + 3)))
a("v_max_u32 v34, v34, v35")
a("v_cmp_eq_u32 vcc, -1, v34")
a("s_sub_u32 %s, %s, 1" % (sCNT, sCNT))
a("s_cmp_eq_u32 %s, 0" % sCNT)
a("s_cbranch_scc1 Lfetch_done")
a("s_cbranch_vccz Lfetch_done")
fetch_dma()
a("s_branch Lfetch_val")
a.label("Lfetch_done")
if OPT["stamps"]:
    a("v_mov_b32 v30, %s" % sCNT)
    a("v_mov_b32 v31, 0")
    a("s_mov_b64 exec, 1")
    a("buffer_store_dwordx2 v[30:31], %s, %s, %s offen offset:%d" % (vZ, WS, sTSOFF, 30 * 8))
    a("s_mov_b64 exec, -1")
a("s_branch Lp2b")

a.label("Lp2")
p2_setup()
a.label("Lp2b")
stamp("kv_landed")
a("s_barrier")
stamp("b8")
stamp("rt_b8")
a(("s_cmp_ge_u32 %s, 4" if OPT["bm"] else "s_cmp_lt_u32 %s, 4") % sWAVE)
a("s_cbranch_scc1 Lp2go")
bg("B")
if OPT["ap"]:
    a("s_setprio 1")
a.label("Lp2go")
if A1:
    a("s_cmp_lg_u32 %s, 0" % sWAVE)
    a("s_cbranch_scc1 Lnofd")
    sum_s(sT0, [(sG, 128), (sJ, 8)], WS_FD)
    flag_store(sT0, " sc1")
    a.label("Lnofd")
a("buffer_load_dwordx2 %s, %s, %s, 0 offen sc1" % (v(vGF, 2), vGFA, WS))
a("ds_read_b128 %s, %s" % (v(QF, 4), vQA))
NKB = 6


def kread(i):
    a("ds_read_b128 %s, %s offset:%d" % (v(KB + 4 * (i % NKB), 4), v(vKA[i & 1]), (i >> 1) * 4096))


for i in range(NKB):
    kread(i)
for i in range(17):
    rem = min(NKB - 1, 16 - i)
    a("s_waitcnt lgkmcnt(%d)" % rem)
    if i == 0:
        for k in range(2):
            a("v_cndmask_b32 %s, %s, %s, %s" % (v(QF + k), v(QF + k), vZ, sFQ))
            a("v_cndmask_b32 %s, %s, %s, %s" % (v(QF + 2 + k), v(QF + 2 + k), vZ, sFO))
    cc = v(M0R, 4) if i == 0 else (v(M16R, 4) if i == 16 else "0")
    a("v_mfma_f32_16x16x32_bf16 %s, %s, %s, %s" % (v(SC + 4 * i, 4), v(KB + 4 * (i % NKB), 4), v(QF, 4), cc))
    if i + NKB < 17:
        kread(i + NKB)


def vread(n):
    p, dt = n >> 1, n & 1
    for b in range(2):
        par = b if p < 8 else 0
        a("ds_read_b64_tr_b16 %s, %s offset:%d" % (v(VB + 4 * (n % NKB) + 2 * b, 2), v(vVA[par]), 2048 + p * 4096 + dt * 1024))


for n in range(NKB):
    vread(n)
a("s_cmp_ge_u32 %s, 2" % sG)
a("s_cbranch_scc1 Lnoinv")
a("s_lshl_b32 %s, %s, 3" % (sT0, sG))
a("s_add_u32 %s, %s, %s" % (sT0, sT0, sWAVE))
a("s_sub_u32 %s, 16, %s" % (sT0, sT0))
for i in range(16):
    a("s_cmp_le_u32 %s, %d" % (sT0, i))
    a("s_cbranch_scc1 Lnoinv")
    for c in range(4):
        a("v_mov_b32 %s, %s" % (v(SC + 4 * i + c), vNEG))
a.label("Lnoinv")
vM, vM2 = v(vT), v(vT + 1)
a("v_max3_f32 %s, %s, %s, %s" % (vM, v(SC), v(SC + 1), v(SC + 2)))
a("v_max3_f32 %s, %s, %s, %s" % (vM2, v(SC + 3), v(SC + 4), v(SC + 5)))
i = 6
flip = 0
while i < 68:
    tgt = vM if flip == 0 else vM2
    a("v_max3_f32 %s, %s, %s, %s" % (tgt, tgt, v(SC + i), v(SC + i + 1)))
    i += 2
    flip ^= 1
a("v_max_f32 %s, %s, %s" % (vM, vM, vM2))
a("v_mov_b32 %s, %s" % (vM2, vM))
a("v_permlane32_swap_b32 %s, %s" % (vM, vM2))
a("v_max_f32 %s, %s, %s" % (vM, vM, vM2))
a("v_mov_b32 %s, %s" % (vM2, vM))
a("v_permlane16_swap_b32 %s, %s" % (vM, vM2))
a("v_max_f32 %s, %s, %s" % (vM, vM, vM2))
CSC = (28.0 ** -0.5) * math.log2(math.e)
a("s_mov_b32 %s, %s" % (sT0, f32(CSC)))
a("v_mul_f32 %s, %s, %s" % (vM, f32(-CSC), vM))
for p in range(9):
    ne = 8 if p < 8 else 4
    for i in range(ne):
        a("v_fma_f32 %s, %s, %s, %s" % (v(SC + 8 * p + i), v(SC + 8 * p + i), sT0, vM))
    for i in range(ne):
        a("v_exp_f32 %s, %s" % (v(SC + 8 * p + i), v(SC + 8 * p + i)))
    pf = PF + 4 * (p % 2) if p < 8 else PF + 8
    for i in range(ne // 2):
        a("v_cvt_pk_bf16_f32 %s, %s, %s" % (v(pf + i), v(SC + 8 * p + 2 * i), v(SC + 8 * p + 2 * i + 1)))
    a("v_mfma_f32_16x16x32_bf16 %s, %s, %s, %s" % (v(LS, 4), v(ONE4, 4), v(pf, 4), "0" if p == 0 else v(LS, 4)))
    for dt in range(2):
        n = 2 * p + dt
        rem = min(NKB - 1, 17 - n)
        a("s_waitcnt lgkmcnt(%d)" % (2 * rem))
        cc = "0" if p == 0 else v(OA + 4 * dt, 4)
        a("v_mfma_f32_16x16x32_bf16 %s, %s, %s, %s" % (v(OA + 4 * dt, 4), v(VB + 4 * (n % NKB), 4), v(pf, 4), cc))
        if n + NKB < 18:
            vread(n + NKB)
    if OPT["ap"] and p == OPT["ap"] - 1:
        a("s_setprio 0")
    if p == 6:
        a("s_waitcnt vmcnt(0)")
        a("v_and_b32 %s, -8, %s" % (v(vT + 4), v(vGF)))
        a("v_mov_b32 %s, %s" % (v(vT + 5), v(vGF + 1)))
        a("v_cmp_ne_u64 vcc, %s, %s" % (sEP, v(vT + 4, 2)))
        a("s_cbranch_vccz Lgf_ok")
        poll(vGFA, vT + 4, "gf")
        a("buffer_load_dwordx2 %s, %s, %s, 0 offen sc1" % (v(vGF, 2), vGFA, WS))
        a("s_waitcnt vmcnt(0)")
        a.label("Lgf_ok")
        a("v_cmp_ne_u32 vcc, %s, %s" % (v(vGF), v(vFLG)))
        a("s_cmp_eq_u64 vcc, 0")
        a("s_cselect_b32 %s, %d, 0" % (sFAST, 0 if OPT["force_slow"] else 1))
stamp("att_done")
if OPT["stamps"]:
    a("v_mov_b32 v30, %s" % sXCC)
    a("v_mov_b32 v31, %s" % sFAST)
    a("s_mov_b64 exec, 1")
    a("buffer_store_dwordx2 v[30:31], %s, %s, %s offen offset:%d" % (vZ, WS, sTSOFF, 31 * 8))
    a("s_mov_b64 exec, -1")
a("v_rcp_f32 %s, %s" % (v(vT + 2), v(LS)))
a("v_cndmask_b32 %s, %s, %s, %s" % (v(vT), v(vT + 2), vZ, sFQ))
a("v_cndmask_b32 %s, %s, %s, %s" % (v(vT + 1), v(vT + 2), vZ, sFO))
for i in range(4):
    a("v_mul_f32 %s, %s, %s" % (v(OA + i), v(OA + i), v(vT)))
    a("v_mul_f32 %s, %s, %s" % (v(OA + 4 + i), v(OA + 4 + i), v(vT + 1)))
OP = 136
for i in range(4):
    a("v_cvt_pk_bf16_f32 %s, %s, %s" % (v(OP + i), v(OA + 2 * i), v(OA + 2 * i + 1)))
publish(["buffer_store_dwordx4 %s, %s, %s, %s offen{sc}" % (v(OP, 4), vOA, WS, sE)], sF, data_sc1=bool(OPT["ohsc"]))
if OPT["ohsc"]:
    a("buffer_load_dword v26, %s, %s, %s offen sc1" % (vOA, WS, sE))
stamp("o_pub")
stamp("rt_opub")
a("s_cmp_ge_u32 %s, 4" % sWAVE)
a("s_cbranch_scc1 Lhelper2")

HF = 32
A4 = 144
W4 = 200
SPR = 232
NM4, RS4 = [246, 248], [250, 252]
vW4a, vW4b, vW4c, vSPA = "v254", "v255", "v27", "v28"

def h1_bases(tile, d0, d1, d2):
    sum_s(d0, [(tile, QT)], WS_QKV + 28672)
    sum_s(d1, [(tile, 32768)], WS_O - 8 * 7168)
    sum_s(d2, [(tile, 28672)], WS_H - 12 * 7168)


def p4_setup():
    a("v_lshrrev_b32 %s, 1, %s" % (v(vT), vQ4))
    a("v_lshlrev_b32 %s, 4, %s" % (v(vT), v(vT)))
    a("v_and_b32 %s, 1, %s" % (v(vT + 1), vQ4))
    a("v_lshl_add_u32 %s, %s, 2, %s" % (v(vT), v(vT + 1), v(vT)))
    a("v_lshrrev_b32 %s, 2, %s" % (v(vT + 1), vR))
    a("v_add_u32 %s, %s, %s" % (v(vT), v(vT), v(vT + 1)))
    a("v_mul_u32_u24 %s, 224, %s" % (v(vT), v(vT)))
    a("v_and_b32 %s, 3, %s" % (v(vT + 1), vL))
    a("v_lshl_add_u32 %s, %s, 3, %s" % (vW4a, v(vT + 1), v(vT)))
    a("v_add_u32 %s, %d, %s" % (vW4b, 8 * 7168, vW4a))
    a("v_add_u32 %s, %d, %s" % (vW4c, L_W1U, vW4a))
    assert lds_conflicts([(16 * (l >> 5) + 4 * ((l >> 4) & 1) + ((l & 15) >> 2)) * 224 + (l & 3) * 8 for l in range(64)], "tr") == 0
    sum_s(sT1, [(sTILE4, 128)], WS_F3)
    a("v_min_u32 %s, 13, %s" % (v(vT), vR))
    a("v_lshlrev_b32 %s, 3, %s" % (v(vT), v(vT)))
    a("v_add_u32 %s, %s, %s" % (v(vT), sT1, v(vT)))
    if AH:
        sum_s(sT4, [(sTILE4, QT)], WS_QKV)
    else:
        sum_s(sT4, [(sTILE4, 28 * 1024)], WS_H)
    a("s_add_u32 %s, %s, %d" % (sE, sT4, 14 * 1024))
    sum_s(sT3, [(sTILE4, 4096)], WS_HS)
    a("v_mul_u32_u24 %s, %d, %s" % (vSPA, 7 * 256, vH))
    a("v_lshl_add_u32 %s, %s, 3, %s" % (vSPA, vL31, vSPA))
    if A1:
        h1_bases(sTILE4, sT0, sT1, sT2)
        a("s_cmp_lt_u32 %s, 12" % sJ)
        a("s_cselect_b32 %s, %s, %s" % (sA, sT1, sT2))
        a("s_cmp_lt_u32 %s, 8" % sJ)
        a("s_cselect_b32 %s, %s, %s" % (sA, sT0, sA))
        a("s_mul_i32 %s, %s, 7168" % (sT0, sJ))
        a("s_add_u32 %s, %s, %s" % (sA, sA, sT0))
        a("v_bfe_u32 %s, %s, 4, 1" % (v(vT + 4), vL))
        a("v_add_u32 %s, 1, %s" % (v(vT + 4), v(vT + 4)))
        a("v_add_u32 %s, %s, %s" % (v(vT + 4), sG, v(vT + 4)))
        a("v_min_u32 %s, 15, %s" % (v(vT + 4), v(vT + 4)))
        a("v_lshlrev_b32 %s, 7, %s" % (v(vT + 4), v(vT + 4)))
        a("v_lshl_add_u32 %s, %s, 3, %s" % (v(vT + 4), vR, v(vT + 4)))
        a("v_add_u32 %s, %d, %s" % (vTMP, WS_FD, v(vT + 4)))
    else:
        sum_s(sA, [(sTILE4, 112 * 1024), (sJ, 7168)], WS_H1)
    a("s_add_u32 %s, %s, 4096" % (sB, sA))
    sum_s(sF, [(sTILE4, 128), (sJ, 8)], WS_F4)


if OPT["prio"]:
    a("s_setprio %d" % OPT["prio"])
a("s_cmp_ge_u32 %s, 14" % sJ)
a("s_cbranch_scc1 Lp3_idle")
AK, AS = 32, 48
OF = 64
WB = 128
vWk, vWs = "v160", "v161"
vEXW, vEXR, vHA, vHSA, vF2A = "v162", "v163", "v164", "v165", "v166"


def tr_base_128(dkeep, dsend, hmul, base_s, base_imm):
    a("v_lshrrev_b32 %s, 2, %s" % (v(vT), vR))
    a("v_lshrrev_b32 %s, 1, %s" % (v(vT + 1), v(vT)))
    a("v_xor_b32 %s, %s, %s" % (v(vT + 1), sKH, v(vT + 1)))
    a("v_lshl_add_u32 %s, %s, %d, %s" % (v(vT), vH, {4: 2, 8: 3}[hmul], v(vT)))
    a("v_lshlrev_b32 %s, 7, %s" % (v(vT), v(vT)))
    a("v_bfe_u32 %s, %s, 4, 1" % (v(vT + 2), vL))
    a("v_lshl_add_u32 %s, %s, 5, %s" % (v(vT), v(vT + 2), v(vT)))
    a("v_and_b32 %s, 3, %s" % (v(vT + 2), vL))
    a("v_lshl_add_u32 %s, %s, 3, %s" % (v(vT), v(vT + 2), v(vT)))
    a("v_add_u32 %s, %s, %s" % (v(vT), base_s, v(vT)))
    if base_imm:
        a("v_add_u32 %s, %d, %s" % (v(vT), base_imm, v(vT)))
    a("v_lshl_add_u32 %s, %s, 6, %s" % (dkeep, v(vT + 1), v(vT)))
    a("v_xor_b32 %s, 64, %s" % (dsend, dkeep))


def ex_addrs():
    a("v_add_u32 %s, %s, %s" % (vEXW, sHW4K, vL16))
    a("v_xor_b32 %s, 0x2000, %s" % (vEXR, vEXW))
    a("v_add_u32 %s, %d, %s" % (vEXW, L_SCR, vEXW))
    a("v_add_u32 %s, %d, %s" % (vEXR, L_SCR, vEXR))


for hm in (4, 8):
    for nt in range(2):
        assert lds_conflicts([(hm * (l >> 5) + ((l & 15) >> 2)) * 128 + ((nt ^ (((l & 15) >> 3) & 1)) * 64) + ((l >> 4) & 1) * 32 + (l & 3) * 8 for l in range(64)], "tr") == 0
a("s_mul_i32 %s, %s, %d" % (sT0, sKH, 224 * 128))
tr_base_128(vWk, vWs, 4, sT0, L_WO)
ex_addrs()
sum_s(sT0, [(sG, 1024), (sMH2, 512), (sMH, 256), (sKH, 64)], WS_F2)
a("v_bfe_u32 %s, %s, 3, 1" % (v(vT), vL))
a("v_lshlrev_b32 %s, 7, %s" % (v(vT), v(vT)))
a("v_and_b32 %s, 7, %s" % (v(vT + 1), vL))
a("v_lshl_add_u32 %s, %s, 3, %s" % (v(vT), v(vT + 1), v(vT)))
a("v_add_u32 %s, %s, %s" % (vF2A, sT0, v(vT)))
sum_s(sT4, [(sTILE, 32768), (sKH, 16384)], WS_O)
if AH:
    sum_s(sA, [(sTILE, QT), (sNB, 2048), (sKH, 1024)], WS_QKV)
else:
    sum_s(sA, [(sTILE, 28 * 1024), (sNB, 2048), (sKH, 1024)], WS_H)
sum_s(sB, [(sTILE, 4096), (sNB, 512), (sKH, 256)], WS_HS)
sum_s(sC, [(sTILE, 128), (sNB, 16), (sKH, 8)], WS_F3)
a("v_bfe_u32 %s, %s, 4, 1" % (v(vT), vL))
a("v_mul_u32_u24 %s, %d, %s" % (v(vT), 14 * 1024, v(vT)))
a("v_lshl_add_u32 %s, %s, 8, %s" % (v(vT), vH, v(vT)))
a("v_lshl_add_u32 %s, %s, 4, %s" % (vHA, vR, v(vT)))
a("v_lshlrev_b32 %s, 3, %s" % (vHSA, vL31))
XF = 168
for i in range(8):
    a("v_lshlrev_b32 %s, 16, %s" % (v(XF + 2 * i), v(vXRES + i)))
    a("v_and_b32 %s, 0xffff0000, %s" % (v(XF + 2 * i + 1), v(vXRES + i)))
a("v_mov_b32 v167, 0x3f803f80")
a("s_barrier")
stamp("b9")


def p3_wread(s):
    head, ab = s >> 1, s & 1
    wb = WB + 8 * (s % 4)
    r0 = (28 * head - 4 * (head & 1) + 8 * ab) * 128
    for k, base in enumerate((vWk, vWs)):
        a("ds_read_b64_tr_b16 %s, %s offset:%d" % (v(wb + 4 * k, 2), base, r0))
        a("ds_read_b64_tr_b16 %s, %s offset:%d" % (v(wb + 4 * k + 2, 2), base, r0 + 16 * 128))


def p3_load(s):
    if s and s % 4 == 0:
        a("s_add_u32 %s, %s, 4096" % (sT4, sT4))
    a("buffer_load_dwordx4 %s, %s, %s, %s offen offset:%d sc1" % (v(OF + 4 * s, 4), vL16, WS, sT4, (s % 4) * 1024))


for s in range(3):
    p3_wread(s)
poll(vF2A, vT + 2, "f2")
stamp("f2ok")
stamp("rt_f2ok")
UP = OPT["up3"]
for s in range(UP):
    p3_load(s)
for s in range(16):
    a("s_waitcnt vmcnt(%d) lgkmcnt(%d)" % (min(UP - 1, 15 - s), min(8, 4 * (15 - s))))
    if s + 3 < 16:
        p3_wread(s + 3)
    wb = WB + 8 * (s % 4)
    a("v_mfma_f32_32x32x16_bf16 %s, %s, %s, %s" % (v(AS, 16), v(wb + 4, 4), v(OF + 4 * s, 4), "0" if s == 0 else v(AS, 16)))
    if s + UP < 16:
        p3_load(s + UP)
    if OPT["b9b"] and s + UP == 15:
        a("s_barrier")
    a("v_mfma_f32_32x32x16_bf16 %s, %s, %s, %s" % (v(AK, 16), v(wb, 4), v(OF + 4 * s, 4), "0" if s == 0 else v(AK, 16)))
stamp("p3_mfma")


def exchange():
    for i in range(4):
        a("ds_write_b128 %s, %s offset:%d" % (vEXW, v(AS + 4 * i, 4), 1024 * i))
    a("s_waitcnt lgkmcnt(0)")
    a("s_barrier")
    for i in range(4):
        a("ds_read_b128 %s, %s offset:%d" % (v(AS + 4 * i, 4), vEXR, 1024 * i))


def residual_add(out):
    for i in range(4):
        a("s_waitcnt lgkmcnt(%d)" % (3 - i))
        for k in range(2):
            r_ = 4 * i + 2 * k
            a("v_pk_add_f32 %s, %s, %s" % (v(AK + r_, 2), v(AK + r_, 2), v(AS + r_, 2)))
        for k in range(2):
            r_ = 4 * i + 2 * k
            a("v_cvt_pk_bf16_f32 %s, %s, %s" % (v(AS + r_), v(AK + r_), v(AK + r_ + 1)))
        for k in range(2):
            r_ = 4 * i + 2 * k
            a("v_lshlrev_b32 %s, 16, %s" % (v(AK + r_), v(AS + r_)))
            a("v_and_b32 %s, 0xffff0000, %s" % (v(AK + r_ + 1), v(AS + r_)))
        for k in range(2):
            r_ = 4 * i + 2 * k
            a("v_pk_add_f32 %s, %s, %s" % (v(AK + r_, 2), v(AK + r_, 2), v(XF + r_, 2)))
        for k in range(2):
            r_ = 4 * i + 2 * k
            a("v_cvt_pk_bf16_f32 %s, %s, %s" % (v(out + 2 * i + k), v(AK + r_), v(AK + r_ + 1)))


exchange()
residual_add(vXRES)
stamp("p3_res")
a("v_mov_b32 %s, 0" % v(AS))
a("v_mov_b32 %s, 0" % v(AS + 1))
st3 = ["buffer_store_dwordx4 %s, %s, %s, %s offen{sc}" % (v(vXRES, 4), vHA, WS, sA),
       "buffer_store_dwordx4 %s, %s, %s, %s offen offset:512{sc}" % (v(vXRES + 4, 4), vHA, WS, sA)]
for i in range(8):
    st3.append("v_dot2c_f32_bf16 %s, %s, v167" % (v(AS), v(vXRES + i)))
    st3.append("v_dot2c_f32_bf16 %s, %s, %s" % (v(AS + 1), v(vXRES + i), v(vXRES + i)))
st3 += ["v_mov_b32 %s, %s" % (v(AS + 2), v(AS)), "v_mov_b32 %s, %s" % (v(AS + 3), v(AS + 1)),
        "v_permlane32_swap_b32 %s, %s" % (v(AS), v(AS + 2)), "v_permlane32_swap_b32 %s, %s" % (v(AS + 1), v(AS + 3)),
        "v_pk_add_f32 %s, %s, %s" % (v(AS, 2), v(AS, 2), v(AS + 2, 2)),
        "buffer_store_dwordx2 %s, %s, %s, %s offen{sc}" % (v(AS, 2), vHSA, WS, sB)]
publish(st3, sC, data_sc1=bool(OPT["ohsc"]), mid=p4_setup if OPT["shadow"] else None)
if OPT["ohsc"]:
    a("buffer_load_dword v26, %s, %s, %s offen sc1" % (vHA, WS, sA))
    a("buffer_load_dword v26, %s, %s, %s offen offset:512 sc1" % (vHA, WS, sA))
    a("buffer_load_dword v26, %s, %s, %s offen sc1" % (vHSA, WS, sB))
stamp("h_pub")
stamp("rt_hpub")
a("s_branch Lp3_done")
a.label("Lp3_idle")
if OPT["shadow"]:
    p4_setup()
a("s_barrier")
if OPT["b9b"]:
    a("s_barrier")
a("s_barrier")
a.label("Lp3_done")

RF = 64
NRF = 16
WB5 = 128
AD5 = 208
UMAP = {0: (2, 0), 1: (2, 2 * UNIT), 2: (0, 0), 3: (0, 2 * UNIT), 4: (1, 0), 5: (2, 0), 6: (2, 2 * UNIT), 7: (0, 0)}
def p5_wread(i):
    n, u = divmod(i, 7)
    b, off = UMAP[n]
    wb = WB5 + 8 * (i % 4)
    if u < 6:
        pat, r0, d2 = 0, 32 * (u >> 1) + 8 * (u & 1), 16
    else:
        pat, r0, d2 = 1, 96, 4
    for k in range(2):
        base = v(AD5 + 6 * pat + 2 * b + k)
        a("ds_read_b64_tr_b16 %s, %s offset:%d" % (v(wb + 4 * k, 2), base, off + r0 * 128))
        a("ds_read_b64_tr_b16 %s, %s offset:%d" % (v(wb + 4 * k + 2, 2), base, off + (r0 + d2) * 128))

vFW, vFR, vFO = "v184", "v185", "v186"


def p5_setup():
    a("s_mul_i32 %s, %s, %d" % (sT0, sKH, UNIT))
    for pat, hm in enumerate((4, 8)):
        tr_base_128(v(AD5 + 6 * pat), v(AD5 + 6 * pat + 1), hm, sT0, 0)
        for b, off in ((1, 4 * UNIT), (2, L_WO)):
            for k in range(2):
                a("v_add_u32 %s, %d, %s" % (v(AD5 + 6 * pat + 2 * b + k), off, v(AD5 + 6 * pat + k)))
    ex_addrs()
    for i in range(8):
        a("v_lshlrev_b32 %s, 16, %s" % (v(XF + 2 * i), v(vXRES + i)))
        a("v_and_b32 %s, 0xffff0000, %s" % (v(XF + 2 * i + 1), v(vXRES + i)))
    if OPT["ow"] == 2:
        sum_s(sT0, [(sMH, 32 * 144), (sKH, 64)])
        a("v_mul_u32_u24 %s, 144, %s" % (vFW, vL31))
        a("v_lshl_add_u32 %s, %s, 4, %s" % (vFW, vH, vFW))
        a("v_add_u32 %s, %s, %s" % (vFW, sT0, vFW))
        a("v_lshrrev_b32 %s, 3, %s" % (v(vT), vL))
        a("v_and_b32 %s, 7, %s" % (v(vT + 1), vL))
        a("v_mul_u32_u24 %s, 144, %s" % (vFR, v(vT)))
        a("v_lshl_add_u32 %s, %s, 4, %s" % (vFR, v(vT + 1), vFR))
        a("s_mul_i32 %s, %s, %d" % (sT0, sHW, 16 * 144))
        a("v_add_u32 %s, %s, %s" % (vFR, sT0, vFR))
        a("v_mul_u32_u24 %s, 896, %s" % (vFO, v(vT)))
        a("v_lshl_add_u32 %s, %s, 4, %s" % (vFO, v(vT + 1), vFO))
        sum_s(sA, [(sG, 128 * 896), (sMH2, 64 * 896), (sHW, 16 * 896), (sNB, 128)])
        a("s_add_u32 %s, %s, %d" % (sB, sA, 8 * 896))
    sum_s(sT0, [(sTILE, 128), (sKH, 64)], WS_F4)
    a("v_and_b32 %s, 7, %s" % (v(vT), vL))
    a("v_lshlrev_b32 %s, 3, %s" % (v(vT), v(vT)))
    a("v_add_u32 %s, %s, %s" % (v(vT), sT0, v(vT)))
    if A1:
        h1_bases(sTILE, sC, sD, sE)
        a("s_add_u32 %s, %s, %d" % (sD, sD, 8 * 7168))
        a("s_add_u32 %s, %s, %d" % (sE, sE, 8 * 7168))
        a("s_cmp_eq_u32 %s, 0" % sKH)
        a("s_cselect_b32 %s, %s, %s" % (sD, sC, sD))
        a("s_cselect_b32 %s, %s, %s" % (sE, sC, sE))
    else:
        sum_s(sT4, [(sTILE, 112 * 1024), (sKH, 56 * 1024)], WS_H1)


if not OPT["shadow"]:
    p4_setup()
a("s_barrier")
stamp("b11")
NW4 = 8
AHEAD = 7


def p4_wread(q):
    ks, nt = divmod(q, 7)
    if ks < 8:
        base, off = vW4a, ks * 7168
    elif ks < 12:
        base, off = vW4b, (ks - 8) * 7168
    else:
        base, off = vW4c, (ks - 12) * 7168
    wb = W4 + 4 * (q % NW4)
    a("ds_read_b64_tr_b16 %s, %s offset:%d" % (v(wb, 2), base, off + nt * 32))
    a("ds_read_b64_tr_b16 %s, %s offset:%d" % (v(wb + 2, 2), base, off + nt * 32 + 8 * 224))


def p4_load(ks, mt):
    if mt == 0 and ks and ks % 4 == 0:
        a("s_add_u32 %s, %s, 4096" % (sT4, sT4))
        a("s_add_u32 %s, %s, 4096" % (sE, sE))
    a("buffer_load_dwordx4 %s, %s, %s, %s offen offset:%d sc1" % (v(HF + 4 * (mt * 14 + ks), 4), vL16, WS, (sT4, sE)[mt], (ks % 4) * 1024))


def p4_two_pass():
    SEQ = [(ks, nt) for ks in range(14) for nt in range(4)] + [(ks, nt) for ks in range(14) for nt in (4, 5, 6)]
    NA = 56
    ldsq = []

    def lds(tag, text):
        a(text)
        ldsq.append(tag)

    def after(tag):
        idx = len(ldsq) - 1 - ldsq[::-1].index(tag)
        return min(15, len(ldsq) - 1 - idx)

    def wread(q):
        ks, nt = SEQ[q]
        if ks < 8:
            base, off = vW4a, ks * 7168
        elif ks < 12:
            base, off = vW4b, (ks - 8) * 7168
        else:
            base, off = vW4c, (ks - 12) * 7168
        wb = W4 + 4 * (q % NW4)
        lds(q, "ds_read_b64_tr_b16 %s, %s offset:%d" % (v(wb, 2), base, off + nt * 32))
        lds(q, "ds_read_b64_tr_b16 %s, %s offset:%d" % (v(wb + 2, 2), base, off + nt * 32 + 8 * 224))

    CSR = {0: SPR, 1: SPR + 4, 2: SPR + 8, 3: vT + 2, 4: SPR, 5: SPR + 4, 6: SPR + 8}

    def epi(ps):
        for p in ps:
            nts = (2 * p, 2 * p + 1) if p < 3 else (6,)
            for mt in range(2):
                a0 = A4 + 4 * (mt * 7 + nts[0])
                n2 = 2 * len(nts)
                for k in range(n2):
                    a("v_pk_mul_f32 %s, %s, %s" % (v(a0 + 2 * k, 2), v(a0 + 2 * k, 2), v(RS4[mt], 2)))
                for k in range(n2):
                    a("v_pk_fma_f32 %s, %s, %s, %s" % (v(a0 + 2 * k, 2), v(CSR[nts[k >> 1]] + 2 * (k & 1), 2), v(NM4[mt], 2), v(a0 + 2 * k, 2)))
                for k in range(n2):
                    a("v_cvt_pk_bf16_f32 %s, %s, %s" % (v(a0 + k), v(a0 + 2 * k), v(a0 + 2 * k + 1)))
                for k in range(n2):
                    a("v_pk_max_i16 %s, %s, %s" % (v(a0 + k), v(a0 + k), vZ))
                if p < 3:
                    so, off = (sA, p * 2048 + mt * 256) if p < 2 else (sB, mt * 256)
                    a("buffer_store_dwordx4 %s, %s, %s, %s offen offset:%d sc1" % (v(a0, 4), v(vT), WS, so, off))
                else:
                    a("buffer_store_dwordx2 %s, %s, %s, %s offen offset:%d sc1" % (v(a0, 2), v(vT + 1), WS, sB, 2048 + mt * 256))

    AH_ = 6
    for q in range(AH_):
        wread(q)
    poll(v(vT), vT + 2, "f3")
    stamp("f3ok")
    stamp("rt_f3ok")
    UP = OPT["up4"]
    for ks in range(UP):
        p4_load(ks, 0)
        p4_load(ks, 1)
        if ks == 1:
            for i in range(7):
                a("buffer_load_dwordx2 %s, %s, %s, %s offen offset:%d sc1" % (v(SPR + 2 * i, 2), vSPA, WS, sT3, 256 * i))
    a("v_lshlrev_b32 %s, 4, %s" % (vTMP, vQ4))
    a("v_add_u32 %s, %d, %s" % (vTMP, L_CS1, vTMP))
    a("v_lshlrev_b32 %s, 9, %s" % (v(vT), vQ4))
    a("v_lshl_add_u32 %s, %s, 4, %s" % (v(vT), vR, v(vT)))
    a("v_lshrrev_b32 %s, 1, %s" % (v(vT + 1), vQ4))
    a("v_lshlrev_b32 %s, 9, %s" % (v(vT + 1), v(vT + 1)))
    a("v_lshl_add_u32 %s, %s, 4, %s" % (v(vT + 1), vR, v(vT + 1)))
    a("v_and_b32 %s, 1, %s" % (v(vT + 3), vQ4))
    a("v_lshl_add_u32 %s, %s, 3, %s" % (v(vT + 1), v(vT + 3), v(vT + 1)))
    for q, (ks, nt) in enumerate(SEQ):
        first_of_ks = q < NA and nt == 0
        if q == 12:
            for i in range(1, 7):
                a("v_pk_add_f32 %s, %s, %s" % (v(SPR, 2), v(SPR, 2), v(SPR + 2 * i, 2)))
            xhalf_sum(v(SPR), v(SPR + 2))
            xhalf_sum(v(SPR + 1), v(SPR + 2))
            ln_finish(v(SPR), v(SPR + 1), v(NM4[0]), v(RS4[0]), v(SPR + 2))
            a("v_mul_f32 %s, %s, %s" % (v(NM4[0]), v(NM4[0]), v(RS4[0])))
            a("v_mov_b32 %s, %s" % (v(NM4[1]), v(NM4[0])))
            a("v_mov_b32 %s, %s" % (v(RS4[1]), v(RS4[0])))
            a("v_permlane16_swap_b32 %s, %s" % (v(NM4[0]), v(NM4[1])))
            a("v_permlane16_swap_b32 %s, %s" % (v(RS4[0]), v(RS4[1])))
            for r_ in NM4 + RS4:
                a("v_mov_b32 %s, %s" % (v(r_ + 1), v(r_)))
        if q == OPT["kbq"] + 1:
            a("s_barrier")
        if q == OPT["kbq"] + 9:
            a("s_barrier")
        if q == NA:
            stamp("p4_k7")
            a("s_waitcnt lgkmcnt(%d)" % after("csA"))
            epi((0, 1))
        need = q + 1 if (q % 2 == 0 and q + 1 < len(SEQ)) else q
        if first_of_ks:
            later = 2 * (min(13, ks + UP - 1) - ks) + (7 if ks <= 1 else 0)
            a("s_waitcnt vmcnt(%d) lgkmcnt(%d)" % (later, after(need)))
        elif q % 2 == 0:
            a("s_waitcnt lgkmcnt(%d)" % after(need))
        if q + AH_ < len(SEQ):
            wread(q + AH_)
        if q == NA - 4:
            for k in range(2):
                lds("csA", "ds_read_b128 %s, %s offset:%d" % (v(CSR[k], 4), vTMP, 64 * k))
        if q == NA - 2:
            for k in range(2, 4):
                lds("csA", "ds_read_b128 %s, %s offset:%d" % (v(CSR[k], 4), vTMP, 64 * k))
        if q == len(SEQ) - 4:
            for k in (4, 5, 6):
                lds("csB", "ds_read_b128 %s, %s offset:%d" % (v(CSR[k], 4), vTMP, 64 * k))
        wb = W4 + 4 * (q % NW4)
        for mt in range(2):
            acc = v(A4 + 4 * (mt * 7 + nt), 4)
            a("v_mfma_f32_16x16x32_bf16 %s, %s, %s, %s" % (acc, v(wb, 4), v(HF + 4 * (mt * 14 + ks), 4), "0" if ks == 0 else acc))
        if q < NA and nt < 2 and ks + UP < 14:
            p4_load(ks + UP, nt)
    stamp("p4_mfma")
    a("s_waitcnt lgkmcnt(0)")
    epi((2, 3))
    publish([], sF, data_sc1=True, mid=p5_setup if OPT["shadow"] else None)


if OPT["tp"]:
    assert not A1 and OPT["h1sc"]
    p4_two_pass()
else:
    for q in range(AHEAD):
        p4_wread(q)
    poll(v(vT), vT + 2, "f3")
    stamp("f3ok")
    stamp("rt_f3ok")
    UP = OPT["up4"]
    for ks in range(UP):
        p4_load(ks, 0)
        p4_load(ks, 1)
        if ks == 1:
            for i in range(7):
                a("buffer_load_dwordx2 %s, %s, %s, %s offen offset:%d sc1" % (v(SPR + 2 * i, 2), vSPA, WS, sT3, 256 * i))
    assert UP >= 3
    for ks in range(14):
        if ks == 3:
            for i in range(1, 7):
                a("v_pk_add_f32 %s, %s, %s" % (v(SPR, 2), v(SPR, 2), v(SPR + 2 * i, 2)))
            xhalf_sum(v(SPR), v(SPR + 2))
            xhalf_sum(v(SPR + 1), v(SPR + 2))
            ln_finish(v(SPR), v(SPR + 1), v(NM4[0]), v(RS4[0]), v(SPR + 2))
            a("v_mul_f32 %s, %s, %s" % (v(NM4[0]), v(NM4[0]), v(RS4[0])))
            a("v_mov_b32 %s, %s" % (v(NM4[1]), v(NM4[0])))
            a("v_mov_b32 %s, %s" % (v(RS4[1]), v(RS4[0])))
            a("v_permlane16_swap_b32 %s, %s" % (v(NM4[0]), v(NM4[1])))
            a("v_permlane16_swap_b32 %s, %s" % (v(RS4[0]), v(RS4[1])))
            for r_ in NM4 + RS4:
                a("v_mov_b32 %s, %s" % (v(r_ + 1), v(r_)))
        if ks in (1, 7):
            stamp("p4_k%d" % ks)
        if ks == 14 - UP + 1 and A1:
            a("buffer_load_dwordx2 %s, %s, %s, 0 offen sc1" % (v(SPR, 2), vTMP, WS))
        for nt in range(7):
            q = ks * 7 + nt
            if q == 7 * OPT["kb"] + 2:
                a("s_barrier")
            if q == 7 * OPT["kb"] + 9:
                a("s_barrier")
            lg = min(2 * (AHEAD - 1), 2 * (97 - q))
            if OPT["w2"] and nt in (0, 2, 4):
                lg = max(0, min(2 * (AHEAD - 2), 2 * (97 - q - 1)))
            if nt == 0:
                later = 2 * (min(13, ks + UP - 1) - ks) + (7 if ks <= 1 else 0) + (1 if (A1 and ks >= 14 - UP + 1) else 0)
                a("s_waitcnt vmcnt(%d) lgkmcnt(%d)" % (later, lg))
            elif not OPT["w2"] or nt in (2, 4, 6):
                a("s_waitcnt lgkmcnt(%d)" % lg)
            if q + AHEAD < 98:
                p4_wread(q + AHEAD)
            wb = W4 + 4 * (q % NW4)
            for mt in range(2):
                acc = v(A4 + 4 * (mt * 7 + nt), 4)
                a("v_mfma_f32_16x16x32_bf16 %s, %s, %s, %s" % (acc, v(wb, 4), v(HF + 4 * (mt * 14 + ks), 4), "0" if ks == 0 else acc))
            if nt < 2 and ks + UP < 14:
                p4_load(ks + UP, nt)
    stamp("p4_mfma")
    CS4 = 200
    a("v_lshlrev_b32 %s, 4, %s" % (v(vT), vQ4))
    a("v_add_u32 %s, %d, %s" % (v(vT), L_CS1, v(vT)))
    for nt in range(7):
        a("ds_read_b128 %s, %s offset:%d" % (v(CS4 + 4 * nt, 4), v(vT), 64 * nt))
    a("v_lshlrev_b32 %s, 9, %s" % (v(vT), vQ4))
    a("v_lshl_add_u32 %s, %s, 4, %s" % (v(vT), vR, v(vT)))
    a("v_lshrrev_b32 %s, 1, %s" % (v(vT + 1), vQ4))
    a("v_lshlrev_b32 %s, 9, %s" % (v(vT + 1), v(vT + 1)))
    a("v_lshl_add_u32 %s, %s, 4, %s" % (v(vT + 1), vR, v(vT + 1)))
    a("v_and_b32 %s, 1, %s" % (v(vT + 3), vQ4))
    a("v_lshl_add_u32 %s, %s, 3, %s" % (v(vT + 1), v(vT + 3), v(vT + 1)))
    if A1:
        a("s_waitcnt vmcnt(0)")
        a("v_and_b32 %s, -8, %s" % (v(SPR), v(SPR)))
        a("v_cmp_ne_u64 vcc, %s, %s" % (sEP, v(SPR, 2)))
        a("s_cbranch_vccz Lfd_ok")
        poll(vTMP, SPR, "fd")
        a.label("Lfd_ok")
    H1P = 32
    TT = 64
    st = ["s_waitcnt lgkmcnt(0)"]
    for mt in range(2):
        for p in range(4):
            nts = (2 * p, 2 * p + 1) if p < 3 else (6,)
            for nt in nts:
                for c in range(2):
                    st.append("v_pk_mul_f32 %s, %s, %s" % (v(TT + 4 * (nt & 1) + 2 * c, 2), v(CS4 + 4 * nt + 2 * c, 2), v(NM4[mt], 2)))
            for nt in nts:
                acc = A4 + 4 * (mt * 7 + nt)
                for c in range(2):
                    st.append("v_pk_fma_f32 %s, %s, %s, %s" % (v(acc + 2 * c, 2), v(acc + 2 * c, 2), v(RS4[mt], 2), v(TT + 4 * (nt & 1) + 2 * c, 2)))
            for nt in nts:
                acc = A4 + 4 * (mt * 7 + nt)
                hp = H1P + 16 * mt + 2 * nt
                for c in range(2):
                    st.append("v_cvt_pk_bf16_f32 %s, %s, %s" % (v(hp + c), v(acc + 2 * c), v(acc + 2 * c + 1)))
            for nt in nts:
                hp = H1P + 16 * mt + 2 * nt
                for c in range(2):
                    st.append("v_pk_max_i16 %s, %s, %s" % (v(hp + c), v(hp + c), vZ))
            if p < 3:
                so, off = (sA, p * 2048 + mt * 256) if p < 2 else (sB, mt * 256)
                st.append("buffer_store_dwordx4 %s, %s, %s, %s offen offset:%d{sc}" % (v(H1P + 16 * mt + 4 * p, 4), v(vT), WS, so, off))
            else:
                st.append("buffer_store_dwordx2 %s, %s, %s, %s offen offset:%d{sc}" % (v(H1P + 16 * mt + 12, 2), v(vT + 1), WS, sB, 2048 + mt * 256))
    publish(st, sF, data_sc1=bool(OPT["h1sc"]) and OPT["alias"] != 1, mid=p5_setup if OPT["shadow"] else None)
if OPT["st4"]:
    a("v_min_u32 %s, 55, %s" % (v(vT), vL))
    a("v_lshlrev_b32 %s, 7, %s" % (v(vT), v(vT)))
    a("buffer_load_dword v26, %s, %s, %s offen sc1" % (v(vT), WS, sA))
stamp("h1_pub")
stamp("rt_h1pub")
a("s_cmp_ge_u32 %s, 14" % sJ)
a("s_cbranch_scc1 %s" % ("Lsvc_end" if OPT["wb"] else "Lend"))

if not OPT["shadow"]:
    p5_setup()
a("s_barrier")
stamp("b12")
for i in range(3):
    p5_wread(i)
poll(v(vT), vT + 2, "f4")
stamp("f4ok")
stamp("rt_f4ok")


def p5_load(i):
    n, u = divmod(i, 7)
    if u == 0:
        a("s_add_u32 %s, %s, %d" % (sT0, sRU, n))
        a("s_and_b32 %s, %s, 7" % (sT0, sT0))
        if A1:
            a("s_cmp_lt_u32 %s, 4" % sT0)
            a("s_cselect_b32 %s, %s, %s" % (sT4, sD, sE))
        a("s_mul_i32 %s, %s, 7168" % (sT0, sT0))
        a("s_add_u32 %s, %s, %s" % (sT3, sT4, sT0))
    if u == 4:
        a("s_add_u32 %s, %s, 4096" % (sT3, sT3))
    a("buffer_load_dwordx4 %s, %s, %s, %s offen offset:%d sc1" % (v(RF + 4 * (i % NRF), 4), vL16, WS, sT3, (u % 4) * 1024))


UP = OPT["up5"]
assert UP < NRF
for i in range(UP):
    p5_load(i)
BARS = [{14, 21, 35}, {14, 28, 42}, {14, 35, 49}][OPT["bars"]]
nread = 3
for i in range(56):
    if i in BARS:
        a("s_barrier")
        stamp("p5_b%d" % i)
    while nread < 56 and nread <= i + 2 and not any(i < b <= nread for b in BARS):
        p5_wread(nread)
        nread += 1
    lg = 4 * (nread - 1 - i)
    vm = min(UP - 1, 55 - i)
    a("s_waitcnt vmcnt(%d) lgkmcnt(%d)" % (vm, lg))
    if nread < 56 and nread <= i + 3 and not any(i < b <= nread for b in BARS):
        p5_wread(nread)
        nread += 1
    wb = WB5 + 8 * (i % 4)
    rf = v(RF + 4 * (i % NRF), 4)
    a("v_mfma_f32_32x32x16_bf16 %s, %s, %s, %s" % (v(AS, 16), v(wb + 4, 4), rf, "0" if i == 0 else v(AS, 16)))
    if i + UP < 56:
        p5_load(i + UP)
    a("v_mfma_f32_32x32x16_bf16 %s, %s, %s, %s" % (v(AK, 16), v(wb, 4), rf, "0" if i == 0 else v(AK, 16)))
stamp("p5_mfma")
exchange()
OUTP = 64
residual_add(OUTP)
if OPT["ow"] == 2:
    for m in range(2):
        for k in range(2):
            a("v_permlane32_swap_b32 %s, %s" % (v(OUTP + 4 * m + k), v(OUTP + 4 * m + 2 + k)))
    for m in range(2):
        a("ds_write_b128 %s, %s offset:%d" % (vFW, v(OUTP + 4 * m, 4), 32 * m))
    a("s_waitcnt lgkmcnt(0)")
    a("s_barrier")
    for m in range(2):
        a("ds_read_b128 %s, %s offset:%d" % (v(OUTP + 8 + 4 * m, 4), vFR, 8 * 144 * m))
    for m in range(2):
        a("s_waitcnt lgkmcnt(%d)" % (1 - m))
        a("buffer_store_dwordx4 %s, %s, %s, %s offen%s" % (v(OUTP + 8 + 4 * m, 4), vFO, OUT, (sA, sB)[m], (" " + OPT["osc"]) if OPT["osc"] else ""))
elif OPT["ow"]:
    a("v_mul_u32_u24 %s, 896, %s" % (v(vT), vL31))
    a("v_lshl_add_u32 %s, %s, 4, %s" % (v(vT), vH, v(vT)))
    for m in range(2):
        for k in range(2):
            a("v_permlane32_swap_b32 %s, %s" % (v(OUTP + 4 * m + k), v(OUTP + 4 * m + 2 + k)))
    for m in range(2):
        a("buffer_store_dwordx4 %s, %s, %s, %s offen offset:%d%s" % (v(OUTP + 4 * m, 4), v(vT), OUT, sXO, 32 * m, (" " + OPT["osc"]) if OPT["osc"] else ""))
else:
    for jj in range(4):
        a("buffer_store_dwordx2 %s, %s, %s, %s offen offset:%d%s" % (v(OUTP + 2 * jj, 2), vXOFF, OUT, sXO, 16 * jj, (" " + OPT["osc"]) if OPT["osc"] else ""))
stamp("end")
stamp("rt_end")
a("s_endpgm")

RS0 = 72


def unit_index(dst, n_s, n_imm):
    if n_s:
        a("s_add_u32 %s, %s, %s" % (dst, sRU, n_s))
        if n_imm:
            a("s_add_u32 %s, %s, %d" % (dst, dst, n_imm))
    else:
        a("s_add_u32 %s, %s, %d" % (dst, sRU, n_imm))
    a("s_and_b32 %s, %s, 7" % (dst, dst))
    a("s_lshl_b32 %s, %s, 3" % (sT5, sMH))
    a("s_add_u32 %s, %s, %s" % (dst, dst, sT5))


def w2_rows(n, to_reg=None, lds_s=None, lds_imm=0):
    for i in range(n):
        if to_reg is None:
            dma(vWO, W2, sT3, lds_s, lds_imm + i * 1024)
        elif not OPT["nobg"]:
            a("buffer_load_dwordx4 %s, %s, %s, %s offen" % (v(to_reg + 4 * i, 4), vWO, W2, sT3))
        if i < n - 1:
            a("s_add_u32 %s, %s, %d" % (sT3, sT3, 8 * 896))


def stage(nfull, nhalf, reg, parts=3):
    if parts & 1:
        unit_index(sT0, sKH, nfull)
        a("s_mul_i32 %s, %s, %d" % (sT3, sT0, 112 * 896))
        w2_rows(14, to_reg=reg)
    if not parts & 2:
        return
    unit_index(sT0, None, nhalf)
    sum_s(sT3, [(sT0, 112 * 896), (sKH, 7 * 8 * 896)])
    w2_rows(7, to_reg=reg + 56)


def dump(reg, n, addr, off):
    for i in range(n):
        a("ds_write_b128 %s, %s offset:%d" % (addr, v(reg + 4 * i, 4), off + 1024 * i))


def cold_quarter(slot):
    if OPT["cq"] == slot:
        lab = a.newlabel("Lnocq")
        a("s_cmp_ge_u32 %s, 14" % sJ)
        a("s_cbranch_scc1 %s" % lab)
        stage(2, 4, RS0, parts=1)
        a.label(lab)


a.label("Lhelper2")
a("s_barrier")
bg("C")
if OPT["ur"] and not OPT["nobg"]:
    lab = a.newlabel("Lnour")
    a("s_cmp_ge_u32 %s, 2" % sHW)
    a("s_cbranch_scc1 %s" % lab)
    a("s_add_u32 %s, %s, 12" % (sT0, sHW))
    a("s_mul_i32 %s, %s, %d" % (sT1, sT0, 32 * 3584))
    for k in range(7):
        a("buffer_load_dwordx4 %s, %s, %s, %s offen" % (v(RS0 + 84 + 4 * k, 4), v(vW1[k]), W1, sT1))
    a.label(lab)
cold_quarter("C")
if OPT["b9b"]:
    a("s_barrier")
bg("C2")
cold_quarter("C2")
stamp("h_w1b")
if OPT["pt_h1"] == 1:
    sum_s(sT0, [(sG, 448 * 1024), (sJ, 28 * 1024), (sHW, 7168)], WS_H1)
    touch_lines(WS, sT0, 56, sc1=True)
C1 = 32
C1B = 40
cA, cB, cONE = "v68", "v69", "v70"
RS0 = 72
a("v_lshrrev_b32 %s, 1, %s" % (v(vT), vQ4))
a("v_lshlrev_b32 %s, 4, %s" % (v(vT), v(vT)))
a("v_and_b32 %s, 1, %s" % (v(vT + 1), vQ4))
a("v_lshl_add_u32 %s, %s, 2, %s" % (v(vT), v(vT + 1), v(vT)))
a("v_lshrrev_b32 %s, 2, %s" % (v(vT + 1), vR))
a("v_add_u32 %s, %s, %s" % (v(vT), v(vT), v(vT + 1)))
a("v_mul_u32_u24 %s, 224, %s" % (v(vT), v(vT)))
a("v_and_b32 %s, 3, %s" % (v(vT + 1), vL))
a("v_lshl_add_u32 %s, %s, 3, %s" % (cA, v(vT + 1), v(vT)))
a("s_mul_i32 %s, %s, 7168" % (sT0, sHW))
a("v_add_u32 %s, %s, %s" % (cA, sT0, cA))
a("v_add_u32 %s, %d, %s" % (cB, L_W1U, cA))
a("v_mov_b32 %s, 0x3f803f80" % cONE)
for nt in range(7):
    a("v_mov_b32 %s, 0" % v(C1 + nt))


def cs1_block(base, off):
    for nt in range(7):
        a("ds_read_b64_tr_b16 %s, %s offset:%d" % (v(C1B + 4 * nt, 2), base, off + nt * 32))
        a("ds_read_b64_tr_b16 %s, %s offset:%d" % (v(C1B + 4 * nt + 2, 2), base, off + nt * 32 + 8 * 224))
    a("s_waitcnt lgkmcnt(0)")
    for i in range(4):
        for nt in range(7):
            a("v_dot2c_f32_bf16 %s, %s, %s" % (v(C1 + nt), v(C1B + 4 * nt + i), cONE))


cs1_block(cA, 8 * 7168)
a("s_barrier")
a("s_waitcnt vmcnt(0)")
stamp("h_w1_landed")
cs1_block(cA, 0)
cs1_block(cA, 4 * 7168)
a("s_barrier")


lab = a.newlabel("Lnou")
a("s_cmp_ge_u32 %s, 2" % sHW)
a("s_cbranch_scc1 %s" % lab)
if OPT["ur"]:
    sum_s(sT0, [(sHW, 7168)], L_W1U)
    a("v_add_u32 %s, %s, %s" % (v(vT), sT0, vL16))
    dump(RS0 + 84, 7, v(vT), 0)
else:
    w1_block(12)
    a("s_waitcnt vmcnt(0)")
cs1_block(cB, 0)
a.label(lab)
bg("D")
cold_quarter("D")
for nt in range(7):
    xhalf_sum(v(C1 + nt), v(vT))
    xrow_sum(v(C1 + nt), v(vT))
sum_s(sT0, [(sHW, 448)], L_CSP)
a("v_lshl_add_u32 %s, %s, 2, %s" % (v(vT), vR, sT0))
for nt in range(7):
    a("ds_write_b32 %s, %s offset:%d" % (v(vT), v(C1 + nt), 64 * nt))
a("s_waitcnt lgkmcnt(0)")
a("s_barrier")
lab = a.newlabel("Lnocs1")
a("s_cmp_lg_u32 %s, 4" % sWAVE)
a("s_cbranch_scc1 %s" % lab)
a("v_min_u32 %s, 55, %s" % (v(vT), vL))
a("v_lshlrev_b32 %s, 3, %s" % (v(vT), v(vT)))
a("v_add_u32 %s, %d, %s" % (v(vT + 1), L_CSP, v(vT)))
for k in range(4):
    a("ds_read_b64 %s, %s offset:%d" % (v(40 + 2 * k, 2), v(vT + 1), 448 * k))
a("s_waitcnt lgkmcnt(0)")
for c in range(2):
    a("v_add_f32 %s, %s, %s" % (v(40 + c), v(40 + c), v(42 + c)))
    a("v_add_f32 %s, %s, %s" % (v(44 + c), v(44 + c), v(46 + c)))
    a("v_add_f32 %s, %s, %s" % (v(40 + c), v(40 + c), v(44 + c)))
a("v_add_u32 %s, %d, %s" % (v(vT + 1), L_CS1, v(vT)))
a("ds_write_b64 %s, %s" % (v(vT + 1), v(40, 2)))
a("s_waitcnt lgkmcnt(0)")
a.label(lab)
a("s_barrier")
bg("D2")
cold_quarter("D2")
a("s_cmp_ge_u32 %s, 14" % sJ)
a("s_cbranch_scc1 Lend")
unit_index(sT0, sKH, 0)
a("s_mul_i32 %s, %s, %d" % (sT3, sT0, 112 * 896))
a("s_mul_i32 %s, %s, %d" % (sT1, sHW, UNIT))
w2_rows(14, lds_s=sT1, lds_imm=L_WO)
stage(2, 4, RS0, parts=2 if OPT["cq"] else 3)
if OPT["r2early"] and not OPT["abl"] & 2:
    stage(5, 7, RS0 + 84)
a("v_add_u32 v40, %s, %s" % (sT1, vL16))
a("v_add_u32 v41, %d, v40" % L_WO)
sum_s(sT1, [(sMH, UNIT), (sKH, 7168)])
a("v_add_u32 v42, %s, %s" % (sT1, vL16))
stamp("h_w2_issued")
NR = 0 if OPT["nobg"] else 21
NR1 = (NR // 3) if OPT["cq"] else NR
if OPT["abl"] & 2:
    NR = 0
a("s_waitcnt vmcnt(%d)" % (NR1 + NR if OPT["r2early"] else NR1))
stamp("h_w2a_landed")
a("s_barrier")
a("s_waitcnt vmcnt(%d)" % (NR if OPT["r2early"] else 0))
dump(RS0, 14, "v40", 0)
dump(RS0 + 56, 7, "v42", 4 * UNIT)
if not OPT["r2early"]:
    stage(5, 7, RS0 + 84)
a("s_waitcnt lgkmcnt(0)")
stamp("h_w2b_landed")
a("s_barrier")
a("s_waitcnt vmcnt(0)")
dump(RS0 + 84, 14, "v41", 0)
a("s_waitcnt lgkmcnt(0)")
a("s_barrier")
dump(RS0 + 84 + 56, 7, "v42", 0)
a("s_waitcnt lgkmcnt(0)")
a("s_barrier")
a("s_barrier")
a.label("Lend")
a("s_endpgm")
if OPT["wb"]:
    a.label("Lsvc_end")
    a("s_cmp_lg_u32 %s, 0" % sWAVE)
    a("s_cbranch_scc1 Lend")
    a("s_cmp_lg_u32 %s, 15" % sJ)
    a("s_cbranch_scc1 Lend")
    if OPT["wb"] == 2:
        sum_s(sT0, [(sG, 512)], WS_F4)
        a("v_lshlrev_b32 %s, 3, %s" % (v(vT), vL))
        a("v_add_u32 %s, %s, %s" % (v(vT), sT0, v(vT)))
        poll(v(vT), vT + 2, "wb")
    a.raw("  buffer_wbl2 sc1")
    a("s_waitcnt vmcnt(0)")
    a("s_endpgm")
a.raw("Lcode_end:")
a.raw('.section .rodata,"a"')
a.raw(".p2align 6")
a.raw(".amdhsa_kernel %s" % KNAME)
a.raw("  .amdhsa_next_free_vgpr 256")
a.raw("  .amdhsa_next_free_sgpr 102")
a.raw("  .amdhsa_accum_offset 256")
a.raw("  .amdhsa_group_segment_fixed_size 0")
a.raw("  .amdhsa_kernarg_size 72")
a.raw("  .amdhsa_user_sgpr_count 2")
a.raw("  .amdhsa_user_sgpr_kernarg_segment_ptr 1")
a.raw("  .amdhsa_system_sgpr_workgroup_id_x 1")
a.raw(".end_amdhsa_kernel")
open(sys.argv[1], "w").write(a.text())
json.dump(STAMPS, open(sys.argv[1] + ".stamps.json", "w"))
print("instructions:", a.count)
```
